```python
import torch

def _softmax(x, axis=-1):
    return torch.softmax(x, dim=axis)
def _gelu(x):
    return torch.nn.functional.gelu(x, approximate="tanh")
def _silu(x):
    return torch.nn.functional.silu(x)
def _sigmoid(x):
    return torch.sigmoid(x)
def _layernorm(x, axis=-1, eps=1e-5):
    m = x.mean(dim=axis, keepdim=True)
    v = x.var(dim=axis, keepdim=True, unbiased=False)
    return (x - m) / torch.sqrt(v + eps)
def _scatter_add(tgt, idx, src, axis=0):
    return tgt.clone().index_add_(axis, idx, src)
def _segment_sum(src, seg, n):
    out = torch.zeros((n,) + src.shape[1:], dtype=src.dtype)
    return out.index_add_(0, seg, src)
def _pad(x, pw):
    flat = tuple(v for pair in reversed(pw) for v in pair)
    return torch.nn.functional.pad(x, flat)

kernel_name = 'concat_heads__mha_block_cached__mha_block_cached__near_ridge'

def setup_inputs():

    _w = (lambda a: (lambda t: t.to(torch.bfloat16) if t.is_floating_point() else t)(torch.as_tensor(a)))
    def _A_setup():
        B, Sq, D = 8, 144, 448
        H, Sk, Dh = 16, 1024, 256
        return {
            "x": _w((lambda *s: torch.randn(*s, dtype=torch.bfloat16) * 0.8)(B, Sq, D)),
            "k_cache": _w((lambda *s: torch.randn(*s, dtype=torch.bfloat16) * 0.8)(B, H, Sk, Dh)),
            "v_cache": _w((lambda *s: torch.randn(*s, dtype=torch.bfloat16) * 0.05)(B, H, Sk, Dh)),
            "wq": _w((lambda *s: torch.randn(*s, dtype=torch.bfloat16) * 0.8)(D, H * Dh) * (D ** -0.5)),
            "wo": _w((lambda *s: torch.randn(*s, dtype=torch.bfloat16) * 0.05)(H * Dh, D) * ((H * Dh) ** -0.5)),
        }
    _A_in = _A_setup()

    def _B_setup():
        B, Sq, D = 8, 144, 448
        H, Sk, Dh = 16, 1024, 256
        return {
            "x": _w((lambda *s: torch.randn(*s, dtype=torch.bfloat16) * 0.8)(B, Sq, D)),
            "k_cache": _w((lambda *s: torch.randn(*s, dtype=torch.bfloat16) * 0.8)(B, H, Sk, Dh)),
            "v_cache": _w((lambda *s: torch.randn(*s, dtype=torch.bfloat16) * 0.05)(B, H, Sk, Dh)),
            "wq": _w((lambda *s: torch.randn(*s, dtype=torch.bfloat16) * 0.8)(D, H * Dh) * (D ** -0.5)),
            "wo": _w((lambda *s: torch.randn(*s, dtype=torch.bfloat16) * 0.05)(H * Dh, D) * ((H * Dh) ** -0.5)),
        }
    _B_in = _B_setup()

    return {
        "A_x": _A_in["x"],
        "A_k_cache": _A_in["k_cache"],
        "A_v_cache": _A_in["v_cache"],
        "A_wq": _A_in["wq"],
        "A_wo": _A_in["wo"],
        "B_x": _B_in["x"],
        "B_k_cache": _B_in["k_cache"],
        "B_v_cache": _B_in["v_cache"],
        "B_wq": _B_in["wq"],
        "B_wo": _B_in["wo"],
    }

def reference(A_x, A_k_cache, A_v_cache, A_wq, A_wo, B_x, B_k_cache, B_v_cache, B_wq, B_wo):
    def _A_ref(x, k_cache, v_cache, wq, wo):
        B, Sq, D = x.shape
        H, Dh = 16, 256
        q = (lambda x, *d: x.permute(*d))((x @ wq).reshape(B, Sq, H, Dh), 0, 2, 1, 3)
        scores = torch.einsum("bhqd,bhkd->bhqk", q, k_cache) * (Dh ** -0.5)
        p = _softmax(scores, axis=-1)
        o = torch.einsum("bhqk,bhkd->bhqd", p, v_cache)
        return (lambda x, *d: x.permute(*d))(o, 0, 2, 1, 3).reshape(B, Sq, H * Dh) @ wo

    def _B_ref(x, k_cache, v_cache, wq, wo):
        B, Sq, D = x.shape
        H, Dh = 16, 256
        q = (lambda x, *d: x.permute(*d))((x @ wq).reshape(B, Sq, H, Dh), 0, 2, 1, 3)
        scores = torch.einsum("bhqd,bhkd->bhqk", q, k_cache) * (Dh ** -0.5)
        p = _softmax(scores, axis=-1)
        o = torch.einsum("bhqk,bhkd->bhqd", p, v_cache)
        return (lambda x, *d: x.permute(*d))(o, 0, 2, 1, 3).reshape(B, Sq, H * Dh) @ wo

    a = _A_ref(A_x, A_k_cache, A_v_cache, A_wq, A_wo)
    b = _B_ref(B_x, B_k_cache, B_v_cache, B_wq, B_wo)
    return torch.concatenate([a, b], axis=-1)
```

```python
import sys, math

KNAME = "concat_heads__mha_block_cached__mha_block_cached__near_ridge_kernel"
RNAME = "reduce_kernel"

class Asm:
    def __init__(self):
        self.L = []
    def __call__(self, s):
        self.L.append("    " + s)
    def label(self, s):
        self.L.append(s + ":")
    def raw(self, s):
        self.L.append(s)
    def text(self):
        return "\n".join(self.L) + "\n"

class Lgkm:
    def __init__(self, a):
        self.a = a; self.q = []
    def issue(self, ins, tag):
        assert len(self.q) < 15, ("too many lds ops outstanding", self.q)
        self.a(ins); self.q.append(tag)
    def need(self, tag):
        if tag in self.q:
            idx = len(self.q) - 1 - self.q[::-1].index(tag)
            n = len(self.q) - 1 - idx
            self.a(f"s_waitcnt lgkmcnt({n})")
            self.q = self.q[idx + 1:]
    def drain(self):
        if self.q:
            self.a("s_waitcnt lgkmcnt(0)")
            self.q = []

class Vm:
    def __init__(self, a):
        self.a = a; self.q = []
    def room(self, n):
        over = len(self.q) + n - 63
        if over > 0:
            keep = len(self.q) - over
            self.a(f"s_waitcnt vmcnt({keep})")
            self.q = self.q[over:]
    def issue(self, ins, tag):
        assert len(self.q) < 63
        self.a(ins); self.q.append(tag)
    def need(self, tag):
        if tag in self.q:
            idx = len(self.q) - 1 - self.q[::-1].index(tag)
            n = len(self.q) - 1 - idx
            self.a(f"s_waitcnt vmcnt({n})")
            self.q = self.q[idx + 1:]

def v(n, cnt=1):
    return f"v{n}" if cnt == 1 else f"v[{n}:{n+cnt-1}]"
def ar(n, cnt=1):
    return f"a{n}" if cnt == 1 else f"a[{n}:{n+cnt-1}]"

V_LANE = 1
V_T0, V_T1 = 2, 3
V_KB = 4
V_VB = 8
V_TMP = 16
V_S = [24, 48]
V_P = 72
V_CM = 84
V_KBUF = 96
V_VBUF = 128
V_Q = 160
A_O = 0
A_L = 192
A_ONES = 204
A_DUMMY = 208

def Qreg(qt, T): return V_Q + (qt * 8 + T) * 4
def Xreg(s, qt):
    i = s * 3 + qt
    if i < 18: return 24 + 4 * i
    return V_Q + 4 * (i - 18)
def Oreg(u, qt): return A_O + (u * 3 + qt) * 4
def Sreg(par, qt, a): return V_S[par] + (qt * 2 + a) * 4

KS = [i * 16384 for i in range(4)]
VREG = 65536
VS = [VREG + i * 16384 for i in range(4)]
ES = [131072, 147456]
WRING = [ES[0], ES[1], VS[2], VS[3]]
WBASE = VS[2]
WOSLOT = [ES[0], ES[1], KS[0], KS[1], VS[0], KS[2], VS[1], KS[3], VS[2], VS[3], ES[0], ES[1], KS[0], KS[1]]

S_WID = 3
S_X = 4
S_K = 8
S_V = 12
S_WQ = 16
S_WO = 20
S_WS = 24
S_B = 28
S_H = 29
S_BR = 30
S_THR = 31
S_SO = 32
S_SO2 = 33
S_CNT = 34
S_RET = 36
S_TGT = 38
S_WOFF = 40
S_T = 42
S_TS = 60

QSCALE = math.log2(math.e) / 16.0
import struct
def f2u(x): return struct.unpack("<I", struct.pack("<f", x))[0]

class Cfg:
    nt_kv = True
    nt_w = False
    nt_x = False
    nt_wo = False
    st_flags = ""
    rd_flags = ""
    warm_wq = True
    warm_wo = True
    thr = 8.0
    dump = None
    stamps = False
    stop_after = None

def emit_setup(a, cfg):
    a("s_cmp_ge_u32 s2, 256")
    a("s_cbranch_scc1 L_end")
    if cfg.stamps:
        a(f"s_memrealtime s[{S_TS}:{S_TS+1}]")
    a("s_load_dwordx4 s[44:47], s[0:1], 0")
    a("s_load_dwordx4 s[48:51], s[0:1], 16")
    a("s_load_dwordx2 s[52:53], s[0:1], 32")
    a("s_load_dwordx2 s[54:55], s[0:1], 40")
    a("s_load_dwordx4 s[64:67], s[0:1], 48")
    a("s_load_dwordx4 s[68:71], s[0:1], 64")
    a("s_load_dwordx2 s[72:73], s[0:1], 96")
    a(f"v_lshrrev_b32 v{V_T0}, 6, v0")
    a(f"v_and_b32 v{V_LANE}, 63, v0")
    a(f"v_readfirstlane_b32 s{S_WID}, v{V_T0}")
    a("s_and_b32 s74, s2, 7")
    a("s_lshr_b32 s75, s2, 3")
    a(f"s_lshr_b32 s{S_BR}, s74, 2")
    a("s_and_b32 s76, s74, 3")
    a("s_lshl_b32 s76, s76, 2")
    a("s_and_b32 s77, s75, 3")
    a(f"s_add_u32 s{S_H}, s76, s77")
    a(f"s_lshr_b32 s{S_B}, s75, 2")
    a("s_waitcnt lgkmcnt(0)")
    a(f"s_cmp_eq_u32 s{S_BR}, 0")
    a(f"s_cselect_b32 s{S_X}, s44, s54")
    a(f"s_cselect_b32 s{S_X+1}, s45, s55")
    a(f"s_cselect_b32 s{S_K}, s46, s64")
    a(f"s_cselect_b32 s{S_K+1}, s47, s65")
    a(f"s_cselect_b32 s{S_V}, s48, s66")
    a(f"s_cselect_b32 s{S_V+1}, s49, s67")
    a(f"s_cselect_b32 s{S_WQ}, s50, s68")
    a(f"s_cselect_b32 s{S_WQ+1}, s51, s69")
    a(f"s_cselect_b32 s{S_WO}, s52, s70")
    a(f"s_cselect_b32 s{S_WO+1}, s53, s71")
    a(f"s_mul_i32 s74, s{S_B}, 129024")
    a(f"s_add_u32 s{S_X}, s{S_X}, s74")
    a(f"s_addc_u32 s{S_X+1}, s{S_X+1}, 0")
    a(f"s_mov_b32 s{S_X+2}, 129024")
    a(f"s_mov_b32 s{S_X+3}, 0x20000")
    a(f"s_lshl_b32 s74, s{S_B}, 4")
    a(f"s_add_u32 s74, s74, s{S_H}")
    a("s_lshl_b32 s75, s74, 19")
    for S in (S_K, S_V):
        a(f"s_add_u32 s{S}, s{S}, s75")
        a(f"s_addc_u32 s{S+1}, s{S+1}, 0")
        a(f"s_mov_b32 s{S+2}, 524288")
        a(f"s_mov_b32 s{S+3}, 0x20000")
    a(f"s_lshl_b32 s75, s{S_H}, 9")
    a(f"s_add_u32 s{S_WQ}, s{S_WQ}, s75")
    a(f"s_addc_u32 s{S_WQ+1}, s{S_WQ+1}, 0")
    a(f"s_sub_u32 s{S_WQ+2}, {448*8192}, s75")
    a(f"s_mov_b32 s{S_WQ+3}, 0x20000")
    a(f"s_mul_i32 s75, s{S_H}, {256*896}")
    a(f"s_add_u32 s{S_WO}, s{S_WO}, s75")
    a(f"s_addc_u32 s{S_WO+1}, s{S_WO+1}, 0")
    a(f"s_mov_b32 s{S_WO+2}, {256*896}")
    a(f"s_mov_b32 s{S_WO+3}, 0x20000")
    a(f"s_lshl_b32 s75, s{S_BR}, 7")
    a("s_add_u32 s74, s74, s75")
    a("s_mul_i32 s74, s74, 129024")
    a(f"s_add_u32 s{S_WS}, s72, s74")
    a(f"s_addc_u32 s{S_WS+1}, s73, 0")
    a(f"s_mov_b32 s{S_WS+2}, 129024")
    a(f"s_mov_b32 s{S_WS+3}, 0x20000")
    a(f"s_cmp_eq_u32 s{S_WID}, 3")
    a("s_cbranch_scc1 L_loader")

def barrier_list():
    L = [("PB", s) for s in range(14)]
    L += [("B", t) for t in range(-1, 32)]
    L += [("TB", j) for j in range(14)]
    return L

def emit_loader(a, cfg):
    a.label("L_loader")
    vm = Vm(a)
    LH, LP = 2, 3
    VK, VV, VW, VO, VO3 = 8, 16, 20, 24, 28
    T0, T1 = 4, 5
    a(f"v_lshrrev_b32 v{LH}, 5, v{V_LANE}")
    a(f"v_and_b32 v{LP}, 31, v{V_LANE}")
    for i in range(8):
        a(f"v_add_u32 v{T0}, {2*i}, v{LH}")
        a(f"v_xor_b32 v{T0}, v{T0}, v{LP}")
        a(f"v_lshlrev_b32 v{T0}, 4, v{T0}")
        a(f"v_lshl_add_u32 v{VK+i}, v{LH}, 9, v{T0}")
    for i in range(4):
        a(f"v_add_u32 v{T0}, {2*i}, v{LH}")
        a(f"v_lshlrev_b32 v{T0}, 1, v{T0}")
        a(f"v_xor_b32 v{T0}, v{T0}, v{LP}")
        a(f"v_lshlrev_b32 v{T1}, 4, v{T0}")
        a(f"v_lshl_add_u32 v{VV+i}, v{LH}, 9, v{T1}")
        a(f"v_lshl_add_u32 v{VW+i}, v{LH}, 13, v{T1}")
        a(f"v_lshrrev_b32 v6, 4, v{T0}")
        a(f"v_lshl_add_u32 v6, v6, 5, v{LH}")
        a(f"v_mul_u32_u24 v6, 896, v6")
        a(f"v_and_b32 v7, 15, v{T0}")
        a(f"v_lshl_add_u32 v{VO+i}, v7, 4, v6")
        a(f"v_lshrrev_b32 v6, 3, v{T0}")
        a(f"v_lshl_add_u32 v6, v6, 5, v{LH}")
        a(f"v_mul_u32_u24 v6, 896, v6")
        a(f"v_and_b32 v7, 7, v{T0}")
        a(f"v_lshl_add_u32 v{VO3+i}, v7, 4, v6")
    a(f"v_lshlrev_b32 v32, 4, v{V_LANE}")
    ntkv = " nt" if cfg.nt_kv else ""
    ntw = " nt" if cfg.nt_w else ""
    ntwo = " nt" if cfg.nt_wo else ""

    def tile_kv(kind, t):
        srd = S_K if kind == "K" else S_V
        lds = KS[t % 4] if kind == "K" else VS[t % 4]
        vm.room(16)
        for m in range(4):
            a(f"s_mov_b32 m0, {lds + m*4096}")
            a(f"s_mov_b32 s{S_SO}, {t*16384 + m*4096}")
            for n in range(4):
                i = 4*m + n
                vo = VK + (i & 7) if kind == "K" else VV + (i & 3)
                vm.issue(f"buffer_load_dwordx4 v{vo}, s[{srd}:{srd+3}], s{S_SO} offen offset:{n*1024}{ntkv} lds", (kind, t))
    def tile_w(s):
        lds = WRING[s % 4]
        vm.room(16)
        for i in range(16):
            sig0 = 8*((i & 7) >> 1) + 4*(i >> 3) + 2*(i & 1)
            a(f"s_mov_b32 m0, {lds + i*1024}")
            a(f"s_mov_b32 s{S_SO}, {(s*32 + sig0)*8192}")
            vm.issue(f"buffer_load_dwordx4 v{VW + (i & 3)}, s[{S_WQ}:{S_WQ+3}], s{S_SO} offen{ntw} lds", ("W", s))
    def tile_wo(j):
        lds = WOSLOT[j]
        vm.room(16)
        for i in range(16):
            if j < 12:
                p, T0_ = j // 4, (j % 4) * 2
                so = (32*T0_ + 2*i)*896 + p*256
                vo = VO + (i & 3)
            else:
                T0_ = (j - 12) * 4
                so = (32*T0_ + 2*i)*896 + 768
                vo = VO3 + (i & 3)
            a(f"s_mov_b32 m0, {lds + i*1024}")
            a(f"s_mov_b32 s{S_SO}, {so}")
            vm.issue(f"buffer_load_dwordx4 v{vo}, s[{S_WO}:{S_WO+3}], s{S_SO} offen{ntwo} lds", ("WO", j))
    def warm_wo(i0, n):
        vm.room(n)
        for i in range(i0, i0 + n):
            a(f"s_mul_i32 s{S_SO}, s{S_B}, 28672")
            a(f"s_add_u32 s{S_SO}, s{S_SO}, {i*1024}")
            vm.issue(f"buffer_load_dwordx4 v[36:39], v32, s[{S_WO}:{S_WO+3}], s{S_SO} offen", ("warm", i))

    tile_w(0); tile_w(1); tile_w(2)
    tile_kv("K", 0)
    kv_after_pb = {0: [("V", 0)], 1: [("K", 1)], 3: [("K", 2)], 5: [("V", 1)], 7: [("K", 3)], 11: [("V", 2)], 12: [("V", 3)]}
    for name, idx in barrier_list():
        if name == "PB":
            if idx + 1 <= 13: vm.need(("W", idx + 1))
            else: vm.need(("W", 13))
        elif name == "B":
            t = idx
            if t == -1:
                vm.need(("K", 0)); vm.need(("K", 1))
            else:
                if t + 2 <= 31: vm.need(("K", t + 2))
                vm.need(("V", t))
            if t == 31:
                vm.need(("WO", 0)); vm.need(("WO", 1))
        else:
            j = idx
            vm.need(("WO", min(j + 1, 13)))
        a("s_barrier")
        if name == "PB":
            if idx + 3 <= 13: tile_w(idx + 3)
            for k, t in kv_after_pb.get(idx, []): tile_kv(k, t)
        elif name == "B":
            t = idx
            if t >= 0:
                if t + 4 <= 31: tile_kv("K", t + 4)
                if t >= 1 and t + 3 <= 31: tile_kv("V", t + 3)
            if cfg.warm_wo and 18 <= t <= 24:
                warm_wo((t - 18) * 4, 4)
            if t == 26: tile_wo(0)
            if t == 27: tile_wo(1)
            if t == 28: tile_wo(2)
            if t == 29: tile_wo(3); tile_wo(4)
            if t == 30: tile_wo(5); tile_wo(6)
            if t == 31: tile_wo(7); tile_wo(8)
        else:
            j = idx
            if j == 0: tile_wo(9)
            if 1 <= j <= 4: tile_wo(9 + j)
    a("s_waitcnt vmcnt(0)")
    a("s_branch L_end")

def mfma(a, d, A, B, c, dacc, cacc_zero=False):
    D = ar(d, 4) if dacc else v(d, 4)
    C = c if c is not None else D
    a(f"v_mfma_f32_16x16x32_bf16 {D}, {A}, {B}, {C}")

class Phase:
    pass

def emit_compute(a, cfg):
    rare_blocks = []
    emit_compute_main(a, cfg, rare_blocks)
    emit_rare(a, cfg, rare_blocks)

def xlane_max(a, r, tmp):
    a(f"v_mov_b32 v{tmp}, v{r}")
    a("s_nop 1")
    a(f"v_permlane32_swap_b32 v{r}, v{tmp}")
    a("s_nop 1")
    a(f"v_max_f32 v{r}, v{r}, v{tmp}")
    a(f"v_mov_b32 v{tmp}, v{r}")
    a("s_nop 1")
    a(f"v_permlane16_swap_b32 v{r}, v{tmp}")
    a("s_nop 1")
    a(f"v_max_f32 v{r}, v{r}, v{tmp}")

def emit_compute_main(a, cfg, rare_blocks):
    lg = Lgkm(a)
    lane = V_LANE
    T0, T1 = V_T0, V_T1
    g_, i15 = 16, 17
    a(f"v_lshrrev_b32 v{g_}, 4, v{lane}")
    a(f"v_and_b32 v{i15}, 15, v{lane}")
    a(f"s_mul_i32 s74, s{S_WID}, {48*896}")
    for qt in range(3):
        a(f"v_add_u32 v{T0}, {16*qt}, v{i15}")
        a(f"v_mul_u32_u24 v{T0}, 896, v{T0}")
        a(f"v_lshl_add_u32 v{T0}, v{g_}, 4, v{T0}")
        a(f"v_add_u32 v{18+qt}, s74, v{T0}")
    vm = Vm(a)
    ntx = " nt" if cfg.nt_x else ""
    for s in range(14):
        for qt in range(3):
            vm.issue(f"buffer_load_dwordx4 {v(Xreg(s,qt),4)}, v{18+qt}, s[{S_X}:{S_X+3}], 0 offen offset:{s*64}{ntx}", ("x", s))
    if cfg.warm_wq:
        a(f"v_lshrrev_b32 v{T0}, 5, v{lane}")
        a(f"v_and_b32 v{T1}, 31, v{lane}")
        a(f"v_lshlrev_b32 v{T1}, 4, v{T1}")
        a(f"v_lshl_add_u32 v21, v{T0}, 13, v{T1}")
        a(f"s_mul_i32 s74, s{S_B}, 40")
        a(f"s_mul_i32 s75, s{S_WID}, 14")
        a("s_add_u32 s74, s74, s75")
        a("s_add_u32 s74, s74, 128")
        a("s_lshl_b32 s74, s74, 13")
        for i in range(7):
            vm.issue(f"buffer_load_dwordx4 {ar(A_DUMMY,4)}, v21, s[{S_WQ}:{S_WQ+3}], s74 offen", ("warm", i))
            if i < 6: a(f"s_add_u32 s74, s74, {2*8192}")
    for j in range(4):
        a(f"v_add_u32 v{T0}, {4*j}, v{g_}")
        a(f"v_xor_b32 v{T0}, v{T0}, v{i15}")
        a(f"v_lshlrev_b32 v{T0}, 4, v{T0}")
        a(f"v_lshl_add_u32 v{V_KB+j}, v{i15}, 9, v{T0}")
    rp, cc, row, rho = 18, 19, 20, 21
    a(f"v_lshrrev_b32 v{rp}, 2, v{i15}")
    a(f"v_and_b32 v{cc}, 3, v{i15}")
    a(f"v_lshl_add_u32 v{row}, v{g_}, 2, v{rp}")
    a(f"v_and_b32 v{rho}, 7, v{row}")
    a(f"v_lshrrev_b32 v{T0}, 1, v{cc}")
    a(f"v_lshlrev_b32 v{T0}, 4, v{T0}")
    a(f"v_and_b32 v{T1}, 1, v{cc}")
    a(f"v_lshl_add_u32 v{T0}, v{T1}, 3, v{T0}")
    a(f"v_lshl_add_u32 v22, v{row}, 9, v{T0}")
    for j in range(8):
        a(f"v_xor_b32 v{T0}, {j}, v{rho}")
        a(f"v_lshl_add_u32 v{T0}, v{T0}, 5, v22")
        a(f"v_add_u32 v{V_VB+j}, {VREG}, v{T0}")
    WB = 16
    a(f"v_lshlrev_b32 v23, 1, v{rho}")
    a(f"v_lshlrev_b32 v22, 9, v{row}")
    a(f"v_mov_b32 v21, v{cc}")
    for j in range(4):
        a(f"v_add_u32 v{T0}, {4*j}, v21")
        a(f"v_xor_b32 v{T0}, v{T0}, v23")
        a(f"v_lshl_add_u32 v{T0}, v{T0}, 4, v22")
        a(f"v_add_u32 v{WB+j}, {WBASE}, v{T0}")
    a(f"s_mov_b32 s{S_THR}, {hex(f2u(cfg.thr))}")
    a(f"v_mov_b32 v{T0}, 0x3f803f80")
    for r in range(4):
        a(f"v_accvgpr_write_b32 a{A_ONES+r}, v{T0}")

    FB = V_KBUF
    def wfrag_issue(s, u):
        T = u >> 1
        off = (WRING[s % 4] - WBASE) + (T >> 2) * 256 + (u & 1) * 8
        r = FB + 4 * u
        lg.issue(f"ds_read_b64_tr_b16 {v(r,2)}, v{WB + (T & 3)} offset:{off}", ("w", s, u))
        lg.issue(f"ds_read_b64_tr_b16 {v(r+2,2)}, v{WB + (T & 3)} offset:{off + 8192}", ("w", s, u))
    NWP = 5
    for s in range(14):
        a("s_barrier")
        if s == 0:
            for u in range(NWP): wfrag_issue(0, u)
        vm.need(("x", s))
        nxt = NWP
        for u in range(16):
            lg.need(("w", s, u))
            for qt in range(3):
                mfma(a, Oreg(u, qt), v(FB + 4*u, 4), v(Xreg(s, qt), 4), "0" if s == 0 else None, True)
                if qt == 0 or qt == 1:
                    pass
            if nxt < 16:
                wfrag_issue(s, nxt); nxt += 1
            elif s < 13:
                k = nxt - 16
                if k < NWP:
                    wfrag_issue(s + 1, k); nxt += 1
    if cfg.dump == "qacc":
        emit_dump_acc(a, cfg, 192); return
    a(f"s_mov_b32 s74, {hex(f2u(QSCALE))}")
    a("s_nop 7")
    tmp = 24
    for T in range(8):
        for qt in range(3):
            for h in range(2):
                o = Oreg(2*T + h, qt)
                for r in range(4):
                    a(f"v_accvgpr_read_b32 v{tmp + 4*h + r}, a{o + r}")
            for r in range(8):
                a(f"v_mul_f32 v{tmp + r}, s74, v{tmp + r}")
            q = Qreg(qt, T)
            for r in range(4):
                a(f"v_cvt_pk_bf16_f32 v{q + r}, v{tmp + 2*r}, v{tmp + 2*r + 1}")
    if cfg.dump == "q":
        emit_dump_v(a, cfg, V_Q, 96); return

    def kfrag_issue(t, f):
        aa, T = f >> 3, f & 7
        off = KS[t % 4] + aa * 8192 + (T >> 2) * 256
        lg.issue(f"ds_read_b128 {v(V_KBUF + 4*(f % 8), 4)}, v{V_KB + (T & 3)} offset:{off}", ("k", t, f))
    def vfrag_issue(t, u):
        off = (VS[t % 4] - VREG) + (u >> 3) * 256
        r = V_VBUF + 4 * (u % 8)
        lg.issue(f"ds_read_b64_tr_b16 {v(r,2)}, v{V_VB + (u & 7)} offset:{off}", ("v", t, u))
        lg.issue(f"ds_read_b64_tr_b16 {v(r+2,2)}, v{V_VB + (u & 7)} offset:{off + 8192}", ("v", t, u))
    NKP, NVP = 6, 4

    def phaseA(t):
        doqk = t + 1 <= 31
        doexp = t >= 0
        fill = []
        vfill = []
        if doexp:
            par = t & 1
            for qt in range(3):
                for aa in range(2):
                    s = Sreg(par, qt, aa)
                    for hh in range(2):
                        e0, e1 = s + 2*hh, s + 2*hh + 1
                        pr = V_P + qt*4 + aa*2 + hh
                        vfill.append([f"v_exp_f32 v{e0}, v{e0}"])
                        vfill.append([f"v_exp_f32 v{e1}, v{e1}"])
                        vfill.append([None, f"v_cvt_pk_bf16_f32 v{pr}, v{e0}, v{e1}"])
        if not doqk:
            for grp in range(12):
                a(vfill[3*grp][0]); a(vfill[3*grp+1][0])
                if grp > 0: a(vfill[3*(grp-1)+2][1])
                if grp < NVP: vfrag_issue(t, grp)
            a("s_nop 0")
            a(vfill[3*11+2][1])
            return
        par1 = (t + 1) & 1
        nk = NKP
        nv = 0
        vi = 0
        pend_cvt = None
        for m in range(48):
            aa, T, qt = m // 24, (m % 24) // 3, m % 3
            f = aa * 8 + T
            if qt == 0: lg.need(("k", t + 1, f))
            if T == 0:
                c = "0" if t == -1 else v(V_CM + 4*qt, 4)
            else:
                c = None
            mfma(a, Sreg(par1, qt, aa), v(V_KBUF + 4*(f % 8), 4), v(Qreg(qt, T), 4), c, False)
            ph = m % 4
            if doexp:
                grp = m // 4
                if ph == 0: a(vfill[3*grp][0])
                if ph == 1: a(vfill[3*grp+1][0])
                if ph == 3: a(vfill[3*grp+2][1])
            if ph in (2, 3):
                if nk < 16 and m >= 3*(nk - 8) + 2:
                    kfrag_issue(t + 1, nk); nk += 1
                elif nk >= 16 and doexp and nv < NVP and m >= 30:
                    vfrag_issue(t, nv); nv += 1
        assert nk == 16
        if doexp:
            while nv < NVP:
                vfrag_issue(t, nv); nv += 1

    def phaseB(t):
        first = (t == 0)
        docheck = t + 1 <= 31
        par1 = (t + 1) & 1
        chk = []
        if docheck:
            s0 = V_S[par1]
            mx = V_TMP
            chk.append(f"v_max3_f32 v{mx}, v{s0}, v{s0+1}, v{s0+2}")
            for k in range(10):
                chk.append(f"v_max3_f32 v{mx}, v{mx}, v{s0+3+2*k}, v{s0+4+2*k}")
            chk.append(f"v_max_f32 v{mx}, v{mx}, v{s0+23}")
            chk.append(f"v_cmp_lt_f32 vcc, s{S_THR}, v{mx}")
        a("s_nop 1")
        for qt in range(3):
            mfma(a, A_L + 4*qt, ar(A_ONES, 4), v(V_P + 4*qt, 4), "0" if first else None, True)
        nv = NVP
        nk = 0
        ci = 0
        for m in range(48):
            u, qt = m // 3, m % 3
            if qt == 0: lg.need(("v", t, u))
            mfma(a, Oreg(u, qt), v(V_VBUF + 4*(u % 8), 4), v(V_P + 4*qt, 4), "0" if first else None, True)
            if qt == 0 and nv < 16 and (nv < 8 or m >= 3*(nv - 8) + 2 or True):
                if nv < 8 or u > nv - 8:
                    vfrag_issue(t, nv); nv += 1
            elif qt == 1 and ci < len(chk) and m >= 6:
                a(chk[ci]); ci += 1
            elif qt == 2 and nv >= 16 and t + 2 <= 31 and nk < NKP:
                kfrag_issue(t + 2, nk); nk += 1
        assert nv == 16
        while ci < len(chk):
            a(chk[ci]); ci += 1
        if t + 2 <= 31:
            while nk < NKP:
                kfrag_issue(t + 2, nk); nk += 1

    def check_branch(t, tag):
        a(f"s_cbranch_vccnz L_rare_{tag}")
        a.label(f"L_back_{tag}")
        rare_blocks.append((tag, (t + 1) & 1))

    a("s_barrier")
    for f in range(NKP): kfrag_issue(0, f)
    phaseA(-1)
    for f in range(NKP): kfrag_issue(1, f)
    a("s_nop 7")
    for qt in range(3):
        s0 = Sreg(0, qt, 0)
        mx = V_TMP + qt
        a(f"v_max3_f32 v{mx}, v{s0}, v{s0+1}, v{s0+2}")
        a(f"v_max3_f32 v{mx}, v{mx}, v{s0+3}, v{s0+4}")
        a(f"v_max3_f32 v{mx}, v{mx}, v{s0+5}, v{s0+6}")
        a(f"v_max_f32 v{mx}, v{mx}, v{s0+7}")
        xlane_max(a, mx, V_TMP + 4)
        for r in range(8):
            a(f"v_sub_f32 v{s0+r}, v{s0+r}, v{mx}")
        for r in range(4):
            a(f"v_sub_f32 v{V_CM + 4*qt + r}, 0, v{mx}")
    if cfg.dump == "s0":
        lg.drain()
        emit_dump_v(a, cfg, V_S[0], 24, extra=(V_CM, 12)); return

    def iteration(t, tag):
        a("s_barrier")
        phaseA(t)
        phaseB(t)
        if t + 1 <= 31:
            check_branch(t, tag)

    iteration(0, "p0")
    q0 = list(lg.q)
    a(f"s_mov_b32 s{S_CNT}, 7")
    a.label("L_loop")
    for t in range(1, 5):
        iteration(t, f"l{t}")
    q1 = [(k, tt - 4, f) for (k, tt, f) in lg.q]
    assert q0 == q1, (q0, q1)
    a(f"s_sub_u32 s{S_CNT}, s{S_CNT}, 1")
    a(f"s_cmp_lg_u32 s{S_CNT}, 0")
    a("s_cbranch_scc1 L_loop")
    lg.q = [(k, tt + 28, f) for (k, tt, f) in q0]
    for t in range(29, 32):
        iteration(t, f"e{t}")
    if cfg.dump == "o":
        a("s_nop 7")
        emit_dump_acc(a, cfg, 204); return

    a("s_nop 7")
    rl = V_TMP
    for qt in range(3):
        a(f"v_accvgpr_read_b32 v{rl+qt}, a{A_L + 4*qt}")
    for qt in range(3):
        a(f"v_rcp_f32 v{rl+qt}, v{rl+qt}")
    tmp = 40
    for T in range(8):
        for qt in range(3):
            for h in range(2):
                o = Oreg(2*T + h, qt)
                for r in range(4):
                    a(f"v_accvgpr_read_b32 v{tmp + 4*h + r}, a{o + r}")
            for r in range(8):
                a(f"v_mul_f32 v{tmp + r}, v{rl+qt}, v{tmp + r}")
            q = Qreg(qt, T)
            for r in range(4):
                a(f"v_cvt_pk_bf16_f32 v{q + r}, v{tmp + 2*r}, v{tmp + 2*r + 1}")
    if cfg.dump == "on":
        emit_dump_v(a, cfg, V_Q, 96); return
    VBK, VBE = 24, 32
    for j in range(8):
        a(f"v_subrev_u32 v{VBK+j}, {VREG}, v{V_VB+j}")
        a(f"v_add_u32 v{VBE+j}, {VREG}, v{V_VB+j}")
    VST = 20
    a(f"v_lshlrev_b32 v{VST}, 4, v{lane}")
    a(f"s_mul_i32 s{S_WOFF}, s{S_WID}, {3*14*1024}")

    def wo_base(j, jj):
        addr = WOSLOT[j]
        if addr < VREG: return VBK + jj, addr
        if addr < VREG + 65536: return V_VB + jj, addr - VREG
        return VBE + jj, addr - VREG - 65536
    steps = []
    for p in range(3):
        for T in range(8):
            steps.append((p, T, 4*p + T//2, T & 1, 8))
    for T in range(8):
        steps.append((3, T, 12 + T//4, T & 3, 4))
    frs = []
    for si, (p, T, j, tau, nu) in enumerate(steps):
        for u in range(nu):
            frs.append((si, p, T, j, tau, nu, u))
    FBN = 16
    def fr_issue(k):
        si, p, T, j, tau, nu, u = frs[k]
        tp = (8*tau + u) if p < 3 else (4*tau + u)
        br, off = wo_base(j, tp & 7)
        off += (tp >> 3) * 256
        r = FB + 4 * (k % FBN)
        lg.issue(f"ds_read_b64_tr_b16 {v(r,2)}, v{br} offset:{off}", ("o", k, 0))
        lg.issue(f"ds_read_b64_tr_b16 {v(r+2,2)}, v{br} offset:{off + 8192}", ("o", k, 0))
    def acc(p, u, qt): return 96 * (p & 1) + (u * 3 + qt) * 4
    CT = 40
    def conv_ops(p):
        ops = []
        nu = 8 if p < 3 else 4
        slot = 0
        for up in range(nu // 2):
            for qt in range(3):
                t8 = CT + 12 * (slot % 4); slot += 1
                g1 = []
                for h in range(2):
                    o = acc(p, 2*up + h, qt)
                    for r in range(4):
                        ops.append(f"v_accvgpr_read_b32 v{t8 + 4*h + r}, a{o + r}")
                for r in range(4):
                    ops.append(f"v_cvt_pk_bf16_f32 v{t8 + 8 + r}, v{t8 + 2*r}, v{t8 + 2*r + 1}")
                upair = 4*p + up
                ops.append(f"s_add_u32 s{S_SO}, s{S_WOFF}, {(qt*14 + upair)*1024}")
                ops.append(f"buffer_store_dwordx4 {v(t8+8,4)}, v{VST}, s[{S_WS}:{S_WS+3}], s{S_SO} offen{cfg.st_flags}")
        return ops
    NOP_ = 5
    a("s_barrier")
    cur_slot = 0
    for k in range(NOP_): fr_issue(k)
    nxt = NOP_
    pend = []
    mcount = 0
    last_p = 0
    for k, (si, p, T, j, tau, nu, u) in enumerate(frs):
        if j != cur_slot:
            a("s_barrier")
            cur_slot = j
        if p != last_p:
            assert not pend
            pend = conv_ops(last_p); last_p = p
            delay = 3
        lg.need(("o", k, 0))
        for qt in range(3):
            mfma(a, acc(p, u, qt), v(FB + 4*(k % FBN), 4), v(Qreg(qt, T), 4), "0" if T == 0 else None, True)
            mcount += 1
            if pend:
                if delay > 0:
                    delay -= 1
                else:
                    n = 2 if p == 3 else 1
                    for _ in range(n):
                        if pend: a(pend.pop(0))
        if nxt < len(frs):
            if frs[nxt][3] <= j + 1:
                fr_issue(nxt); nxt += 1
            while nxt < len(frs) and nxt - k < NOP_ and frs[nxt][3] <= j + 1 and len(lg.q) <= 12:
                fr_issue(nxt); nxt += 1
    while pend: a(pend.pop(0))
    a("s_nop 7")
    for op in conv_ops(3): a(op)
    if cfg.stamps:
        a("s_waitcnt vmcnt(0)")
        emit_stamp_end(a)
    a("s_branch L_end")

def emit_rare(a, cfg, rare_blocks):
    for tag, par in rare_blocks:
        a.label(f"L_rare_{tag}")
        a("s_nop 7")
        for qt in range(3):
            s0 = Sreg(par, qt, 0)
            mx = V_TMP + qt
            a(f"v_max3_f32 v{mx}, v{s0}, v{s0+1}, v{s0+2}")
            a(f"v_max3_f32 v{mx}, v{mx}, v{s0+3}, v{s0+4}")
            a(f"v_max3_f32 v{mx}, v{mx}, v{s0+5}, v{s0+6}")
            a(f"v_max_f32 v{mx}, v{mx}, v{s0+7}")
            xlane_max(a, mx, V_TMP + 4)
            a(f"v_max_f32 v{mx}, 0, v{mx}")
            for r in range(8):
                a(f"v_sub_f32 v{s0+r}, v{s0+r}, v{mx}")
            for r in range(4):
                a(f"v_sub_f32 v{V_CM + 4*qt + r}, v{V_CM + 4*qt + r}, v{mx}")
            a(f"v_sub_f32 v{mx}, 0, v{mx}")
            a(f"v_exp_f32 v{mx}, v{mx}")
        a(f"s_getpc_b64 s[{S_TGT}:{S_TGT+1}]")
        a.label(f"L_pc_{tag}")
        a(f"s_add_u32 s{S_TGT}, s{S_TGT}, L_rescale-L_pc_{tag}")
        a(f"s_addc_u32 s{S_TGT+1}, s{S_TGT+1}, 0")
        a(f"s_swappc_b64 s[{S_RET}:{S_RET+1}], s[{S_TGT}:{S_TGT+1}]")
        a(f"s_branch L_back_{tag}")
    if not rare_blocks: return
    a.label("L_rescale")
    a("s_nop 7")
    for qt in range(3):
        regs = [Oreg(u, qt) + r for u in range(16) for r in range(4)] + [A_L + 4*qt + r for r in range(4)]
        for i in range(0, len(regs), 4):
            for k in range(4):
                a(f"v_accvgpr_read_b32 v{V_TMP+4+k}, a{regs[i+k]}")
            for k in range(4):
                a(f"v_mul_f32 v{V_TMP+4+k}, v{V_TMP+qt}, v{V_TMP+4+k}")
            for k in range(4):
                a(f"v_accvgpr_write_b32 a{regs[i+k]}, v{V_TMP+4+k}")
    a("s_nop 1")
    a(f"s_setpc_b64 s[{S_RET}:{S_RET+1}]")

def remaining_barriers(a, n):
    for _ in range(n): a("s_barrier")

def emit_dump_common(a, cfg, regs, isacc):
    a("s_mov_b32 s76, s72"); a("s_mov_b32 s77, s73")
    a("s_mov_b32 s78, 0x10000000"); a("s_mov_b32 s79, 0x20000")
    a(f"s_mul_i32 s74, s2, 3")
    a(f"s_add_u32 s74, s74, s{S_WID}")
    a("s_lshl_b32 s74, s74, 16")
    a(f"v_lshlrev_b32 v{V_T0}, 2, v{V_LANE}")
    for i, r in enumerate(regs):
        if isacc:
            a(f"v_accvgpr_read_b32 v{V_T1}, a{r}")
            src = V_T1
        else:
            src = r
        a(f"buffer_store_dword v{src}, v{V_T0}, s[76:79], s74 offen")
        a("s_add_u32 s74, s74, 256")
        if isacc: a("s_waitcnt vmcnt(0)")
    a("s_waitcnt vmcnt(0)")
    n = {"qacc": 33 + 14, "q": 33 + 14, "s0": 32 + 14, "o": 14, "on": 14}[cfg.dump]
    remaining_barriers(a, n)
    a("s_branch L_end")
def emit_dump_acc(a, cfg, n):
    a("s_nop 7")
    emit_dump_common(a, cfg, list(range(n)), True)
def emit_dump_v(a, cfg, base, n, extra=None):
    regs = list(range(base, base + n))
    if extra: regs += list(range(extra[0], extra[0] + extra[1]))
    emit_dump_common(a, cfg, regs, False)
def emit_stamp_end(a):
    pass

def emit_reduce(a, cfg):
    a(f".globl {RNAME}")
    a(".p2align 8")
    a(f".type {RNAME},@function")
    a.label(RNAME)
    a("s_cmp_ge_u32 s2, 504")
    a("s_cbranch_scc1 LR_end")
    a("s_load_dwordx2 s[4:5], s[0:1], 96")
    a("s_load_dwordx2 s[8:9], s[0:1], 80")
    a("v_lshrrev_b32 v1, 6, v0")
    a("v_and_b32 v2, 63, v0")
    a("v_readfirstlane_b32 s3, v1")
    a("s_lshl_b32 s12, s2, 2")
    a("s_add_u32 s12, s12, s3")
    a(f"s_mul_hi_u32 s13, s12, {(2**32 + 125)//126}")
    a("s_mul_i32 s14, s13, 126")
    a("s_sub_u32 s14, s12, s14")
    a(f"s_mul_hi_u32 s15, s14, {(2**32 + 13)//14}")
    a("s_mul_i32 s16, s15, 14")
    a("s_sub_u32 s16, s14, s16")
    a("s_waitcnt lgkmcnt(0)")
    a(f"s_mul_i32 s17, s13, {16*129024}")
    a("s_lshl_b32 s18, s14, 10")
    a("s_add_u32 s17, s17, s18")
    a("s_add_u32 s4, s4, s17")
    a("s_addc_u32 s5, s5, 0")
    a(f"s_mov_b32 s6, {15*129024 + 1024}")
    a("s_mov_b32 s7, 0x20000")
    a("v_lshlrev_b32 v3, 4, v2")
    for h in range(16):
        a(f"s_mov_b32 s19, {h*129024}")
        a(f"buffer_load_dwordx4 v[{8+4*h}:{11+4*h}], v3, s[4:7], s19 offen{cfg.rd_flags}")
    a("s_and_b32 s20, s13, 7")
    a("s_lshr_b32 s21, s13, 3")
    a("s_mul_i32 s20, s20, 144")
    a("s_lshl_b32 s22, s15, 4")
    a("s_add_u32 s20, s20, s22")
    a("s_mul_i32 s20, s20, 1792")
    a("s_mul_i32 s21, s21, 896")
    a("s_lshl_b32 s22, s16, 6")
    a("s_add_u32 s20, s20, s21")
    a("s_add_u32 s20, s20, s22")
    a("v_and_b32 v4, 15, v2")
    a("v_mul_u32_u24 v4, 1792, v4")
    a("v_lshrrev_b32 v5, 4, v2")
    a("v_lshl_add_u32 v4, v5, 3, v4")
    a("s_mov_b32 s10, %d" % (8*144*896*2))
    a("s_mov_b32 s11, 0x20000")
    for h in range(16):
        a(f"s_waitcnt vmcnt({15-h})")
        for r in range(4):
            src = 8 + 4*h + r
            if h == 0:
                a(f"v_lshlrev_b32 v{72+2*r}, 16, v{src}")
                a(f"v_and_b32 v{73+2*r}, 0xffff0000, v{src}")
            else:
                a(f"v_lshlrev_b32 v80, 16, v{src}")
                a(f"v_and_b32 v81, 0xffff0000, v{src}")
                a(f"v_add_f32 v{72+2*r}, v{72+2*r}, v80")
                a(f"v_add_f32 v{73+2*r}, v{73+2*r}, v81")
    for r in range(4):
        a(f"v_cvt_pk_bf16_f32 v{84+r}, v{72+2*r}, v{73+2*r}")
    a("buffer_store_dwordx2 v[84:85], v4, s[8:11], s20 offen")
    a("buffer_store_dwordx2 v[86:87], v4, s[8:11], s20 offen offset:32")
    a.label("LR_end")
    a("s_endpgm")

def kd(a, name, vg, acc, sg=102):
    a.raw(f".amdhsa_kernel {name}")
    a.raw(f"  .amdhsa_next_free_vgpr {vg}")
    a.raw(f"  .amdhsa_next_free_sgpr {sg}")
    a.raw(f"  .amdhsa_accum_offset {acc}")
    a.raw("  .amdhsa_group_segment_fixed_size 0")
    a.raw("  .amdhsa_kernarg_size 104")
    a.raw("  .amdhsa_user_sgpr_count 2")
    a.raw("  .amdhsa_user_sgpr_kernarg_segment_ptr 1")
    a.raw("  .amdhsa_system_sgpr_workgroup_id_x 1")
    a.raw(".end_amdhsa_kernel")

HEADER = """; Fused MHA block (two branches): Q-proj + flash attention + partial out-proj per (branch,batch,head) workgroup,
; followed by a head-reduction kernel.  Generated by the author's schedule generator.
"""
def generate(cfg):
    a = Asm()
    a.raw(HEADER.rstrip())
    a.raw(f"; @launch kernel={KNAME} grid=(256,1,1) block=(256,1,1) lds=163840")
    if not cfg.dump:
        a.raw(f"; @launch kernel={RNAME} grid=(504,1,1) block=(256,1,1) lds=0")
    a.raw('.amdgcn_target "amdgcn-amd-amdhsa--gfx950"')
    a.raw(".text")
    a.raw(f".globl {KNAME}")
    a.raw(".p2align 8")
    a.raw(f".type {KNAME},@function")
    a.label(KNAME)
    emit_setup(a, cfg)
    emit_compute(a, cfg)
    emit_loader(a, cfg)
    a.label("L_end")
    a("s_endpgm")
    if not cfg.dump:
        emit_reduce(a, cfg)
    a.raw('.section .rodata,"a"')
    a.raw(".p2align 6")
    kd(a, KNAME, 512, 256)
    if not cfg.dump:
        a.raw(".p2align 6")
        kd(a, RNAME, 96, 96, 32)
    return a.text()

if __name__ == "__main__":
    cfg = Cfg()
    out = sys.argv[1]
    for kv in sys.argv[2:]:
        k, val = kv.split("=", 1)
        cur = getattr(cfg, k)
        if isinstance(cur, bool): val = val in ("1", "True", "true")
        elif isinstance(cur, float): val = float(val)
        elif isinstance(cur, int): val = int(val)
        elif val == "None": val = None
        setattr(cfg, k, val)
    open(out, "w").write(generate(cfg))
```

```python
import sys, math, struct, re

KNAME = "concat_heads__mha_block_cached__mha_block_cached__near_ridge_kernel"
RNAME = "reduce_kernel"

class Asm:
    def __init__(self):
        self.L = []
    def __call__(self, s):
        self.L.append("    " + s)
    def label(self, s):
        self.L.append(s + ":")
    def raw(self, s):
        self.L.append(s)
    def text(self):
        return "\n".join(self.L) + "\n"

class Lgkm:
    def __init__(self, a):
        self.a = a; self.q = []; self.issued = set(); self.throttled = 0
    def issue(self, ins, tag):
        if len(self.q) >= 15:
            self.a("s_waitcnt lgkmcnt(14)"); self.q = self.q[len(self.q) - 14:]; self.throttled += 1
        self.a(ins); self.q.append(tag); self.issued.add(tag)
    def need(self, tag):
        assert tag in self.issued, ("not issued", tag)
        if tag in self.q:
            idx = len(self.q) - 1 - self.q[::-1].index(tag)
            n = len(self.q) - 1 - idx
            self.a(f"s_waitcnt lgkmcnt({n})")
            self.q = self.q[idx + 1:]
    def drain(self):
        if self.q:
            self.a("s_waitcnt lgkmcnt(0)")
            self.q = []

class Vm:
    def __init__(self, a):
        self.a = a; self.q = []
    def room(self, n):
        over = len(self.q) + n - 63
        if over > 0:
            keep = len(self.q) - over
            self.a(f"s_waitcnt vmcnt({keep})")
            self.q = self.q[over:]
    def issue(self, ins, tag):
        assert len(self.q) < 63
        self.a(ins); self.q.append(tag)
    def need(self, tag):
        if tag in self.q:
            idx = len(self.q) - 1 - self.q[::-1].index(tag)
            n = len(self.q) - 1 - idx
            self.a(f"s_waitcnt vmcnt({n})")
            self.q = self.q[idx + 1:]

class It:
    def __init__(self, fn, cost=4, earliest=0, deadline=10**9):
        self.fn, self.cost, self.earliest, self.deadline = fn, cost, earliest, deadline

def sched(a, mf, streams, budget=8, flush=True):
    n = len(mf)
    for m, (pre, emit) in enumerate(mf):
        if pre: pre()
        emit()
        b = budget
        if m + 1 < n and mf[m + 1][0] is not None: b -= 4
        for st in streams:
            while st and st[0].deadline <= m:
                it = st.pop(0); it.fn(); b -= it.cost
        for st in streams:
            while st and st[0].earliest <= m and st[0].cost <= b:
                it = st.pop(0); it.fn(); b -= it.cost
    if flush:
        prog = True
        while any(streams):
            for st in streams:
                if st:
                    it = st.pop(0); it.fn()

def v(n, cnt=1):
    return f"v{n}" if cnt == 1 else f"v[{n}:{n+cnt-1}]"
def ar(n, cnt=1):
    return f"a{n}" if cnt == 1 else f"a[{n}:{n+cnt-1}]"
def f2u(x): return struct.unpack("<I", struct.pack("<f", x))[0]

V_LANE = 1
V_T0, V_T1 = 2, 3
V_KB = 4
V_VB = 8
V_TMP = 16
V_S = [24, 48]
V_P = 72
V_CM = 84
V_KBUF = 96
V_VBUF = 128
V_Q = 160
A_O = 0
A_L = 192
A_ONES = 204
A_X = 0
A_W = 168
A_DUMMY = 232
V_QACC = 64
V_WB = 16
V_XB = 20
A_WO = 208
V_P0 = 64
VBK, VBE = 24, 32
V_RL = 16
V_ST = 22
V_CT = 40

def Qreg(qt, T): return V_Q + (qt * 8 + T) * 4
def Xreg(s, qt): return A_X + (s * 3 + qt) * 4
def QAcc(u, qt): return V_QACC + (qt * 8 + (u >> 1)) * 8 + 4 * (u & 1)
def Oreg(u, qt): return A_O + (u * 3 + qt) * 4
def Sreg(par, qt, a): return V_S[par] + (qt * 2 + a) * 4

KS = [i * 16384 for i in range(4)]
VREG = 65536
VS = [VREG + i * 16384 for i in range(4)]
ES = [131072, 147456]
WRING = [ES[0], ES[1], VS[2], VS[3]]
WBASE = VS[2]
XW = 43008
WOSLOT = [ES[0], ES[1], KS[0], KS[1], VS[0], KS[2], VS[1], KS[3], VS[2], VS[3], ES[0], ES[1], KS[0], KS[1]]

S_WID = 3
S_X, S_K, S_V, S_WQ, S_WO, S_WS = 4, 8, 12, 16, 20, 24
S_B, S_H, S_BR, S_THR = 28, 29, 30, 31
S_SO, S_SO2, S_CNT = 32, 33, 34
S_RET, S_TGT = 36, 38
S_WOFF = 40
S_PC = 56
S_TS = 60

QSCALE = math.log2(math.e) / 16.0

class Cfg:
    nt_kv = True
    nt_w = True
    nt_x = True
    nt_wo = True
    nt_warm = True
    st_flags = " sc0 sc1"
    rd_flags = " nt"
    warm_wq = True
    warm_wo = False
    code_pf = True
    thr = 8.0
    dump = None
    stamps = False
    kvsched = "c"
    nkp = 8
    nvp = 4

def emit_setup(a, cfg):
    a("s_cmp_ge_u32 s2, 256")
    a("s_cbranch_scc1 L_end")
    if cfg.stamps:
        a(f"s_memrealtime s[{S_TS}:{S_TS+1}]")
    a("s_load_dwordx4 s[44:47], s[0:1], 0")
    a("s_load_dwordx4 s[48:51], s[0:1], 16")
    a("s_load_dwordx2 s[52:53], s[0:1], 32")
    a("s_load_dwordx2 s[54:55], s[0:1], 40")
    a("s_load_dwordx4 s[64:67], s[0:1], 48")
    a("s_load_dwordx4 s[68:71], s[0:1], 64")
    a("s_load_dwordx2 s[72:73], s[0:1], 96")
    a(f"v_lshrrev_b32 v{V_T0}, 6, v0")
    a(f"v_and_b32 v{V_LANE}, 63, v0")
    a(f"v_readfirstlane_b32 s{S_WID}, v{V_T0}")
    a("s_and_b32 s74, s2, 7")
    a("s_lshr_b32 s75, s2, 3")
    a(f"s_lshr_b32 s{S_BR}, s74, 2")
    a("s_and_b32 s76, s74, 3")
    a("s_lshl_b32 s76, s76, 2")
    a("s_and_b32 s77, s75, 3")
    a(f"s_add_u32 s{S_H}, s76, s77")
    a(f"s_lshr_b32 s{S_B}, s75, 2")
    a(f"s_mul_i32 s78, s{S_B}, 129024")
    a(f"s_lshl_b32 s79, s{S_H}, 9")
    a(f"s_mov_b32 s{S_X+2}, 129024")
    a(f"s_mov_b32 s{S_X+3}, 0x20000")
    a(f"s_sub_u32 s{S_WQ+2}, {448*8192}, s79")
    a(f"s_mov_b32 s{S_WQ+3}, 0x20000")
    a("s_waitcnt lgkmcnt(0)")
    a(f"s_cmp_eq_u32 s{S_BR}, 0")
    a(f"s_cselect_b32 s{S_X}, s44, s54")
    a(f"s_cselect_b32 s{S_X+1}, s45, s55")
    a(f"s_cselect_b32 s{S_WQ}, s50, s68")
    a(f"s_cselect_b32 s{S_WQ+1}, s51, s69")
    a(f"s_cselect_b32 s{S_K}, s46, s64")
    a(f"s_cselect_b32 s{S_K+1}, s47, s65")
    a(f"s_cselect_b32 s{S_V}, s48, s66")
    a(f"s_cselect_b32 s{S_V+1}, s49, s67")
    a(f"s_cselect_b32 s{S_WO}, s52, s70")
    a(f"s_cselect_b32 s{S_WO+1}, s53, s71")
    a(f"s_add_u32 s{S_X}, s{S_X}, s78")
    a(f"s_addc_u32 s{S_X+1}, s{S_X+1}, 0")
    a(f"s_add_u32 s{S_WQ}, s{S_WQ}, s79")
    a(f"s_addc_u32 s{S_WQ+1}, s{S_WQ+1}, 0")
    a(f"s_cmp_eq_u32 s{S_WID}, 3")
    a("s_cbranch_scc1 L_loader")

def emit_setup_late(a, cfg, loader):
    a(f"s_lshl_b32 s74, s{S_B}, 4")
    a(f"s_add_u32 s74, s74, s{S_H}")
    if loader:
        a("s_lshl_b32 s75, s74, 19")
        for S in (S_K, S_V):
            a(f"s_add_u32 s{S}, s{S}, s75")
            a(f"s_addc_u32 s{S+1}, s{S+1}, 0")
            a(f"s_mov_b32 s{S+2}, 524288")
            a(f"s_mov_b32 s{S+3}, 0x20000")
        a(f"s_mul_i32 s75, s{S_H}, {256*896}")
        a(f"s_add_u32 s{S_WO}, s{S_WO}, s75")
        a(f"s_addc_u32 s{S_WO+1}, s{S_WO+1}, 0")
        a(f"s_mov_b32 s{S_WO+2}, {256*896}")
        a(f"s_mov_b32 s{S_WO+3}, 0x20000")
    else:
        a(f"s_lshl_b32 s75, s{S_BR}, 7")
        a("s_add_u32 s74, s74, s75")
        a("s_mul_i32 s74, s74, 129024")
        a(f"s_add_u32 s{S_WS}, s72, s74")
        a(f"s_addc_u32 s{S_WS+1}, s73, 0")
        a(f"s_mov_b32 s{S_WS+2}, 129024")
        a(f"s_mov_b32 s{S_WS+3}, 0x20000")

def barrier_list():
    L = [("PB", s) for s in range(14)]
    L += [("B", t) for t in range(-1, 32)]
    L += [("TB", j) for j in range(14)]
    return L

KVSCHED = {
    "a": {1: [("K", 0)], 2: [("V", 0)], 3: [("K", 1)], 4: [("K", 2)], 6: [("V", 1)], 7: [("K", 3)], 11: [("V", 2)], 12: [("V", 3)]},
    "b": {1: [("K", 0), ("V", 0)], 2: [("K", 1)], 3: [("K", 2)], 4: [("V", 1)], 5: [("K", 3)], 11: [("V", 2)], 12: [("V", 3)]},
    "c": {1: [("K", 0)], 3: [("V", 0)], 4: [("K", 1)], 6: [("K", 2)], 7: [("V", 1)], 9: [("K", 3)], 11: [("V", 2)], 12: [("V", 3)]},
}

def emit_code_prefetch(a, cfg, vm, vaddr, lo, hi, dst):
    a(f"s_getpc_b64 s[{S_PC}:{S_PC+1}]")
    lab = f"L_pc_{lo}"
    a.label(lab)
    a(f"s_add_u32 s{S_PC}, s{S_PC}, {lo}-{lab}")
    a(f"s_addc_u32 s{S_PC+1}, s{S_PC+1}, 0")
    a(f"s_mov_b32 s{S_PC+2}, {hi}-{lo}")
    a(f"s_mov_b32 s{S_PC+3}, 0x20000")
    return

def emit_loader(a, cfg):
    a.label("L_loader")
    vm = Vm(a)
    LH, LP = 2, 3
    VK, VV, VW, VO, VO3 = 8, 16, 20, 24, 28
    T0, T1 = 4, 5
    stamp_idx = [0]
    def xstamp(i):
        if cfg.stamps:
            a("s_memrealtime s[62:63]")
            a("s_waitcnt lgkmcnt(0)")
            a(f"v_writelane_b32 v42, s62, {i}")
    if cfg.stamps:
        a(f"v_writelane_b32 v40, s{S_TS}, 0")
    xstamp(0)
    a(f"v_lshrrev_b32 v{LH}, 5, v{V_LANE}")
    a(f"v_and_b32 v{LP}, 31, v{V_LANE}")
    a(f"v_lshlrev_b32 v32, 4, v{V_LANE}")
    def chunkpat(i):
        a(f"v_add_u32 v{T0}, {2*i}, v{LH}")
        a(f"v_lshlrev_b32 v{T0}, 1, v{T0}")
        a(f"v_xor_b32 v{T0}, v{T0}, v{LP}")
    for i in range(4):
        chunkpat(i)
        a(f"v_lshlrev_b32 v{T1}, 4, v{T0}")
        a(f"v_lshl_add_u32 v{VW+i}, v{LH}, 13, v{T1}")
    ntkv = " nt" if cfg.nt_kv else ""
    ntw = " nt" if cfg.nt_w else ""
    ntwo = " nt" if cfg.nt_wo else ""
    ntwarm = " nt" if cfg.nt_warm else ""

    def tile_kv(kind, t):
        srd = S_K if kind == "K" else S_V
        lds = KS[t % 4] if kind == "K" else VS[t % 4]
        vm.room(16)
        for m in range(4):
            a(f"s_mov_b32 m0, {lds + m*4096}")
            a(f"s_mov_b32 s{S_SO}, {t*16384 + m*4096}")
            for n in range(4):
                i = 4*m + n
                vo = VK + (i & 7) if kind == "K" else VV + (i & 3)
                vm.issue(f"buffer_load_dwordx4 v{vo}, s[{srd}:{srd+3}], s{S_SO} offen offset:{n*1024}{ntkv} lds", (kind, t))
    def tile_w(s):
        lds = WRING[s % 4]
        vm.room(16)
        for i in range(16):
            sig0 = 8*((i & 7) >> 1) + 4*(i >> 3) + 2*(i & 1)
            a(f"s_mov_b32 m0, {lds + i*1024}")
            a(f"s_mov_b32 s{S_SO}, {(s*32 + sig0)*8192}")
            vm.issue(f"buffer_load_dwordx4 v{VW + (i & 3)}, s[{S_WQ}:{S_WQ+3}], s{S_SO} offen{ntw} lds", ("W", s))
    def tile_wo(j):
        lds = WOSLOT[j]
        vm.room(16)
        for i in range(16):
            if j < 12:
                p, T0_ = j // 4, (j % 4) * 2
                so = (32*T0_ + 2*i)*896 + p*256
                vo = VO + (i & 3)
            else:
                T0_ = (j - 12) * 4
                so = (32*T0_ + 2*i)*896 + 768
                vo = VO3 + (i & 3)
            a(f"s_mov_b32 m0, {lds + i*1024}")
            a(f"s_mov_b32 s{S_SO}, {so}")
            vm.issue(f"buffer_load_dwordx4 v{vo}, s[{S_WO}:{S_WO+3}], s{S_SO} offen{ntwo} lds", ("WO", j))
    def warm_wo(i0, n):
        vm.room(n)
        for i in range(i0, i0 + n):
            a(f"s_mul_i32 s{S_SO}, s{S_B}, 28672")
            a(f"s_add_u32 s{S_SO}, s{S_SO}, {i*1024}")
            vm.issue(f"buffer_load_dwordx4 v[36:39], v32, s[{S_WO}:{S_WO+3}], s{S_SO} offen{ntwarm}", ("warm", i))
    def code_pf(lo, hi, tagn):
        a(f"s_getpc_b64 s[{S_PC}:{S_PC+1}]")
        lab = f"L_pc_{tagn}"
        a.label(lab)
        a(f"s_add_u32 s{S_PC}, s{S_PC}, {lo}-{lab}")
        a(f"s_addc_u32 s{S_PC+1}, s{S_PC+1}, -1" if False else f"s_addc_u32 s{S_PC+1}, s{S_PC+1}, ({lo}-{lab})>>32")
        a(f"s_mov_b32 s{S_PC+2}, {hi}-{lo}")
        a(f"s_mov_b32 s{S_PC+3}, 0x20000")
        a(f"s_lshr_b32 s{S_SO2}, s2, 3")
        a(f"s_mul_i32 s{S_SO2}, s{S_SO2}, 3072")
        vm.room(3)
        for i in range(3):
            vm.issue(f"buffer_load_dwordx4 v[36:39], v32, s[{S_PC}:{S_PC+3}], s{S_SO2} offen offset:{i*1024}", ("pf", tagn, i))

    tile_w(0); xstamp(1)
    if cfg.code_pf: code_pf(KNAME, "L_code_end", "all")
    tile_w(1); xstamp(2)
    emit_setup_late(a, cfg, True)
    for i in range(8):
        a(f"v_add_u32 v{T0}, {2*i}, v{LH}")
        a(f"v_xor_b32 v{T0}, v{T0}, v{LP}")
        a(f"v_lshlrev_b32 v{T0}, 4, v{T0}")
        a(f"v_lshl_add_u32 v{VK+i}, v{LH}, 9, v{T0}")
    for i in range(4):
        chunkpat(i)
        a(f"v_lshlrev_b32 v{T1}, 4, v{T0}")
        a(f"v_lshl_add_u32 v{VV+i}, v{LH}, 9, v{T1}")
        a(f"v_lshrrev_b32 v6, 4, v{T0}")
        a(f"v_lshl_add_u32 v6, v6, 5, v{LH}")
        a(f"v_mul_u32_u24 v6, 896, v6")
        a(f"v_and_b32 v7, 15, v{T0}")
        a(f"v_lshl_add_u32 v{VO+i}, v7, 4, v6")
        a(f"v_lshrrev_b32 v6, 3, v{T0}")
        a(f"v_lshl_add_u32 v6, v6, 5, v{LH}")
        a(f"v_mul_u32_u24 v6, 896, v6")
        a(f"v_and_b32 v7, 7, v{T0}")
        a(f"v_lshl_add_u32 v{VO3+i}, v7, 4, v6")
    xstamp(3)
    kv_after_pb = KVSCHED[cfg.kvsched]
    for name, idx in barrier_list():
        if name == "PB":
            if idx == 0: vm.need(("W", 0)); vm.need(("W", 1))
            elif idx == 1: pass
            elif idx + 1 <= 13: vm.need(("W", idx + 1))
        elif name == "B":
            t = idx
            if t == -1:
                vm.need(("K", 0)); vm.need(("K", 1))
            else:
                if t + 2 <= 31: vm.need(("K", t + 2))
                vm.need(("V", t))
            if t == 31:
                vm.need(("WO", 0)); vm.need(("WO", 1))
        else:
            j = idx
            vm.need(("WO", min(j + 1, 13)))
        a("s_barrier")
        if cfg.stamps:
            stamp_idx[0] += 1
            a("s_memrealtime s[62:63]")
            a("s_waitcnt lgkmcnt(0)")
            a(f"v_writelane_b32 v40, s62, {stamp_idx[0]}")
            a("s_memtime s[62:63]")
            a("s_waitcnt lgkmcnt(0)")
            a(f"v_writelane_b32 v43, s62, {stamp_idx[0]}")
        if name == "PB":
            if idx == 1: tile_w(2); tile_w(3); tile_w(4)
            elif idx >= 2 and idx + 3 <= 13: tile_w(idx + 3)
            for k, t in kv_after_pb.get(idx, []): tile_kv(k, t)
        elif name == "B":
            t = idx
            if t >= 0:
                if t + 4 <= 31: tile_kv("K", t + 4)
                if t >= 1 and t + 3 <= 31: tile_kv("V", t + 3)
            if cfg.warm_wo and 18 <= t <= 24:
                warm_wo((t - 18) * 4, 4)
            if cfg.code_pf and t == 25: code_pf("L_tail_code", "L_tail_end", "tail")
            if t == 26: tile_wo(0)
            if t == 27: tile_wo(1)
            if t == 28: tile_wo(2)
            if t == 29: tile_wo(3); tile_wo(4)
            if t == 30: tile_wo(5); tile_wo(6)
            if t == 31: tile_wo(7); tile_wo(8)
        else:
            j = idx
            if j == 0: tile_wo(9)
            if 1 <= j <= 4: tile_wo(9 + j)
    a("s_waitcnt vmcnt(0)")
    if cfg.stamps:
        a("s_barrier")
        a("s_memrealtime s[62:63]")
        a("s_waitcnt lgkmcnt(0)")
        a(f"v_writelane_b32 v40, s62, 62")
        a("s_mov_b32 s76, s72"); a("s_mov_b32 s77, s73")
        a("s_mov_b32 s78, 0x10000000"); a("s_mov_b32 s79, 0x20000")
        a("s_lshl_b32 s74, s2, 8")
        a("s_add_u32 s74, s74, 0x4000000")
        a(f"v_lshlrev_b32 v41, 2, v{V_LANE}")
        a("buffer_store_dword v40, v41, s[76:79], s74 offen")
        a("s_add_u32 s74, s74, 0x100000")
        a("buffer_store_dword v42, v41, s[76:79], s74 offen")
        a("s_add_u32 s74, s74, 0x100000")
        a("buffer_store_dword v43, v41, s[76:79], s74 offen")
        a("s_waitcnt vmcnt(0)")
    a("s_branch L_end")

def mfma(a, D, A, B, C=None):
    a(f"v_mfma_f32_16x16x32_bf16 {D}, {A}, {B}, {C if C is not None else D}")

def xlane_max(a, r, tmp):
    a(f"v_mov_b32 v{tmp}, v{r}")
    a("s_nop 1")
    a(f"v_permlane32_swap_b32 v{r}, v{tmp}")
    a("s_nop 1")
    a(f"v_max_f32 v{r}, v{r}, v{tmp}")
    a(f"v_mov_b32 v{tmp}, v{r}")
    a("s_nop 1")
    a(f"v_permlane16_swap_b32 v{r}, v{tmp}")
    a("s_nop 1")
    a(f"v_max_f32 v{r}, v{r}, v{tmp}")

def emit_compute(a, cfg):
    rare_blocks = []
    emit_compute_main(a, cfg, rare_blocks)
    emit_rare(a, cfg, rare_blocks)

def emit_compute_main(a, cfg, rare_blocks):
    lg = Lgkm(a)
    lane = V_LANE
    T0, T1 = V_T0, V_T1
    NKP, NVP = cfg.nkp, cfg.nvp
    a(f"v_lshrrev_b32 v{T0}, 3, v{lane}")
    a(f"v_and_b32 v{T1}, 7, v{lane}")
    a(f"v_lshrrev_b32 v22, 1, v{T0}")
    a(f"v_xor_b32 v22, v22, v{T1}")
    a(f"v_mul_u32_u24 v23, 896, v{T0}")
    a(f"v_lshl_add_u32 v24, v22, 4, v23")
    a(f"v_xor_b32 v22, 4, v22")
    a(f"v_lshl_add_u32 v25, v22, 4, v23")
    a(f"v_add_u32 v25, {8*896}, v25")
    a(f"s_mul_i32 s74, s{S_WID}, {XW}")
    vm = Vm(a)
    ntx = " nt" if cfg.nt_x else ""
    for sp in range(7):
        for qt in range(3):
            for hb in range(2):
                a(f"s_add_u32 m0, s74, {((qt*2 + hb)*7 + sp)*1024}")
                a(f"s_add_u32 s{S_SO}, s74, {qt*14336 + sp*128}")
                vm.issue(f"buffer_load_dwordx4 v{24+hb}, s[{S_X}:{S_X+3}], s{S_SO} offen{ntx} lds", ("x",))
    if cfg.warm_wq:
        ntwarm = " nt" if cfg.nt_warm else ""
        a(f"v_lshrrev_b32 v{T0}, 5, v{lane}")
        a(f"v_and_b32 v{T1}, 31, v{lane}")
        a(f"v_lshlrev_b32 v{T1}, 4, v{T1}")
        a(f"v_lshl_add_u32 v26, v{T0}, 13, v{T1}")
        a(f"s_mul_i32 s75, s{S_B}, 48")
        a(f"s_lshl_b32 s76, s{S_WID}, 4")
        a("s_add_u32 s75, s75, s76")
        a("s_add_u32 s75, s75, 64")
        a("s_lshl_b32 s75, s75, 13")
        for i in range(8):
            vm.issue(f"buffer_load_dwordx4 {ar(A_DUMMY,4)}, v26, s[{S_WQ}:{S_WQ+3}], s75 offen{ntwarm}", ("warm", i))
            if i < 7: a(f"s_add_u32 s75, s75, {2*8192}")
    emit_setup_late(a, cfg, False)
    g_, i15 = 22, 23
    a(f"v_lshrrev_b32 v{g_}, 4, v{lane}")
    a(f"v_and_b32 v{i15}, 15, v{lane}")
    a(f"v_lshrrev_b32 v26, 1, v{i15}")
    a(f"v_lshrrev_b32 v27, 3, v{i15}")
    a(f"v_mul_u32_u24 v27, 7168, v27")
    a(f"v_and_b32 v28, 7, v{i15}")
    a(f"v_lshl_add_u32 v27, v28, 7, v27")
    a(f"s_mul_i32 s74, s{S_WID}, {XW}")
    a(f"v_add_u32 v27, s74, v27")
    for e in range(2):
        a(f"v_add_u32 v{T0}, {4*e}, v{g_}")
        a(f"v_xor_b32 v{T0}, v{T0}, v26")
        a(f"v_lshl_add_u32 v{V_XB+e}, v{T0}, 4, v27")
    for j in range(4):
        a(f"v_add_u32 v{T0}, {4*j}, v{g_}")
        a(f"v_xor_b32 v{T0}, v{T0}, v{i15}")
        a(f"v_lshlrev_b32 v{T0}, 4, v{T0}")
        a(f"v_lshl_add_u32 v{V_KB+j}, v{i15}, 9, v{T0}")
    rp, cc, row, rho = 26, 27, 28, 29
    a(f"v_lshrrev_b32 v{rp}, 2, v{i15}")
    a(f"v_and_b32 v{cc}, 3, v{i15}")
    a(f"v_lshl_add_u32 v{row}, v{g_}, 2, v{rp}")
    a(f"v_and_b32 v{rho}, 7, v{row}")
    a(f"v_lshrrev_b32 v{T0}, 1, v{cc}")
    a(f"v_lshlrev_b32 v{T0}, 4, v{T0}")
    a(f"v_and_b32 v{T1}, 1, v{cc}")
    a(f"v_lshl_add_u32 v{T0}, v{T1}, 3, v{T0}")
    a(f"v_lshl_add_u32 v30, v{row}, 9, v{T0}")
    for j in range(8):
        a(f"v_xor_b32 v{T0}, {j}, v{rho}")
        a(f"v_lshl_add_u32 v{T0}, v{T0}, 5, v30")
        a(f"v_add_u32 v{V_VB+j}, {VREG}, v{T0}")
    a(f"v_lshlrev_b32 v31, 1, v{rho}")
    a(f"v_lshlrev_b32 v30, 9, v{row}")
    for j in range(4):
        a(f"v_add_u32 v{T0}, {4*j}, v{cc}")
        a(f"v_xor_b32 v{T0}, v{T0}, v31")
        a(f"v_lshl_add_u32 v{T0}, v{T0}, 4, v30")
        a(f"v_add_u32 v{V_WB+j}, {WBASE}, v{T0}")
    a(f"s_mov_b32 s{S_THR}, {hex(f2u(cfg.thr))}")

    def wread(s, u, half):
        T = u >> 1
        off = (WRING[s % 4] - WBASE) + (T >> 2) * 256 + (u & 1) * 8 + half * 8192
        r = A_W + 4 * u + 2 * half
        lg.issue(f"ds_read_b64_tr_b16 {ar(r,2)}, v{V_WB + (T & 3)} offset:{off}", ("w", s, u, half))
    def xread(s, qt):
        off = qt * 14336 + (s >> 1) * 1024
        lg.issue(f"ds_read_b128 {ar(Xreg(s, qt), 4)}, v{V_XB + (s & 1)} offset:{off}", ("x", s, qt))
    NWP = 6
    n_after = 8 if cfg.warm_wq else 0
    a(f"s_waitcnt vmcnt({n_after})")
    for qt in range(3): xread(0, qt)
    for s in range(14):
        a("s_barrier")
        pre_done = (s >= 3) or s == 1
        if not pre_done:
            if s == 0: lg.need(("x", 0, 2))
            for u in range(NWP - (2 if s == 0 else 0)):
                wread(s, u, 0); wread(s, u, 1)
        nfirst = NWP - (2 if s == 0 else 0)
        mf = []
        for u in range(16):
            for qt in range(3):
                pre = None
                if qt == 0 and u % 2 == 0:
                    pre = (lambda s=s, u=u: lg.need(("w", s, u + 1, 1)))
                D = v(QAcc(u, qt), 4)
                mf.append((pre, (lambda D=D, s=s, u=u, qt=qt: mfma(a, D, ar(A_W + 4*u, 4), ar(Xreg(s, qt), 4), "0" if s == 0 else None))))
        st = []
        for u in range(nfirst, 16):
            for h in range(2):
                st.append(It((lambda s=s, u=u, h=h: wread(s, u, h)), 4, max(0, 3*(u - NWP) + h), max(0, 3*(u - 3))))
        nxt_pre = (s + 1 <= 13) and ((s + 1 >= 3) or s + 1 == 1)
        if nxt_pre:
            for u in range(NWP):
                for h in range(2):
                    st.append(It((lambda s=s, u=u, h=h: wread(s + 1, u, h)), 4, 3*(16 + u - NWP) + h))
        streams = [st]
        if s == 0:
            xs = [It((lambda ss=ss, qt=qt: xread(ss, qt)), 4, ((ss - 1)*3 + qt) * 46 // 39) for ss in range(1, 14) for qt in range(3)]
            streams.append(xs)
        sched(a, mf, streams)
        if s == 0:
            lg.need(("x", 13, 2))
    lg.drain()
    if cfg.dump == "qacc":
        emit_dump_v(a, cfg, V_QACC, 192); return
    a(f"s_mov_b32 s74, {hex(f2u(QSCALE))}")
    a(f"s_mov_b32 s75, {hex(f2u(QSCALE))}")
    a(f"v_mov_b32 v{T0}, 0x3f803f80")
    for r in range(4):
        a(f"v_accvgpr_write_b32 a{A_ONES+r}, v{T0}")
    a("s_nop 3")
    for i in range(23, -1, -1):
        src = V_QACC + 8 * i
        dst = V_Q + 4 * i
        for r in range(4):
            a(f"v_pk_mul_f32 {v(src + 2*r, 2)}, {v(src + 2*r, 2)}, s[74:75]")
        for r in range(3, -1, -1):
            a(f"v_cvt_pk_bf16_f32 v{dst + r}, v{src + 2*r}, v{src + 2*r + 1}")
    if cfg.dump == "q":
        emit_dump_v(a, cfg, V_Q, 96); return

    def kread(t, f):
        aa, T = f >> 3, f & 7
        off = KS[t % 4] + aa * 8192 + (T >> 2) * 256
        lg.issue(f"ds_read_b128 {v(V_KBUF + 4*(f % 8), 4)}, v{V_KB + (T & 3)} offset:{off}", ("k", t, f))
    def vread(t, u, half):
        off = (VS[t % 4] - VREG) + (u >> 3) * 256 + half * 8192
        r = V_VBUF + 4 * (u % 8) + 2 * half
        lg.issue(f"ds_read_b64_tr_b16 {v(r,2)}, v{V_VB + (u & 7)} offset:{off}", ("v", t, u, half))

    def exp_items(t):
        par = t & 1
        st = []
        for qt in range(3):
            for aa in range(2):
                s = Sreg(par, qt, aa)
                for hh in range(2):
                    e0, e1 = s + 2*hh, s + 2*hh + 1
                    pr = V_P + qt*4 + aa*2 + hh
                    st.append(It((lambda e=e0: a(f"v_exp_f32 v{e}, v{e}")), 8))
                    st.append(It((lambda e=e1: a(f"v_exp_f32 v{e}, v{e}")), 8))
                    st.append(("cvt", It((lambda pr=pr, e0=e0, e1=e1: a(f"v_cvt_pk_bf16_f32 v{pr}, v{e0}, v{e1}")), 4)))
        exps = [x for x in st if not isinstance(x, tuple)]
        cvts = [x[1] for x in st if isinstance(x, tuple)]
        return exps, cvts

    def phaseA(t):
        doqk = t + 1 <= 31
        doexp = t >= 0
        if doexp: exps, cvts = exp_items(t)
        if not doqk:
            vq = [(u, h) for u in range(NVP) for h in range(2)]
            for grp in range(12):
                exps[2*grp].fn(); exps[2*grp+1].fn()
                if grp > 0: cvts[grp-1].fn()
                if vq: vread(t, *vq.pop(0))
            a("s_nop 0")
            cvts[11].fn()
            while vq: vread(t, *vq.pop(0))
            return
        par1 = (t + 1) & 1
        mf = []
        for m in range(48):
            aa, T, qt = m // 24, (m % 24) // 3, m % 3
            f = aa * 8 + T
            pre = None
            if qt == 0 and f % 2 == 0:
                pre = (lambda f=f: lg.need(("k", t + 1, f + 1)))
            C = None
            if T == 0: C = "0" if t == -1 else v(V_CM + 4*qt, 4)
            D = v(Sreg(par1, qt, aa), 4)
            mf.append((pre, (lambda D=D, f=f, qt=qt, T=T, C=C: mfma(a, D, v(V_KBUF + 4*(f % 8), 4), v(Qreg(qt, T), 4), C))))
        ks = [It((lambda f=f: kread(t + 1, f)), 4, max(0, 3*(f - 8) + 2), 3*f - 8) for f in range(NKP, 16)]
        streams = [ks]
        if doexp:
            for i, e in enumerate(exps):
                e.earliest = 4*(i // 2) + (i & 1); e.deadline = e.earliest
            for i, c in enumerate(cvts):
                c.earliest = 4*i + 2; c.deadline = min(4*i + 5, 47)
            vs = [It((lambda u=u, h=h: vread(t, u, h)), 4, 26) for u in range(NVP) for h in range(2)]
            streams = [exps, cvts, ks, vs]
        sched(a, mf, streams)

    def phaseB(t, extra=None):
        first = (t == 0)
        docheck = t + 1 <= 31
        par1 = (t + 1) & 1
        Z = "0" if first else None
        mf = []
        for qt in range(3):
            mf.append((None, (lambda qt=qt: mfma(a, ar(A_L + 4*qt, 4), ar(A_ONES, 4), v(V_P + 4*qt, 4), Z))))
        for m in range(48):
            u, qt = m // 3, m % 3
            pre = None
            if qt == 0 and u % 2 == 0:
                pre = (lambda u=u: lg.need(("v", t, u + 1, 1)))
            mf.append((pre, (lambda u=u, qt=qt: mfma(a, ar(Oreg(u, qt), 4), v(V_VBUF + 4*(u % 8), 4), v(V_P + 4*qt, 4), Z))))
        vs = []
        for u in range(NVP, 16):
            e = max(0 if u < 8 else 3 + 3*(u - 8) + 2, 3 + 3*(u - NVP - 1))
            for h in range(2):
                vs.append(It((lambda u=u, h=h: vread(t, u, h)), 4, e + h, 3 + 3*u - 9))
        streams = [vs]
        if docheck:
            s0 = V_S[par1]; mx = V_TMP
            chk = [f"v_max3_f32 v{mx}, v{s0}, v{s0+1}, v{s0+2}"]
            for k in range(10):
                chk.append(f"v_max3_f32 v{mx}, v{mx}, v{s0+3+2*k}, v{s0+4+2*k}")
            chk.append(f"v_max_f32 v{mx}, v{mx}, v{s0+23}")
            chk.append(f"v_cmp_lt_f32 vcc, s{S_THR}, v{mx}")
            streams.append([It((lambda c=c: a(c)), 4, 6 + 2*i) for i, c in enumerate(chk)])
        if t + 2 <= 31:
            streams.append([It((lambda f=f: kread(t + 2, f)), 4, 30 + 2*f) for f in range(NKP)])
        if extra: streams += extra
        a("s_nop 1")
        sched(a, mf, streams)

    def check_branch(t, tag):
        a(f"s_cbranch_vccnz L_rare_{tag}")
        a.label(f"L_back_{tag}")
        rare_blocks.append((tag, (t + 1) & 1))

    a("s_barrier")
    for f in range(NKP): kread(0, f)
    phaseA(-1)
    for f in range(NKP): kread(1, f)
    a("s_nop 1")
    for qt in range(3):
        s0 = Sreg(0, qt, 0)
        mx = V_TMP + qt
        a(f"v_max3_f32 v{mx}, v{s0}, v{s0+1}, v{s0+2}")
        a(f"v_max3_f32 v{mx}, v{mx}, v{s0+3}, v{s0+4}")
        a(f"v_max3_f32 v{mx}, v{mx}, v{s0+5}, v{s0+6}")
        a(f"v_max_f32 v{mx}, v{mx}, v{s0+7}")
    for step in range(2):
        for qt in range(3): a(f"v_mov_b32 v{V_TMP+4+qt}, v{V_TMP+qt}")
        a("s_nop 0")
        for qt in range(3):
            a(f"v_permlane{32 if step == 0 else 16}_swap_b32 v{V_TMP+qt}, v{V_TMP+4+qt}")
        a("s_nop 0")
        for qt in range(3): a(f"v_max_f32 v{V_TMP+qt}, v{V_TMP+qt}, v{V_TMP+4+qt}")
    for qt in range(3):
        s0 = Sreg(0, qt, 0); mx = V_TMP + qt
        for r in range(8):
            a(f"v_sub_f32 v{s0+r}, v{s0+r}, v{mx}")
        for r in range(4):
            a(f"v_sub_f32 v{V_CM + 4*qt + r}, 0, v{mx}")
    if cfg.dump == "s0":
        lg.drain()
        emit_dump_v(a, cfg, V_S[0], 24, extra=(V_CM, 12)); return

    def iteration(t, tag):
        a("s_barrier")
        phaseA(t)
        phaseB(t)
        if t + 1 <= 31:
            check_branch(t, tag)

    iteration(0, "p0")
    q0 = list(lg.q)
    a(f"s_mov_b32 s{S_CNT}, 7")
    a.label("L_loop")
    for t in range(1, 5):
        iteration(t, f"l{t}")
    q1 = [(x[0], x[1] - 4) + x[2:] for x in lg.q]
    assert q0 == q1, (q0, q1)
    a(f"s_sub_u32 s{S_CNT}, s{S_CNT}, 1")
    a(f"s_cmp_lg_u32 s{S_CNT}, 0")
    a("s_cbranch_scc1 L_loop")
    lg.q = [(x[0], x[1] + 28) + x[2:] for x in q0]
    for x in lg.q: lg.issued.add(x)
    for f in range(16): lg.issued.add(("k", 30, f))
    a.label("L_tail_code")
    for t in range(29, 31):
        iteration(t, f"e{t}")

    def oconv_items(T, earliest=0):
        its = []
        for qt in range(3):
            tb = V_CT + 8 * qt
            for h in range(2):
                o = Oreg(2*T + h, qt)
                for r in range(4):
                    its.append(It((lambda d=tb + 4*h + r, s=o + r: a(f"v_accvgpr_read_b32 v{d}, a{s}")), 4, earliest))
            q = Qreg(qt, T)
            for r in range(4):
                its.append(It((lambda d=q + r, s=tb + 2*r: a(f"v_cvt_pk_bf16_f32 v{d}, v{s}, v{s+1}")), 4, earliest))
        return its

    def wo_base(j, jj):
        addr = WOSLOT[j]
        if addr < VREG: return VBK + jj, addr
        if addr < VREG + 65536: return V_VB + jj, addr - VREG
        return VBE + jj, addr - VREG - 65536
    steps = []
    for p in range(3):
        for T in range(8):
            steps.append((p, T, 4*p + T//2, T & 1, 8))
    for T in range(8):
        steps.append((3, T, 12 + T//4, T & 3, 4))
    frs = []
    for si, (p, T, j, tau, nu) in enumerate(steps):
        for u in range(nu):
            frs.append((si, p, T, j, tau, nu, u))
    FBN = 12
    def oread(k, half):
        si, p, T, j, tau, nu, u = frs[k]
        tp = (8*tau + u) if p < 3 else (4*tau + u)
        br, off = wo_base(j, tp & 7)
        off += (tp >> 3) * 256 + half * 8192
        r = A_WO + 4 * (k % FBN) + 2 * half
        lg.issue(f"ds_read_b64_tr_b16 {ar(r,2)}, v{br} offset:{off}", ("o", k, half))
    def accreg(p, u, qt):
        i = (u * 3 + qt) * 4
        if p == 0 or p == 2: return ("v", V_P0 + i)
        return ("a", i)
    def accstr(p, u, qt):
        f, r = accreg(p, u, qt)
        return v(r, 4) if f == "v" else ar(r, 4)
    slotc = [0]
    def conv_items(p):
        its = []
        nu = 8 if p < 3 else 4
        for up in range(nu // 2):
            for qt in range(3):
                rl = V_RL + qt * 0
                rlp = f"v[{V_RL + 2*qt}:{V_RL + 2*qt + 1}]"
                f, _ = accreg(p, 0, 0)
                tb = V_CT + 12 * (slotc[0] % 2); slotc[0] += 1
                out = tb + 8
                if f == "a":
                    for h in range(2):
                        o = accreg(p, 2*up + h, qt)[1]
                        for r in range(4):
                            its.append(It((lambda d=tb + 4*h + r, s=o + r: a(f"v_accvgpr_read_b32 v{d}, a{s}"))))
                    srcs = [tb + 2*r for r in range(4)]
                else:
                    o0 = accreg(p, 2*up, qt)[1]; o1 = accreg(p, 2*up + 1, qt)[1]
                    srcs = [o0, o0 + 2, o1, o1 + 2]
                for sreg in srcs:
                    its.append(It((lambda s=sreg, rlp=rlp: a(f"v_pk_mul_f32 {v(s,2)}, {v(s,2)}, {rlp}"))))
                for r, sreg in enumerate(srcs):
                    its.append(It((lambda d=out + r, s=sreg: a(f"v_cvt_pk_bf16_f32 v{d}, v{s}, v{s+1}"))))
                upair = 4*p + up
                its.append(It((lambda c=(qt*14 + upair)*1024: a(f"s_add_u32 s{S_SO}, s{S_WOFF}, {c}")), 4))
                its.append(It((lambda o=out: a(f"buffer_store_dwordx4 {v(o,4)}, v{V_ST}, s[{S_WS}:{S_WS+3}], s{S_SO} offen{cfg.st_flags}")), 4))
        return its

    a("s_barrier")
    phaseA(31)
    setup_its = []
    for j in range(8):
        setup_its.append(It((lambda j=j: a(f"v_subrev_u32 v{VBK+j}, {VREG}, v{V_VB+j}")), 4, 0))
        setup_its.append(It((lambda j=j: a(f"v_add_u32 v{VBE+j}, {VREG}, v{V_VB+j}")), 4, 0))
    NOP_ = 5
    ex1 = oconv_items(0, earliest=3 + 3*1 + 2 + 8)
    ex2 = oconv_items(1, earliest=3 + 3*3 + 2 + 8)
    pre_o = [It((lambda k=k, h=h: oread(k, h)), 4, 42) for k in range(NOP_) for h in range(2)]
    phaseB(31, extra=[setup_its, ex1 + ex2, pre_o])
    if cfg.dump == "o":
        a("s_nop 7")
        emit_dump_acc(a, cfg, 204); return
    a(f"v_lshlrev_b32 v{V_ST}, 4, v{lane}")
    a(f"s_mul_i32 s{S_WOFF}, s{S_WID}, {3*14*1024}")
    for qt in range(3):
        a(f"v_accvgpr_read_b32 v{V_RL+2*qt}, a{A_L + 4*qt}")
    for qt in range(3):
        a(f"v_rcp_f32 v{V_RL+2*qt}, v{V_RL+2*qt}")
    a("s_nop 0")
    for qt in range(3):
        a(f"v_mov_b32 v{V_RL+2*qt+1}, v{V_RL+2*qt}")

    cur_slot = -1
    nxt = NOP_
    pend = []
    for si, (p, T, j, tau, nu) in enumerate(steps):
        if j != cur_slot:
            a("s_barrier")
            cur_slot = j
        k0 = sum(s[4] for s in steps[:si])
        if T == 0 and p > 0:
            assert not pend
            pend = conv_items(p - 1)
            for it in pend[:1]: pass
        mf = []
        for u in range(nu):
            k = k0 + u
            for qt in range(3):
                pre = None
                if qt == 0 and u % 2 == 0:
                    pre = (lambda k=k: lg.need(("o", k + 1, 1)))
                mf.append((pre, (lambda u=u, qt=qt, k=k: mfma(a, accstr(p, u, qt), ar(A_WO + 4*(k % FBN), 4), v(Qreg(qt, T), 4), "0" if T == 0 else None))))
        rs = []
        lim = k0 + nu + NOP_
        while nxt < len(frs) and nxt < lim and frs[nxt][3] <= j + 1:
            kk = nxt
            use = 3 * (kk - k0)
            e = max(0, 3 * (kk - FBN - k0) + 2)
            for h in range(2):
                rs.append(It((lambda kk=kk, h=h: oread(kk, h)), 4, max(e, use - 3*NOP_ - 3), max(0, use - 10)))
            nxt += 1
        streams = [rs]
        if p == 0 and T + 2 <= 7:
            streams.append(oconv_items(T + 2))
        if pend:
            if T == 0:
                for it in pend: it.earliest = 4
            streams.append(pend)
            last_of_pass = (T == 7)
            sched(a, mf, [rs] + [pend], flush=False)
            while rs: rs.pop(0).fn()
            if last_of_pass:
                while pend: pend.pop(0).fn()
            for it in pend: it.earliest = 0
        else:
            sched(a, mf, streams)
    a("s_nop 7")
    for it in conv_items(3): it.fn()
    a.label("L_tail_end")
    print("lds throttles:", lg.throttled, file=sys.stderr)
    if cfg.stamps:
        a("s_waitcnt vmcnt(0)")
        a("s_barrier")
    a("s_branch L_end")

def emit_rare(a, cfg, rare_blocks):
    for tag, par in rare_blocks:
        a.label(f"L_rare_{tag}")
        a("s_nop 7")
        for qt in range(3):
            s0 = Sreg(par, qt, 0)
            mx = V_TMP + qt
            a(f"v_max3_f32 v{mx}, v{s0}, v{s0+1}, v{s0+2}")
            a(f"v_max3_f32 v{mx}, v{mx}, v{s0+3}, v{s0+4}")
            a(f"v_max3_f32 v{mx}, v{mx}, v{s0+5}, v{s0+6}")
            a(f"v_max_f32 v{mx}, v{mx}, v{s0+7}")
            xlane_max(a, mx, V_TMP + 4)
            a(f"v_max_f32 v{mx}, 0, v{mx}")
            for r in range(8):
                a(f"v_sub_f32 v{s0+r}, v{s0+r}, v{mx}")
            for r in range(4):
                a(f"v_sub_f32 v{V_CM + 4*qt + r}, v{V_CM + 4*qt + r}, v{mx}")
            a(f"v_sub_f32 v{mx}, 0, v{mx}")
            a(f"v_exp_f32 v{mx}, v{mx}")
        a(f"s_getpc_b64 s[{S_TGT}:{S_TGT+1}]")
        a.label(f"L_pc_{tag}")
        a(f"s_add_u32 s{S_TGT}, s{S_TGT}, L_rescale-L_pc_{tag}")
        a(f"s_addc_u32 s{S_TGT+1}, s{S_TGT+1}, 0")
        a(f"s_swappc_b64 s[{S_RET}:{S_RET+1}], s[{S_TGT}:{S_TGT+1}]")
        a(f"s_branch L_back_{tag}")
    if not rare_blocks: return
    a.label("L_rescale")
    a("s_nop 7")
    for qt in range(3):
        regs = [Oreg(u, qt) + r for u in range(16) for r in range(4)] + [A_L + 4*qt + r for r in range(4)]
        for i in range(0, len(regs), 4):
            for k in range(4):
                a(f"v_accvgpr_read_b32 v{V_TMP+4+k}, a{regs[i+k]}")
            for k in range(4):
                a(f"v_mul_f32 v{V_TMP+4+k}, v{V_TMP+qt}, v{V_TMP+4+k}")
            for k in range(4):
                a(f"v_accvgpr_write_b32 a{regs[i+k]}, v{V_TMP+4+k}")
    a("s_nop 1")
    a(f"s_setpc_b64 s[{S_RET}:{S_RET+1}]")

def emit_dump_common(a, cfg, regs, isacc):
    a("s_mov_b32 s76, s72"); a("s_mov_b32 s77, s73")
    a("s_mov_b32 s78, 0x10000000"); a("s_mov_b32 s79, 0x20000")
    a(f"s_mul_i32 s74, s2, 3")
    a(f"s_add_u32 s74, s74, s{S_WID}")
    a("s_lshl_b32 s74, s74, 16")
    a(f"v_lshlrev_b32 v{V_T0}, 2, v{V_LANE}")
    for i, r in enumerate(regs):
        if isacc:
            a(f"v_accvgpr_read_b32 v{V_T1}, a{r}")
            src = V_T1
        else:
            src = r
        a(f"buffer_store_dword v{src}, v{V_T0}, s[76:79], s74 offen")
        a("s_add_u32 s74, s74, 256")
        if isacc: a("s_waitcnt vmcnt(0)")
    a("s_waitcnt vmcnt(0)")
    n = {"qacc": 33 + 14, "q": 33 + 14, "s0": 32 + 14, "o": 14}[cfg.dump]
    for _ in range(n): a("s_barrier")
    if cfg.stamps: a("s_barrier")
    a.label("L_tail_end")
    if cfg.dump != "o": a.label("L_tail_code")
    a("s_branch L_end")
def emit_dump_acc(a, cfg, n):
    a("s_nop 7")
    emit_dump_common(a, cfg, list(range(n)), True)
def emit_dump_v(a, cfg, base, n, extra=None):
    regs = list(range(base, base + n))
    if extra: regs += list(range(extra[0], extra[0] + extra[1]))
    emit_dump_common(a, cfg, regs, False)

def emit_reduce(a, cfg):
    a.raw(f".globl {RNAME}")
    a.raw(".p2align 8")
    a.raw(f".type {RNAME},@function")
    a.label(RNAME)
    a("s_cmp_ge_u32 s2, 504")
    a("s_cbranch_scc1 LR_end")
    a("s_load_dwordx2 s[4:5], s[0:1], 96")
    a("s_load_dwordx2 s[8:9], s[0:1], 80")
    a("v_lshrrev_b32 v1, 6, v0")
    a("v_and_b32 v2, 63, v0")
    a("v_readfirstlane_b32 s3, v1")
    a("s_lshl_b32 s12, s2, 2")
    a("s_add_u32 s12, s12, s3")
    a(f"s_mul_hi_u32 s13, s12, {(2**32 + 125)//126}")
    a("s_mul_i32 s14, s13, 126")
    a("s_sub_u32 s14, s12, s14")
    a(f"s_mul_hi_u32 s15, s14, {(2**32 + 13)//14}")
    a("s_mul_i32 s16, s15, 14")
    a("s_sub_u32 s16, s14, s16")
    a("s_waitcnt lgkmcnt(0)")
    a(f"s_mul_i32 s17, s13, {16*129024}")
    a("s_lshl_b32 s18, s14, 10")
    a("s_add_u32 s17, s17, s18")
    a("s_add_u32 s4, s4, s17")
    a("s_addc_u32 s5, s5, 0")
    a(f"s_mov_b32 s6, {15*129024 + 1024}")
    a("s_mov_b32 s7, 0x20000")
    a("v_lshlrev_b32 v3, 4, v2")
    for h in range(16):
        a(f"s_mov_b32 s19, {h*129024}")
        a(f"buffer_load_dwordx4 v[{8+4*h}:{11+4*h}], v3, s[4:7], s19 offen{cfg.rd_flags}")
    a("s_and_b32 s20, s13, 7")
    a("s_lshr_b32 s21, s13, 3")
    a("s_mul_i32 s20, s20, 144")
    a("s_lshl_b32 s22, s15, 4")
    a("s_add_u32 s20, s20, s22")
    a("s_mul_i32 s20, s20, 1792")
    a("s_mul_i32 s21, s21, 896")
    a("s_lshl_b32 s22, s16, 6")
    a("s_add_u32 s20, s20, s21")
    a("s_add_u32 s20, s20, s22")
    a("v_and_b32 v4, 15, v2")
    a("v_mul_u32_u24 v4, 1792, v4")
    a("v_lshrrev_b32 v5, 4, v2")
    a("v_lshl_add_u32 v4, v5, 3, v4")
    a("s_mov_b32 s10, %d" % (8*144*896*2))
    a("s_mov_b32 s11, 0x20000")
    for h in range(16):
        a(f"s_waitcnt vmcnt({15-h})")
        for r in range(4):
            src = 8 + 4*h + r
            if h == 0:
                a(f"v_lshlrev_b32 v{72+2*r}, 16, v{src}")
                a(f"v_and_b32 v{73+2*r}, 0xffff0000, v{src}")
            else:
                a(f"v_lshlrev_b32 v80, 16, v{src}")
                a(f"v_and_b32 v81, 0xffff0000, v{src}")
                a(f"v_add_f32 v{72+2*r}, v{72+2*r}, v80")
                a(f"v_add_f32 v{73+2*r}, v{73+2*r}, v81")
    for r in range(4):
        a(f"v_cvt_pk_bf16_f32 v{84+r}, v{72+2*r}, v{73+2*r}")
    a("buffer_store_dwordx2 v[84:85], v4, s[8:11], s20 offen")
    a("buffer_store_dwordx2 v[86:87], v4, s[8:11], s20 offen offset:32")
    a.label("LR_end")
    a("s_endpgm")

def kd(a, name, vg, acc, sg=102):
    a.raw(f".amdhsa_kernel {name}")
    a.raw(f"  .amdhsa_next_free_vgpr {vg}")
    a.raw(f"  .amdhsa_next_free_sgpr {sg}")
    a.raw(f"  .amdhsa_accum_offset {acc}")
    a.raw("  .amdhsa_group_segment_fixed_size 0")
    a.raw("  .amdhsa_kernarg_size 104")
    a.raw("  .amdhsa_user_sgpr_count 2")
    a.raw("  .amdhsa_user_sgpr_kernarg_segment_ptr 1")
    a.raw("  .amdhsa_system_sgpr_workgroup_id_x 1")
    a.raw(".end_amdhsa_kernel")

HEADER = """; Fused MHA block (two branches): Q-proj + flash attention + partial out-proj per (branch,batch,head) workgroup,
"""
def generate(cfg):
    a = Asm()
    a.raw(HEADER.rstrip())
    a.raw(f"; @launch kernel={KNAME} grid=(256,1,1) block=(256,1,1) lds=163840")
    if not cfg.dump:
        a.raw(f"; @launch kernel={RNAME} grid=(504,1,1) block=(256,1,1) lds=0")
    a.raw('.amdgcn_target "amdgcn-amd-amdhsa--gfx950"')
    a.raw(".text")
    a.raw(f".globl {KNAME}")
    a.raw(".p2align 8")
    a.raw(f".type {KNAME},@function")
    a.label(KNAME)
    emit_setup(a, cfg)
    rare = []
    emit_compute_main(a, cfg, rare)
    emit_loader(a, cfg)
    a.label("L_code_end")
    emit_rare(a, cfg, rare)
    a.label("L_end")
    a("s_endpgm")
    if not cfg.dump:
        emit_reduce(a, cfg)
    a.raw('.section .rodata,"a"')
    a.raw(".p2align 6")
    kd(a, KNAME, 512, 256)
    if not cfg.dump:
        a.raw(".p2align 6")
        kd(a, RNAME, 96, 96, 32)
    return a.text()

if __name__ == "__main__":
    cfg = Cfg()
    out = sys.argv[1]
    for kv in sys.argv[2:]:
        k, val = kv.split("=", 1)
        cur = getattr(cfg, k)
        if isinstance(cur, bool): val = val in ("1", "True", "true")
        elif isinstance(cur, float): val = float(val)
        elif isinstance(cur, int): val = int(val)
        elif val == "None": val = None
        setattr(cfg, k, val)
    open(out, "w").write(generate(cfg))
```

```python
import sys, math, struct, re

KNAME = "concat_heads__mha_block_cached__mha_block_cached__near_ridge_kernel"
RNAME = "reduce_kernel"

class Asm:
    def __init__(self):
        self.L = []
    def __call__(self, s):
        self.L.append("    " + s)
    def label(self, s):
        self.L.append(s + ":")
    def raw(self, s):
        self.L.append(s)
    def text(self):
        return "\n".join(self.L) + "\n"

class Lgkm:
    def __init__(self, a):
        self.a = a; self.q = []; self.issued = set(); self.throttled = 0
    def issue(self, ins, tag):
        if len(self.q) >= 15:
            self.a("s_waitcnt lgkmcnt(14)"); self.q = self.q[len(self.q) - 14:]; self.throttled += 1
        self.a(ins); self.q.append(tag); self.issued.add(tag)
    def need(self, tag):
        assert tag in self.issued, ("not issued", tag)
        if tag in self.q:
            idx = len(self.q) - 1 - self.q[::-1].index(tag)
            n = len(self.q) - 1 - idx
            self.a(f"s_waitcnt lgkmcnt({n})")
            self.q = self.q[idx + 1:]
    def drain(self):
        if self.q:
            self.a("s_waitcnt lgkmcnt(0)")
            self.q = []

class Vm:
    def __init__(self, a):
        self.a = a; self.q = []
    def room(self, n):
        over = len(self.q) + n - 63
        if over > 0:
            keep = len(self.q) - over
            self.a(f"s_waitcnt vmcnt({keep})")
            self.q = self.q[over:]
    def issue(self, ins, tag):
        assert len(self.q) < 63
        self.a(ins); self.q.append(tag)
    def need(self, tag):
        if tag in self.q:
            idx = len(self.q) - 1 - self.q[::-1].index(tag)
            n = len(self.q) - 1 - idx
            self.a(f"s_waitcnt vmcnt({n})")
            self.q = self.q[idx + 1:]

class It:
    def __init__(self, fn, cost=4, earliest=0, deadline=10**9):
        self.fn, self.cost, self.earliest, self.deadline = fn, cost, earliest, deadline

def sched(a, mf, streams, budget=8, flush=True):
    n = len(mf)
    for m, (pre, emit) in enumerate(mf):
        if pre: pre()
        emit()
        b = budget
        if m + 1 < n and mf[m + 1][0] is not None: b -= 4
        for st in streams:
            while st and st[0].deadline <= m:
                it = st.pop(0); it.fn(); b -= it.cost
        for st in streams:
            while st and st[0].earliest <= m and st[0].cost <= b:
                it = st.pop(0); it.fn(); b -= it.cost
    if flush:
        prog = True
        while any(streams):
            for st in streams:
                if st:
                    it = st.pop(0); it.fn()

def v(n, cnt=1):
    return f"v{n}" if cnt == 1 else f"v[{n}:{n+cnt-1}]"
def ar(n, cnt=1):
    return f"a{n}" if cnt == 1 else f"a[{n}:{n+cnt-1}]"
def f2u(x): return struct.unpack("<I", struct.pack("<f", x))[0]

V_LANE = 1
V_T0, V_T1 = 2, 3
V_KB = 4
V_VB = 8
V_TMP = 16
V_S = [24, 48]
V_P = 72
V_CM = 84
V_KBUF = 96
V_VBUF = 128
V_Q = 160
A_O = 0
A_L = 192
A_ONES = 204
A_X = 0
A_W = 168
A_DUMMY = 232
V_QACC = 64
V_WB = 16
V_XB = 20
A_WO = 208
V_P0 = 64
VBK, VBE = 24, 32
V_RL = 16
V_ST = 22
V_CT = 40

def Qreg(qt, T): return V_Q + (qt * 8 + T) * 4
def Xreg(s, qt): return A_X + (s * 3 + qt) * 4
def QAcc(u, qt): return V_QACC + (qt * 8 + (u >> 1)) * 8 + 4 * (u & 1)
def Oreg(u, qt): return A_O + (u * 3 + qt) * 4
def Sreg(par, qt, a): return V_S[par] + (qt * 2 + a) * 4

KS = [i * 16384 for i in range(4)]
VREG = 65536
VS = [VREG + i * 16384 for i in range(4)]
ES = [131072, 147456]
WRING = [ES[0], ES[1], VS[2], VS[3]]
WBASE = VS[2]
XW = 43008
WOSLOT = [ES[0], ES[1], KS[0], KS[1], VS[0], KS[2], VS[1], KS[3], VS[2], VS[3], ES[0], ES[1], KS[0], KS[1]]

S_WID = 3
S_X, S_K, S_V, S_WQ, S_WO, S_WS = 4, 8, 12, 16, 20, 24
S_B, S_H, S_BR, S_THR = 28, 29, 30, 31
S_SO, S_SO2, S_CNT = 32, 33, 34
S_RET, S_TGT = 36, 38
S_WOFF = 40
S_PC = 56
S_TS = 60

QSCALE = math.log2(math.e) / 16.0
CNT_OFF = 0x2100000

class Cfg:
    nt_kv = True
    nt_w = True
    nt_x = True
    nt_wo = True
    nt_warm = True
    st_flags = " sc0 sc1"
    rd_flags = " sc0 sc1"
    warm_wq = True
    warm_wo = False
    code_pf = True
    thr = 8.0
    dump = None
    stamps = False
    kvsched = "c"
    fused = True
    poll_flags = " sc1"
    out_flags = ""
    aslist = False
    sig_t = 4
    poll_sleep = 2
    sig_t1 = 6
    nkp = 8
    nvp = 4

def emit_setup(a, cfg):
    a("s_cmp_ge_u32 s2, 256")
    a("s_cbranch_scc1 L_end")
    if cfg.stamps:
        a(f"s_memrealtime s[{S_TS}:{S_TS+1}]")
    a("s_load_dwordx4 s[44:47], s[0:1], 0")
    a("s_load_dwordx4 s[48:51], s[0:1], 16")
    a("s_load_dwordx2 s[52:53], s[0:1], 32")
    a("s_load_dwordx2 s[54:55], s[0:1], 40")
    a("s_load_dwordx4 s[64:67], s[0:1], 48")
    a("s_load_dwordx4 s[68:71], s[0:1], 64")
    a("s_load_dwordx2 s[72:73], s[0:1], 96")
    a("s_load_dwordx4 s[80:83], s[0:1], 80")
    a(f"v_lshrrev_b32 v{V_T0}, 6, v0")
    a(f"v_and_b32 v{V_LANE}, 63, v0")
    a(f"v_readfirstlane_b32 s{S_WID}, v{V_T0}")
    a("s_and_b32 s74, s2, 7")
    a("s_lshr_b32 s75, s2, 3")
    a(f"s_lshr_b32 s{S_BR}, s74, 2")
    a("s_and_b32 s76, s74, 3")
    a("s_lshl_b32 s76, s76, 2")
    a("s_and_b32 s77, s75, 3")
    a(f"s_add_u32 s{S_H}, s76, s77")
    a(f"s_lshr_b32 s{S_B}, s75, 2")
    a(f"s_mul_i32 s78, s{S_B}, 129024")
    a(f"s_lshl_b32 s79, s{S_H}, 9")
    a(f"s_mov_b32 s{S_X+2}, 129024")
    a(f"s_mov_b32 s{S_X+3}, 0x20000")
    a(f"s_sub_u32 s{S_WQ+2}, {448*8192}, s79")
    a(f"s_mov_b32 s{S_WQ+3}, 0x20000")
    a("s_waitcnt lgkmcnt(0)")
    a(f"s_cmp_eq_u32 s{S_BR}, 0")
    a(f"s_cselect_b32 s{S_X}, s44, s54")
    a(f"s_cselect_b32 s{S_X+1}, s45, s55")
    a(f"s_cselect_b32 s{S_WQ}, s50, s68")
    a(f"s_cselect_b32 s{S_WQ+1}, s51, s69")
    a(f"s_cselect_b32 s{S_K}, s46, s64")
    a(f"s_cselect_b32 s{S_K+1}, s47, s65")
    a(f"s_cselect_b32 s{S_V}, s48, s66")
    a(f"s_cselect_b32 s{S_V+1}, s49, s67")
    a(f"s_cselect_b32 s{S_WO}, s52, s70")
    a(f"s_cselect_b32 s{S_WO+1}, s53, s71")
    a(f"s_add_u32 s{S_X}, s{S_X}, s78")
    a(f"s_addc_u32 s{S_X+1}, s{S_X+1}, 0")
    a(f"s_add_u32 s{S_WQ}, s{S_WQ}, s79")
    a(f"s_addc_u32 s{S_WQ+1}, s{S_WQ+1}, 0")
    a(f"s_cmp_eq_u32 s{S_WID}, 3")
    a("s_cbranch_scc1 L_loader")

def emit_setup_late(a, cfg, loader):
    a(f"s_lshl_b32 s74, s{S_B}, 4")
    a(f"s_add_u32 s74, s74, s{S_H}")
    if loader:
        a("s_lshl_b32 s75, s74, 19")
        for S in (S_K, S_V):
            a(f"s_add_u32 s{S}, s{S}, s75")
            a(f"s_addc_u32 s{S+1}, s{S+1}, 0")
            a(f"s_mov_b32 s{S+2}, 524288")
            a(f"s_mov_b32 s{S+3}, 0x20000")
        a(f"s_mul_i32 s75, s{S_H}, {256*896}")
        a(f"s_add_u32 s{S_WO}, s{S_WO}, s75")
        a(f"s_addc_u32 s{S_WO+1}, s{S_WO+1}, 0")
        a(f"s_mov_b32 s{S_WO+2}, {256*896}")
        a(f"s_mov_b32 s{S_WO+3}, 0x20000")
    else:
        a(f"s_lshl_b32 s75, s{S_BR}, 7")
        a("s_add_u32 s74, s74, s75")
        a("s_mul_i32 s74, s74, 129024")
        a(f"s_add_u32 s{S_WS}, s72, s74")
        a(f"s_addc_u32 s{S_WS+1}, s73, 0")
        a(f"s_mov_b32 s{S_WS+2}, 129024")
        a(f"s_mov_b32 s{S_WS+3}, 0x20000")

def ntb(cfg): return 9 if (cfg.fused and not cfg.dump) else 14
def barrier_list(cfg):
    L = [("PB", s) for s in range(14)]
    L += [("B", t) for t in range(-1, 32)]
    L += [("TB", j) for j in range(ntb(cfg))]
    return L

KVSCHED = {
    "a": {1: [("K", 0)], 2: [("V", 0)], 3: [("K", 1)], 4: [("K", 2)], 6: [("V", 1)], 7: [("K", 3)], 11: [("V", 2)], 12: [("V", 3)]},
    "b": {1: [("K", 0), ("V", 0)], 2: [("K", 1)], 3: [("K", 2)], 4: [("V", 1)], 5: [("K", 3)], 11: [("V", 2)], 12: [("V", 3)]},
    "c": {1: [("K", 0)], 3: [("V", 0)], 4: [("K", 1)], 6: [("K", 2)], 7: [("V", 1)], 9: [("K", 3)], 11: [("V", 2)], 12: [("V", 3)]},
}

def emit_code_prefetch(a, cfg, vm, vaddr, lo, hi, dst):
    a(f"s_getpc_b64 s[{S_PC}:{S_PC+1}]")
    lab = f"L_pc_{lo}"
    a.label(lab)
    a(f"s_add_u32 s{S_PC}, s{S_PC}, {lo}-{lab}")
    a(f"s_addc_u32 s{S_PC+1}, s{S_PC+1}, 0")
    a(f"s_mov_b32 s{S_PC+2}, {hi}-{lo}")
    a(f"s_mov_b32 s{S_PC+3}, 0x20000")
    return

def emit_loader(a, cfg):
    a.label("L_loader")
    vm = Vm(a)
    LH, LP = 2, 3
    VK, VV, VW, VO, VO3 = 8, 16, 20, 24, 28
    T0, T1 = 4, 5
    stamp_idx = [0]
    def xstamp(i):
        if cfg.stamps:
            a("s_memrealtime s[62:63]")
            a("s_waitcnt lgkmcnt(0)")
            a(f"v_writelane_b32 v202, s62, {i}")
    if cfg.stamps:
        a(f"v_writelane_b32 v200, s{S_TS}, 0")
    xstamp(0)
    a(f"v_lshrrev_b32 v{LH}, 5, v{V_LANE}")
    a(f"v_and_b32 v{LP}, 31, v{V_LANE}")
    a(f"v_lshlrev_b32 v32, 4, v{V_LANE}")
    def chunkpat(i):
        a(f"v_add_u32 v{T0}, {2*i}, v{LH}")
        a(f"v_lshlrev_b32 v{T0}, 1, v{T0}")
        a(f"v_xor_b32 v{T0}, v{T0}, v{LP}")
    for i in range(4):
        chunkpat(i)
        a(f"v_lshlrev_b32 v{T1}, 4, v{T0}")
        a(f"v_lshl_add_u32 v{VW+i}, v{LH}, 13, v{T1}")
    ntkv = " nt" if cfg.nt_kv else ""
    ntw = " nt" if cfg.nt_w else ""
    ntwo = " nt" if cfg.nt_wo else ""
    ntwarm = " nt" if cfg.nt_warm else ""

    def tile_kv(kind, t):
        srd = S_K if kind == "K" else S_V
        lds = KS[t % 4] if kind == "K" else VS[t % 4]
        vm.room(16)
        for m in range(4):
            a(f"s_mov_b32 m0, {lds + m*4096}")
            a(f"s_mov_b32 s{S_SO}, {t*16384 + m*4096}")
            for n in range(4):
                i = 4*m + n
                vo = VK + (i & 7) if kind == "K" else VV + (i & 3)
                vm.issue(f"buffer_load_dwordx4 v{vo}, s[{srd}:{srd+3}], s{S_SO} offen offset:{n*1024}{ntkv} lds", (kind, t))
    def tile_w(s):
        lds = WRING[s % 4]
        vm.room(16)
        for i in range(16):
            sig0 = 8*((i & 7) >> 1) + 4*(i >> 3) + 2*(i & 1)
            a(f"s_mov_b32 m0, {lds + i*1024}")
            a(f"s_mov_b32 s{S_SO}, {(s*32 + sig0)*8192}")
            vm.issue(f"buffer_load_dwordx4 v{VW + (i & 3)}, s[{S_WQ}:{S_WQ+3}], s{S_SO} offen{ntw} lds", ("W", s))
    def tile_wo(j):
        lds = WOSLOT[j]
        vm.room(16)
        for i in range(16):
            if j < 12:
                p, T0_ = j // 4, (j % 4) * 2
                so = (32*T0_ + 2*i)*896 + p*256
                vo = VO + (i & 3)
            else:
                T0_ = (j - 12) * 4
                so = (32*T0_ + 2*i)*896 + 768
                vo = VO3 + (i & 3)
            a(f"s_mov_b32 m0, {lds + i*1024}")
            a(f"s_mov_b32 s{S_SO}, {so}")
            vm.issue(f"buffer_load_dwordx4 v{vo}, s[{S_WO}:{S_WO+3}], s{S_SO} offen{ntwo} lds", ("WO", j))
    def warm_wo(i0, n):
        vm.room(n)
        for i in range(i0, i0 + n):
            a(f"s_mul_i32 s{S_SO}, s{S_B}, 28672")
            a(f"s_add_u32 s{S_SO}, s{S_SO}, {i*1024}")
            vm.issue(f"buffer_load_dwordx4 v[36:39], v32, s[{S_WO}:{S_WO+3}], s{S_SO} offen{ntwarm}", ("warm", i))
    def code_pf(lo, hi, tagn):
        a(f"s_getpc_b64 s[{S_PC}:{S_PC+1}]")
        lab = f"L_pc_{tagn}"
        a.label(lab)
        a(f"s_add_u32 s{S_PC}, s{S_PC}, {lo}-{lab}")
        a(f"s_addc_u32 s{S_PC+1}, s{S_PC+1}, -1" if False else f"s_addc_u32 s{S_PC+1}, s{S_PC+1}, ({lo}-{lab})>>32")
        a(f"s_mov_b32 s{S_PC+2}, {hi}-{lo}")
        a(f"s_mov_b32 s{S_PC+3}, 0x20000")
        a(f"s_lshr_b32 s{S_SO2}, s2, 3")
        a(f"s_mul_i32 s{S_SO2}, s{S_SO2}, 3072")
        vm.room(3)
        for i in range(3):
            vm.issue(f"buffer_load_dwordx4 v[36:39], v32, s[{S_PC}:{S_PC+3}], s{S_SO2} offen offset:{i*1024}", ("pf", tagn, i))

    fused = cfg.fused and not cfg.dump
    if fused:
        emit_cnt_srd(a)
        a("s_mov_b32 s48, s82"); a("s_mov_b32 s49, s83")
        a("s_mov_b32 s50, 256"); a("s_mov_b32 s51, 0x20000")
        a(f"s_lshl_b32 s52, s{S_BR}, 3")
        a(f"s_add_u32 s52, s52, s{S_B}")
        a("s_lshl_b32 s52, s52, 4")
        a(f"s_cmp_lg_u32 s{S_H}, 0")
        a("s_cbranch_scc1 L_noinit")
        a(f"v_lshlrev_b32 v33, 12, v{V_LANE}")
        a("v_mov_b32 v34, 0")
        a("s_mov_b64 exec, 7")
        a("buffer_store_dword v34, v33, s[84:87], 0 offen sc1")
        a("s_mov_b64 exec, -1")
        a.label("L_noinit")
    tile_w(0); xstamp(1)
    if cfg.code_pf: code_pf(KNAME, "L_code_end", "all")
    tile_w(1); xstamp(2)
    emit_setup_late(a, cfg, True)
    for i in range(8):
        a(f"v_add_u32 v{T0}, {2*i}, v{LH}")
        a(f"v_xor_b32 v{T0}, v{T0}, v{LP}")
        a(f"v_lshlrev_b32 v{T0}, 4, v{T0}")
        a(f"v_lshl_add_u32 v{VK+i}, v{LH}, 9, v{T0}")
    for i in range(4):
        chunkpat(i)
        a(f"v_lshlrev_b32 v{T1}, 4, v{T0}")
        a(f"v_lshl_add_u32 v{VV+i}, v{LH}, 9, v{T1}")
        a(f"v_lshrrev_b32 v6, 4, v{T0}")
        a(f"v_lshl_add_u32 v6, v6, 5, v{LH}")
        a(f"v_mul_u32_u24 v6, 896, v6")
        a(f"v_and_b32 v7, 15, v{T0}")
        a(f"v_lshl_add_u32 v{VO+i}, v7, 4, v6")
        a(f"v_lshrrev_b32 v6, 3, v{T0}")
        a(f"v_lshl_add_u32 v6, v6, 5, v{LH}")
        a(f"v_mul_u32_u24 v6, 896, v6")
        a(f"v_and_b32 v7, 7, v{T0}")
        a(f"v_lshl_add_u32 v{VO3+i}, v7, 4, v6")
    xstamp(3)
    kv_after_pb = KVSCHED[cfg.kvsched]
    for name, idx in barrier_list(cfg):
        if name == "PB":
            if idx == 0: vm.need(("W", 0)); vm.need(("W", 1))
            elif idx == 1: pass
            elif idx + 1 <= 13: vm.need(("W", idx + 1))
        elif name == "B":
            t = idx
            if t == -1:
                vm.need(("K", 0)); vm.need(("K", 1))
            else:
                if t + 2 <= 31: vm.need(("K", t + 2))
                vm.need(("V", t))
            if t == 31:
                vm.need(("WO", 0)); vm.need(("WO", 1))
        else:
            j = idx
            vm.need(("WO", min(j + 1, 13)))
            if j == ntb(cfg) - 1: vm.need(("WO", 13))
        a("s_barrier")
        if cfg.stamps:
            stamp_idx[0] += 1
            a("s_memrealtime s[62:63]")
            a("s_waitcnt lgkmcnt(0)")
            a(f"v_writelane_b32 v200, s62, {stamp_idx[0]}")
            a("s_memtime s[62:63]")
            a("s_waitcnt lgkmcnt(0)")
            a(f"v_writelane_b32 v203, s62, {stamp_idx[0]}")
        if name == "PB" and idx == 0 and fused:
            a(f"s_cmp_lg_u32 s{S_H}, 0")
            a("s_cbranch_scc1 L_noinit2")
            a("v_mov_b32 v34, 1")
            a("s_mov_b64 exec, 1")
            a("buffer_atomic_add v34, off, s[48:51], s52")
            a("s_mov_b64 exec, -1")
            a.label("L_noinit2")
        if name == "PB":
            if idx == 1: tile_w(2); tile_w(3); tile_w(4)
            elif idx >= 2 and idx + 3 <= 13: tile_w(idx + 3)
            for k, t in kv_after_pb.get(idx, []): tile_kv(k, t)
        elif name == "B":
            t = idx
            if t >= 0:
                if t + 4 <= 31: tile_kv("K", t + 4)
                if t >= 1 and t + 3 <= 31: tile_kv("V", t + 3)
            if cfg.warm_wo and 18 <= t <= 24:
                warm_wo((t - 18) * 4, 4)
            if cfg.code_pf and t == 25: code_pf("L_tail_code", "L_tail_end", "tail")
            if fused and t == 10:
                vm.room(1)
                a("s_mov_b64 exec, 1")
                vm.issue(f"buffer_load_dword v35, off, s[48:51], s52 sc1", ("initflag",))
                a("s_mov_b64 exec, -1")
            if fused and t == 14:
                vm.need(("initflag",))
                a("v_readfirstlane_b32 s90, v35")
                a("s_nop 3")
                a("s_cmp_ge_u32 s90, 1")
                a("s_cbranch_scc1 L_init_ok")
                a("s_mov_b64 exec, 1")
                a("s_mov_b32 s89, 0")
                a.label("L_init_poll")
                a("buffer_load_dword v35, off, s[48:51], s52 sc1")
                a("s_waitcnt vmcnt(0)")
                a("v_readfirstlane_b32 s90, v35")
                a("s_add_u32 s89, s89, 1")
                a("s_cmp_ge_u32 s90, 1")
                a("s_cbranch_scc1 L_init_done")
                a("s_cmp_ge_u32 s89, 0x40000")
                a("s_cbranch_scc1 L_init_done")
                a("s_sleep 8")
                a("s_branch L_init_poll")
                a.label("L_init_done")
                a("s_mov_b64 exec, -1")
                a.label("L_init_ok")
            if t == 26: tile_wo(0)
            if t == 27: tile_wo(1)
            if t == 28: tile_wo(2)
            if t == 29: tile_wo(3); tile_wo(4)
            if t == 30: tile_wo(5); tile_wo(6)
            if t == 31: tile_wo(7); tile_wo(8)
        else:
            j = idx
            if j == 0: tile_wo(9)
            if 1 <= j <= 4: tile_wo(9 + j)
            if j == 5 and cfg.fused and not cfg.dump:
                a(f"v_lshlrev_b32 v33, 2, v{V_LANE}")
                a(f"v_add_u32 v33, {VS[0]}, v33")
                a("v_mov_b32 v34, 0")
                a("ds_write_b32 v33, v34")
                a("s_waitcnt lgkmcnt(0)")
    a("s_waitcnt vmcnt(0)")
    if cfg.fused and not cfg.dump:
        emit_red_setup(a, cfg)
        for p in range(2):
            emit_poll(a, cfg, p)
            xstamp(4 + p)
            for e in range(2):
                a(f"s_add_u32 s90, s{S_H}, {16*e}")
                a(f"s_lshr_b32 s{96+2*e}, s90, 2")
                a("s_and_b32 s90, s90, 3")
                a(f"s_add_u32 s{97+2*e}, s90, {4*p}")
            emit_reduce_frags(a, cfg, 2)
        emit_poll(a, cfg, 2)
        xstamp(6)
        a("s_barrier")
        emit_final_reduce(a, cfg)
        xstamp(7)
    if cfg.stamps:
        if not (cfg.fused and not cfg.dump): a("s_barrier")
        a("s_memrealtime s[62:63]")
        a("s_waitcnt lgkmcnt(0)")
        a(f"v_writelane_b32 v200, s62, 62")
        a("s_mov_b32 s76, s72"); a("s_mov_b32 s77, s73")
        a("s_mov_b32 s78, 0x10000000"); a("s_mov_b32 s79, 0x20000")
        a("s_lshl_b32 s74, s2, 8")
        a("s_add_u32 s74, s74, 0x4000000")
        a(f"v_lshlrev_b32 v201, 2, v{V_LANE}")
        a("buffer_store_dword v200, v201, s[76:79], s74 offen")
        a("s_add_u32 s74, s74, 0x100000")
        a("buffer_store_dword v202, v201, s[76:79], s74 offen")
        a("s_add_u32 s74, s74, 0x100000")
        a("buffer_store_dword v203, v201, s[76:79], s74 offen")
        a("s_waitcnt vmcnt(0)")
    a("s_branch L_end")

def emit_cnt_srd(a):
    a(f"s_lshl_b32 s84, s{S_BR}, 3")
    a(f"s_add_u32 s84, s84, s{S_B}")
    a("s_lshl_b32 s84, s84, 14")
    a(f"s_add_u32 s84, s84, {CNT_OFF}")
    a("s_add_u32 s84, s72, s84")
    a("s_addc_u32 s85, s73, 0")
    a("s_mov_b32 s86, 16384"); a("s_mov_b32 s87, 0x20000")

def emit_red_setup(a, cfg):
    lane = V_LANE
    emit_cnt_srd(a)
    a(f"s_lshl_b32 s88, s{S_BR}, 3")
    a(f"s_add_u32 s88, s88, s{S_B}")
    a(f"s_mul_i32 s45, s88, {16*129024}")
    a("s_add_u32 s44, s72, s45")
    a("s_addc_u32 s45, s73, 0")
    a(f"s_mov_b32 s46, {16*129024}")
    a("s_mov_b32 s47, 0x20000")
    a("s_mov_b32 s92, s80"); a("s_mov_b32 s93, s81")
    a(f"s_mov_b32 s94, {8*144*896*2}"); a("s_mov_b32 s95, 0x20000")

_lab = [0]
def emit_poll(a, cfg, p):
    _lab[0] += 1; n = _lab[0]
    a("s_mov_b64 exec, 1")
    a("s_mov_b32 s89, 0")
    a.label(f"L_poll{n}")
    a(f"s_mov_b32 s88, {4096*p}")
    a(f"buffer_load_dword v2, off, s[84:87], s88{cfg.poll_flags}")
    a("s_waitcnt vmcnt(0)")
    a("v_readfirstlane_b32 s90, v2")
    a("s_add_u32 s89, s89, 1")
    a("s_cmp_ge_u32 s90, 16")
    a(f"s_cbranch_scc1 L_poll_done{n}")
    a("s_cmp_ge_u32 s89, 0x40000")
    a(f"s_cbranch_scc1 L_poll_done{n}")
    a(f"s_sleep {cfg.poll_sleep}")
    a(f"s_branch L_poll{n}")
    a.label(f"L_poll_done{n}")
    a("s_mov_b64 exec, -1")

def emit_reduce_frags(a, cfg, nf):
    lane = V_LANE
    a(f"v_lshlrev_b32 v2, 4, v{lane}")
    for e in range(nf):
        a(f"s_mul_i32 s90, s{96+2*e}, 14")
        a(f"s_add_u32 s90, s90, s{97+2*e}")
        a("s_lshl_b32 s91, s90, 10")
        for hh in range(16):
            r = 64 + 64*e + 4*hh
            a(f"buffer_load_dwordx4 v[{r}:{r+3}], v2, s[44:47], s91 offen{cfg.rd_flags}")
            if hh < 15: a(f"s_add_u32 s91, s91, 129024")
    a(f"v_and_b32 v3, 15, v{lane}")
    a("v_mul_u32_u24 v3, 1792, v3")
    a(f"v_lshrrev_b32 v4, 4, v{lane}")
    a("v_lshl_add_u32 v3, v4, 3, v3")
    for e in range(nf):
        a(f"s_mul_i32 s100, s{S_B}, 144")
        a(f"s_lshl_b32 s90, s{96+2*e}, 4")
        a("s_add_u32 s100, s100, s90")
        a("s_mul_i32 s100, s100, 1792")
        a(f"s_lshl_b32 s90, s{97+2*e}, 6")
        a("s_add_u32 s100, s100, s90")
        a(f"s_mul_i32 s90, s{S_BR}, 896")
        a(f"s_add_u32 s{96+2*e}, s100, s90")
    for e in range(nf):
        acc = 32 + 8*e
        for hh in range(16):
            a(f"s_waitcnt vmcnt({16*nf - 1 - 16*e - hh})")
            for r in range(4):
                src = 64 + 64*e + 4*hh + r
                if hh == 0:
                    a(f"v_lshlrev_b32 v{acc+2*r}, 16, v{src}")
                    a(f"v_and_b32 v{acc+2*r+1}, 0xffff0000, v{src}")
                else:
                    t = 8 + 2*r
                    a(f"v_lshlrev_b32 v{t}, 16, v{src}")
                    a(f"v_and_b32 v{t+1}, 0xffff0000, v{src}")
            if hh > 0:
                for r in range(4):
                    t = 8 + 2*r
                    a(f"v_pk_add_f32 v[{acc+2*r}:{acc+2*r+1}], v[{acc+2*r}:{acc+2*r+1}], v[{t}:{t+1}]")
        for r in range(4):
            a(f"v_cvt_pk_bf16_f32 v{48+4*e+r}, v{acc+2*r}, v{acc+2*r+1}")
    for e in range(nf):
        a(f"buffer_store_dwordx2 v[{48+4*e}:{49+4*e}], v3, s[92:95], s{96+2*e} offen{cfg.out_flags}")
        a(f"buffer_store_dwordx2 v[{50+4*e}:{51+4*e}], v3, s[92:95], s{96+2*e} offen offset:32{cfg.out_flags}")

def emit_final_reduce(a, cfg):
    _lab[0] += 1; n = _lab[0]
    a(f"s_lshl_b32 s90, s{S_WID}, 4")
    a(f"s_add_u32 s90, s90, s{S_H}")
    a("s_cmp_ge_u32 s90, 62")
    a(f"s_cbranch_scc1 L_fin_done{n}")
    a("s_lshr_b32 s96, s90, 2")
    a("s_and_b32 s97, s90, 3")
    a("s_add_u32 s97, s97, 8")
    a("s_sub_u32 s91, s90, 36")
    a("s_lshr_b32 s98, s91, 1")
    a("s_and_b32 s99, s91, 1")
    a("s_add_u32 s99, s99, 12")
    a("s_cmp_ge_u32 s90, 36")
    a("s_cselect_b32 s96, s98, s96")
    a("s_cselect_b32 s97, s99, s97")
    a("s_sub_u32 s91, s90, 54")
    a("s_cmp_ge_u32 s90, 54")
    a("s_cselect_b32 s96, 8, s96")
    a("s_cselect_b32 s97, s91, s97")
    emit_reduce_frags(a, cfg, 1)
    a.label(f"L_fin_done{n}")

def mfma(a, D, A, B, C=None):
    a(f"v_mfma_f32_16x16x32_bf16 {D}, {A}, {B}, {C if C is not None else D}")

def xlane_max(a, r, tmp):
    a(f"v_mov_b32 v{tmp}, v{r}")
    a("s_nop 1")
    a(f"v_permlane32_swap_b32 v{r}, v{tmp}")
    a("s_nop 1")
    a(f"v_max_f32 v{r}, v{r}, v{tmp}")
    a(f"v_mov_b32 v{tmp}, v{r}")
    a("s_nop 1")
    a(f"v_permlane16_swap_b32 v{r}, v{tmp}")
    a("s_nop 1")
    a(f"v_max_f32 v{r}, v{r}, v{tmp}")

def emit_compute(a, cfg):
    rare_blocks = []
    emit_compute_main(a, cfg, rare_blocks)
    emit_rare(a, cfg, rare_blocks)

def emit_compute_main(a, cfg, rare_blocks):
    lg = Lgkm(a)
    lane = V_LANE
    T0, T1 = V_T0, V_T1
    NKP, NVP = cfg.nkp, cfg.nvp
    a(f"v_lshrrev_b32 v{T0}, 3, v{lane}")
    a(f"v_and_b32 v{T1}, 7, v{lane}")
    a(f"v_lshrrev_b32 v22, 1, v{T0}")
    a(f"v_xor_b32 v22, v22, v{T1}")
    a(f"v_mul_u32_u24 v23, 896, v{T0}")
    a(f"v_lshl_add_u32 v24, v22, 4, v23")
    a(f"v_xor_b32 v22, 4, v22")
    a(f"v_lshl_add_u32 v25, v22, 4, v23")
    a(f"v_add_u32 v25, {8*896}, v25")
    a(f"s_mul_i32 s74, s{S_WID}, {XW}")
    vm = Vm(a)
    ntx = " nt" if cfg.nt_x else ""
    for sp in range(7):
        for qt in range(3):
            for hb in range(2):
                a(f"s_add_u32 m0, s74, {((qt*2 + hb)*7 + sp)*1024}")
                a(f"s_add_u32 s{S_SO}, s74, {qt*14336 + sp*128}")
                vm.issue(f"buffer_load_dwordx4 v{24+hb}, s[{S_X}:{S_X+3}], s{S_SO} offen{ntx} lds", ("x",))
    if cfg.warm_wq:
        ntwarm = " nt" if cfg.nt_warm else ""
        a(f"v_lshrrev_b32 v{T0}, 5, v{lane}")
        a(f"v_and_b32 v{T1}, 31, v{lane}")
        a(f"v_lshlrev_b32 v{T1}, 4, v{T1}")
        a(f"v_lshl_add_u32 v26, v{T0}, 13, v{T1}")
        a(f"s_mul_i32 s75, s{S_B}, 48")
        a(f"s_lshl_b32 s76, s{S_WID}, 4")
        a("s_add_u32 s75, s75, s76")
        a("s_add_u32 s75, s75, 64")
        a("s_lshl_b32 s75, s75, 13")
        for i in range(8):
            vm.issue(f"buffer_load_dwordx4 {ar(A_DUMMY,4)}, v26, s[{S_WQ}:{S_WQ+3}], s75 offen{ntwarm}", ("warm", i))
            if i < 7: a(f"s_add_u32 s75, s75, {2*8192}")
    emit_setup_late(a, cfg, False)
    g_, i15 = 22, 23
    a(f"v_lshrrev_b32 v{g_}, 4, v{lane}")
    a(f"v_and_b32 v{i15}, 15, v{lane}")
    a(f"v_lshrrev_b32 v26, 1, v{i15}")
    a(f"v_lshrrev_b32 v27, 3, v{i15}")
    a(f"v_mul_u32_u24 v27, 7168, v27")
    a(f"v_and_b32 v28, 7, v{i15}")
    a(f"v_lshl_add_u32 v27, v28, 7, v27")
    a(f"s_mul_i32 s74, s{S_WID}, {XW}")
    a(f"v_add_u32 v27, s74, v27")
    for e in range(2):
        a(f"v_add_u32 v{T0}, {4*e}, v{g_}")
        a(f"v_xor_b32 v{T0}, v{T0}, v26")
        a(f"v_lshl_add_u32 v{V_XB+e}, v{T0}, 4, v27")
    for j in range(4):
        a(f"v_add_u32 v{T0}, {4*j}, v{g_}")
        a(f"v_xor_b32 v{T0}, v{T0}, v{i15}")
        a(f"v_lshlrev_b32 v{T0}, 4, v{T0}")
        a(f"v_lshl_add_u32 v{V_KB+j}, v{i15}, 9, v{T0}")
    rp, cc, row, rho = 26, 27, 28, 29
    a(f"v_lshrrev_b32 v{rp}, 2, v{i15}")
    a(f"v_and_b32 v{cc}, 3, v{i15}")
    a(f"v_lshl_add_u32 v{row}, v{g_}, 2, v{rp}")
    a(f"v_and_b32 v{rho}, 7, v{row}")
    a(f"v_lshrrev_b32 v{T0}, 1, v{cc}")
    a(f"v_lshlrev_b32 v{T0}, 4, v{T0}")
    a(f"v_and_b32 v{T1}, 1, v{cc}")
    a(f"v_lshl_add_u32 v{T0}, v{T1}, 3, v{T0}")
    a(f"v_lshl_add_u32 v30, v{row}, 9, v{T0}")
    for j in range(8):
        a(f"v_xor_b32 v{T0}, {j}, v{rho}")
        a(f"v_lshl_add_u32 v{T0}, v{T0}, 5, v30")
        a(f"v_add_u32 v{V_VB+j}, {VREG}, v{T0}")
    a(f"v_lshlrev_b32 v31, 1, v{rho}")
    a(f"v_lshlrev_b32 v30, 9, v{row}")
    for j in range(4):
        a(f"v_add_u32 v{T0}, {4*j}, v{cc}")
        a(f"v_xor_b32 v{T0}, v{T0}, v31")
        a(f"v_lshl_add_u32 v{T0}, v{T0}, 4, v30")
        a(f"v_add_u32 v{V_WB+j}, {WBASE}, v{T0}")
    a(f"s_mov_b32 s{S_THR}, {hex(f2u(cfg.thr))}")

    def wread(s, u, half):
        T = u >> 1
        off = (WRING[s % 4] - WBASE) + (T >> 2) * 256 + (u & 1) * 8 + half * 8192
        r = A_W + 4 * u + 2 * half
        lg.issue(f"ds_read_b64_tr_b16 {ar(r,2)}, v{V_WB + (T & 3)} offset:{off}", ("w", s, u, half))
    def xread(s, qt):
        off = qt * 14336 + (s >> 1) * 1024
        lg.issue(f"ds_read_b128 {ar(Xreg(s, qt), 4)}, v{V_XB + (s & 1)} offset:{off}", ("x", s, qt))
    NWP = 6
    n_after = 8 if cfg.warm_wq else 0
    a(f"s_waitcnt vmcnt({n_after})")
    for qt in range(3): xread(0, qt)
    for s in range(14):
        a("s_barrier")
        pre_done = (s >= 3) or s == 1
        if not pre_done:
            if s == 0: lg.need(("x", 0, 2))
            for u in range(NWP - (2 if s == 0 else 0)):
                wread(s, u, 0); wread(s, u, 1)
        nfirst = NWP - (2 if s == 0 else 0)
        mf = []
        for u in range(16):
            for qt in range(3):
                pre = None
                if qt == 0 and u % 2 == 0:
                    pre = (lambda s=s, u=u: lg.need(("w", s, u + 1, 1)))
                D = v(QAcc(u, qt), 4)
                mf.append((pre, (lambda D=D, s=s, u=u, qt=qt: mfma(a, D, ar(A_W + 4*u, 4), ar(Xreg(s, qt), 4), "0" if s == 0 else None))))
        st = []
        for u in range(nfirst, 16):
            for h in range(2):
                st.append(It((lambda s=s, u=u, h=h: wread(s, u, h)), 4, max(0, 3*(u - NWP) + h), max(0, 3*(u - 3))))
        nxt_pre = (s + 1 <= 13) and ((s + 1 >= 3) or s + 1 == 1)
        if nxt_pre:
            for u in range(NWP):
                for h in range(2):
                    st.append(It((lambda s=s, u=u, h=h: wread(s + 1, u, h)), 4, 3*(16 + u - NWP) + h))
        streams = [st]
        if s == 0:
            xs = [It((lambda ss=ss, qt=qt: xread(ss, qt)), 4, ((ss - 1)*3 + qt) * 46 // 39) for ss in range(1, 14) for qt in range(3)]
            streams.append(xs)
        sched(a, mf, streams)
        if s == 0:
            lg.need(("x", 13, 2))
    lg.drain()
    if cfg.dump == "qacc":
        emit_dump_v(a, cfg, V_QACC, 192); return
    a(f"s_mov_b32 s74, {hex(f2u(QSCALE))}")
    a(f"s_mov_b32 s75, {hex(f2u(QSCALE))}")
    a(f"v_mov_b32 v{T0}, 0x3f803f80")
    for r in range(4):
        a(f"v_accvgpr_write_b32 a{A_ONES+r}, v{T0}")
    a("s_nop 3")
    for i in range(23, -1, -1):
        src = V_QACC + 8 * i
        dst = V_Q + 4 * i
        for r in range(4):
            a(f"v_pk_mul_f32 {v(src + 2*r, 2)}, {v(src + 2*r, 2)}, s[74:75]")
        for r in range(3, -1, -1):
            a(f"v_cvt_pk_bf16_f32 v{dst + r}, v{src + 2*r}, v{src + 2*r + 1}")
    if cfg.dump == "q":
        emit_dump_v(a, cfg, V_Q, 96); return

    def kread(t, f):
        aa, T = f >> 3, f & 7
        off = KS[t % 4] + aa * 8192 + (T >> 2) * 256
        lg.issue(f"ds_read_b128 {v(V_KBUF + 4*(f % 8), 4)}, v{V_KB + (T & 3)} offset:{off}", ("k", t, f))
    def vread(t, u, half):
        off = (VS[t % 4] - VREG) + (u >> 3) * 256 + half * 8192
        r = V_VBUF + 4 * (u % 8) + 2 * half
        lg.issue(f"ds_read_b64_tr_b16 {v(r,2)}, v{V_VB + (u & 7)} offset:{off}", ("v", t, u, half))

    def exp_items(t):
        par = t & 1
        st = []
        for qt in range(3):
            for aa in range(2):
                s = Sreg(par, qt, aa)
                for hh in range(2):
                    e0, e1 = s + 2*hh, s + 2*hh + 1
                    pr = V_P + qt*4 + aa*2 + hh
                    st.append(It((lambda e=e0: a(f"v_exp_f32 v{e}, v{e}")), 8))
                    st.append(It((lambda e=e1: a(f"v_exp_f32 v{e}, v{e}")), 8))
                    st.append(("cvt", It((lambda pr=pr, e0=e0, e1=e1: a(f"v_cvt_pk_bf16_f32 v{pr}, v{e0}, v{e1}")), 4)))
        exps = [x for x in st if not isinstance(x, tuple)]
        cvts = [x[1] for x in st if isinstance(x, tuple)]
        return exps, cvts

    def phaseA(t):
        doqk = t + 1 <= 31
        doexp = t >= 0
        if doexp: exps, cvts = exp_items(t)
        if not doqk:
            vq = [(u, h) for u in range(NVP) for h in range(2)]
            for grp in range(12):
                exps[2*grp].fn(); exps[2*grp+1].fn()
                if grp > 0: cvts[grp-1].fn()
                if vq: vread(t, *vq.pop(0))
            a("s_nop 0")
            cvts[11].fn()
            while vq: vread(t, *vq.pop(0))
            return
        par1 = (t + 1) & 1
        mf = []
        for m in range(48):
            aa, T, qt = m // 24, (m % 24) // 3, m % 3
            f = aa * 8 + T
            pre = None
            if qt == 0 and f % 2 == 0:
                pre = (lambda f=f: lg.need(("k", t + 1, f + 1)))
            C = None
            if T == 0: C = "0" if t == -1 else v(V_CM + 4*qt, 4)
            D = v(Sreg(par1, qt, aa), 4)
            mf.append((pre, (lambda D=D, f=f, qt=qt, T=T, C=C: mfma(a, D, v(V_KBUF + 4*(f % 8), 4), v(Qreg(qt, T), 4), C))))
        ks = [It((lambda f=f: kread(t + 1, f)), 4, max(0, 3*(f - 8) + 2), 3*f - 8) for f in range(NKP, 16)]
        streams = [ks]
        if doexp:
            for i, e in enumerate(exps):
                e.earliest = 4*(i // 2) + (i & 1); e.deadline = e.earliest
            for i, c in enumerate(cvts):
                c.earliest = 4*i + 2; c.deadline = min(4*i + 5, 47)
            vs = [It((lambda u=u, h=h: vread(t, u, h)), 4, 26) for u in range(NVP) for h in range(2)]
            streams = [exps, cvts, ks, vs]
        sched(a, mf, streams)

    def phaseB(t, extra=None):
        first = (t == 0)
        docheck = t + 1 <= 31
        par1 = (t + 1) & 1
        Z = "0" if first else None
        mf = []
        for qt in range(3):
            mf.append((None, (lambda qt=qt: mfma(a, ar(A_L + 4*qt, 4), ar(A_ONES, 4), v(V_P + 4*qt, 4), Z))))
        for m in range(48):
            u, qt = m // 3, m % 3
            pre = None
            if qt == 0 and u % 2 == 0:
                pre = (lambda u=u: lg.need(("v", t, u + 1, 1)))
            mf.append((pre, (lambda u=u, qt=qt: mfma(a, ar(Oreg(u, qt), 4), v(V_VBUF + 4*(u % 8), 4), v(V_P + 4*qt, 4), Z))))
        vs = []
        for u in range(NVP, 16):
            e = max(0 if u < 8 else 3 + 3*(u - 8) + 2, 3 + 3*(u - NVP - 1))
            for h in range(2):
                vs.append(It((lambda u=u, h=h: vread(t, u, h)), 4, e + h, 3 + 3*u - 9))
        streams = [vs]
        if docheck:
            s0 = V_S[par1]; mx = V_TMP
            chk = [f"v_max3_f32 v{mx}, v{s0}, v{s0+1}, v{s0+2}"]
            for k in range(10):
                chk.append(f"v_max3_f32 v{mx}, v{mx}, v{s0+3+2*k}, v{s0+4+2*k}")
            chk.append(f"v_max_f32 v{mx}, v{mx}, v{s0+23}")
            chk.append(f"v_cmp_lt_f32 vcc, s{S_THR}, v{mx}")
            streams.append([It((lambda c=c: a(c)), 4, 6 + 2*i) for i, c in enumerate(chk)])
        if t + 2 <= 31:
            streams.append([It((lambda f=f: kread(t + 2, f)), 4, 30 + 2*f) for f in range(NKP)])
        if extra: streams += extra
        a("s_nop 1")
        sched(a, mf, streams)

    def check_branch(t, tag):
        a(f"s_cbranch_vccnz L_rare_{tag}")
        a.label(f"L_back_{tag}")
        rare_blocks.append((tag, (t + 1) & 1))

    a("s_barrier")
    for f in range(NKP): kread(0, f)
    phaseA(-1)
    for f in range(NKP): kread(1, f)
    a("s_nop 1")
    for qt in range(3):
        s0 = Sreg(0, qt, 0)
        mx = V_TMP + qt
        a(f"v_max3_f32 v{mx}, v{s0}, v{s0+1}, v{s0+2}")
        a(f"v_max3_f32 v{mx}, v{mx}, v{s0+3}, v{s0+4}")
        a(f"v_max3_f32 v{mx}, v{mx}, v{s0+5}, v{s0+6}")
        a(f"v_max_f32 v{mx}, v{mx}, v{s0+7}")
    for step in range(2):
        for qt in range(3): a(f"v_mov_b32 v{V_TMP+4+qt}, v{V_TMP+qt}")
        a("s_nop 0")
        for qt in range(3):
            a(f"v_permlane{32 if step == 0 else 16}_swap_b32 v{V_TMP+qt}, v{V_TMP+4+qt}")
        a("s_nop 0")
        for qt in range(3): a(f"v_max_f32 v{V_TMP+qt}, v{V_TMP+qt}, v{V_TMP+4+qt}")
    for qt in range(3):
        s0 = Sreg(0, qt, 0); mx = V_TMP + qt
        for r in range(8):
            a(f"v_sub_f32 v{s0+r}, v{s0+r}, v{mx}")
        for r in range(4):
            a(f"v_sub_f32 v{V_CM + 4*qt + r}, 0, v{mx}")
    if cfg.dump == "s0":
        lg.drain()
        emit_dump_v(a, cfg, V_S[0], 24, extra=(V_CM, 12)); return

    def iteration(t, tag):
        a("s_barrier")
        phaseA(t)
        phaseB(t)
        if t + 1 <= 31:
            check_branch(t, tag)

    iteration(0, "p0")
    q0 = list(lg.q)
    a(f"s_mov_b32 s{S_CNT}, 7")
    a.label("L_loop")
    for t in range(1, 5):
        iteration(t, f"l{t}")
    q1 = [(x[0], x[1] - 4) + x[2:] for x in lg.q]
    assert q0 == q1, (q0, q1)
    a(f"s_sub_u32 s{S_CNT}, s{S_CNT}, 1")
    a(f"s_cmp_lg_u32 s{S_CNT}, 0")
    a("s_cbranch_scc1 L_loop")
    lg.q = [(x[0], x[1] + 28) + x[2:] for x in q0]
    for x in lg.q: lg.issued.add(x)
    for f in range(16): lg.issued.add(("k", 30, f))
    a.label("L_tail_code")
    for t in range(29, 31):
        iteration(t, f"e{t}")

    def oconv_items(T, earliest=0):
        its = []
        for qt in range(3):
            tb = V_CT + 8 * qt
            for h in range(2):
                o = Oreg(2*T + h, qt)
                for r in range(4):
                    its.append(It((lambda d=tb + 4*h + r, s=o + r: a(f"v_accvgpr_read_b32 v{d}, a{s}")), 4, earliest))
            q = Qreg(qt, T)
            for r in range(4):
                its.append(It((lambda d=q + r, s=tb + 2*r: a(f"v_cvt_pk_bf16_f32 v{d}, v{s}, v{s+1}")), 4, earliest))
        return its

    def wo_base(j, jj):
        addr = WOSLOT[j]
        if addr < VREG: return VBK + jj, addr
        if addr < VREG + 65536: return V_VB + jj, addr - VREG
        return VBE + jj, addr - VREG - 65536
    steps = []
    for p in range(3):
        for T in range(8):
            steps.append((p, T, 4*p + T//2, T & 1, 8))
    for T in range(8):
        steps.append((3, T, 12 + T//4, T & 3, 4))
    frs = []
    for si, (p, T, j, tau, nu) in enumerate(steps):
        for u in range(nu):
            frs.append((si, p, T, j, tau, nu, u))
    FBN = 12
    def oread(k, half):
        si, p, T, j, tau, nu, u = frs[k]
        tp = (8*tau + u) if p < 3 else (4*tau + u)
        br, off = wo_base(j, tp & 7)
        off += (tp >> 3) * 256 + half * 8192
        r = A_WO + 4 * (k % FBN) + 2 * half
        lg.issue(f"ds_read_b64_tr_b16 {ar(r,2)}, v{br} offset:{off}", ("o", k, half))
    def accreg(p, u, qt):
        i = (u * 3 + qt) * 4
        if p == 0 or p == 2: return ("v", V_P0 + i)
        return ("a", i)
    def accstr(p, u, qt):
        f, r = accreg(p, u, qt)
        return v(r, 4) if f == "v" else ar(r, 4)
    slotc = [0]
    slog = []
    def conv_items(p, packed=False):
        its = []
        nu = 8 if p < 3 else 4
        for up in range(nu // 2):
            for qt in range(3):
                rl = V_RL + qt * 0
                rlp = f"v[{V_RL + 2*qt}:{V_RL + 2*qt + 1}]"
                f, _ = accreg(p, 0, 0)
                tb = V_CT + 12 * (slotc[0] % 2); slotc[0] += 1
                out = tb + 8
                if f == "a":
                    for h in range(2):
                        o = accreg(p, 2*up + h, qt)[1]
                        for r in range(4):
                            its.append(It((lambda d=tb + 4*h + r, s=o + r: a(f"v_accvgpr_read_b32 v{d}, a{s}"))))
                    srcs = [tb + 2*r for r in range(4)]
                else:
                    o0 = accreg(p, 2*up, qt)[1]; o1 = accreg(p, 2*up + 1, qt)[1]
                    srcs = [o0, o0 + 2, o1, o1 + 2]
                for sreg in srcs:
                    if packed:
                        its.append(It((lambda s=sreg, rlp=rlp: a(f"v_pk_mul_f32 {v(s,2)}, {v(s,2)}, {rlp}"))))
                    else:
                        for k in range(2):
                            its.append(It((lambda s=sreg + k, qt=qt: a(f"v_mul_f32 v{s}, v{V_RL + 2*qt}, v{s}"))))
                for r, sreg in enumerate(srcs):
                    its.append(It((lambda d=out + r, s=sreg: a(f"v_cvt_pk_bf16_f32 v{d}, v{s}, v{s+1}"))))
                upair = 4*p + up
                its.append(It((lambda c=(qt*14 + upair)*1024: a(f"s_add_u32 s{S_SO}, s{S_WOFF}, {c}")), 4))
                its.append(It((lambda o=out, p=p: (a(f"buffer_store_dwordx4 {v(o,4)}, v{V_ST}, s[{S_WS}:{S_WS+3}], s{S_SO} offen{cfg.st_flags}"), slog.append(p))), 4))
        return its

    svm = Vm(a)
    def signal_a(p, nafter):
        a(f"s_waitcnt vmcnt({nafter})")
        a("s_mov_b64 exec, 1")
        lg.issue(f"ds_add_rtn_u32 v6, v4, v5 offset:{4*p}", ("sig", p))
        a("s_mov_b64 exec, -1")
    def signal_b(p):
        lg.need(("sig", p))
        a("v_readfirstlane_b32 s90, v6")
        a("s_nop 3")
        a("s_cmp_eq_u32 s90, 2")
        a(f"s_cbranch_scc0 L_nosig{p}")
        a("s_mov_b64 exec, 1")
        a(f"s_mov_b32 s88, {4096*p}")
        a(f"buffer_atomic_add v5, off, s[84:87], s88")
        a("s_mov_b64 exec, -1")
        a.label(f"L_nosig{p}")
    a("s_barrier")
    phaseA(31)
    setup_its = []
    for j in range(8):
        setup_its.append(It((lambda j=j: a(f"v_subrev_u32 v{VBK+j}, {VREG}, v{V_VB+j}")), 4, 0))
        setup_its.append(It((lambda j=j: a(f"v_add_u32 v{VBE+j}, {VREG}, v{V_VB+j}")), 4, 0))
    NOP_ = 5
    ex1 = oconv_items(0, earliest=3 + 3*1 + 2 + 8)
    ex2 = oconv_items(1, earliest=3 + 3*3 + 2 + 8)
    pre_o = [It((lambda k=k, h=h: oread(k, h)), 4, 42) for k in range(NOP_) for h in range(2)]
    phaseB(31, extra=[setup_its, ex1 + ex2, pre_o])
    if cfg.dump == "o":
        a("s_nop 7")
        emit_dump_acc(a, cfg, 204); return
    a(f"v_lshlrev_b32 v{V_ST}, 4, v{lane}")
    a(f"s_mul_i32 s{S_WOFF}, s{S_WID}, {3*14*1024}")
    for qt in range(3):
        a(f"v_accvgpr_read_b32 v{V_RL+2*qt}, a{A_L + 4*qt}")
    for qt in range(3):
        a(f"v_rcp_f32 v{V_RL+2*qt}, v{V_RL+2*qt}")
    a("s_nop 0")
    for qt in range(3):
        a(f"v_mov_b32 v{V_RL+2*qt+1}, v{V_RL+2*qt}")
    if cfg.fused:
        a(f"v_mov_b32 v4, {VS[0]}")
        a("v_mov_b32 v5, 1")
        emit_red_setup(a, cfg)

    cur_slot = -1
    nxt = NOP_
    pend = []
    store_log = slog
    stores_since = {q: (lambda q=q: sum(1 for i, x in enumerate(store_log) if i > max(k for k, y in enumerate(store_log) if y == q))) for q in range(4)}
    for si, (p, T, j, tau, nu) in enumerate(steps):
        if j != cur_slot:
            if j < ntb(cfg): a("s_barrier")
            cur_slot = j
        if cfg.fused and p == 2 and T == cfg.sig_t:
            signal_a(0, stores_since[0]())
        if cfg.fused and p == 2 and T == cfg.sig_t + 1:
            signal_b(0)
        if cfg.fused and p == 3 and T == cfg.sig_t1:
            signal_a(1, stores_since[1]())
        if cfg.fused and p == 3 and T == cfg.sig_t1 + 1:
            signal_b(1)
        k0 = sum(s[4] for s in steps[:si])
        if T == 0 and p > 0:
            assert not pend
            pend = conv_items(p - 1)
            for it in pend[:1]: pass
        mf = []
        for u in range(nu):
            k = k0 + u
            for qt in range(3):
                pre = None
                if qt == 0 and u % 2 == 0:
                    pre = (lambda k=k: lg.need(("o", k + 1, 1)))
                mf.append((pre, (lambda u=u, qt=qt, k=k: mfma(a, accstr(p, u, qt), ar(A_WO + 4*(k % FBN), 4), v(Qreg(qt, T), 4), "0" if T == 0 else None))))
        rs = []
        lim = k0 + nu + NOP_
        while nxt < len(frs) and nxt < lim and frs[nxt][3] <= j + 1:
            kk = nxt
            use = 3 * (kk - k0)
            e = max(0, 3 * (kk - FBN - k0) + 2)
            for h in range(2):
                rs.append(It((lambda kk=kk, h=h: oread(kk, h)), 4, max(e, use - 3*NOP_ - 3), max(0, use - 10)))
            nxt += 1
        streams = [rs]
        if p == 0 and T + 2 <= 7:
            streams.append(oconv_items(T + 2))
        if pend:
            if T == 0:
                for it in pend: it.earliest = 4
            streams.append(pend)
            last_of_pass = (T == 7)
            sched(a, mf, [rs] + [pend], flush=False)
            while rs: rs.pop(0).fn()
            if last_of_pass:
                while pend: pend.pop(0).fn()
            for it in pend: it.earliest = 0
        else:
            sched(a, mf, streams)
    a("s_nop 7")
    for it in conv_items(3, packed=True): it.fn()
    a.label("L_tail_end")
    print("lds throttles:", lg.throttled, file=sys.stderr)
    if cfg.fused:
        signal_a(2, 0); signal_b(2)
        a("s_barrier")
        emit_final_reduce(a, cfg)
    elif cfg.stamps:
        a("s_waitcnt vmcnt(0)")
        a("s_barrier")
    a("s_branch L_end")

def emit_rare(a, cfg, rare_blocks):
    for tag, par in rare_blocks:
        a.label(f"L_rare_{tag}")
        a("s_nop 7")
        for qt in range(3):
            s0 = Sreg(par, qt, 0)
            mx = V_TMP + qt
            a(f"v_max3_f32 v{mx}, v{s0}, v{s0+1}, v{s0+2}")
            a(f"v_max3_f32 v{mx}, v{mx}, v{s0+3}, v{s0+4}")
            a(f"v_max3_f32 v{mx}, v{mx}, v{s0+5}, v{s0+6}")
            a(f"v_max_f32 v{mx}, v{mx}, v{s0+7}")
            xlane_max(a, mx, V_TMP + 4)
            a(f"v_max_f32 v{mx}, 0, v{mx}")
            for r in range(8):
                a(f"v_sub_f32 v{s0+r}, v{s0+r}, v{mx}")
            for r in range(4):
                a(f"v_sub_f32 v{V_CM + 4*qt + r}, v{V_CM + 4*qt + r}, v{mx}")
            a(f"v_sub_f32 v{mx}, 0, v{mx}")
            a(f"v_exp_f32 v{mx}, v{mx}")
        a(f"s_getpc_b64 s[{S_TGT}:{S_TGT+1}]")
        a.label(f"L_pc_{tag}")
        a(f"s_add_u32 s{S_TGT}, s{S_TGT}, L_rescale-L_pc_{tag}")
        a(f"s_addc_u32 s{S_TGT+1}, s{S_TGT+1}, 0")
        a(f"s_swappc_b64 s[{S_RET}:{S_RET+1}], s[{S_TGT}:{S_TGT+1}]")
        a(f"s_branch L_back_{tag}")
    if not rare_blocks: return
    a.label("L_rescale")
    a("s_nop 7")
    for qt in range(3):
        regs = [Oreg(u, qt) + r for u in range(16) for r in range(4)] + [A_L + 4*qt + r for r in range(4)]
        for i in range(0, len(regs), 4):
            for k in range(4):
                a(f"v_accvgpr_read_b32 v{V_TMP+4+k}, a{regs[i+k]}")
            for k in range(4):
                a(f"v_mul_f32 v{V_TMP+4+k}, v{V_TMP+qt}, v{V_TMP+4+k}")
            for k in range(4):
                a(f"v_accvgpr_write_b32 a{regs[i+k]}, v{V_TMP+4+k}")
    a("s_nop 1")
    a(f"s_setpc_b64 s[{S_RET}:{S_RET+1}]")

def emit_dump_common(a, cfg, regs, isacc):
    a("s_mov_b32 s76, s72"); a("s_mov_b32 s77, s73")
    a("s_mov_b32 s78, 0x10000000"); a("s_mov_b32 s79, 0x20000")
    a(f"s_mul_i32 s74, s2, 3")
    a(f"s_add_u32 s74, s74, s{S_WID}")
    a("s_lshl_b32 s74, s74, 16")
    a(f"v_lshlrev_b32 v{V_T0}, 2, v{V_LANE}")
    for i, r in enumerate(regs):
        if isacc:
            a(f"v_accvgpr_read_b32 v{V_T1}, a{r}")
            src = V_T1
        else:
            src = r
        a(f"buffer_store_dword v{src}, v{V_T0}, s[76:79], s74 offen")
        a("s_add_u32 s74, s74, 256")
        if isacc: a("s_waitcnt vmcnt(0)")
    a("s_waitcnt vmcnt(0)")
    n = {"qacc": 33 + 14, "q": 33 + 14, "s0": 32 + 14, "o": 14}[cfg.dump]
    for _ in range(n): a("s_barrier")
    if cfg.stamps: a("s_barrier")
    a.label("L_tail_end")
    if cfg.dump != "o": a.label("L_tail_code")
    a("s_branch L_end")
def emit_dump_acc(a, cfg, n):
    a("s_nop 7")
    emit_dump_common(a, cfg, list(range(n)), True)
def emit_dump_v(a, cfg, base, n, extra=None):
    regs = list(range(base, base + n))
    if extra: regs += list(range(extra[0], extra[0] + extra[1]))
    emit_dump_common(a, cfg, regs, False)

def emit_reduce(a, cfg):
    a.raw(f".globl {RNAME}")
    a.raw(".p2align 8")
    a.raw(f".type {RNAME},@function")
    a.label(RNAME)
    a("s_cmp_ge_u32 s2, 504")
    a("s_cbranch_scc1 LR_end")
    a("s_load_dwordx2 s[4:5], s[0:1], 96")
    a("s_load_dwordx2 s[8:9], s[0:1], 80")
    a("v_lshrrev_b32 v1, 6, v0")
    a("v_and_b32 v2, 63, v0")
    a("v_readfirstlane_b32 s3, v1")
    a("s_lshl_b32 s12, s2, 2")
    a("s_add_u32 s12, s12, s3")
    a(f"s_mul_hi_u32 s13, s12, {(2**32 + 125)//126}")
    a("s_mul_i32 s14, s13, 126")
    a("s_sub_u32 s14, s12, s14")
    a(f"s_mul_hi_u32 s15, s14, {(2**32 + 13)//14}")
    a("s_mul_i32 s16, s15, 14")
    a("s_sub_u32 s16, s14, s16")
    a("s_waitcnt lgkmcnt(0)")
    a(f"s_mul_i32 s17, s13, {16*129024}")
    a("s_lshl_b32 s18, s14, 10")
    a("s_add_u32 s17, s17, s18")
    a("s_add_u32 s4, s4, s17")
    a("s_addc_u32 s5, s5, 0")
    a(f"s_mov_b32 s6, {15*129024 + 1024}")
    a("s_mov_b32 s7, 0x20000")
    a("v_lshlrev_b32 v3, 4, v2")
    for h in range(16):
        a(f"s_mov_b32 s19, {h*129024}")
        a(f"buffer_load_dwordx4 v[{8+4*h}:{11+4*h}], v3, s[4:7], s19 offen{cfg.rd_flags}")
    a("s_and_b32 s20, s13, 7")
    a("s_lshr_b32 s21, s13, 3")
    a("s_mul_i32 s20, s20, 144")
    a("s_lshl_b32 s22, s15, 4")
    a("s_add_u32 s20, s20, s22")
    a("s_mul_i32 s20, s20, 1792")
    a("s_mul_i32 s21, s21, 896")
    a("s_lshl_b32 s22, s16, 6")
    a("s_add_u32 s20, s20, s21")
    a("s_add_u32 s20, s20, s22")
    a("v_and_b32 v4, 15, v2")
    a("v_mul_u32_u24 v4, 1792, v4")
    a("v_lshrrev_b32 v5, 4, v2")
    a("v_lshl_add_u32 v4, v5, 3, v4")
    a("s_mov_b32 s10, %d" % (8*144*896*2))
    a("s_mov_b32 s11, 0x20000")
    for h in range(16):
        a(f"s_waitcnt vmcnt({15-h})")
        for r in range(4):
            src = 8 + 4*h + r
            if h == 0:
                a(f"v_lshlrev_b32 v{72+2*r}, 16, v{src}")
                a(f"v_and_b32 v{73+2*r}, 0xffff0000, v{src}")
            else:
                a(f"v_lshlrev_b32 v80, 16, v{src}")
                a(f"v_and_b32 v81, 0xffff0000, v{src}")
                a(f"v_add_f32 v{72+2*r}, v{72+2*r}, v80")
                a(f"v_add_f32 v{73+2*r}, v{73+2*r}, v81")
    for r in range(4):
        a(f"v_cvt_pk_bf16_f32 v{84+r}, v{72+2*r}, v{73+2*r}")
    a("buffer_store_dwordx2 v[84:85], v4, s[8:11], s20 offen")
    a("buffer_store_dwordx2 v[86:87], v4, s[8:11], s20 offen offset:32")
    a.label("LR_end")
    a("s_endpgm")

def kd(a, name, vg, acc, sg=102):
    a.raw(f".amdhsa_kernel {name}")
    a.raw(f"  .amdhsa_next_free_vgpr {vg}")
    a.raw(f"  .amdhsa_next_free_sgpr {sg}")
    a.raw(f"  .amdhsa_accum_offset {acc}")
    a.raw("  .amdhsa_group_segment_fixed_size 0")
    a.raw("  .amdhsa_kernarg_size 104")
    a.raw("  .amdhsa_user_sgpr_count 2")
    a.raw("  .amdhsa_user_sgpr_kernarg_segment_ptr 1")
    a.raw("  .amdhsa_system_sgpr_workgroup_id_x 1")
    a.raw(".end_amdhsa_kernel")

HEADER = """; Fused MHA block (two branches): Q-proj + flash attention + partial out-proj per (branch,batch,head) workgroup,
"""
def generate(cfg):
    a = Asm()
    a.raw(HEADER.rstrip())
    if cfg.fused and not cfg.aslist:
        a.raw(f"; @launch grid=(256,1,1) block=(256,1,1) lds=163840")
    else:
        a.raw(f"; @launch kernel={KNAME} grid=(256,1,1) block=(256,1,1) lds=163840")
    if not cfg.dump and not cfg.fused:
        a.raw(f"; @launch kernel={RNAME} grid=(504,1,1) block=(256,1,1) lds=0")
    a.raw('.amdgcn_target "amdgcn-amd-amdhsa--gfx950"')
    a.raw(".text")
    a.raw(f".globl {KNAME}")
    a.raw(".p2align 8")
    a.raw(f".type {KNAME},@function")
    a.label(KNAME)
    emit_setup(a, cfg)
    rare = []
    emit_compute_main(a, cfg, rare)
    emit_loader(a, cfg)
    a.label("L_code_end")
    emit_rare(a, cfg, rare)
    a.label("L_end")
    a("s_endpgm")
    if not cfg.dump and not cfg.fused:
        emit_reduce(a, cfg)
    a.raw('.section .rodata,"a"')
    a.raw(".p2align 6")
    kd(a, KNAME, 512, 256)
    if not cfg.dump and not cfg.fused:
        a.raw(".p2align 6")
        kd(a, RNAME, 96, 96, 32)
    return a.text()

if __name__ == "__main__":
    cfg = Cfg()
    out = sys.argv[1]
    for kv in sys.argv[2:]:
        k, val = kv.split("=", 1)
        cur = getattr(cfg, k)
        if isinstance(cur, bool): val = val in ("1", "True", "true")
        elif isinstance(cur, float): val = float(val)
        elif isinstance(cur, int): val = int(val)
        elif val == "None": val = None
        setattr(cfg, k, val)
    open(out, "w").write(generate(cfg))
```

```python
import sys, math, struct, re

KNAME = "concat_heads__mha_block_cached__mha_block_cached__near_ridge_kernel"
RNAME = "reduce_kernel"

class Asm:
    def __init__(self):
        self.L = []
    def __call__(self, s):
        self.L.append("    " + s)
    def label(self, s):
        self.L.append(s + ":")
    def raw(self, s):
        self.L.append(s)
    def text(self):
        return "\n".join(self.L) + "\n"

class Lgkm:
    def __init__(self, a):
        self.a = a; self.q = []; self.issued = set(); self.throttled = 0
    def issue(self, ins, tag):
        if len(self.q) >= 15:
            self.a("s_waitcnt lgkmcnt(14)"); self.q = self.q[len(self.q) - 14:]; self.throttled += 1
        self.a(ins); self.q.append(tag); self.issued.add(tag)
    def need(self, tag):
        assert tag in self.issued, ("not issued", tag)
        if tag in self.q:
            idx = len(self.q) - 1 - self.q[::-1].index(tag)
            n = len(self.q) - 1 - idx
            self.a(f"s_waitcnt lgkmcnt({n})")
            self.q = self.q[idx + 1:]
    def drain(self):
        if self.q:
            self.a("s_waitcnt lgkmcnt(0)")
            self.q = []

class Vm:
    def __init__(self, a):
        self.a = a; self.q = []
    def room(self, n):
        over = len(self.q) + n - 63
        if over > 0:
            keep = len(self.q) - over
            self.a(f"s_waitcnt vmcnt({keep})")
            self.q = self.q[over:]
    def issue(self, ins, tag):
        assert len(self.q) < 63
        self.a(ins); self.q.append(tag)
    def need(self, tag):
        if tag in self.q:
            idx = len(self.q) - 1 - self.q[::-1].index(tag)
            n = len(self.q) - 1 - idx
            self.a(f"s_waitcnt vmcnt({n})")
            self.q = self.q[idx + 1:]

class It:
    def __init__(self, fn, cost=4, earliest=0, deadline=10**9):
        self.fn, self.cost, self.earliest, self.deadline = fn, cost, earliest, deadline

def sched(a, mf, streams, budget=8, flush=True):
    n = len(mf)
    for m, (pre, emit) in enumerate(mf):
        if pre: pre()
        emit()
        b = budget
        if m + 1 < n and mf[m + 1][0] is not None: b -= 4
        for st in streams:
            while st and st[0].deadline <= m:
                it = st.pop(0); it.fn(); b -= it.cost
        for st in streams:
            while st and st[0].earliest <= m and st[0].cost <= b:
                it = st.pop(0); it.fn(); b -= it.cost
    if flush:
        prog = True
        while any(streams):
            for st in streams:
                if st:
                    it = st.pop(0); it.fn()

def v(n, cnt=1):
    return f"v{n}" if cnt == 1 else f"v[{n}:{n+cnt-1}]"
def ar(n, cnt=1):
    return f"a{n}" if cnt == 1 else f"a[{n}:{n+cnt-1}]"
def f2u(x): return struct.unpack("<I", struct.pack("<f", x))[0]

V_LANE = 1
V_T0, V_T1 = 2, 3
V_KB = 4
V_VB = 8
V_TMP = 16
V_S = [24, 48]
V_P = 72
V_CM = 84
V_KBUF = 96
V_VBUF = 128
V_Q = 160
A_O = 0
A_L = 192
A_ONES = 204
A_X = 0
A_W = 168
A_DUMMY = 232
V_QACC = 64
V_WB = 16
V_XB = 20
A_WO = 208
V_P0 = 64
VBK, VBE = 24, 32
V_RL = 16
V_ST = 22
V_CT = 40

def Qreg(qt, T): return V_Q + (qt * 8 + T) * 4
def Xreg(s, qt): return A_X + (s * 3 + qt) * 4
def QAcc(u, qt): return V_QACC + (qt * 8 + (u >> 1)) * 8 + 4 * (u & 1)
def Oreg(u, qt): return A_O + (u * 3 + qt) * 4
def Sreg(par, qt, a): return V_S[par] + (qt * 2 + a) * 4

KS = [i * 16384 for i in range(4)]
VREG = 65536
VS = [VREG + i * 16384 for i in range(4)]
ES = [131072, 147456]
WRING = [ES[0], ES[1], VS[2], VS[3]]
WBASE = VS[2]
XW = 43008
WOSLOT = [ES[0], ES[1], KS[0], KS[1], VS[0], KS[2], VS[1], KS[3], VS[2], VS[3], ES[0], ES[1], KS[0], KS[1]]

S_WID = 3
S_X, S_K, S_V, S_WQ, S_WO, S_WS = 4, 8, 12, 16, 20, 24
S_B, S_H, S_BR, S_THR = 28, 29, 30, 31
S_SO, S_SO2, S_CNT = 32, 33, 34
S_RET, S_TGT = 36, 38
S_WOFF = 40
S_PC = 56
S_TS = 60

QSCALE = math.log2(math.e) / 16.0
CNT_OFF = 0x2100000

class Cfg:
    nt_kv = True
    nt_w = True
    nt_x = True
    nt_wo = True
    nt_warm = True
    st_flags = " sc0 sc1"
    rd_flags = " sc0 sc1"
    warm_wq = True
    warm_wo = False
    code_pf = True
    thr = 8.0
    dump = None
    stamps = False
    kvsched = "c"
    fused = True
    poll_flags = " sc1"
    out_flags = ""
    aslist = False
    sig_t = 4
    wo_reg0 = 7
    wo_reg_t0 = 8
    warm_t0 = 18
    poll_sleep = 2
    sig_t1 = 6
    nkp = 8
    nvp = 4

def emit_setup(a, cfg):
    a("s_cmp_ge_u32 s2, 256")
    a("s_cbranch_scc1 L_end")
    if cfg.stamps:
        a(f"s_memrealtime s[{S_TS}:{S_TS+1}]")
    a("s_load_dwordx4 s[44:47], s[0:1], 0")
    a("s_load_dwordx4 s[48:51], s[0:1], 16")
    a("s_load_dwordx2 s[52:53], s[0:1], 32")
    a("s_load_dwordx2 s[54:55], s[0:1], 40")
    a("s_load_dwordx4 s[64:67], s[0:1], 48")
    a("s_load_dwordx4 s[68:71], s[0:1], 64")
    a("s_load_dwordx2 s[72:73], s[0:1], 96")
    a("s_load_dwordx4 s[80:83], s[0:1], 80")
    a(f"v_lshrrev_b32 v{V_T0}, 6, v0")
    a(f"v_and_b32 v{V_LANE}, 63, v0")
    a(f"v_readfirstlane_b32 s{S_WID}, v{V_T0}")
    a("s_and_b32 s74, s2, 7")
    a("s_lshr_b32 s75, s2, 3")
    a(f"s_lshr_b32 s{S_BR}, s74, 2")
    a("s_and_b32 s76, s74, 3")
    a("s_lshl_b32 s76, s76, 2")
    a("s_and_b32 s77, s75, 3")
    a(f"s_add_u32 s{S_H}, s76, s77")
    a(f"s_lshr_b32 s{S_B}, s75, 2")
    a(f"s_mul_i32 s78, s{S_B}, 129024")
    a(f"s_lshl_b32 s79, s{S_H}, 9")
    a(f"s_mov_b32 s{S_X+2}, 129024")
    a(f"s_mov_b32 s{S_X+3}, 0x20000")
    a(f"s_sub_u32 s{S_WQ+2}, {448*8192}, s79")
    a(f"s_mov_b32 s{S_WQ+3}, 0x20000")
    a("s_waitcnt lgkmcnt(0)")
    a(f"s_cmp_eq_u32 s{S_BR}, 0")
    a(f"s_cselect_b32 s{S_X}, s44, s54")
    a(f"s_cselect_b32 s{S_X+1}, s45, s55")
    a(f"s_cselect_b32 s{S_WQ}, s50, s68")
    a(f"s_cselect_b32 s{S_WQ+1}, s51, s69")
    a(f"s_cselect_b32 s{S_K}, s46, s64")
    a(f"s_cselect_b32 s{S_K+1}, s47, s65")
    a(f"s_cselect_b32 s{S_V}, s48, s66")
    a(f"s_cselect_b32 s{S_V+1}, s49, s67")
    a(f"s_cselect_b32 s{S_WO}, s52, s70")
    a(f"s_cselect_b32 s{S_WO+1}, s53, s71")
    a(f"s_add_u32 s{S_X}, s{S_X}, s78")
    a(f"s_addc_u32 s{S_X+1}, s{S_X+1}, 0")
    a(f"s_add_u32 s{S_WQ}, s{S_WQ}, s79")
    a(f"s_addc_u32 s{S_WQ+1}, s{S_WQ+1}, 0")
    a(f"s_cmp_eq_u32 s{S_WID}, 3")
    a("s_cbranch_scc1 L_loader")

def emit_setup_late(a, cfg, loader):
    a(f"s_lshl_b32 s74, s{S_B}, 4")
    a(f"s_add_u32 s74, s74, s{S_H}")
    if loader:
        a("s_lshl_b32 s75, s74, 19")
        for S in (S_K, S_V):
            a(f"s_add_u32 s{S}, s{S}, s75")
            a(f"s_addc_u32 s{S+1}, s{S+1}, 0")
            a(f"s_mov_b32 s{S+2}, 524288")
            a(f"s_mov_b32 s{S+3}, 0x20000")
        a(f"s_mul_i32 s75, s{S_H}, {256*896}")
        a(f"s_add_u32 s{S_WO}, s{S_WO}, s75")
        a(f"s_addc_u32 s{S_WO+1}, s{S_WO+1}, 0")
        a(f"s_mov_b32 s{S_WO+2}, {256*896}")
        a(f"s_mov_b32 s{S_WO+3}, 0x20000")
    else:
        a(f"s_lshl_b32 s75, s{S_BR}, 7")
        a("s_add_u32 s74, s74, s75")
        a("s_mul_i32 s74, s74, 129024")
        a(f"s_add_u32 s{S_WS}, s72, s74")
        a(f"s_addc_u32 s{S_WS+1}, s73, 0")
        a(f"s_mov_b32 s{S_WS+2}, 129024")
        a(f"s_mov_b32 s{S_WS+3}, 0x20000")

def ntb(cfg): return 9 if (cfg.fused and not cfg.dump) else 14
def barrier_list(cfg):
    L = [("PB", s) for s in range(14)]
    L += [("B", t) for t in range(-1, 32)]
    L += [("TB", j) for j in range(ntb(cfg))]
    return L

KVSCHED = {
    "a": {1: [("K", 0)], 2: [("V", 0)], 3: [("K", 1)], 4: [("K", 2)], 6: [("V", 1)], 7: [("K", 3)], 11: [("V", 2)], 12: [("V", 3)]},
    "b": {1: [("K", 0), ("V", 0)], 2: [("K", 1)], 3: [("K", 2)], 4: [("V", 1)], 5: [("K", 3)], 11: [("V", 2)], 12: [("V", 3)]},
    "c": {1: [("K", 0)], 3: [("V", 0)], 4: [("K", 1)], 6: [("K", 2)], 7: [("V", 1)], 9: [("K", 3)], 11: [("V", 2)], 12: [("V", 3)]},
}

def emit_code_prefetch(a, cfg, vm, vaddr, lo, hi, dst):
    a(f"s_getpc_b64 s[{S_PC}:{S_PC+1}]")
    lab = f"L_pc_{lo}"
    a.label(lab)
    a(f"s_add_u32 s{S_PC}, s{S_PC}, {lo}-{lab}")
    a(f"s_addc_u32 s{S_PC+1}, s{S_PC+1}, 0")
    a(f"s_mov_b32 s{S_PC+2}, {hi}-{lo}")
    a(f"s_mov_b32 s{S_PC+3}, 0x20000")
    return

def emit_loader(a, cfg):
    a.label("L_loader")
    vm = Vm(a)
    LH, LP = 2, 3
    VK, VV, VW, VO, VO3 = 8, 16, 20, 24, 28
    T0, T1 = 4, 5
    stamp_idx = [0]
    def xstamp(i):
        if cfg.stamps:
            a("s_memrealtime s[62:63]")
            a("s_waitcnt lgkmcnt(0)")
            a(f"v_writelane_b32 v58, s62, {i}")
    if cfg.stamps:
        a(f"v_writelane_b32 v56, s{S_TS}, 0")
    xstamp(0)
    a(f"v_lshrrev_b32 v{LH}, 5, v{V_LANE}")
    a(f"v_and_b32 v{LP}, 31, v{V_LANE}")
    a(f"v_lshlrev_b32 v32, 4, v{V_LANE}")
    def chunkpat(i):
        a(f"v_add_u32 v{T0}, {2*i}, v{LH}")
        a(f"v_lshlrev_b32 v{T0}, 1, v{T0}")
        a(f"v_xor_b32 v{T0}, v{T0}, v{LP}")
    for i in range(4):
        chunkpat(i)
        a(f"v_lshlrev_b32 v{T1}, 4, v{T0}")
        a(f"v_lshl_add_u32 v{VW+i}, v{LH}, 13, v{T1}")
    ntkv = " nt" if cfg.nt_kv else ""
    ntw = " nt" if cfg.nt_w else ""
    ntwo = " nt" if cfg.nt_wo else ""
    ntwarm = " nt" if cfg.nt_warm else ""

    def tile_kv(kind, t):
        srd = S_K if kind == "K" else S_V
        lds = KS[t % 4] if kind == "K" else VS[t % 4]
        vm.room(16)
        for m in range(4):
            a(f"s_mov_b32 m0, {lds + m*4096}")
            a(f"s_mov_b32 s{S_SO}, {t*16384 + m*4096}")
            for n in range(4):
                i = 4*m + n
                vo = VK + (i & 7) if kind == "K" else VV + (i & 3)
                vm.issue(f"buffer_load_dwordx4 v{vo}, s[{srd}:{srd+3}], s{S_SO} offen offset:{n*1024}{ntkv} lds", (kind, t))
    def tile_w(s):
        lds = WRING[s % 4]
        vm.room(16)
        for i in range(16):
            sig0 = 8*((i & 7) >> 1) + 4*(i >> 3) + 2*(i & 1)
            a(f"s_mov_b32 m0, {lds + i*1024}")
            a(f"s_mov_b32 s{S_SO}, {(s*32 + sig0)*8192}")
            vm.issue(f"buffer_load_dwordx4 v{VW + (i & 3)}, s[{S_WQ}:{S_WQ+3}], s{S_SO} offen{ntw} lds", ("W", s))
    def tile_wo(j):
        lds = WOSLOT[j]
        vm.room(16)
        for i in range(16):
            if j < 12:
                p, T0_ = j // 4, (j % 4) * 2
                so = (32*T0_ + 2*i)*896 + p*256
                vo = VO + (i & 3)
            else:
                T0_ = (j - 12) * 4
                so = (32*T0_ + 2*i)*896 + 768
                vo = VO3 + (i & 3)
            a(f"s_mov_b32 m0, {lds + i*1024}")
            a(f"s_mov_b32 s{S_SO}, {so}")
            vm.issue(f"buffer_load_dwordx4 v{vo}, s[{S_WO}:{S_WO+3}], s{S_SO} offen{ntwo} lds", ("WO", j))
    NREG0 = cfg.wo_reg0
    def wo_quad(j, i):
        k = (j - NREG0) * 16 + i
        return ar(4*k, 4) if k < 64 else v(64 + 4*(k - 64), 4)
    def wo_addr(j, i):
        if j < 12:
            p, T0_ = j // 4, (j % 4) * 2
            return (32*T0_ + 2*i)*896 + p*256, VO + (i & 3)
        T0_ = (j - 12) * 4
        return (32*T0_ + 2*i)*896 + 768, VO3 + (i & 3)
    def load_wo_reg(j, i0, n):
        vm.room(n)
        for i in range(i0, i0 + n):
            so, vo = wo_addr(j, i)
            a(f"s_mov_b32 s{S_SO}, {so}")
            vm.issue(f"buffer_load_dwordx4 {wo_quad(j, i)}, v{vo}, s[{S_WO}:{S_WO+3}], s{S_SO} offen{ntwo}", ("WOR", j))
    def put_wo(j):
        vm.need(("WOR", j))
        a(f"v_add_u32 v33, {WOSLOT[j]}, v32")
        for i in range(16):
            a(f"ds_write_b128 v33, {wo_quad(j, i)} offset:{i*1024}")
        wo_written.append(j)
    wo_written = []
    def need_wo(j):
        if j >= NREG0:
            if j in wo_written:
                a("s_waitcnt lgkmcnt(0)")
                while wo_written: wo_written.pop()
        else:
            vm.need(("WO", j))
    def tile_wo_any(j):
        if j >= NREG0: put_wo(j)
        else: tile_wo(j)
    def warm_wo(i0, n):
        vm.room(n)
        for i in range(i0, i0 + n):
            a(f"s_mul_i32 s{S_SO}, s{S_B}, 28672")
            a(f"s_add_u32 s{S_SO}, s{S_SO}, {i*1024}")
            vm.issue(f"buffer_load_dwordx4 v[36:39], v32, s[{S_WO}:{S_WO+3}], s{S_SO} offen{ntwarm}", ("warm", i))
    def code_pf(lo, hi, tagn):
        a(f"s_getpc_b64 s[{S_PC}:{S_PC+1}]")
        lab = f"L_pc_{tagn}"
        a.label(lab)
        a(f"s_add_u32 s{S_PC}, s{S_PC}, {lo}-{lab}")
        a(f"s_addc_u32 s{S_PC+1}, s{S_PC+1}, -1" if False else f"s_addc_u32 s{S_PC+1}, s{S_PC+1}, ({lo}-{lab})>>32")
        a(f"s_mov_b32 s{S_PC+2}, {hi}-{lo}")
        a(f"s_mov_b32 s{S_PC+3}, 0x20000")
        a(f"s_lshr_b32 s{S_SO2}, s2, 3")
        a(f"s_mul_i32 s{S_SO2}, s{S_SO2}, 3072")
        vm.room(3)
        for i in range(3):
            vm.issue(f"buffer_load_dwordx4 v[36:39], v32, s[{S_PC}:{S_PC+3}], s{S_SO2} offen offset:{i*1024}", ("pf", tagn, i))

    fused = cfg.fused and not cfg.dump
    if fused:
        emit_cnt_srd(a)
        a("s_mov_b32 s48, s82"); a("s_mov_b32 s49, s83")
        a("s_mov_b32 s50, 256"); a("s_mov_b32 s51, 0x20000")
        a(f"s_lshl_b32 s52, s{S_BR}, 3")
        a(f"s_add_u32 s52, s52, s{S_B}")
        a("s_lshl_b32 s52, s52, 4")
        a(f"s_cmp_lg_u32 s{S_H}, 0")
        a("s_cbranch_scc1 L_noinit")
        a(f"v_lshlrev_b32 v33, 12, v{V_LANE}")
        a("v_mov_b32 v34, 0")
        a("s_mov_b64 exec, 7")
        a("buffer_store_dword v34, v33, s[84:87], 0 offen sc1")
        a("s_mov_b64 exec, -1")
        a.label("L_noinit")
    tile_w(0); xstamp(1)
    if cfg.code_pf: code_pf(KNAME, "L_code_end", "all")
    tile_w(1); xstamp(2)
    emit_setup_late(a, cfg, True)
    for i in range(8):
        a(f"v_add_u32 v{T0}, {2*i}, v{LH}")
        a(f"v_xor_b32 v{T0}, v{T0}, v{LP}")
        a(f"v_lshlrev_b32 v{T0}, 4, v{T0}")
        a(f"v_lshl_add_u32 v{VK+i}, v{LH}, 9, v{T0}")
    for i in range(4):
        chunkpat(i)
        a(f"v_lshlrev_b32 v{T1}, 4, v{T0}")
        a(f"v_lshl_add_u32 v{VV+i}, v{LH}, 9, v{T1}")
        a(f"v_lshrrev_b32 v6, 4, v{T0}")
        a(f"v_lshl_add_u32 v6, v6, 5, v{LH}")
        a(f"v_mul_u32_u24 v6, 896, v6")
        a(f"v_and_b32 v7, 15, v{T0}")
        a(f"v_lshl_add_u32 v{VO+i}, v7, 4, v6")
        a(f"v_lshrrev_b32 v6, 3, v{T0}")
        a(f"v_lshl_add_u32 v6, v6, 5, v{LH}")
        a(f"v_mul_u32_u24 v6, 896, v6")
        a(f"v_and_b32 v7, 7, v{T0}")
        a(f"v_lshl_add_u32 v{VO3+i}, v7, 4, v6")
    xstamp(3)
    kv_after_pb = KVSCHED[cfg.kvsched]
    for name, idx in barrier_list(cfg):
        if name == "PB":
            if idx == 0: vm.need(("W", 0)); vm.need(("W", 1))
            elif idx == 1: pass
            elif idx + 1 <= 13: vm.need(("W", idx + 1))
        elif name == "B":
            t = idx
            if t == -1:
                vm.need(("K", 0)); vm.need(("K", 1))
            else:
                if t + 2 <= 31: vm.need(("K", t + 2))
                vm.need(("V", t))
            if t == 31:
                need_wo(0); need_wo(1)
        else:
            j = idx
            need_wo(min(j + 1, 13))
            if j == ntb(cfg) - 1:
                for jj in range(14): need_wo(jj)
        a("s_barrier")
        if cfg.stamps:
            stamp_idx[0] += 1
            a("s_memrealtime s[62:63]")
            a("s_waitcnt lgkmcnt(0)")
            a(f"v_writelane_b32 v56, s62, {stamp_idx[0]}")
            a("s_memtime s[62:63]")
            a("s_waitcnt lgkmcnt(0)")
            a(f"v_writelane_b32 v59, s62, {stamp_idx[0]}")
        if name == "PB" and idx == 0 and fused:
            a(f"s_cmp_lg_u32 s{S_H}, 0")
            a("s_cbranch_scc1 L_noinit2")
            a("v_mov_b32 v34, 1")
            a("s_mov_b64 exec, 1")
            a("buffer_atomic_add v34, off, s[48:51], s52")
            a("s_mov_b64 exec, -1")
            a.label("L_noinit2")
        if name == "PB":
            if idx == 1: tile_w(2); tile_w(3); tile_w(4)
            elif idx >= 2 and idx + 3 <= 13: tile_w(idx + 3)
            for k, t in kv_after_pb.get(idx, []): tile_kv(k, t)
        elif name == "B":
            t = idx
            if t >= 0:
                if t + 4 <= 31: tile_kv("K", t + 4)
                if t >= 1 and t + 3 <= 31: tile_kv("V", t + 3)
            if cfg.warm_wo and cfg.warm_t0 <= t <= cfg.warm_t0 + 6:
                warm_wo((t - cfg.warm_t0) * 4, 4)
            if cfg.code_pf and t == 25: code_pf("L_tail_code", "L_tail_end", "tail")
            if fused and t == 10:
                vm.room(1)
                a("s_mov_b64 exec, 1")
                vm.issue(f"buffer_load_dword v35, off, s[48:51], s52 sc1", ("initflag",))
                a("s_mov_b64 exec, -1")
            if fused and t == 14:
                vm.need(("initflag",))
                a("v_readfirstlane_b32 s90, v35")
                a("s_nop 3")
                a("s_cmp_ge_u32 s90, 1")
                a("s_cbranch_scc1 L_init_ok")
                a("s_mov_b64 exec, 1")
                a("s_mov_b32 s89, 0")
                a.label("L_init_poll")
                a("buffer_load_dword v35, off, s[48:51], s52 sc1")
                a("s_waitcnt vmcnt(0)")
                a("v_readfirstlane_b32 s90, v35")
                a("s_add_u32 s89, s89, 1")
                a("s_cmp_ge_u32 s90, 1")
                a("s_cbranch_scc1 L_init_done")
                a("s_cmp_ge_u32 s89, 0x40000")
                a("s_cbranch_scc1 L_init_done")
                a("s_sleep 8")
                a("s_branch L_init_poll")
                a.label("L_init_done")
                a("s_mov_b64 exec, -1")
                a.label("L_init_ok")
            nreg = 14 - NREG0
            k = t - cfg.wo_reg_t0
            if 0 <= k < 2 * nreg:
                load_wo_reg(NREG0 + k // 2, 8 * (k & 1), 8)
            if t == 26: tile_wo_any(0)
            if t == 27: tile_wo_any(1)
            if t == 28: tile_wo_any(2)
            if t == 29: tile_wo_any(3); tile_wo_any(4)
            if t == 30: tile_wo_any(5); tile_wo_any(6)
            if t == 31: tile_wo_any(7); tile_wo_any(8)
        else:
            j = idx
            if j == 0: tile_wo_any(9)
            if 1 <= j <= 4: tile_wo_any(9 + j)
            if j == 5 and cfg.fused and not cfg.dump:
                a(f"v_lshlrev_b32 v33, 2, v{V_LANE}")
                a(f"v_add_u32 v33, {VS[0]}, v33")
                a("v_mov_b32 v34, 0")
                a("ds_write_b32 v33, v34")
                a("s_waitcnt lgkmcnt(0)")
    a("s_waitcnt vmcnt(0)")
    if cfg.fused and not cfg.dump:
        emit_red_setup(a, cfg)
        for p in range(2):
            emit_poll(a, cfg, p)
            xstamp(4 + p)
            for e in range(2):
                a(f"s_add_u32 s90, s{S_H}, {16*e}")
                a(f"s_lshr_b32 s{96+2*e}, s90, 2")
                a("s_and_b32 s90, s90, 3")
                a(f"s_add_u32 s{97+2*e}, s90, {4*p}")
            emit_reduce_frags(a, cfg, 2)
        emit_poll(a, cfg, 2)
        xstamp(6)
        a("s_barrier")
        emit_final_reduce(a, cfg)
        xstamp(7)
    if cfg.stamps:
        if not (cfg.fused and not cfg.dump): a("s_barrier")
        a("s_memrealtime s[62:63]")
        a("s_waitcnt lgkmcnt(0)")
        a(f"v_writelane_b32 v56, s62, 62")
        a("s_mov_b32 s76, s72"); a("s_mov_b32 s77, s73")
        a("s_mov_b32 s78, 0x10000000"); a("s_mov_b32 s79, 0x20000")
        a("s_lshl_b32 s74, s2, 8")
        a("s_add_u32 s74, s74, 0x4000000")
        a(f"v_lshlrev_b32 v57, 2, v{V_LANE}")
        a("buffer_store_dword v56, v57, s[76:79], s74 offen")
        a("s_add_u32 s74, s74, 0x100000")
        a("buffer_store_dword v58, v57, s[76:79], s74 offen")
        a("s_add_u32 s74, s74, 0x100000")
        a("buffer_store_dword v59, v57, s[76:79], s74 offen")
        a("s_waitcnt vmcnt(0)")
    a("s_branch L_end")

def emit_cnt_srd(a):
    a(f"s_lshl_b32 s84, s{S_BR}, 3")
    a(f"s_add_u32 s84, s84, s{S_B}")
    a("s_lshl_b32 s84, s84, 14")
    a(f"s_add_u32 s84, s84, {CNT_OFF}")
    a("s_add_u32 s84, s72, s84")
    a("s_addc_u32 s85, s73, 0")
    a("s_mov_b32 s86, 16384"); a("s_mov_b32 s87, 0x20000")

def emit_red_setup(a, cfg):
    lane = V_LANE
    emit_cnt_srd(a)
    a(f"s_lshl_b32 s88, s{S_BR}, 3")
    a(f"s_add_u32 s88, s88, s{S_B}")
    a(f"s_mul_i32 s45, s88, {16*129024}")
    a("s_add_u32 s44, s72, s45")
    a("s_addc_u32 s45, s73, 0")
    a(f"s_mov_b32 s46, {16*129024}")
    a("s_mov_b32 s47, 0x20000")
    a("s_mov_b32 s92, s80"); a("s_mov_b32 s93, s81")
    a(f"s_mov_b32 s94, {8*144*896*2}"); a("s_mov_b32 s95, 0x20000")

_lab = [0]
def emit_poll(a, cfg, p):
    _lab[0] += 1; n = _lab[0]
    a("s_mov_b64 exec, 1")
    a("s_mov_b32 s89, 0")
    a.label(f"L_poll{n}")
    a(f"s_mov_b32 s88, {4096*p}")
    a(f"buffer_load_dword v2, off, s[84:87], s88{cfg.poll_flags}")
    a("s_waitcnt vmcnt(0)")
    a("v_readfirstlane_b32 s90, v2")
    a("s_add_u32 s89, s89, 1")
    a("s_cmp_ge_u32 s90, 16")
    a(f"s_cbranch_scc1 L_poll_done{n}")
    a("s_cmp_ge_u32 s89, 0x40000")
    a(f"s_cbranch_scc1 L_poll_done{n}")
    a(f"s_sleep {cfg.poll_sleep}")
    a(f"s_branch L_poll{n}")
    a.label(f"L_poll_done{n}")
    a("s_mov_b64 exec, -1")

def emit_reduce_frags(a, cfg, nf):
    lane = V_LANE
    a(f"v_lshlrev_b32 v2, 4, v{lane}")
    for e in range(nf):
        a(f"s_mul_i32 s90, s{96+2*e}, 14")
        a(f"s_add_u32 s90, s90, s{97+2*e}")
        a("s_lshl_b32 s91, s90, 10")
        for hh in range(16):
            r = 64 + 64*e + 4*hh
            a(f"buffer_load_dwordx4 v[{r}:{r+3}], v2, s[44:47], s91 offen{cfg.rd_flags}")
            if hh < 15: a(f"s_add_u32 s91, s91, 129024")
    a(f"v_and_b32 v3, 15, v{lane}")
    a("v_mul_u32_u24 v3, 1792, v3")
    a(f"v_lshrrev_b32 v4, 4, v{lane}")
    a("v_lshl_add_u32 v3, v4, 3, v3")
    for e in range(nf):
        a(f"s_mul_i32 s100, s{S_B}, 144")
        a(f"s_lshl_b32 s90, s{96+2*e}, 4")
        a("s_add_u32 s100, s100, s90")
        a("s_mul_i32 s100, s100, 1792")
        a(f"s_lshl_b32 s90, s{97+2*e}, 6")
        a("s_add_u32 s100, s100, s90")
        a(f"s_mul_i32 s90, s{S_BR}, 896")
        a(f"s_add_u32 s{96+2*e}, s100, s90")
    for e in range(nf):
        acc = 32 + 8*e
        for hh in range(16):
            a(f"s_waitcnt vmcnt({16*nf - 1 - 16*e - hh})")
            for r in range(4):
                src = 64 + 64*e + 4*hh + r
                if hh == 0:
                    a(f"v_lshlrev_b32 v{acc+2*r}, 16, v{src}")
                    a(f"v_and_b32 v{acc+2*r+1}, 0xffff0000, v{src}")
                else:
                    t = 8 + 2*r
                    a(f"v_lshlrev_b32 v{t}, 16, v{src}")
                    a(f"v_and_b32 v{t+1}, 0xffff0000, v{src}")
            if hh > 0:
                for r in range(4):
                    t = 8 + 2*r
                    a(f"v_pk_add_f32 v[{acc+2*r}:{acc+2*r+1}], v[{acc+2*r}:{acc+2*r+1}], v[{t}:{t+1}]")
        for r in range(4):
            a(f"v_cvt_pk_bf16_f32 v{48+4*e+r}, v{acc+2*r}, v{acc+2*r+1}")
    for e in range(nf):
        a(f"buffer_store_dwordx2 v[{48+4*e}:{49+4*e}], v3, s[92:95], s{96+2*e} offen{cfg.out_flags}")
        a(f"buffer_store_dwordx2 v[{50+4*e}:{51+4*e}], v3, s[92:95], s{96+2*e} offen offset:32{cfg.out_flags}")

def emit_final_reduce(a, cfg):
    _lab[0] += 1; n = _lab[0]
    a(f"s_lshl_b32 s90, s{S_WID}, 4")
    a(f"s_add_u32 s90, s90, s{S_H}")
    a("s_cmp_ge_u32 s90, 62")
    a(f"s_cbranch_scc1 L_fin_done{n}")
    a("s_lshr_b32 s96, s90, 2")
    a("s_and_b32 s97, s90, 3")
    a("s_add_u32 s97, s97, 8")
    a("s_sub_u32 s91, s90, 36")
    a("s_lshr_b32 s98, s91, 1")
    a("s_and_b32 s99, s91, 1")
    a("s_add_u32 s99, s99, 12")
    a("s_cmp_ge_u32 s90, 36")
    a("s_cselect_b32 s96, s98, s96")
    a("s_cselect_b32 s97, s99, s97")
    a("s_sub_u32 s91, s90, 54")
    a("s_cmp_ge_u32 s90, 54")
    a("s_cselect_b32 s96, 8, s96")
    a("s_cselect_b32 s97, s91, s97")
    emit_reduce_frags(a, cfg, 1)
    a.label(f"L_fin_done{n}")

def mfma(a, D, A, B, C=None):
    a(f"v_mfma_f32_16x16x32_bf16 {D}, {A}, {B}, {C if C is not None else D}")

def xlane_max(a, r, tmp):
    a(f"v_mov_b32 v{tmp}, v{r}")
    a("s_nop 1")
    a(f"v_permlane32_swap_b32 v{r}, v{tmp}")
    a("s_nop 1")
    a(f"v_max_f32 v{r}, v{r}, v{tmp}")
    a(f"v_mov_b32 v{tmp}, v{r}")
    a("s_nop 1")
    a(f"v_permlane16_swap_b32 v{r}, v{tmp}")
    a("s_nop 1")
    a(f"v_max_f32 v{r}, v{r}, v{tmp}")

def emit_compute(a, cfg):
    rare_blocks = []
    emit_compute_main(a, cfg, rare_blocks)
    emit_rare(a, cfg, rare_blocks)

def emit_compute_main(a, cfg, rare_blocks):
    lg = Lgkm(a)
    lane = V_LANE
    T0, T1 = V_T0, V_T1
    NKP, NVP = cfg.nkp, cfg.nvp
    a(f"v_lshrrev_b32 v{T0}, 3, v{lane}")
    a(f"v_and_b32 v{T1}, 7, v{lane}")
    a(f"v_lshrrev_b32 v22, 1, v{T0}")
    a(f"v_xor_b32 v22, v22, v{T1}")
    a(f"v_mul_u32_u24 v23, 896, v{T0}")
    a(f"v_lshl_add_u32 v24, v22, 4, v23")
    a(f"v_xor_b32 v22, 4, v22")
    a(f"v_lshl_add_u32 v25, v22, 4, v23")
    a(f"v_add_u32 v25, {8*896}, v25")
    a(f"s_mul_i32 s74, s{S_WID}, {XW}")
    vm = Vm(a)
    ntx = " nt" if cfg.nt_x else ""
    for sp in range(7):
        for qt in range(3):
            for hb in range(2):
                a(f"s_add_u32 m0, s74, {((qt*2 + hb)*7 + sp)*1024}")
                a(f"s_add_u32 s{S_SO}, s74, {qt*14336 + sp*128}")
                vm.issue(f"buffer_load_dwordx4 v{24+hb}, s[{S_X}:{S_X+3}], s{S_SO} offen{ntx} lds", ("x",))
    if cfg.warm_wq:
        ntwarm = " nt" if cfg.nt_warm else ""
        a(f"v_lshrrev_b32 v{T0}, 5, v{lane}")
        a(f"v_and_b32 v{T1}, 31, v{lane}")
        a(f"v_lshlrev_b32 v{T1}, 4, v{T1}")
        a(f"v_lshl_add_u32 v26, v{T0}, 13, v{T1}")
        a(f"s_mul_i32 s75, s{S_B}, 48")
        a(f"s_lshl_b32 s76, s{S_WID}, 4")
        a("s_add_u32 s75, s75, s76")
        a("s_add_u32 s75, s75, 64")
        a("s_lshl_b32 s75, s75, 13")
        for i in range(8):
            vm.issue(f"buffer_load_dwordx4 {ar(A_DUMMY,4)}, v26, s[{S_WQ}:{S_WQ+3}], s75 offen{ntwarm}", ("warm", i))
            if i < 7: a(f"s_add_u32 s75, s75, {2*8192}")
    emit_setup_late(a, cfg, False)
    g_, i15 = 22, 23
    a(f"v_lshrrev_b32 v{g_}, 4, v{lane}")
    a(f"v_and_b32 v{i15}, 15, v{lane}")
    a(f"v_lshrrev_b32 v26, 1, v{i15}")
    a(f"v_lshrrev_b32 v27, 3, v{i15}")
    a(f"v_mul_u32_u24 v27, 7168, v27")
    a(f"v_and_b32 v28, 7, v{i15}")
    a(f"v_lshl_add_u32 v27, v28, 7, v27")
    a(f"s_mul_i32 s74, s{S_WID}, {XW}")
    a(f"v_add_u32 v27, s74, v27")
    for e in range(2):
        a(f"v_add_u32 v{T0}, {4*e}, v{g_}")
        a(f"v_xor_b32 v{T0}, v{T0}, v26")
        a(f"v_lshl_add_u32 v{V_XB+e}, v{T0}, 4, v27")
    for j in range(4):
        a(f"v_add_u32 v{T0}, {4*j}, v{g_}")
        a(f"v_xor_b32 v{T0}, v{T0}, v{i15}")
        a(f"v_lshlrev_b32 v{T0}, 4, v{T0}")
        a(f"v_lshl_add_u32 v{V_KB+j}, v{i15}, 9, v{T0}")
    rp, cc, row, rho = 26, 27, 28, 29
    a(f"v_lshrrev_b32 v{rp}, 2, v{i15}")
    a(f"v_and_b32 v{cc}, 3, v{i15}")
    a(f"v_lshl_add_u32 v{row}, v{g_}, 2, v{rp}")
    a(f"v_and_b32 v{rho}, 7, v{row}")
    a(f"v_lshrrev_b32 v{T0}, 1, v{cc}")
    a(f"v_lshlrev_b32 v{T0}, 4, v{T0}")
    a(f"v_and_b32 v{T1}, 1, v{cc}")
    a(f"v_lshl_add_u32 v{T0}, v{T1}, 3, v{T0}")
    a(f"v_lshl_add_u32 v30, v{row}, 9, v{T0}")
    for j in range(8):
        a(f"v_xor_b32 v{T0}, {j}, v{rho}")
        a(f"v_lshl_add_u32 v{T0}, v{T0}, 5, v30")
        a(f"v_add_u32 v{V_VB+j}, {VREG}, v{T0}")
    a(f"v_lshlrev_b32 v31, 1, v{rho}")
    a(f"v_lshlrev_b32 v30, 9, v{row}")
    for j in range(4):
        a(f"v_add_u32 v{T0}, {4*j}, v{cc}")
        a(f"v_xor_b32 v{T0}, v{T0}, v31")
        a(f"v_lshl_add_u32 v{T0}, v{T0}, 4, v30")
        a(f"v_add_u32 v{V_WB+j}, {WBASE}, v{T0}")
    a(f"s_mov_b32 s{S_THR}, {hex(f2u(cfg.thr))}")

    def wread(s, u, half):
        T = u >> 1
        off = (WRING[s % 4] - WBASE) + (T >> 2) * 256 + (u & 1) * 8 + half * 8192
        r = A_W + 4 * u + 2 * half
        lg.issue(f"ds_read_b64_tr_b16 {ar(r,2)}, v{V_WB + (T & 3)} offset:{off}", ("w", s, u, half))
    def xread(s, qt):
        off = qt * 14336 + (s >> 1) * 1024
        lg.issue(f"ds_read_b128 {ar(Xreg(s, qt), 4)}, v{V_XB + (s & 1)} offset:{off}", ("x", s, qt))
    NWP = 6
    n_after = 8 if cfg.warm_wq else 0
    a(f"s_waitcnt vmcnt({n_after})")
    for qt in range(3): xread(0, qt)
    for s in range(14):
        a("s_barrier")
        pre_done = (s >= 3) or s == 1
        if not pre_done:
            if s == 0: lg.need(("x", 0, 2))
            for u in range(NWP - (2 if s == 0 else 0)):
                wread(s, u, 0); wread(s, u, 1)
        nfirst = NWP - (2 if s == 0 else 0)
        mf = []
        for u in range(16):
            for qt in range(3):
                pre = None
                if qt == 0 and u % 2 == 0:
                    pre = (lambda s=s, u=u: lg.need(("w", s, u + 1, 1)))
                D = v(QAcc(u, qt), 4)
                mf.append((pre, (lambda D=D, s=s, u=u, qt=qt: mfma(a, D, ar(A_W + 4*u, 4), ar(Xreg(s, qt), 4), "0" if s == 0 else None))))
        st = []
        for u in range(nfirst, 16):
            for h in range(2):
                st.append(It((lambda s=s, u=u, h=h: wread(s, u, h)), 4, max(0, 3*(u - NWP) + h), max(0, 3*(u - 3))))
        nxt_pre = (s + 1 <= 13) and ((s + 1 >= 3) or s + 1 == 1)
        if nxt_pre:
            for u in range(NWP):
                for h in range(2):
                    st.append(It((lambda s=s, u=u, h=h: wread(s + 1, u, h)), 4, 3*(16 + u - NWP) + h))
        streams = [st]
        if s == 0:
            xs = [It((lambda ss=ss, qt=qt: xread(ss, qt)), 4, ((ss - 1)*3 + qt) * 46 // 39) for ss in range(1, 14) for qt in range(3)]
            streams.append(xs)
        sched(a, mf, streams)
        if s == 0:
            lg.need(("x", 13, 2))
    lg.drain()
    if cfg.dump == "qacc":
        emit_dump_v(a, cfg, V_QACC, 192); return
    a(f"s_mov_b32 s74, {hex(f2u(QSCALE))}")
    a(f"s_mov_b32 s75, {hex(f2u(QSCALE))}")
    a(f"v_mov_b32 v{T0}, 0x3f803f80")
    for r in range(4):
        a(f"v_accvgpr_write_b32 a{A_ONES+r}, v{T0}")
    a("s_nop 3")
    for i in range(23, -1, -1):
        src = V_QACC + 8 * i
        dst = V_Q + 4 * i
        for r in range(4):
            a(f"v_pk_mul_f32 {v(src + 2*r, 2)}, {v(src + 2*r, 2)}, s[74:75]")
        for r in range(3, -1, -1):
            a(f"v_cvt_pk_bf16_f32 v{dst + r}, v{src + 2*r}, v{src + 2*r + 1}")
    if cfg.dump == "q":
        emit_dump_v(a, cfg, V_Q, 96); return

    def kread(t, f):
        aa, T = f >> 3, f & 7
        off = KS[t % 4] + aa * 8192 + (T >> 2) * 256
        lg.issue(f"ds_read_b128 {v(V_KBUF + 4*(f % 8), 4)}, v{V_KB + (T & 3)} offset:{off}", ("k", t, f))
    def vread(t, u, half):
        off = (VS[t % 4] - VREG) + (u >> 3) * 256 + half * 8192
        r = V_VBUF + 4 * (u % 8) + 2 * half
        lg.issue(f"ds_read_b64_tr_b16 {v(r,2)}, v{V_VB + (u & 7)} offset:{off}", ("v", t, u, half))

    def exp_items(t):
        par = t & 1
        st = []
        for qt in range(3):
            for aa in range(2):
                s = Sreg(par, qt, aa)
                for hh in range(2):
                    e0, e1 = s + 2*hh, s + 2*hh + 1
                    pr = V_P + qt*4 + aa*2 + hh
                    st.append(It((lambda e=e0: a(f"v_exp_f32 v{e}, v{e}")), 8))
                    st.append(It((lambda e=e1: a(f"v_exp_f32 v{e}, v{e}")), 8))
                    st.append(("cvt", It((lambda pr=pr, e0=e0, e1=e1: a(f"v_cvt_pk_bf16_f32 v{pr}, v{e0}, v{e1}")), 4)))
        exps = [x for x in st if not isinstance(x, tuple)]
        cvts = [x[1] for x in st if isinstance(x, tuple)]
        return exps, cvts

    def phaseA(t):
        doqk = t + 1 <= 31
        doexp = t >= 0
        if doexp: exps, cvts = exp_items(t)
        if not doqk:
            vq = [(u, h) for u in range(NVP) for h in range(2)]
            for grp in range(12):
                exps[2*grp].fn(); exps[2*grp+1].fn()
                if grp > 0: cvts[grp-1].fn()
                if vq: vread(t, *vq.pop(0))
            a("s_nop 0")
            cvts[11].fn()
            while vq: vread(t, *vq.pop(0))
            return
        par1 = (t + 1) & 1
        mf = []
        for m in range(48):
            aa, T, qt = m // 24, (m % 24) // 3, m % 3
            f = aa * 8 + T
            pre = None
            if qt == 0 and f % 2 == 0:
                pre = (lambda f=f: lg.need(("k", t + 1, f + 1)))
            C = None
            if T == 0: C = "0" if t == -1 else v(V_CM + 4*qt, 4)
            D = v(Sreg(par1, qt, aa), 4)
            mf.append((pre, (lambda D=D, f=f, qt=qt, T=T, C=C: mfma(a, D, v(V_KBUF + 4*(f % 8), 4), v(Qreg(qt, T), 4), C))))
        ks = [It((lambda f=f: kread(t + 1, f)), 4, max(0, 3*(f - 8) + 2), 3*f - 8) for f in range(NKP, 16)]
        streams = [ks]
        if doexp:
            for i, e in enumerate(exps):
                e.earliest = 4*(i // 2) + (i & 1); e.deadline = e.earliest
            for i, c in enumerate(cvts):
                c.earliest = 4*i + 2; c.deadline = min(4*i + 5, 47)
            vs = [It((lambda u=u, h=h: vread(t, u, h)), 4, 26) for u in range(NVP) for h in range(2)]
            streams = [exps, cvts, ks, vs]
        sched(a, mf, streams)

    def phaseB(t, extra=None):
        first = (t == 0)
        docheck = t + 1 <= 31
        par1 = (t + 1) & 1
        Z = "0" if first else None
        mf = []
        for qt in range(3):
            mf.append((None, (lambda qt=qt: mfma(a, ar(A_L + 4*qt, 4), ar(A_ONES, 4), v(V_P + 4*qt, 4), Z))))
        for m in range(48):
            u, qt = m // 3, m % 3
            pre = None
            if qt == 0 and u % 2 == 0:
                pre = (lambda u=u: lg.need(("v", t, u + 1, 1)))
            mf.append((pre, (lambda u=u, qt=qt: mfma(a, ar(Oreg(u, qt), 4), v(V_VBUF + 4*(u % 8), 4), v(V_P + 4*qt, 4), Z))))
        vs = []
        for u in range(NVP, 16):
            e = max(0 if u < 8 else 3 + 3*(u - 8) + 2, 3 + 3*(u - NVP - 1))
            for h in range(2):
                vs.append(It((lambda u=u, h=h: vread(t, u, h)), 4, e + h, 3 + 3*u - 9))
        streams = [vs]
        if docheck:
            s0 = V_S[par1]; mx = V_TMP
            chk = [f"v_max3_f32 v{mx}, v{s0}, v{s0+1}, v{s0+2}"]
            for k in range(10):
                chk.append(f"v_max3_f32 v{mx}, v{mx}, v{s0+3+2*k}, v{s0+4+2*k}")
            chk.append(f"v_max_f32 v{mx}, v{mx}, v{s0+23}")
            chk.append(f"v_cmp_lt_f32 vcc, s{S_THR}, v{mx}")
            streams.append([It((lambda c=c: a(c)), 4, 6 + 2*i) for i, c in enumerate(chk)])
        if t + 2 <= 31:
            streams.append([It((lambda f=f: kread(t + 2, f)), 4, 30 + 2*f) for f in range(NKP)])
        if extra: streams += extra
        a("s_nop 1")
        sched(a, mf, streams)

    def check_branch(t, tag):
        a(f"s_cbranch_vccnz L_rare_{tag}")
        a.label(f"L_back_{tag}")
        rare_blocks.append((tag, (t + 1) & 1))

    a("s_barrier")
    for f in range(NKP): kread(0, f)
    phaseA(-1)
    for f in range(NKP): kread(1, f)
    a("s_nop 1")
    for qt in range(3):
        s0 = Sreg(0, qt, 0)
        mx = V_TMP + qt
        a(f"v_max3_f32 v{mx}, v{s0}, v{s0+1}, v{s0+2}")
        a(f"v_max3_f32 v{mx}, v{mx}, v{s0+3}, v{s0+4}")
        a(f"v_max3_f32 v{mx}, v{mx}, v{s0+5}, v{s0+6}")
        a(f"v_max_f32 v{mx}, v{mx}, v{s0+7}")
    for step in range(2):
        for qt in range(3): a(f"v_mov_b32 v{V_TMP+4+qt}, v{V_TMP+qt}")
        a("s_nop 0")
        for qt in range(3):
            a(f"v_permlane{32 if step == 0 else 16}_swap_b32 v{V_TMP+qt}, v{V_TMP+4+qt}")
        a("s_nop 0")
        for qt in range(3): a(f"v_max_f32 v{V_TMP+qt}, v{V_TMP+qt}, v{V_TMP+4+qt}")
    for qt in range(3):
        s0 = Sreg(0, qt, 0); mx = V_TMP + qt
        for r in range(8):
            a(f"v_sub_f32 v{s0+r}, v{s0+r}, v{mx}")
        for r in range(4):
            a(f"v_sub_f32 v{V_CM + 4*qt + r}, 0, v{mx}")
    if cfg.dump == "s0":
        lg.drain()
        emit_dump_v(a, cfg, V_S[0], 24, extra=(V_CM, 12)); return

    def iteration(t, tag):
        a("s_barrier")
        phaseA(t)
        phaseB(t)
        if t + 1 <= 31:
            check_branch(t, tag)

    iteration(0, "p0")
    q0 = list(lg.q)
    a(f"s_mov_b32 s{S_CNT}, 7")
    a.label("L_loop")
    for t in range(1, 5):
        iteration(t, f"l{t}")
    q1 = [(x[0], x[1] - 4) + x[2:] for x in lg.q]
    assert q0 == q1, (q0, q1)
    a(f"s_sub_u32 s{S_CNT}, s{S_CNT}, 1")
    a(f"s_cmp_lg_u32 s{S_CNT}, 0")
    a("s_cbranch_scc1 L_loop")
    lg.q = [(x[0], x[1] + 28) + x[2:] for x in q0]
    for x in lg.q: lg.issued.add(x)
    for f in range(16): lg.issued.add(("k", 30, f))
    a.label("L_tail_code")
    for t in range(29, 31):
        iteration(t, f"e{t}")

    def oconv_items(T, earliest=0):
        its = []
        for qt in range(3):
            tb = V_CT + 8 * qt
            for h in range(2):
                o = Oreg(2*T + h, qt)
                for r in range(4):
                    its.append(It((lambda d=tb + 4*h + r, s=o + r: a(f"v_accvgpr_read_b32 v{d}, a{s}")), 4, earliest))
            q = Qreg(qt, T)
            for r in range(4):
                its.append(It((lambda d=q + r, s=tb + 2*r: a(f"v_cvt_pk_bf16_f32 v{d}, v{s}, v{s+1}")), 4, earliest))
        return its

    def wo_base(j, jj):
        addr = WOSLOT[j]
        if addr < VREG: return VBK + jj, addr
        if addr < VREG + 65536: return V_VB + jj, addr - VREG
        return VBE + jj, addr - VREG - 65536
    steps = []
    for p in range(3):
        for T in range(8):
            steps.append((p, T, 4*p + T//2, T & 1, 8))
    for T in range(8):
        steps.append((3, T, 12 + T//4, T & 3, 4))
    frs = []
    for si, (p, T, j, tau, nu) in enumerate(steps):
        for u in range(nu):
            frs.append((si, p, T, j, tau, nu, u))
    FBN = 12
    def oread(k, half):
        si, p, T, j, tau, nu, u = frs[k]
        tp = (8*tau + u) if p < 3 else (4*tau + u)
        br, off = wo_base(j, tp & 7)
        off += (tp >> 3) * 256 + half * 8192
        r = A_WO + 4 * (k % FBN) + 2 * half
        lg.issue(f"ds_read_b64_tr_b16 {ar(r,2)}, v{br} offset:{off}", ("o", k, half))
    def accreg(p, u, qt):
        i = (u * 3 + qt) * 4
        if p == 0 or p == 2: return ("v", V_P0 + i)
        return ("a", i)
    def accstr(p, u, qt):
        f, r = accreg(p, u, qt)
        return v(r, 4) if f == "v" else ar(r, 4)
    slotc = [0]
    slog = []
    def conv_items(p, packed=False):
        its = []
        nu = 8 if p < 3 else 4
        for up in range(nu // 2):
            for qt in range(3):
                rl = V_RL + qt * 0
                rlp = f"v[{V_RL + 2*qt}:{V_RL + 2*qt + 1}]"
                f, _ = accreg(p, 0, 0)
                tb = V_CT + 12 * (slotc[0] % 2); slotc[0] += 1
                out = tb + 8
                if f == "a":
                    for h in range(2):
                        o = accreg(p, 2*up + h, qt)[1]
                        for r in range(4):
                            its.append(It((lambda d=tb + 4*h + r, s=o + r: a(f"v_accvgpr_read_b32 v{d}, a{s}"))))
                    srcs = [tb + 2*r for r in range(4)]
                else:
                    o0 = accreg(p, 2*up, qt)[1]; o1 = accreg(p, 2*up + 1, qt)[1]
                    srcs = [o0, o0 + 2, o1, o1 + 2]
                for sreg in srcs:
                    if packed:
                        its.append(It((lambda s=sreg, rlp=rlp: a(f"v_pk_mul_f32 {v(s,2)}, {v(s,2)}, {rlp}"))))
                    else:
                        for k in range(2):
                            its.append(It((lambda s=sreg + k, qt=qt: a(f"v_mul_f32 v{s}, v{V_RL + 2*qt}, v{s}"))))
                for r, sreg in enumerate(srcs):
                    its.append(It((lambda d=out + r, s=sreg: a(f"v_cvt_pk_bf16_f32 v{d}, v{s}, v{s+1}"))))
                upair = 4*p + up
                its.append(It((lambda c=(qt*14 + upair)*1024: a(f"s_add_u32 s{S_SO}, s{S_WOFF}, {c}")), 4))
                its.append(It((lambda o=out, p=p: (a(f"buffer_store_dwordx4 {v(o,4)}, v{V_ST}, s[{S_WS}:{S_WS+3}], s{S_SO} offen{cfg.st_flags}"), slog.append(p))), 4))
        return its

    svm = Vm(a)
    def signal_a(p, nafter):
        a(f"s_waitcnt vmcnt({nafter})")
        a("s_mov_b64 exec, 1")
        lg.issue(f"ds_add_rtn_u32 v6, v4, v5 offset:{4*p}", ("sig", p))
        a("s_mov_b64 exec, -1")
    def signal_b(p):
        lg.need(("sig", p))
        a("v_readfirstlane_b32 s90, v6")
        a("s_nop 3")
        a("s_cmp_eq_u32 s90, 2")
        a(f"s_cbranch_scc0 L_nosig{p}")
        a("s_mov_b64 exec, 1")
        a(f"s_mov_b32 s88, {4096*p}")
        a(f"buffer_atomic_add v5, off, s[84:87], s88")
        a("s_mov_b64 exec, -1")
        a.label(f"L_nosig{p}")
    a("s_barrier")
    phaseA(31)
    setup_its = []
    for j in range(8):
        setup_its.append(It((lambda j=j: a(f"v_subrev_u32 v{VBK+j}, {VREG}, v{V_VB+j}")), 4, 0))
        setup_its.append(It((lambda j=j: a(f"v_add_u32 v{VBE+j}, {VREG}, v{V_VB+j}")), 4, 0))
    NOP_ = 5
    ex1 = oconv_items(0, earliest=3 + 3*1 + 2 + 8)
    ex2 = oconv_items(1, earliest=3 + 3*3 + 2 + 8)
    pre_o = [It((lambda k=k, h=h: oread(k, h)), 4, 42) for k in range(NOP_) for h in range(2)]
    phaseB(31, extra=[setup_its, ex1 + ex2, pre_o])
    if cfg.dump == "o":
        a("s_nop 7")
        emit_dump_acc(a, cfg, 204); return
    a(f"v_lshlrev_b32 v{V_ST}, 4, v{lane}")
    a(f"s_mul_i32 s{S_WOFF}, s{S_WID}, {3*14*1024}")
    for qt in range(3):
        a(f"v_accvgpr_read_b32 v{V_RL+2*qt}, a{A_L + 4*qt}")
    for qt in range(3):
        a(f"v_rcp_f32 v{V_RL+2*qt}, v{V_RL+2*qt}")
    a("s_nop 0")
    for qt in range(3):
        a(f"v_mov_b32 v{V_RL+2*qt+1}, v{V_RL+2*qt}")
    if cfg.fused:
        a(f"v_mov_b32 v4, {VS[0]}")
        a("v_mov_b32 v5, 1")
        emit_red_setup(a, cfg)

    cur_slot = -1
    nxt = NOP_
    pend = []
    store_log = slog
    stores_since = {q: (lambda q=q: sum(1 for i, x in enumerate(store_log) if i > max(k for k, y in enumerate(store_log) if y == q))) for q in range(4)}
    for si, (p, T, j, tau, nu) in enumerate(steps):
        if j != cur_slot:
            if j < ntb(cfg): a("s_barrier")
            cur_slot = j
        if cfg.fused and p == 2 and T == cfg.sig_t:
            signal_a(0, stores_since[0]())
        if cfg.fused and p == 2 and T == cfg.sig_t + 1:
            signal_b(0)
        if cfg.fused and p == 3 and T == cfg.sig_t1:
            signal_a(1, stores_since[1]())
        if cfg.fused and p == 3 and T == cfg.sig_t1 + 1:
            signal_b(1)
        k0 = sum(s[4] for s in steps[:si])
        if T == 0 and p > 0:
            assert not pend
            pend = conv_items(p - 1)
            for it in pend[:1]: pass
        mf = []
        for u in range(nu):
            k = k0 + u
            for qt in range(3):
                pre = None
                if qt == 0 and u % 2 == 0:
                    pre = (lambda k=k: lg.need(("o", k + 1, 1)))
                mf.append((pre, (lambda u=u, qt=qt, k=k: mfma(a, accstr(p, u, qt), ar(A_WO + 4*(k % FBN), 4), v(Qreg(qt, T), 4), "0" if T == 0 else None))))
        rs = []
        lim = k0 + nu + NOP_
        while nxt < len(frs) and nxt < lim and frs[nxt][3] <= j + 1:
            kk = nxt
            use = 3 * (kk - k0)
            e = max(0, 3 * (kk - FBN - k0) + 2)
            for h in range(2):
                rs.append(It((lambda kk=kk, h=h: oread(kk, h)), 4, max(e, use - 3*NOP_ - 3), max(0, use - 10)))
            nxt += 1
        streams = [rs]
        if p == 0 and T + 2 <= 7:
            streams.append(oconv_items(T + 2))
        if pend:
            if T == 0:
                for it in pend: it.earliest = 4
            streams.append(pend)
            last_of_pass = (T == 7)
            sched(a, mf, [rs] + [pend], flush=False)
            while rs: rs.pop(0).fn()
            if last_of_pass:
                while pend: pend.pop(0).fn()
            for it in pend: it.earliest = 0
        else:
            sched(a, mf, streams)
    a("s_nop 7")
    for it in conv_items(3, packed=True): it.fn()
    a.label("L_tail_end")
    print("lds throttles:", lg.throttled, file=sys.stderr)
    if cfg.fused:
        signal_a(2, 0); signal_b(2)
        a("s_barrier")
        emit_final_reduce(a, cfg)
    elif cfg.stamps:
        a("s_waitcnt vmcnt(0)")
        a("s_barrier")
    a("s_branch L_end")

def emit_rare(a, cfg, rare_blocks):
    for tag, par in rare_blocks:
        a.label(f"L_rare_{tag}")
        a("s_nop 7")
        for qt in range(3):
            s0 = Sreg(par, qt, 0)
            mx = V_TMP + qt
            a(f"v_max3_f32 v{mx}, v{s0}, v{s0+1}, v{s0+2}")
            a(f"v_max3_f32 v{mx}, v{mx}, v{s0+3}, v{s0+4}")
            a(f"v_max3_f32 v{mx}, v{mx}, v{s0+5}, v{s0+6}")
            a(f"v_max_f32 v{mx}, v{mx}, v{s0+7}")
            xlane_max(a, mx, V_TMP + 4)
            a(f"v_max_f32 v{mx}, 0, v{mx}")
            for r in range(8):
                a(f"v_sub_f32 v{s0+r}, v{s0+r}, v{mx}")
            for r in range(4):
                a(f"v_sub_f32 v{V_CM + 4*qt + r}, v{V_CM + 4*qt + r}, v{mx}")
            a(f"v_sub_f32 v{mx}, 0, v{mx}")
            a(f"v_exp_f32 v{mx}, v{mx}")
        a(f"s_getpc_b64 s[{S_TGT}:{S_TGT+1}]")
        a.label(f"L_pc_{tag}")
        a(f"s_add_u32 s{S_TGT}, s{S_TGT}, L_rescale-L_pc_{tag}")
        a(f"s_addc_u32 s{S_TGT+1}, s{S_TGT+1}, 0")
        a(f"s_swappc_b64 s[{S_RET}:{S_RET+1}], s[{S_TGT}:{S_TGT+1}]")
        a(f"s_branch L_back_{tag}")
    if not rare_blocks: return
    a.label("L_rescale")
    a("s_nop 7")
    for qt in range(3):
        regs = [Oreg(u, qt) + r for u in range(16) for r in range(4)] + [A_L + 4*qt + r for r in range(4)]
        for i in range(0, len(regs), 4):
            for k in range(4):
                a(f"v_accvgpr_read_b32 v{V_TMP+4+k}, a{regs[i+k]}")
            for k in range(4):
                a(f"v_mul_f32 v{V_TMP+4+k}, v{V_TMP+qt}, v{V_TMP+4+k}")
            for k in range(4):
                a(f"v_accvgpr_write_b32 a{regs[i+k]}, v{V_TMP+4+k}")
    a("s_nop 1")
    a(f"s_setpc_b64 s[{S_RET}:{S_RET+1}]")

def emit_dump_common(a, cfg, regs, isacc):
    a("s_mov_b32 s76, s72"); a("s_mov_b32 s77, s73")
    a("s_mov_b32 s78, 0x10000000"); a("s_mov_b32 s79, 0x20000")
    a(f"s_mul_i32 s74, s2, 3")
    a(f"s_add_u32 s74, s74, s{S_WID}")
    a("s_lshl_b32 s74, s74, 16")
    a(f"v_lshlrev_b32 v{V_T0}, 2, v{V_LANE}")
    for i, r in enumerate(regs):
        if isacc:
            a(f"v_accvgpr_read_b32 v{V_T1}, a{r}")
            src = V_T1
        else:
            src = r
        a(f"buffer_store_dword v{src}, v{V_T0}, s[76:79], s74 offen")
        a("s_add_u32 s74, s74, 256")
        if isacc: a("s_waitcnt vmcnt(0)")
    a("s_waitcnt vmcnt(0)")
    n = {"qacc": 33 + 14, "q": 33 + 14, "s0": 32 + 14, "o": 14}[cfg.dump]
    for _ in range(n): a("s_barrier")
    if cfg.stamps: a("s_barrier")
    a.label("L_tail_end")
    if cfg.dump != "o": a.label("L_tail_code")
    a("s_branch L_end")
def emit_dump_acc(a, cfg, n):
    a("s_nop 7")
    emit_dump_common(a, cfg, list(range(n)), True)
def emit_dump_v(a, cfg, base, n, extra=None):
    regs = list(range(base, base + n))
    if extra: regs += list(range(extra[0], extra[0] + extra[1]))
    emit_dump_common(a, cfg, regs, False)

def emit_reduce(a, cfg):
    a.raw(f".globl {RNAME}")
    a.raw(".p2align 8")
    a.raw(f".type {RNAME},@function")
    a.label(RNAME)
    a("s_cmp_ge_u32 s2, 504")
    a("s_cbranch_scc1 LR_end")
    a("s_load_dwordx2 s[4:5], s[0:1], 96")
    a("s_load_dwordx2 s[8:9], s[0:1], 80")
    a("v_lshrrev_b32 v1, 6, v0")
    a("v_and_b32 v2, 63, v0")
    a("v_readfirstlane_b32 s3, v1")
    a("s_lshl_b32 s12, s2, 2")
    a("s_add_u32 s12, s12, s3")
    a(f"s_mul_hi_u32 s13, s12, {(2**32 + 125)//126}")
    a("s_mul_i32 s14, s13, 126")
    a("s_sub_u32 s14, s12, s14")
    a(f"s_mul_hi_u32 s15, s14, {(2**32 + 13)//14}")
    a("s_mul_i32 s16, s15, 14")
    a("s_sub_u32 s16, s14, s16")
    a("s_waitcnt lgkmcnt(0)")
    a(f"s_mul_i32 s17, s13, {16*129024}")
    a("s_lshl_b32 s18, s14, 10")
    a("s_add_u32 s17, s17, s18")
    a("s_add_u32 s4, s4, s17")
    a("s_addc_u32 s5, s5, 0")
    a(f"s_mov_b32 s6, {15*129024 + 1024}")
    a("s_mov_b32 s7, 0x20000")
    a("v_lshlrev_b32 v3, 4, v2")
    for h in range(16):
        a(f"s_mov_b32 s19, {h*129024}")
        a(f"buffer_load_dwordx4 v[{8+4*h}:{11+4*h}], v3, s[4:7], s19 offen{cfg.rd_flags}")
    a("s_and_b32 s20, s13, 7")
    a("s_lshr_b32 s21, s13, 3")
    a("s_mul_i32 s20, s20, 144")
    a("s_lshl_b32 s22, s15, 4")
    a("s_add_u32 s20, s20, s22")
    a("s_mul_i32 s20, s20, 1792")
    a("s_mul_i32 s21, s21, 896")
    a("s_lshl_b32 s22, s16, 6")
    a("s_add_u32 s20, s20, s21")
    a("s_add_u32 s20, s20, s22")
    a("v_and_b32 v4, 15, v2")
    a("v_mul_u32_u24 v4, 1792, v4")
    a("v_lshrrev_b32 v5, 4, v2")
    a("v_lshl_add_u32 v4, v5, 3, v4")
    a("s_mov_b32 s10, %d" % (8*144*896*2))
    a("s_mov_b32 s11, 0x20000")
    for h in range(16):
        a(f"s_waitcnt vmcnt({15-h})")
        for r in range(4):
            src = 8 + 4*h + r
            if h == 0:
                a(f"v_lshlrev_b32 v{72+2*r}, 16, v{src}")
                a(f"v_and_b32 v{73+2*r}, 0xffff0000, v{src}")
            else:
                a(f"v_lshlrev_b32 v80, 16, v{src}")
                a(f"v_and_b32 v81, 0xffff0000, v{src}")
                a(f"v_add_f32 v{72+2*r}, v{72+2*r}, v80")
                a(f"v_add_f32 v{73+2*r}, v{73+2*r}, v81")
    for r in range(4):
        a(f"v_cvt_pk_bf16_f32 v{84+r}, v{72+2*r}, v{73+2*r}")
    a("buffer_store_dwordx2 v[84:85], v4, s[8:11], s20 offen")
    a("buffer_store_dwordx2 v[86:87], v4, s[8:11], s20 offen offset:32")
    a.label("LR_end")
    a("s_endpgm")

def kd(a, name, vg, acc, sg=102):
    a.raw(f".amdhsa_kernel {name}")
    a.raw(f"  .amdhsa_next_free_vgpr {vg}")
    a.raw(f"  .amdhsa_next_free_sgpr {sg}")
    a.raw(f"  .amdhsa_accum_offset {acc}")
    a.raw("  .amdhsa_group_segment_fixed_size 0")
    a.raw("  .amdhsa_kernarg_size 104")
    a.raw("  .amdhsa_user_sgpr_count 2")
    a.raw("  .amdhsa_user_sgpr_kernarg_segment_ptr 1")
    a.raw("  .amdhsa_system_sgpr_workgroup_id_x 1")
    a.raw(".end_amdhsa_kernel")

HEADER = """; Fused MHA block (two branches): Q-proj + flash attention + partial out-proj per (branch,batch,head) workgroup,
"""
def generate(cfg):
    a = Asm()
    a.raw(HEADER.rstrip())
    if cfg.fused and not cfg.aslist:
        a.raw(f"; @launch grid=(256,1,1) block=(256,1,1) lds=163840")
    else:
        a.raw(f"; @launch kernel={KNAME} grid=(256,1,1) block=(256,1,1) lds=163840")
    if not cfg.dump and not cfg.fused:
        a.raw(f"; @launch kernel={RNAME} grid=(504,1,1) block=(256,1,1) lds=0")
    a.raw('.amdgcn_target "amdgcn-amd-amdhsa--gfx950"')
    a.raw(".text")
    a.raw(f".globl {KNAME}")
    a.raw(".p2align 8")
    a.raw(f".type {KNAME},@function")
    a.label(KNAME)
    emit_setup(a, cfg)
    rare = []
    emit_compute_main(a, cfg, rare)
    emit_loader(a, cfg)
    a.label("L_code_end")
    emit_rare(a, cfg, rare)
    a.label("L_end")
    a("s_endpgm")
    if not cfg.dump and not cfg.fused:
        emit_reduce(a, cfg)
    a.raw('.section .rodata,"a"')
    a.raw(".p2align 6")
    kd(a, KNAME, 512, 256)
    if not cfg.dump and not cfg.fused:
        a.raw(".p2align 6")
        kd(a, RNAME, 96, 96, 32)
    return a.text()

if __name__ == "__main__":
    cfg = Cfg()
    out = sys.argv[1]
    for kv in sys.argv[2:]:
        k, val = kv.split("=", 1)
        cur = getattr(cfg, k)
        if isinstance(cur, bool): val = val in ("1", "True", "true")
        elif isinstance(cur, float): val = float(val)
        elif isinstance(cur, int): val = int(val)
        elif val == "None": val = None
        setattr(cfg, k, val)
    open(out, "w").write(generate(cfg))
```

```python
import sys, math, struct, re

KNAME = "concat_heads__mha_block_cached__mha_block_cached__near_ridge_kernel"
RNAME = "reduce_kernel"

class Asm:
    def __init__(self):
        self.L = []
    def __call__(self, s):
        self.L.append("    " + s)
    def label(self, s):
        self.L.append(s + ":")
    def raw(self, s):
        self.L.append(s)
    def text(self):
        return "\n".join(self.L) + "\n"

class Lgkm:
    def __init__(self, a):
        self.a = a; self.q = []; self.issued = set(); self.throttled = 0
    def issue(self, ins, tag):
        if len(self.q) >= 15:
            self.a("s_waitcnt lgkmcnt(14)"); self.q = self.q[len(self.q) - 14:]; self.throttled += 1
        self.a(ins); self.q.append(tag); self.issued.add(tag)
    def need(self, tag):
        assert tag in self.issued, ("not issued", tag)
        if tag in self.q:
            idx = len(self.q) - 1 - self.q[::-1].index(tag)
            n = len(self.q) - 1 - idx
            self.a(f"s_waitcnt lgkmcnt({n})")
            self.q = self.q[idx + 1:]
    def drain(self):
        if self.q:
            self.a("s_waitcnt lgkmcnt(0)")
            self.q = []

class Vm:
    def __init__(self, a):
        self.a = a; self.q = []
    def room(self, n):
        over = len(self.q) + n - 63
        if over > 0:
            keep = len(self.q) - over
            self.a(f"s_waitcnt vmcnt({keep})")
            self.q = self.q[over:]
    def issue(self, ins, tag):
        assert len(self.q) < 63
        self.a(ins); self.q.append(tag)
    def need(self, tag):
        if tag in self.q:
            idx = len(self.q) - 1 - self.q[::-1].index(tag)
            n = len(self.q) - 1 - idx
            self.a(f"s_waitcnt vmcnt({n})")
            self.q = self.q[idx + 1:]

class It:
    def __init__(self, fn, cost=4, earliest=0, deadline=10**9):
        self.fn, self.cost, self.earliest, self.deadline = fn, cost, earliest, deadline

def sched(a, mf, streams, budget=8, flush=True):
    n = len(mf)
    for m, (pre, emit) in enumerate(mf):
        if pre: pre()
        emit()
        b = budget
        if m + 1 < n and mf[m + 1][0] is not None: b -= 4
        for st in streams:
            while st and st[0].deadline <= m:
                it = st.pop(0); it.fn(); b -= it.cost
        for st in streams:
            while st and st[0].earliest <= m and st[0].cost <= b:
                it = st.pop(0); it.fn(); b -= it.cost
    if flush:
        prog = True
        while any(streams):
            for st in streams:
                if st:
                    it = st.pop(0); it.fn()

def v(n, cnt=1):
    return f"v{n}" if cnt == 1 else f"v[{n}:{n+cnt-1}]"
def ar(n, cnt=1):
    return f"a{n}" if cnt == 1 else f"a[{n}:{n+cnt-1}]"
def f2u(x): return struct.unpack("<I", struct.pack("<f", x))[0]

V_LANE = 1
V_T0, V_T1 = 2, 3
V_KB = 4
V_VB = 8
V_TMP = 16
V_S = [24, 48]
V_P = 72
V_CM = 84
V_KBUF = 96
V_VBUF = 128
V_Q = 160
A_O = 0
A_L = 192
A_ONES = 204
A_X = 0
A_W = 168
A_DUMMY = 232
V_QACC = 64
V_WB = 16
V_XB = 20
A_WO = 208
V_P0 = 64
VBK, VBE = 24, 32
V_RL = 16
V_ST = 22
V_CT = 40

def Qreg(qt, T): return V_Q + (qt * 8 + T) * 4
def Xreg(s, qt): return A_X + (s * 3 + qt) * 4
def QAcc(u, qt): return V_QACC + (qt * 8 + (u >> 1)) * 8 + 4 * (u & 1)
def Oreg(u, qt): return A_O + (u * 3 + qt) * 4
def Sreg(par, qt, a): return V_S[par] + (qt * 2 + a) * 4

KS = [i * 16384 for i in range(4)]
VREG = 65536
VS = [VREG + i * 16384 for i in range(4)]
ES = [131072, 147456]
WRING = [ES[0], ES[1], VS[2], VS[3]]
WBASE = VS[2]
XW = 43008
WOSLOT = [ES[0], ES[1], KS[0], KS[1], VS[0], KS[2], VS[1], KS[3], VS[2], VS[3], ES[0], ES[1], KS[0], KS[1]]

S_WID = 3
S_X, S_K, S_V, S_WQ, S_WO, S_WS = 4, 8, 12, 16, 20, 24
S_B, S_H, S_BR, S_THR = 28, 29, 30, 31
S_SO, S_SO2, S_CNT = 32, 33, 34
S_RET, S_TGT = 36, 38
S_WOFF = 40
S_PC = 56
S_TS = 60

QSCALE = math.log2(math.e) / 16.0
CNT_OFF = 0x2100000

class Cfg:
    nt_kv = True
    nt_w = True
    nt_x = True
    nt_wo = True
    nt_warm = True
    st_flags = " sc0 sc1"
    rd_flags = " sc0 sc1"
    warm_wq = True
    warm_wo = False
    code_pf = True
    thr = 8.0
    dump = None
    stamps = False
    kvsched = "c"
    fused = True
    poll_flags = " sc1"
    out_flags = ""
    aslist = False
    sig_t = 4
    dbg_stamps = -1
    wo_reg0 = 7
    wo_reg_t0 = 8
    warm_t0 = 18
    poll_sleep = 2
    sig_t1 = 6
    nkp = 8
    nvp = 4

def emit_setup(a, cfg):
    a("s_cmp_ge_u32 s2, 256")
    a("s_cbranch_scc1 L_end")
    if cfg.stamps:
        a(f"s_memrealtime s[{S_TS}:{S_TS+1}]")
    a("s_load_dwordx4 s[44:47], s[0:1], 0")
    a("s_load_dwordx4 s[48:51], s[0:1], 16")
    a("s_load_dwordx2 s[52:53], s[0:1], 32")
    a("s_load_dwordx2 s[54:55], s[0:1], 40")
    a("s_load_dwordx4 s[64:67], s[0:1], 48")
    a("s_load_dwordx4 s[68:71], s[0:1], 64")
    a("s_load_dwordx2 s[72:73], s[0:1], 96")
    a("s_load_dwordx4 s[80:83], s[0:1], 80")
    a(f"v_lshrrev_b32 v{V_T0}, 6, v0")
    a(f"v_and_b32 v{V_LANE}, 63, v0")
    a(f"v_readfirstlane_b32 s{S_WID}, v{V_T0}")
    a("s_and_b32 s74, s2, 7")
    a("s_lshr_b32 s75, s2, 3")
    a(f"s_lshr_b32 s{S_BR}, s74, 2")
    a("s_and_b32 s76, s74, 3")
    a("s_lshl_b32 s76, s76, 2")
    a("s_and_b32 s77, s75, 3")
    a(f"s_add_u32 s{S_H}, s76, s77")
    a(f"s_lshr_b32 s{S_B}, s75, 2")
    a(f"s_mul_i32 s78, s{S_B}, 129024")
    a(f"s_lshl_b32 s79, s{S_H}, 9")
    a(f"s_mov_b32 s{S_X+2}, 129024")
    a(f"s_mov_b32 s{S_X+3}, 0x20000")
    a(f"s_sub_u32 s{S_WQ+2}, {448*8192}, s79")
    a(f"s_mov_b32 s{S_WQ+3}, 0x20000")
    a("s_waitcnt lgkmcnt(0)")
    a(f"s_cmp_eq_u32 s{S_BR}, 0")
    a(f"s_cselect_b32 s{S_X}, s44, s54")
    a(f"s_cselect_b32 s{S_X+1}, s45, s55")
    a(f"s_cselect_b32 s{S_WQ}, s50, s68")
    a(f"s_cselect_b32 s{S_WQ+1}, s51, s69")
    a(f"s_cselect_b32 s{S_K}, s46, s64")
    a(f"s_cselect_b32 s{S_K+1}, s47, s65")
    a(f"s_cselect_b32 s{S_V}, s48, s66")
    a(f"s_cselect_b32 s{S_V+1}, s49, s67")
    a(f"s_cselect_b32 s{S_WO}, s52, s70")
    a(f"s_cselect_b32 s{S_WO+1}, s53, s71")
    a(f"s_add_u32 s{S_X}, s{S_X}, s78")
    a(f"s_addc_u32 s{S_X+1}, s{S_X+1}, 0")
    a(f"s_add_u32 s{S_WQ}, s{S_WQ}, s79")
    a(f"s_addc_u32 s{S_WQ+1}, s{S_WQ+1}, 0")
    a(f"s_cmp_eq_u32 s{S_WID}, 3")
    a("s_cbranch_scc1 L_loader")

def emit_setup_late(a, cfg, loader):
    a(f"s_lshl_b32 s74, s{S_B}, 4")
    a(f"s_add_u32 s74, s74, s{S_H}")
    if loader:
        a("s_lshl_b32 s75, s74, 19")
        for S in (S_K, S_V):
            a(f"s_add_u32 s{S}, s{S}, s75")
            a(f"s_addc_u32 s{S+1}, s{S+1}, 0")
            a(f"s_mov_b32 s{S+2}, 524288")
            a(f"s_mov_b32 s{S+3}, 0x20000")
        a(f"s_mul_i32 s75, s{S_H}, {256*896}")
        a(f"s_add_u32 s{S_WO}, s{S_WO}, s75")
        a(f"s_addc_u32 s{S_WO+1}, s{S_WO+1}, 0")
        a(f"s_mov_b32 s{S_WO+2}, {256*896}")
        a(f"s_mov_b32 s{S_WO+3}, 0x20000")
    else:
        a(f"s_lshl_b32 s75, s{S_BR}, 7")
        a("s_add_u32 s74, s74, s75")
        a("s_mul_i32 s74, s74, 129024")
        a(f"s_add_u32 s{S_WS}, s72, s74")
        a(f"s_addc_u32 s{S_WS+1}, s73, 0")
        a(f"s_mov_b32 s{S_WS+2}, 129024")
        a(f"s_mov_b32 s{S_WS+3}, 0x20000")

def ntb(cfg): return 9 if (cfg.fused and not cfg.dump) else 14
def barrier_list(cfg):
    L = [("PB", s) for s in range(14)]
    L += [("B", t) for t in range(-1, 32)]
    L += [("TB", j) for j in range(ntb(cfg))]
    return L

KVSCHED = {
    "a": {1: [("K", 0)], 2: [("V", 0)], 3: [("K", 1)], 4: [("K", 2)], 6: [("V", 1)], 7: [("K", 3)], 11: [("V", 2)], 12: [("V", 3)]},
    "b": {1: [("K", 0), ("V", 0)], 2: [("K", 1)], 3: [("K", 2)], 4: [("V", 1)], 5: [("K", 3)], 11: [("V", 2)], 12: [("V", 3)]},
    "c": {1: [("K", 0)], 3: [("V", 0)], 4: [("K", 1)], 6: [("K", 2)], 7: [("V", 1)], 9: [("K", 3)], 11: [("V", 2)], 12: [("V", 3)]},
}

def emit_code_prefetch(a, cfg, vm, vaddr, lo, hi, dst):
    a(f"s_getpc_b64 s[{S_PC}:{S_PC+1}]")
    lab = f"L_pc_{lo}"
    a.label(lab)
    a(f"s_add_u32 s{S_PC}, s{S_PC}, {lo}-{lab}")
    a(f"s_addc_u32 s{S_PC+1}, s{S_PC+1}, 0")
    a(f"s_mov_b32 s{S_PC+2}, {hi}-{lo}")
    a(f"s_mov_b32 s{S_PC+3}, 0x20000")
    return

def emit_loader(a, cfg):
    a.label("L_loader")
    vm = Vm(a)
    LH, LP = 2, 3
    VK, VV, VW, VO, VO3 = 8, 16, 20, 24, 28
    T0, T1 = 4, 5
    stamp_idx = [0]
    def xstamp(i):
        if cfg.stamps:
            a("s_memrealtime s[62:63]")
            a("s_waitcnt lgkmcnt(0)")
            a(f"v_writelane_b32 v58, s62, {i}")
    if cfg.stamps:
        a(f"v_writelane_b32 v56, s{S_TS}, 0")
    xstamp(0)
    a(f"v_lshrrev_b32 v{LH}, 5, v{V_LANE}")
    a(f"v_and_b32 v{LP}, 31, v{V_LANE}")
    a(f"v_lshlrev_b32 v32, 4, v{V_LANE}")
    def chunkpat(i):
        a(f"v_add_u32 v{T0}, {2*i}, v{LH}")
        a(f"v_lshlrev_b32 v{T0}, 1, v{T0}")
        a(f"v_xor_b32 v{T0}, v{T0}, v{LP}")
    for i in range(4):
        chunkpat(i)
        a(f"v_lshlrev_b32 v{T1}, 4, v{T0}")
        a(f"v_lshl_add_u32 v{VW+i}, v{LH}, 13, v{T1}")
    ntkv = " nt" if cfg.nt_kv else ""
    ntw = " nt" if cfg.nt_w else ""
    ntwo = " nt" if cfg.nt_wo else ""
    ntwarm = " nt" if cfg.nt_warm else ""

    def tile_kv(kind, t):
        srd = S_K if kind == "K" else S_V
        lds = KS[t % 4] if kind == "K" else VS[t % 4]
        vm.room(16)
        for m in range(4):
            a(f"s_mov_b32 m0, {lds + m*4096}")
            a(f"s_mov_b32 s{S_SO}, {t*16384 + m*4096}")
            for n in range(4):
                i = 4*m + n
                vo = VK + (i & 7) if kind == "K" else VV + (i & 3)
                vm.issue(f"buffer_load_dwordx4 v{vo}, s[{srd}:{srd+3}], s{S_SO} offen offset:{n*1024}{ntkv} lds", (kind, t))
    def tile_w(s):
        lds = WRING[s % 4]
        vm.room(16)
        for i in range(16):
            sig0 = 8*((i & 7) >> 1) + 4*(i >> 3) + 2*(i & 1)
            a(f"s_mov_b32 m0, {lds + i*1024}")
            a(f"s_mov_b32 s{S_SO}, {(s*32 + sig0)*8192}")
            vm.issue(f"buffer_load_dwordx4 v{VW + (i & 3)}, s[{S_WQ}:{S_WQ+3}], s{S_SO} offen{ntw} lds", ("W", s))
    def tile_wo(j):
        lds = WOSLOT[j]
        vm.room(16)
        for i in range(16):
            if j < 12:
                p, T0_ = j // 4, (j % 4) * 2
                so = (32*T0_ + 2*i)*896 + p*256
                vo = VO + (i & 3)
            else:
                T0_ = (j - 12) * 4
                so = (32*T0_ + 2*i)*896 + 768
                vo = VO3 + (i & 3)
            a(f"s_mov_b32 m0, {lds + i*1024}")
            a(f"s_mov_b32 s{S_SO}, {so}")
            vm.issue(f"buffer_load_dwordx4 v{vo}, s[{S_WO}:{S_WO+3}], s{S_SO} offen{ntwo} lds", ("WO", j))
    NREG0 = cfg.wo_reg0
    def wo_quad(j, i):
        k = (j - NREG0) * 16 + i
        return ar(4*k, 4) if k < 64 else v(64 + 4*(k - 64), 4)
    def wo_addr(j, i):
        if j < 12:
            p, T0_ = j // 4, (j % 4) * 2
            return (32*T0_ + 2*i)*896 + p*256, VO + (i & 3)
        T0_ = (j - 12) * 4
        return (32*T0_ + 2*i)*896 + 768, VO3 + (i & 3)
    def load_wo_reg(j, i0, n):
        vm.room(n)
        for i in range(i0, i0 + n):
            so, vo = wo_addr(j, i)
            a(f"s_mov_b32 s{S_SO}, {so}")
            vm.issue(f"buffer_load_dwordx4 {wo_quad(j, i)}, v{vo}, s[{S_WO}:{S_WO+3}], s{S_SO} offen{ntwo}", ("WOR", j))
    def put_wo(j):
        vm.need(("WOR", j))
        a(f"v_add_u32 v33, {WOSLOT[j]}, v32")
        for i in range(16):
            a(f"ds_write_b128 v33, {wo_quad(j, i)} offset:{i*1024}")
        wo_written.append(j)
    wo_written = []
    def need_wo(j):
        if j >= NREG0:
            if j in wo_written:
                a("s_waitcnt lgkmcnt(0)")
                while wo_written: wo_written.pop()
        else:
            vm.need(("WO", j))
    def tile_wo_any(j):
        if j >= NREG0: put_wo(j)
        else: tile_wo(j)
    def warm_wo(i0, n):
        vm.room(n)
        for i in range(i0, i0 + n):
            a(f"s_mul_i32 s{S_SO}, s{S_B}, 28672")
            a(f"s_add_u32 s{S_SO}, s{S_SO}, {i*1024}")
            vm.issue(f"buffer_load_dwordx4 v[36:39], v32, s[{S_WO}:{S_WO+3}], s{S_SO} offen{ntwarm}", ("warm", i))
    def code_pf(lo, hi, tagn):
        a(f"s_getpc_b64 s[{S_PC}:{S_PC+1}]")
        lab = f"L_pc_{tagn}"
        a.label(lab)
        a(f"s_add_u32 s{S_PC}, s{S_PC}, {lo}-{lab}")
        a(f"s_addc_u32 s{S_PC+1}, s{S_PC+1}, -1" if False else f"s_addc_u32 s{S_PC+1}, s{S_PC+1}, ({lo}-{lab})>>32")
        a(f"s_mov_b32 s{S_PC+2}, {hi}-{lo}")
        a(f"s_mov_b32 s{S_PC+3}, 0x20000")
        a(f"s_lshr_b32 s{S_SO2}, s2, 3")
        a(f"s_mul_i32 s{S_SO2}, s{S_SO2}, 3072")
        vm.room(3)
        for i in range(3):
            vm.issue(f"buffer_load_dwordx4 v[36:39], v32, s[{S_PC}:{S_PC+3}], s{S_SO2} offen offset:{i*1024}", ("pf", tagn, i))

    fused = cfg.fused and not cfg.dump
    if fused:
        emit_cnt_srd(a)
        a("s_mov_b32 s48, s82"); a("s_mov_b32 s49, s83")
        a("s_mov_b32 s50, 256"); a("s_mov_b32 s51, 0x20000")
        a(f"s_lshl_b32 s52, s{S_BR}, 3")
        a(f"s_add_u32 s52, s52, s{S_B}")
        a("s_lshl_b32 s52, s52, 4")
        a(f"s_cmp_lg_u32 s{S_H}, 0")
        a("s_cbranch_scc1 L_noinit")
        a(f"v_lshlrev_b32 v33, 12, v{V_LANE}")
        a("v_mov_b32 v34, 0")
        a("s_mov_b64 exec, 7")
        a("buffer_store_dword v34, v33, s[84:87], 0 offen sc1")
        a("s_mov_b64 exec, -1")
        a.label("L_noinit")
    tile_w(0); xstamp(1)
    if cfg.code_pf: code_pf(KNAME, "L_code_end", "all")
    tile_w(1); xstamp(2)
    emit_setup_late(a, cfg, True)
    for i in range(8):
        a(f"v_add_u32 v{T0}, {2*i}, v{LH}")
        a(f"v_xor_b32 v{T0}, v{T0}, v{LP}")
        a(f"v_lshlrev_b32 v{T0}, 4, v{T0}")
        a(f"v_lshl_add_u32 v{VK+i}, v{LH}, 9, v{T0}")
    for i in range(4):
        chunkpat(i)
        a(f"v_lshlrev_b32 v{T1}, 4, v{T0}")
        a(f"v_lshl_add_u32 v{VV+i}, v{LH}, 9, v{T1}")
        a(f"v_lshrrev_b32 v6, 4, v{T0}")
        a(f"v_lshl_add_u32 v6, v6, 5, v{LH}")
        a(f"v_mul_u32_u24 v6, 896, v6")
        a(f"v_and_b32 v7, 15, v{T0}")
        a(f"v_lshl_add_u32 v{VO+i}, v7, 4, v6")
        a(f"v_lshrrev_b32 v6, 3, v{T0}")
        a(f"v_lshl_add_u32 v6, v6, 5, v{LH}")
        a(f"v_mul_u32_u24 v6, 896, v6")
        a(f"v_and_b32 v7, 7, v{T0}")
        a(f"v_lshl_add_u32 v{VO3+i}, v7, 4, v6")
    xstamp(3)
    kv_after_pb = KVSCHED[cfg.kvsched]
    for name, idx in barrier_list(cfg):
        if name == "PB":
            if idx == 0: vm.need(("W", 0)); vm.need(("W", 1))
            elif idx == 1: pass
            elif idx + 1 <= 13: vm.need(("W", idx + 1))
        elif name == "B":
            t = idx
            if t == -1:
                vm.need(("K", 0)); vm.need(("K", 1))
            else:
                if t + 2 <= 31: vm.need(("K", t + 2))
                vm.need(("V", t))
            if t == 31:
                need_wo(0); need_wo(1)
        else:
            j = idx
            need_wo(min(j + 1, 13))
            if j == ntb(cfg) - 1:
                for jj in range(14): need_wo(jj)
        a("s_barrier")
        if cfg.stamps:
            stamp_idx[0] += 1
            a("s_memrealtime s[62:63]")
            a("s_waitcnt lgkmcnt(0)")
            a(f"v_writelane_b32 v56, s62, {stamp_idx[0]}")
            a("s_memtime s[62:63]")
            a("s_waitcnt lgkmcnt(0)")
            a(f"v_writelane_b32 v59, s62, {stamp_idx[0]}")
        if name == "PB" and idx == 0 and fused:
            a(f"s_cmp_lg_u32 s{S_H}, 0")
            a("s_cbranch_scc1 L_noinit2")
            a("v_mov_b32 v34, 1")
            a("s_mov_b64 exec, 1")
            a("buffer_atomic_add v34, off, s[48:51], s52")
            a("s_mov_b64 exec, -1")
            a.label("L_noinit2")
        if name == "PB":
            if idx == 1: tile_w(2); tile_w(3); tile_w(4)
            elif idx >= 2 and idx + 3 <= 13: tile_w(idx + 3)
            for k, t in kv_after_pb.get(idx, []): tile_kv(k, t)
        elif name == "B":
            t = idx
            if t >= 0:
                if t + 4 <= 31: tile_kv("K", t + 4)
                if t >= 1 and t + 3 <= 31: tile_kv("V", t + 3)
            if cfg.warm_wo and cfg.warm_t0 <= t <= cfg.warm_t0 + 6:
                warm_wo((t - cfg.warm_t0) * 4, 4)
            if cfg.code_pf and t == 25: code_pf("L_tail_code", "L_tail_end", "tail")
            if fused and t == 10:
                vm.room(1)
                a("s_mov_b64 exec, 1")
                vm.issue(f"buffer_load_dword v35, off, s[48:51], s52 sc1", ("initflag",))
                a("s_mov_b64 exec, -1")
            if fused and t == 14:
                vm.need(("initflag",))
                a("v_readfirstlane_b32 s90, v35")
                a("s_nop 3")
                a("s_cmp_ge_u32 s90, 1")
                a("s_cbranch_scc1 L_init_ok")
                a("s_mov_b64 exec, 1")
                a("s_mov_b32 s89, 0")
                a.label("L_init_poll")
                a("buffer_load_dword v35, off, s[48:51], s52 sc1")
                a("s_waitcnt vmcnt(0)")
                a("v_readfirstlane_b32 s90, v35")
                a("s_add_u32 s89, s89, 1")
                a("s_cmp_ge_u32 s90, 1")
                a("s_cbranch_scc1 L_init_done")
                a("s_cmp_ge_u32 s89, 0x40000")
                a("s_cbranch_scc1 L_init_done")
                a("s_sleep 8")
                a("s_branch L_init_poll")
                a.label("L_init_done")
                a("s_mov_b64 exec, -1")
                a.label("L_init_ok")
            nreg = 14 - NREG0
            k = t - cfg.wo_reg_t0
            if 0 <= k < 2 * nreg:
                load_wo_reg(NREG0 + k // 2, 8 * (k & 1), 8)
            if t == 26: tile_wo_any(0)
            if t == 27: tile_wo_any(1)
            if t == 28: tile_wo_any(2)
            if t == 29: tile_wo_any(3); tile_wo_any(4)
            if t == 30: tile_wo_any(5); tile_wo_any(6)
            if t == 31: tile_wo_any(7); tile_wo_any(8)
        else:
            j = idx
            if j == 0: tile_wo_any(9)
            if 1 <= j <= 4: tile_wo_any(9 + j)
            if j == 5 and cfg.fused and not cfg.dump:
                a(f"v_lshlrev_b32 v33, 2, v{V_LANE}")
                a(f"v_add_u32 v33, {VS[0]}, v33")
                a("v_mov_b32 v34, 0")
                a("ds_write_b32 v33, v34")
                a("s_waitcnt lgkmcnt(0)")
    a("s_waitcnt vmcnt(0)")
    if cfg.fused and not cfg.dump:
        emit_red_setup(a, cfg)
        for p in range(2):
            emit_poll(a, cfg, p)
            xstamp(4 + p)
            for e in range(2):
                a(f"s_add_u32 s90, s{S_H}, {16*e}")
                a(f"s_lshr_b32 s{96+2*e}, s90, 2")
                a("s_and_b32 s90, s90, 3")
                a(f"s_add_u32 s{97+2*e}, s90, {4*p}")
            emit_reduce_frags(a, cfg, 2)
        emit_poll(a, cfg, 2)
        xstamp(6)
        a("s_barrier")
        emit_final_reduce(a, cfg)
        xstamp(7)
    if cfg.stamps:
        if not (cfg.fused and not cfg.dump): a("s_barrier")
        a("s_memrealtime s[62:63]")
        a("s_waitcnt lgkmcnt(0)")
        a(f"v_writelane_b32 v56, s62, 62")
        a("s_mov_b32 s76, s72"); a("s_mov_b32 s77, s73")
        a("s_mov_b32 s78, 0x10000000"); a("s_mov_b32 s79, 0x20000")
        a("s_lshl_b32 s74, s2, 8")
        a("s_add_u32 s74, s74, 0x4000000")
        a(f"v_lshlrev_b32 v57, 2, v{V_LANE}")
        a("buffer_store_dword v56, v57, s[76:79], s74 offen")
        a("s_add_u32 s74, s74, 0x100000")
        a("buffer_store_dword v58, v57, s[76:79], s74 offen")
        a("s_add_u32 s74, s74, 0x100000")
        a("buffer_store_dword v59, v57, s[76:79], s74 offen")
        a("s_waitcnt vmcnt(0)")
        if cfg.dbg_stamps >= 0:
            a(f"s_cmp_lg_u32 s2, {cfg.dbg_stamps}")
            a("s_cbranch_scc1 L_nodbg")
            sel = [(56, 1), (56, 16), (56, 24), (56, 32), (56, 40), (56, 47), (56, 48), (56, 56), (58, 4), (58, 5), (58, 6), (58, 7)]
            slots = [1, 2, 3, 5, 6, 7, 9, 10, 11, 13, 14, 15]
            a("v_readlane_b32 s91, v56, 0")
            for (r, ln), sl in zip(sel, slots):
                a(f"v_readlane_b32 s90, v{r}, {ln}")
                a("s_nop 3")
                a("s_sub_u32 s90, s90, s91")
                a("v_mov_b32 v60, s90")
                a(f"s_mov_b32 s89, {4*sl}")
                a("s_mov_b64 exec, 1")
                a("buffer_store_dword v60, off, s[48:51], s89")
                a("s_mov_b64 exec, -1")
                a("s_nop 1")
            a("s_waitcnt vmcnt(0)")
            a.label("L_nodbg")
    a("s_branch L_end")

def emit_cnt_srd(a):
    a(f"s_lshl_b32 s84, s{S_BR}, 3")
    a(f"s_add_u32 s84, s84, s{S_B}")
    a("s_lshl_b32 s84, s84, 14")
    a(f"s_add_u32 s84, s84, {CNT_OFF}")
    a("s_add_u32 s84, s72, s84")
    a("s_addc_u32 s85, s73, 0")
    a("s_mov_b32 s86, 16384"); a("s_mov_b32 s87, 0x20000")

def emit_red_setup(a, cfg):
    lane = V_LANE
    emit_cnt_srd(a)
    a(f"s_lshl_b32 s88, s{S_BR}, 3")
    a(f"s_add_u32 s88, s88, s{S_B}")
    a(f"s_mul_i32 s45, s88, {16*129024}")
    a("s_add_u32 s44, s72, s45")
    a("s_addc_u32 s45, s73, 0")
    a(f"s_mov_b32 s46, {16*129024}")
    a("s_mov_b32 s47, 0x20000")
    a("s_mov_b32 s92, s80"); a("s_mov_b32 s93, s81")
    a(f"s_mov_b32 s94, {8*144*896*2}"); a("s_mov_b32 s95, 0x20000")

_lab = [0]
def emit_poll(a, cfg, p):
    _lab[0] += 1; n = _lab[0]
    a("s_mov_b64 exec, 1")
    a("s_mov_b32 s89, 0")
    a.label(f"L_poll{n}")
    a(f"s_mov_b32 s88, {4096*p}")
    a(f"buffer_load_dword v2, off, s[84:87], s88{cfg.poll_flags}")
    a("s_waitcnt vmcnt(0)")
    a("v_readfirstlane_b32 s90, v2")
    a("s_add_u32 s89, s89, 1")
    a("s_cmp_ge_u32 s90, 16")
    a(f"s_cbranch_scc1 L_poll_done{n}")
    a("s_cmp_ge_u32 s89, 0x40000")
    a(f"s_cbranch_scc1 L_poll_done{n}")
    a(f"s_sleep {cfg.poll_sleep}")
    a(f"s_branch L_poll{n}")
    a.label(f"L_poll_done{n}")
    a("s_mov_b64 exec, -1")

def emit_reduce_frags(a, cfg, nf):
    lane = V_LANE
    a(f"v_lshlrev_b32 v2, 4, v{lane}")
    for e in range(nf):
        a(f"s_mul_i32 s90, s{96+2*e}, 14")
        a(f"s_add_u32 s90, s90, s{97+2*e}")
        a("s_lshl_b32 s91, s90, 10")
        for hh in range(16):
            r = 64 + 64*e + 4*hh
            a(f"buffer_load_dwordx4 v[{r}:{r+3}], v2, s[44:47], s91 offen{cfg.rd_flags}")
            if hh < 15: a(f"s_add_u32 s91, s91, 129024")
    a(f"v_and_b32 v3, 15, v{lane}")
    a("v_mul_u32_u24 v3, 1792, v3")
    a(f"v_lshrrev_b32 v4, 4, v{lane}")
    a("v_lshl_add_u32 v3, v4, 3, v3")
    for e in range(nf):
        a(f"s_mul_i32 s100, s{S_B}, 144")
        a(f"s_lshl_b32 s90, s{96+2*e}, 4")
        a("s_add_u32 s100, s100, s90")
        a("s_mul_i32 s100, s100, 1792")
        a(f"s_lshl_b32 s90, s{97+2*e}, 6")
        a("s_add_u32 s100, s100, s90")
        a(f"s_mul_i32 s90, s{S_BR}, 896")
        a(f"s_add_u32 s{96+2*e}, s100, s90")
    for e in range(nf):
        acc = 32 + 8*e
        for hh in range(16):
            a(f"s_waitcnt vmcnt({16*nf - 1 - 16*e - hh})")
            for r in range(4):
                src = 64 + 64*e + 4*hh + r
                if hh == 0:
                    a(f"v_lshlrev_b32 v{acc+2*r}, 16, v{src}")
                    a(f"v_and_b32 v{acc+2*r+1}, 0xffff0000, v{src}")
                else:
                    t = 8 + 2*r
                    a(f"v_lshlrev_b32 v{t}, 16, v{src}")
                    a(f"v_and_b32 v{t+1}, 0xffff0000, v{src}")
            if hh > 0:
                for r in range(4):
                    t = 8 + 2*r
                    a(f"v_pk_add_f32 v[{acc+2*r}:{acc+2*r+1}], v[{acc+2*r}:{acc+2*r+1}], v[{t}:{t+1}]")
        for r in range(4):
            a(f"v_cvt_pk_bf16_f32 v{48+4*e+r}, v{acc+2*r}, v{acc+2*r+1}")
    for e in range(nf):
        a(f"buffer_store_dwordx2 v[{48+4*e}:{49+4*e}], v3, s[92:95], s{96+2*e} offen{cfg.out_flags}")
        a(f"buffer_store_dwordx2 v[{50+4*e}:{51+4*e}], v3, s[92:95], s{96+2*e} offen offset:32{cfg.out_flags}")

def emit_final_reduce(a, cfg):
    _lab[0] += 1; n = _lab[0]
    a(f"s_lshl_b32 s90, s{S_WID}, 4")
    a(f"s_add_u32 s90, s90, s{S_H}")
    a("s_cmp_ge_u32 s90, 62")
    a(f"s_cbranch_scc1 L_fin_done{n}")
    a("s_lshr_b32 s96, s90, 2")
    a("s_and_b32 s97, s90, 3")
    a("s_add_u32 s97, s97, 8")
    a("s_sub_u32 s91, s90, 36")
    a("s_lshr_b32 s98, s91, 1")
    a("s_and_b32 s99, s91, 1")
    a("s_add_u32 s99, s99, 12")
    a("s_cmp_ge_u32 s90, 36")
    a("s_cselect_b32 s96, s98, s96")
    a("s_cselect_b32 s97, s99, s97")
    a("s_sub_u32 s91, s90, 54")
    a("s_cmp_ge_u32 s90, 54")
    a("s_cselect_b32 s96, 8, s96")
    a("s_cselect_b32 s97, s91, s97")
    emit_reduce_frags(a, cfg, 1)
    a.label(f"L_fin_done{n}")

def mfma(a, D, A, B, C=None):
    a(f"v_mfma_f32_16x16x32_bf16 {D}, {A}, {B}, {C if C is not None else D}")

def xlane_max(a, r, tmp):
    a(f"v_mov_b32 v{tmp}, v{r}")
    a("s_nop 1")
    a(f"v_permlane32_swap_b32 v{r}, v{tmp}")
    a("s_nop 1")
    a(f"v_max_f32 v{r}, v{r}, v{tmp}")
    a(f"v_mov_b32 v{tmp}, v{r}")
    a("s_nop 1")
    a(f"v_permlane16_swap_b32 v{r}, v{tmp}")
    a("s_nop 1")
    a(f"v_max_f32 v{r}, v{r}, v{tmp}")

def emit_compute(a, cfg):
    rare_blocks = []
    emit_compute_main(a, cfg, rare_blocks)
    emit_rare(a, cfg, rare_blocks)

def emit_compute_main(a, cfg, rare_blocks):
    lg = Lgkm(a)
    lane = V_LANE
    T0, T1 = V_T0, V_T1
    NKP, NVP = cfg.nkp, cfg.nvp
    a(f"v_lshrrev_b32 v{T0}, 3, v{lane}")
    a(f"v_and_b32 v{T1}, 7, v{lane}")
    a(f"v_lshrrev_b32 v22, 1, v{T0}")
    a(f"v_xor_b32 v22, v22, v{T1}")
    a(f"v_mul_u32_u24 v23, 896, v{T0}")
    a(f"v_lshl_add_u32 v24, v22, 4, v23")
    a(f"v_xor_b32 v22, 4, v22")
    a(f"v_lshl_add_u32 v25, v22, 4, v23")
    a(f"v_add_u32 v25, {8*896}, v25")
    a(f"s_mul_i32 s74, s{S_WID}, {XW}")
    vm = Vm(a)
    ntx = " nt" if cfg.nt_x else ""
    for sp in range(7):
        for qt in range(3):
            for hb in range(2):
                a(f"s_add_u32 m0, s74, {((qt*2 + hb)*7 + sp)*1024}")
                a(f"s_add_u32 s{S_SO}, s74, {qt*14336 + sp*128}")
                vm.issue(f"buffer_load_dwordx4 v{24+hb}, s[{S_X}:{S_X+3}], s{S_SO} offen{ntx} lds", ("x",))
    if cfg.warm_wq:
        ntwarm = " nt" if cfg.nt_warm else ""
        a(f"v_lshrrev_b32 v{T0}, 5, v{lane}")
        a(f"v_and_b32 v{T1}, 31, v{lane}")
        a(f"v_lshlrev_b32 v{T1}, 4, v{T1}")
        a(f"v_lshl_add_u32 v26, v{T0}, 13, v{T1}")
        a(f"s_mul_i32 s75, s{S_B}, 48")
        a(f"s_lshl_b32 s76, s{S_WID}, 4")
        a("s_add_u32 s75, s75, s76")
        a("s_add_u32 s75, s75, 64")
        a("s_lshl_b32 s75, s75, 13")
        for i in range(8):
            vm.issue(f"buffer_load_dwordx4 {ar(A_DUMMY,4)}, v26, s[{S_WQ}:{S_WQ+3}], s75 offen{ntwarm}", ("warm", i))
            if i < 7: a(f"s_add_u32 s75, s75, {2*8192}")
    emit_setup_late(a, cfg, False)
    g_, i15 = 22, 23
    a(f"v_lshrrev_b32 v{g_}, 4, v{lane}")
    a(f"v_and_b32 v{i15}, 15, v{lane}")
    a(f"v_lshrrev_b32 v26, 1, v{i15}")
    a(f"v_lshrrev_b32 v27, 3, v{i15}")
    a(f"v_mul_u32_u24 v27, 7168, v27")
    a(f"v_and_b32 v28, 7, v{i15}")
    a(f"v_lshl_add_u32 v27, v28, 7, v27")
    a(f"s_mul_i32 s74, s{S_WID}, {XW}")
    a(f"v_add_u32 v27, s74, v27")
    for e in range(2):
        a(f"v_add_u32 v{T0}, {4*e}, v{g_}")
        a(f"v_xor_b32 v{T0}, v{T0}, v26")
        a(f"v_lshl_add_u32 v{V_XB+e}, v{T0}, 4, v27")
    for j in range(4):
        a(f"v_add_u32 v{T0}, {4*j}, v{g_}")
        a(f"v_xor_b32 v{T0}, v{T0}, v{i15}")
        a(f"v_lshlrev_b32 v{T0}, 4, v{T0}")
        a(f"v_lshl_add_u32 v{V_KB+j}, v{i15}, 9, v{T0}")
    rp, cc, row, rho = 26, 27, 28, 29
    a(f"v_lshrrev_b32 v{rp}, 2, v{i15}")
    a(f"v_and_b32 v{cc}, 3, v{i15}")
    a(f"v_lshl_add_u32 v{row}, v{g_}, 2, v{rp}")
    a(f"v_and_b32 v{rho}, 7, v{row}")
    a(f"v_lshrrev_b32 v{T0}, 1, v{cc}")
    a(f"v_lshlrev_b32 v{T0}, 4, v{T0}")
    a(f"v_and_b32 v{T1}, 1, v{cc}")
    a(f"v_lshl_add_u32 v{T0}, v{T1}, 3, v{T0}")
    a(f"v_lshl_add_u32 v30, v{row}, 9, v{T0}")
    for j in range(8):
        a(f"v_xor_b32 v{T0}, {j}, v{rho}")
        a(f"v_lshl_add_u32 v{T0}, v{T0}, 5, v30")
        a(f"v_add_u32 v{V_VB+j}, {VREG}, v{T0}")
    a(f"v_lshlrev_b32 v31, 1, v{rho}")
    a(f"v_lshlrev_b32 v30, 9, v{row}")
    for j in range(4):
        a(f"v_add_u32 v{T0}, {4*j}, v{cc}")
        a(f"v_xor_b32 v{T0}, v{T0}, v31")
        a(f"v_lshl_add_u32 v{T0}, v{T0}, 4, v30")
        a(f"v_add_u32 v{V_WB+j}, {WBASE}, v{T0}")
    a(f"s_mov_b32 s{S_THR}, {hex(f2u(cfg.thr))}")

    def wread(s, u, half):
        T = u >> 1
        off = (WRING[s % 4] - WBASE) + (T >> 2) * 256 + (u & 1) * 8 + half * 8192
        r = A_W + 4 * u + 2 * half
        lg.issue(f"ds_read_b64_tr_b16 {ar(r,2)}, v{V_WB + (T & 3)} offset:{off}", ("w", s, u, half))
    def xread(s, qt):
        off = qt * 14336 + (s >> 1) * 1024
        lg.issue(f"ds_read_b128 {ar(Xreg(s, qt), 4)}, v{V_XB + (s & 1)} offset:{off}", ("x", s, qt))
    NWP = 6
    n_after = 8 if cfg.warm_wq else 0
    a(f"s_waitcnt vmcnt({n_after})")
    for qt in range(3): xread(0, qt)
    for s in range(14):
        a("s_barrier")
        pre_done = (s >= 3) or s == 1
        if not pre_done:
            if s == 0: lg.need(("x", 0, 2))
            for u in range(NWP - (2 if s == 0 else 0)):
                wread(s, u, 0); wread(s, u, 1)
        nfirst = NWP - (2 if s == 0 else 0)
        mf = []
        for u in range(16):
            for qt in range(3):
                pre = None
                if qt == 0 and u % 2 == 0:
                    pre = (lambda s=s, u=u: lg.need(("w", s, u + 1, 1)))
                D = v(QAcc(u, qt), 4)
                mf.append((pre, (lambda D=D, s=s, u=u, qt=qt: mfma(a, D, ar(A_W + 4*u, 4), ar(Xreg(s, qt), 4), "0" if s == 0 else None))))
        st = []
        for u in range(nfirst, 16):
            for h in range(2):
                st.append(It((lambda s=s, u=u, h=h: wread(s, u, h)), 4, max(0, 3*(u - NWP) + h), max(0, 3*(u - 3))))
        nxt_pre = (s + 1 <= 13) and ((s + 1 >= 3) or s + 1 == 1)
        if nxt_pre:
            for u in range(NWP):
                for h in range(2):
                    st.append(It((lambda s=s, u=u, h=h: wread(s + 1, u, h)), 4, 3*(16 + u - NWP) + h))
        streams = [st]
        if s == 0:
            xs = [It((lambda ss=ss, qt=qt: xread(ss, qt)), 4, ((ss - 1)*3 + qt) * 46 // 39) for ss in range(1, 14) for qt in range(3)]
            streams.append(xs)
        sched(a, mf, streams)
        if s == 0:
            lg.need(("x", 13, 2))
    lg.drain()
    if cfg.dump == "qacc":
        emit_dump_v(a, cfg, V_QACC, 192); return
    a(f"s_mov_b32 s74, {hex(f2u(QSCALE))}")
    a(f"s_mov_b32 s75, {hex(f2u(QSCALE))}")
    a(f"v_mov_b32 v{T0}, 0x3f803f80")
    for r in range(4):
        a(f"v_accvgpr_write_b32 a{A_ONES+r}, v{T0}")
    a("s_nop 3")
    for i in range(23, -1, -1):
        src = V_QACC + 8 * i
        dst = V_Q + 4 * i
        for r in range(4):
            a(f"v_pk_mul_f32 {v(src + 2*r, 2)}, {v(src + 2*r, 2)}, s[74:75]")
        for r in range(3, -1, -1):
            a(f"v_cvt_pk_bf16_f32 v{dst + r}, v{src + 2*r}, v{src + 2*r + 1}")
    if cfg.dump == "q":
        emit_dump_v(a, cfg, V_Q, 96); return

    def kread(t, f):
        aa, T = f >> 3, f & 7
        off = KS[t % 4] + aa * 8192 + (T >> 2) * 256
        lg.issue(f"ds_read_b128 {v(V_KBUF + 4*(f % 8), 4)}, v{V_KB + (T & 3)} offset:{off}", ("k", t, f))
    def vread(t, u, half):
        off = (VS[t % 4] - VREG) + (u >> 3) * 256 + half * 8192
        r = V_VBUF + 4 * (u % 8) + 2 * half
        lg.issue(f"ds_read_b64_tr_b16 {v(r,2)}, v{V_VB + (u & 7)} offset:{off}", ("v", t, u, half))

    def exp_items(t):
        par = t & 1
        st = []
        for qt in range(3):
            for aa in range(2):
                s = Sreg(par, qt, aa)
                for hh in range(2):
                    e0, e1 = s + 2*hh, s + 2*hh + 1
                    pr = V_P + qt*4 + aa*2 + hh
                    st.append(It((lambda e=e0: a(f"v_exp_f32 v{e}, v{e}")), 8))
                    st.append(It((lambda e=e1: a(f"v_exp_f32 v{e}, v{e}")), 8))
                    st.append(("cvt", It((lambda pr=pr, e0=e0, e1=e1: a(f"v_cvt_pk_bf16_f32 v{pr}, v{e0}, v{e1}")), 4)))
        exps = [x for x in st if not isinstance(x, tuple)]
        cvts = [x[1] for x in st if isinstance(x, tuple)]
        return exps, cvts

    def phaseA(t):
        doqk = t + 1 <= 31
        doexp = t >= 0
        if doexp: exps, cvts = exp_items(t)
        if not doqk:
            vq = [(u, h) for u in range(NVP) for h in range(2)]
            for grp in range(12):
                exps[2*grp].fn(); exps[2*grp+1].fn()
                if grp > 0: cvts[grp-1].fn()
                if vq: vread(t, *vq.pop(0))
            a("s_nop 0")
            cvts[11].fn()
            while vq: vread(t, *vq.pop(0))
            return
        par1 = (t + 1) & 1
        mf = []
        for m in range(48):
            aa, T, qt = m // 24, (m % 24) // 3, m % 3
            f = aa * 8 + T
            pre = None
            if qt == 0 and f % 2 == 0:
                pre = (lambda f=f: lg.need(("k", t + 1, f + 1)))
            C = None
            if T == 0: C = "0" if t == -1 else v(V_CM + 4*qt, 4)
            D = v(Sreg(par1, qt, aa), 4)
            mf.append((pre, (lambda D=D, f=f, qt=qt, T=T, C=C: mfma(a, D, v(V_KBUF + 4*(f % 8), 4), v(Qreg(qt, T), 4), C))))
        ks = [It((lambda f=f: kread(t + 1, f)), 4, max(0, 3*(f - 8) + 2), 3*f - 8) for f in range(NKP, 16)]
        streams = [ks]
        if doexp:
            for i, e in enumerate(exps):
                e.earliest = 4*(i // 2) + (i & 1); e.deadline = e.earliest
            for i, c in enumerate(cvts):
                c.earliest = 4*i + 2; c.deadline = min(4*i + 5, 47)
            vs = [It((lambda u=u, h=h: vread(t, u, h)), 4, 26) for u in range(NVP) for h in range(2)]
            streams = [exps, cvts, ks, vs]
        sched(a, mf, streams)

    def phaseB(t, extra=None):
        first = (t == 0)
        docheck = t + 1 <= 31
        par1 = (t + 1) & 1
        Z = "0" if first else None
        mf = []
        for qt in range(3):
            mf.append((None, (lambda qt=qt: mfma(a, ar(A_L + 4*qt, 4), ar(A_ONES, 4), v(V_P + 4*qt, 4), Z))))
        for m in range(48):
            u, qt = m // 3, m % 3
            pre = None
            if qt == 0 and u % 2 == 0:
                pre = (lambda u=u: lg.need(("v", t, u + 1, 1)))
            mf.append((pre, (lambda u=u, qt=qt: mfma(a, ar(Oreg(u, qt), 4), v(V_VBUF + 4*(u % 8), 4), v(V_P + 4*qt, 4), Z))))
        vs = []
        for u in range(NVP, 16):
            e = max(0 if u < 8 else 3 + 3*(u - 8) + 2, 3 + 3*(u - NVP - 1))
            for h in range(2):
                vs.append(It((lambda u=u, h=h: vread(t, u, h)), 4, e + h, 3 + 3*u - 9))
        streams = [vs]
        if docheck:
            s0 = V_S[par1]; mx = V_TMP
            chk = [f"v_max3_f32 v{mx}, v{s0}, v{s0+1}, v{s0+2}"]
            for k in range(10):
                chk.append(f"v_max3_f32 v{mx}, v{mx}, v{s0+3+2*k}, v{s0+4+2*k}")
            chk.append(f"v_max_f32 v{mx}, v{mx}, v{s0+23}")
            chk.append(f"v_cmp_lt_f32 vcc, s{S_THR}, v{mx}")
            streams.append([It((lambda c=c: a(c)), 4, 6 + 2*i) for i, c in enumerate(chk)])
        if t + 2 <= 31:
            streams.append([It((lambda f=f: kread(t + 2, f)), 4, 30 + 2*f) for f in range(NKP)])
        if extra: streams += extra
        a("s_nop 1")
        sched(a, mf, streams)

    def check_branch(t, tag):
        a(f"s_cbranch_vccnz L_rare_{tag}")
        a.label(f"L_back_{tag}")
        rare_blocks.append((tag, (t + 1) & 1))

    a("s_barrier")
    for f in range(NKP): kread(0, f)
    phaseA(-1)
    for f in range(NKP): kread(1, f)
    a("s_nop 1")
    for qt in range(3):
        s0 = Sreg(0, qt, 0)
        mx = V_TMP + qt
        a(f"v_max3_f32 v{mx}, v{s0}, v{s0+1}, v{s0+2}")
        a(f"v_max3_f32 v{mx}, v{mx}, v{s0+3}, v{s0+4}")
        a(f"v_max3_f32 v{mx}, v{mx}, v{s0+5}, v{s0+6}")
        a(f"v_max_f32 v{mx}, v{mx}, v{s0+7}")
    for step in range(2):
        for qt in range(3): a(f"v_mov_b32 v{V_TMP+4+qt}, v{V_TMP+qt}")
        a("s_nop 0")
        for qt in range(3):
            a(f"v_permlane{32 if step == 0 else 16}_swap_b32 v{V_TMP+qt}, v{V_TMP+4+qt}")
        a("s_nop 0")
        for qt in range(3): a(f"v_max_f32 v{V_TMP+qt}, v{V_TMP+qt}, v{V_TMP+4+qt}")
    for qt in range(3):
        s0 = Sreg(0, qt, 0); mx = V_TMP + qt
        for r in range(8):
            a(f"v_sub_f32 v{s0+r}, v{s0+r}, v{mx}")
        for r in range(4):
            a(f"v_sub_f32 v{V_CM + 4*qt + r}, 0, v{mx}")
    if cfg.dump == "s0":
        lg.drain()
        emit_dump_v(a, cfg, V_S[0], 24, extra=(V_CM, 12)); return

    def iteration(t, tag):
        a("s_barrier")
        phaseA(t)
        phaseB(t)
        if t + 1 <= 31:
            check_branch(t, tag)

    iteration(0, "p0")
    q0 = list(lg.q)
    a(f"s_mov_b32 s{S_CNT}, 7")
    a.label("L_loop")
    for t in range(1, 5):
        iteration(t, f"l{t}")
    q1 = [(x[0], x[1] - 4) + x[2:] for x in lg.q]
    assert q0 == q1, (q0, q1)
    a(f"s_sub_u32 s{S_CNT}, s{S_CNT}, 1")
    a(f"s_cmp_lg_u32 s{S_CNT}, 0")
    a("s_cbranch_scc1 L_loop")
    lg.q = [(x[0], x[1] + 28) + x[2:] for x in q0]
    for x in lg.q: lg.issued.add(x)
    for f in range(16): lg.issued.add(("k", 30, f))
    a.label("L_tail_code")
    for t in range(29, 31):
        iteration(t, f"e{t}")

    def oconv_items(T, earliest=0):
        its = []
        for qt in range(3):
            tb = V_CT + 8 * qt
            for h in range(2):
                o = Oreg(2*T + h, qt)
                for r in range(4):
                    its.append(It((lambda d=tb + 4*h + r, s=o + r: a(f"v_accvgpr_read_b32 v{d}, a{s}")), 4, earliest))
            q = Qreg(qt, T)
            for r in range(4):
                its.append(It((lambda d=q + r, s=tb + 2*r: a(f"v_cvt_pk_bf16_f32 v{d}, v{s}, v{s+1}")), 4, earliest))
        return its

    def wo_base(j, jj):
        addr = WOSLOT[j]
        if addr < VREG: return VBK + jj, addr
        if addr < VREG + 65536: return V_VB + jj, addr - VREG
        return VBE + jj, addr - VREG - 65536
    steps = []
    for p in range(3):
        for T in range(8):
            steps.append((p, T, 4*p + T//2, T & 1, 8))
    for T in range(8):
        steps.append((3, T, 12 + T//4, T & 3, 4))
    frs = []
    for si, (p, T, j, tau, nu) in enumerate(steps):
        for u in range(nu):
            frs.append((si, p, T, j, tau, nu, u))
    FBN = 12
    def oread(k, half):
        si, p, T, j, tau, nu, u = frs[k]
        tp = (8*tau + u) if p < 3 else (4*tau + u)
        br, off = wo_base(j, tp & 7)
        off += (tp >> 3) * 256 + half * 8192
        r = A_WO + 4 * (k % FBN) + 2 * half
        lg.issue(f"ds_read_b64_tr_b16 {ar(r,2)}, v{br} offset:{off}", ("o", k, half))
    def accreg(p, u, qt):
        i = (u * 3 + qt) * 4
        if p == 0 or p == 2: return ("v", V_P0 + i)
        return ("a", i)
    def accstr(p, u, qt):
        f, r = accreg(p, u, qt)
        return v(r, 4) if f == "v" else ar(r, 4)
    slotc = [0]
    slog = []
    def conv_items(p, packed=False):
        its = []
        nu = 8 if p < 3 else 4
        for up in range(nu // 2):
            for qt in range(3):
                rl = V_RL + qt * 0
                rlp = f"v[{V_RL + 2*qt}:{V_RL + 2*qt + 1}]"
                f, _ = accreg(p, 0, 0)
                tb = V_CT + 12 * (slotc[0] % 2); slotc[0] += 1
                out = tb + 8
                if f == "a":
                    for h in range(2):
                        o = accreg(p, 2*up + h, qt)[1]
                        for r in range(4):
                            its.append(It((lambda d=tb + 4*h + r, s=o + r: a(f"v_accvgpr_read_b32 v{d}, a{s}"))))
                    srcs = [tb + 2*r for r in range(4)]
                else:
                    o0 = accreg(p, 2*up, qt)[1]; o1 = accreg(p, 2*up + 1, qt)[1]
                    srcs = [o0, o0 + 2, o1, o1 + 2]
                for sreg in srcs:
                    if packed:
                        its.append(It((lambda s=sreg, rlp=rlp: a(f"v_pk_mul_f32 {v(s,2)}, {v(s,2)}, {rlp}"))))
                    else:
                        for k in range(2):
                            its.append(It((lambda s=sreg + k, qt=qt: a(f"v_mul_f32 v{s}, v{V_RL + 2*qt}, v{s}"))))
                for r, sreg in enumerate(srcs):
                    its.append(It((lambda d=out + r, s=sreg: a(f"v_cvt_pk_bf16_f32 v{d}, v{s}, v{s+1}"))))
                upair = 4*p + up
                its.append(It((lambda c=(qt*14 + upair)*1024: a(f"s_add_u32 s{S_SO}, s{S_WOFF}, {c}")), 4))
                its.append(It((lambda o=out, p=p: (a(f"buffer_store_dwordx4 {v(o,4)}, v{V_ST}, s[{S_WS}:{S_WS+3}], s{S_SO} offen{cfg.st_flags}"), slog.append(p))), 4))
        return its

    svm = Vm(a)
    def signal_a(p, nafter):
        a(f"s_waitcnt vmcnt({nafter})")
        a("s_mov_b64 exec, 1")
        lg.issue(f"ds_add_rtn_u32 v6, v4, v5 offset:{4*p}", ("sig", p))
        a("s_mov_b64 exec, -1")
    def signal_b(p):
        lg.need(("sig", p))
        a("v_readfirstlane_b32 s90, v6")
        a("s_nop 3")
        a("s_cmp_eq_u32 s90, 2")
        a(f"s_cbranch_scc0 L_nosig{p}")
        a("s_mov_b64 exec, 1")
        a(f"s_mov_b32 s88, {4096*p}")
        a(f"buffer_atomic_add v5, off, s[84:87], s88")
        a("s_mov_b64 exec, -1")
        a.label(f"L_nosig{p}")
    a("s_barrier")
    phaseA(31)
    setup_its = []
    for j in range(8):
        setup_its.append(It((lambda j=j: a(f"v_subrev_u32 v{VBK+j}, {VREG}, v{V_VB+j}")), 4, 0))
        setup_its.append(It((lambda j=j: a(f"v_add_u32 v{VBE+j}, {VREG}, v{V_VB+j}")), 4, 0))
    NOP_ = 5
    ex1 = oconv_items(0, earliest=3 + 3*1 + 2 + 8)
    ex2 = oconv_items(1, earliest=3 + 3*3 + 2 + 8)
    pre_o = [It((lambda k=k, h=h: oread(k, h)), 4, 42) for k in range(NOP_) for h in range(2)]
    phaseB(31, extra=[setup_its, ex1 + ex2, pre_o])
    if cfg.dump == "o":
        a("s_nop 7")
        emit_dump_acc(a, cfg, 204); return
    a(f"v_lshlrev_b32 v{V_ST}, 4, v{lane}")
    a(f"s_mul_i32 s{S_WOFF}, s{S_WID}, {3*14*1024}")
    for qt in range(3):
        a(f"v_accvgpr_read_b32 v{V_RL+2*qt}, a{A_L + 4*qt}")
    for qt in range(3):
        a(f"v_rcp_f32 v{V_RL+2*qt}, v{V_RL+2*qt}")
    a("s_nop 0")
    for qt in range(3):
        a(f"v_mov_b32 v{V_RL+2*qt+1}, v{V_RL+2*qt}")
    if cfg.fused:
        a(f"v_mov_b32 v4, {VS[0]}")
        a("v_mov_b32 v5, 1")
        emit_red_setup(a, cfg)

    cur_slot = -1
    nxt = NOP_
    pend = []
    store_log = slog
    stores_since = {q: (lambda q=q: sum(1 for i, x in enumerate(store_log) if i > max(k for k, y in enumerate(store_log) if y == q))) for q in range(4)}
    for si, (p, T, j, tau, nu) in enumerate(steps):
        if j != cur_slot:
            if j < ntb(cfg): a("s_barrier")
            cur_slot = j
        if cfg.fused and p == 2 and T == cfg.sig_t:
            signal_a(0, stores_since[0]())
        if cfg.fused and p == 2 and T == cfg.sig_t + 1:
            signal_b(0)
        if cfg.fused and p == 3 and T == cfg.sig_t1:
            signal_a(1, stores_since[1]())
        if cfg.fused and p == 3 and T == cfg.sig_t1 + 1:
            signal_b(1)
        k0 = sum(s[4] for s in steps[:si])
        if T == 0 and p > 0:
            assert not pend
            pend = conv_items(p - 1)
            for it in pend[:1]: pass
        mf = []
        for u in range(nu):
            k = k0 + u
            for qt in range(3):
                pre = None
                if qt == 0 and u % 2 == 0:
                    pre = (lambda k=k: lg.need(("o", k + 1, 1)))
                mf.append((pre, (lambda u=u, qt=qt, k=k: mfma(a, accstr(p, u, qt), ar(A_WO + 4*(k % FBN), 4), v(Qreg(qt, T), 4), "0" if T == 0 else None))))
        rs = []
        lim = k0 + nu + NOP_
        while nxt < len(frs) and nxt < lim and frs[nxt][3] <= j + 1:
            kk = nxt
            use = 3 * (kk - k0)
            e = max(0, 3 * (kk - FBN - k0) + 2)
            for h in range(2):
                rs.append(It((lambda kk=kk, h=h: oread(kk, h)), 4, max(e, use - 3*NOP_ - 3), max(0, use - 10)))
            nxt += 1
        streams = [rs]
        if p == 0 and T + 2 <= 7:
            streams.append(oconv_items(T + 2))
        if pend:
            if T == 0:
                for it in pend: it.earliest = 4
            streams.append(pend)
            last_of_pass = (T == 7)
            sched(a, mf, [rs] + [pend], flush=False)
            while rs: rs.pop(0).fn()
            if last_of_pass:
                while pend: pend.pop(0).fn()
            for it in pend: it.earliest = 0
        else:
            sched(a, mf, streams)
    a("s_nop 7")
    for it in conv_items(3, packed=True): it.fn()
    a.label("L_tail_end")
    print("lds throttles:", lg.throttled, file=sys.stderr)
    if cfg.fused:
        signal_a(2, 0); signal_b(2)
        a("s_barrier")
        emit_final_reduce(a, cfg)
    elif cfg.stamps:
        a("s_waitcnt vmcnt(0)")
        a("s_barrier")
    a("s_branch L_end")

def emit_rare(a, cfg, rare_blocks):
    for tag, par in rare_blocks:
        a.label(f"L_rare_{tag}")
        a("s_nop 7")
        for qt in range(3):
            s0 = Sreg(par, qt, 0)
            mx = V_TMP + qt
            a(f"v_max3_f32 v{mx}, v{s0}, v{s0+1}, v{s0+2}")
            a(f"v_max3_f32 v{mx}, v{mx}, v{s0+3}, v{s0+4}")
            a(f"v_max3_f32 v{mx}, v{mx}, v{s0+5}, v{s0+6}")
            a(f"v_max_f32 v{mx}, v{mx}, v{s0+7}")
            xlane_max(a, mx, V_TMP + 4)
            a(f"v_max_f32 v{mx}, 0, v{mx}")
            for r in range(8):
                a(f"v_sub_f32 v{s0+r}, v{s0+r}, v{mx}")
            for r in range(4):
                a(f"v_sub_f32 v{V_CM + 4*qt + r}, v{V_CM + 4*qt + r}, v{mx}")
            a(f"v_sub_f32 v{mx}, 0, v{mx}")
            a(f"v_exp_f32 v{mx}, v{mx}")
        a(f"s_getpc_b64 s[{S_TGT}:{S_TGT+1}]")
        a.label(f"L_pc_{tag}")
        a(f"s_add_u32 s{S_TGT}, s{S_TGT}, L_rescale-L_pc_{tag}")
        a(f"s_addc_u32 s{S_TGT+1}, s{S_TGT+1}, 0")
        a(f"s_swappc_b64 s[{S_RET}:{S_RET+1}], s[{S_TGT}:{S_TGT+1}]")
        a(f"s_branch L_back_{tag}")
    if not rare_blocks: return
    a.label("L_rescale")
    a("s_nop 7")
    for qt in range(3):
        regs = [Oreg(u, qt) + r for u in range(16) for r in range(4)] + [A_L + 4*qt + r for r in range(4)]
        for i in range(0, len(regs), 4):
            for k in range(4):
                a(f"v_accvgpr_read_b32 v{V_TMP+4+k}, a{regs[i+k]}")
            for k in range(4):
                a(f"v_mul_f32 v{V_TMP+4+k}, v{V_TMP+qt}, v{V_TMP+4+k}")
            for k in range(4):
                a(f"v_accvgpr_write_b32 a{regs[i+k]}, v{V_TMP+4+k}")
    a("s_nop 1")
    a(f"s_setpc_b64 s[{S_RET}:{S_RET+1}]")

def emit_dump_common(a, cfg, regs, isacc):
    a("s_mov_b32 s76, s72"); a("s_mov_b32 s77, s73")
    a("s_mov_b32 s78, 0x10000000"); a("s_mov_b32 s79, 0x20000")
    a(f"s_mul_i32 s74, s2, 3")
    a(f"s_add_u32 s74, s74, s{S_WID}")
    a("s_lshl_b32 s74, s74, 16")
    a(f"v_lshlrev_b32 v{V_T0}, 2, v{V_LANE}")
    for i, r in enumerate(regs):
        if isacc:
            a(f"v_accvgpr_read_b32 v{V_T1}, a{r}")
            src = V_T1
        else:
            src = r
        a(f"buffer_store_dword v{src}, v{V_T0}, s[76:79], s74 offen")
        a("s_add_u32 s74, s74, 256")
        if isacc: a("s_waitcnt vmcnt(0)")
    a("s_waitcnt vmcnt(0)")
    n = {"qacc": 33 + 14, "q": 33 + 14, "s0": 32 + 14, "o": 14}[cfg.dump]
    for _ in range(n): a("s_barrier")
    if cfg.stamps: a("s_barrier")
    a.label("L_tail_end")
    if cfg.dump != "o": a.label("L_tail_code")
    a("s_branch L_end")
def emit_dump_acc(a, cfg, n):
    a("s_nop 7")
    emit_dump_common(a, cfg, list(range(n)), True)
def emit_dump_v(a, cfg, base, n, extra=None):
    regs = list(range(base, base + n))
    if extra: regs += list(range(extra[0], extra[0] + extra[1]))
    emit_dump_common(a, cfg, regs, False)

def emit_reduce(a, cfg):
    a.raw(f".globl {RNAME}")
    a.raw(".p2align 8")
    a.raw(f".type {RNAME},@function")
    a.label(RNAME)
    a("s_cmp_ge_u32 s2, 504")
    a("s_cbranch_scc1 LR_end")
    a("s_load_dwordx2 s[4:5], s[0:1], 96")
    a("s_load_dwordx2 s[8:9], s[0:1], 80")
    a("v_lshrrev_b32 v1, 6, v0")
    a("v_and_b32 v2, 63, v0")
    a("v_readfirstlane_b32 s3, v1")
    a("s_lshl_b32 s12, s2, 2")
    a("s_add_u32 s12, s12, s3")
    a(f"s_mul_hi_u32 s13, s12, {(2**32 + 125)//126}")
    a("s_mul_i32 s14, s13, 126")
    a("s_sub_u32 s14, s12, s14")
    a(f"s_mul_hi_u32 s15, s14, {(2**32 + 13)//14}")
    a("s_mul_i32 s16, s15, 14")
    a("s_sub_u32 s16, s14, s16")
    a("s_waitcnt lgkmcnt(0)")
    a(f"s_mul_i32 s17, s13, {16*129024}")
    a("s_lshl_b32 s18, s14, 10")
    a("s_add_u32 s17, s17, s18")
    a("s_add_u32 s4, s4, s17")
    a("s_addc_u32 s5, s5, 0")
    a(f"s_mov_b32 s6, {15*129024 + 1024}")
    a("s_mov_b32 s7, 0x20000")
    a("v_lshlrev_b32 v3, 4, v2")
    for h in range(16):
        a(f"s_mov_b32 s19, {h*129024}")
        a(f"buffer_load_dwordx4 v[{8+4*h}:{11+4*h}], v3, s[4:7], s19 offen{cfg.rd_flags}")
    a("s_and_b32 s20, s13, 7")
    a("s_lshr_b32 s21, s13, 3")
    a("s_mul_i32 s20, s20, 144")
    a("s_lshl_b32 s22, s15, 4")
    a("s_add_u32 s20, s20, s22")
    a("s_mul_i32 s20, s20, 1792")
    a("s_mul_i32 s21, s21, 896")
    a("s_lshl_b32 s22, s16, 6")
    a("s_add_u32 s20, s20, s21")
    a("s_add_u32 s20, s20, s22")
    a("v_and_b32 v4, 15, v2")
    a("v_mul_u32_u24 v4, 1792, v4")
    a("v_lshrrev_b32 v5, 4, v2")
    a("v_lshl_add_u32 v4, v5, 3, v4")
    a("s_mov_b32 s10, %d" % (8*144*896*2))
    a("s_mov_b32 s11, 0x20000")
    for h in range(16):
        a(f"s_waitcnt vmcnt({15-h})")
        for r in range(4):
            src = 8 + 4*h + r
            if h == 0:
                a(f"v_lshlrev_b32 v{72+2*r}, 16, v{src}")
                a(f"v_and_b32 v{73+2*r}, 0xffff0000, v{src}")
            else:
                a(f"v_lshlrev_b32 v80, 16, v{src}")
                a(f"v_and_b32 v81, 0xffff0000, v{src}")
                a(f"v_add_f32 v{72+2*r}, v{72+2*r}, v80")
                a(f"v_add_f32 v{73+2*r}, v{73+2*r}, v81")
    for r in range(4):
        a(f"v_cvt_pk_bf16_f32 v{84+r}, v{72+2*r}, v{73+2*r}")
    a("buffer_store_dwordx2 v[84:85], v4, s[8:11], s20 offen")
    a("buffer_store_dwordx2 v[86:87], v4, s[8:11], s20 offen offset:32")
    a.label("LR_end")
    a("s_endpgm")

def kd(a, name, vg, acc, sg=102):
    a.raw(f".amdhsa_kernel {name}")
    a.raw(f"  .amdhsa_next_free_vgpr {vg}")
    a.raw(f"  .amdhsa_next_free_sgpr {sg}")
    a.raw(f"  .amdhsa_accum_offset {acc}")
    a.raw("  .amdhsa_group_segment_fixed_size 0")
    a.raw("  .amdhsa_kernarg_size 104")
    a.raw("  .amdhsa_user_sgpr_count 2")
    a.raw("  .amdhsa_user_sgpr_kernarg_segment_ptr 1")
    a.raw("  .amdhsa_system_sgpr_workgroup_id_x 1")
    a.raw(".end_amdhsa_kernel")

HEADER = """; Fused MHA block (two branches): Q-proj + flash attention + partial out-proj per (branch,batch,head) workgroup,
"""
def generate(cfg):
    a = Asm()
    a.raw(HEADER.rstrip())
    if cfg.fused and not cfg.aslist:
        a.raw(f"; @launch grid=(256,1,1) block=(256,1,1) lds=163840")
    else:
        a.raw(f"; @launch kernel={KNAME} grid=(256,1,1) block=(256,1,1) lds=163840")
    if not cfg.dump and not cfg.fused:
        a.raw(f"; @launch kernel={RNAME} grid=(504,1,1) block=(256,1,1) lds=0")
    a.raw('.amdgcn_target "amdgcn-amd-amdhsa--gfx950"')
    a.raw(".text")
    a.raw(f".globl {KNAME}")
    a.raw(".p2align 8")
    a.raw(f".type {KNAME},@function")
    a.label(KNAME)
    emit_setup(a, cfg)
    rare = []
    emit_compute_main(a, cfg, rare)
    emit_loader(a, cfg)
    a.label("L_code_end")
    emit_rare(a, cfg, rare)
    a.label("L_end")
    a("s_endpgm")
    if not cfg.dump and not cfg.fused:
        emit_reduce(a, cfg)
    a.raw('.section .rodata,"a"')
    a.raw(".p2align 6")
    kd(a, KNAME, 512, 256)
    if not cfg.dump and not cfg.fused:
        a.raw(".p2align 6")
        kd(a, RNAME, 96, 96, 32)
    return a.text()

if __name__ == "__main__":
    cfg = Cfg()
    out = sys.argv[1]
    for kv in sys.argv[2:]:
        k, val = kv.split("=", 1)
        cur = getattr(cfg, k)
        if isinstance(cur, bool): val = val in ("1", "True", "true")
        elif isinstance(cur, float): val = float(val)
        elif isinstance(cur, int): val = int(val)
        elif val == "None": val = None
        setattr(cfg, k, val)
    open(out, "w").write(generate(cfg))
```

```python
import sys, math, struct, re

KNAME = "concat_heads__mha_block_cached__mha_block_cached__near_ridge_kernel"
RNAME = "reduce_kernel"

class Asm:
    def __init__(self):
        self.L = []
    def __call__(self, s):
        self.L.append("    " + s)
    def label(self, s):
        self.L.append(s + ":")
    def raw(self, s):
        self.L.append(s)
    def text(self):
        return "\n".join(self.L) + "\n"

class Lgkm:
    def __init__(self, a):
        self.a = a; self.q = []; self.issued = set(); self.throttled = 0
    def issue(self, ins, tag):
        if len(self.q) >= 15:
            self.a("s_waitcnt lgkmcnt(14)"); self.q = self.q[len(self.q) - 14:]; self.throttled += 1
        self.a(ins); self.q.append(tag); self.issued.add(tag)
    def need(self, tag):
        assert tag in self.issued, ("not issued", tag)
        if tag in self.q:
            idx = len(self.q) - 1 - self.q[::-1].index(tag)
            n = len(self.q) - 1 - idx
            self.a(f"s_waitcnt lgkmcnt({n})")
            self.q = self.q[idx + 1:]
    def drain(self):
        if self.q:
            self.a("s_waitcnt lgkmcnt(0)")
            self.q = []

class Vm:
    def __init__(self, a):
        self.a = a; self.q = []
    def room(self, n):
        over = len(self.q) + n - 63
        if over > 0:
            keep = len(self.q) - over
            self.a(f"s_waitcnt vmcnt({keep})")
            self.q = self.q[over:]
    def issue(self, ins, tag):
        assert len(self.q) < 63
        self.a(ins); self.q.append(tag)
    def need(self, tag):
        if tag in self.q:
            idx = len(self.q) - 1 - self.q[::-1].index(tag)
            n = len(self.q) - 1 - idx
            self.a(f"s_waitcnt vmcnt({n})")
            self.q = self.q[idx + 1:]

class It:
    def __init__(self, fn, cost=4, earliest=0, deadline=10**9):
        self.fn, self.cost, self.earliest, self.deadline = fn, cost, earliest, deadline

def sched(a, mf, streams, budget=8, flush=True):
    n = len(mf)
    for m, (pre, emit) in enumerate(mf):
        if pre: pre()
        emit()
        b = budget
        if m + 1 < n and mf[m + 1][0] is not None: b -= 4
        for st in streams:
            while st and st[0].deadline <= m:
                it = st.pop(0); it.fn(); b -= it.cost
        for st in streams:
            while st and st[0].earliest <= m and st[0].cost <= b:
                it = st.pop(0); it.fn(); b -= it.cost
    if flush:
        prog = True
        while any(streams):
            for st in streams:
                if st:
                    it = st.pop(0); it.fn()

def v(n, cnt=1):
    return f"v{n}" if cnt == 1 else f"v[{n}:{n+cnt-1}]"
def ar(n, cnt=1):
    return f"a{n}" if cnt == 1 else f"a[{n}:{n+cnt-1}]"
def f2u(x): return struct.unpack("<I", struct.pack("<f", x))[0]

V_LANE = 1
V_T0, V_T1 = 2, 3
V_KB = 4
V_VB = 8
V_TMP = 16
V_S = [24, 48]
V_P = 72
V_CM = 84
V_KBUF = 96
V_VBUF = 128
V_Q = 160
A_O = 0
A_L = 192
A_ONES = 204
A_X = 0
A_W = 168
A_DUMMY = 232
V_QACC = 64
V_WB = 16
V_XB = 20
V_XB2 = 24
A_WO = 208
V_P0 = 64
VBK, VBE = 24, 32
V_RL = 16
V_ST = 22
V_CT = 40

def Qreg(qt, T): return V_Q + (qt * 8 + T) * 4
def Xreg(s, qt): return A_X + (s * 3 + qt) * 4
def QAcc(u, qt): return V_QACC + (qt * 8 + (u >> 1)) * 8 + 4 * (u & 1)
def Oreg(u, qt): return A_O + (u * 3 + qt) * 4
def Sreg(par, qt, a): return V_S[par] + (qt * 2 + a) * 4

KS = [i * 16384 for i in range(4)]
VREG = 65536
VS = [VREG + i * 16384 for i in range(4)]
ES = [131072, 147456]
WRING = [ES[0], ES[1], VS[2], VS[3]]
WBASE = VS[2]
XW = 43008
XAW = 24576
XBB = 32768
XBW = 18432
WOSLOT = [ES[0], ES[1], KS[0], KS[1], VS[0], KS[2], VS[1], KS[3], VS[2], VS[3], ES[0], ES[1], KS[0], KS[1]]

S_WID = 3
S_X, S_K, S_V, S_WQ, S_WO, S_WS = 4, 8, 12, 16, 20, 24
S_B, S_H, S_BR, S_THR = 28, 29, 30, 31
S_SO, S_SO2, S_CNT = 32, 33, 34
S_RET, S_TGT = 36, 38
S_WOFF = 40
S_PC = 56
S_TS = 60

QSCALE = math.log2(math.e) / 16.0
SCL_OFF = 0x2200000
CNT_OFF = 0x2100000

class Cfg:
    nt_kv = True
    nt_w = True
    nt_x = True
    nt_wo = True
    nt_warm = True
    st_flags = " sc0 sc1"
    rd_flags = " sc0 sc1"
    warm_wq = True
    warm_wo = False
    code_pf = True
    thr = 8.0
    dump = None
    stamps = False
    kvsched = "d"
    fused = True
    poll_flags = " sc1"
    out_flags = ""
    aslist = False
    sig_t = 0
    warm2 = False
    xbsched = "a"
    xb_read = 5
    xb_one = 0
    wr_pace = 0
    wr_spread = 10
    map_odd = False
    cstamps = False
    stagger = 0
    ncls = 4
    cls_mode = "b"
    stag_tmax = 31
    scale_red = True
    decouple = True
    nop = 6
    dbg_stamps = -1
    wo_reg0 = 9
    wo_reg_t0 = 14
    warm_t0 = 18
    poll_sleep = 2
    sig_t1 = 2
    nkp = 8
    nvp = 4

def emit_setup(a, cfg):
    a("s_cmp_ge_u32 s2, 256")
    a("s_cbranch_scc1 L_end")
    if cfg.stamps:
        a(f"s_memrealtime s[{S_TS}:{S_TS+1}]")
    a("s_load_dwordx4 s[44:47], s[0:1], 0")
    a("s_load_dwordx4 s[48:51], s[0:1], 16")
    a("s_load_dwordx2 s[52:53], s[0:1], 32")
    a("s_load_dwordx2 s[54:55], s[0:1], 40")
    a("s_load_dwordx4 s[64:67], s[0:1], 48")
    a("s_load_dwordx4 s[68:71], s[0:1], 64")
    a("s_load_dwordx2 s[72:73], s[0:1], 96")
    a("s_load_dwordx4 s[80:83], s[0:1], 80")
    a(f"v_lshrrev_b32 v{V_T0}, 6, v0")
    a(f"v_and_b32 v{V_LANE}, 63, v0")
    a(f"v_readfirstlane_b32 s{S_WID}, v{V_T0}")
    a("s_and_b32 s74, s2, 7")
    a("s_lshr_b32 s75, s2, 3")
    if cfg.map_odd:
        a(f"s_and_b32 s{S_BR}, s74, 1")
        a("s_lshr_b32 s76, s74, 1")
    else:
        a(f"s_lshr_b32 s{S_BR}, s74, 2")
        a("s_and_b32 s76, s74, 3")
    a("s_lshl_b32 s76, s76, 2")
    a("s_and_b32 s77, s75, 3")
    a(f"s_add_u32 s{S_H}, s76, s77")
    a(f"s_lshr_b32 s{S_B}, s75, 2")
    a(f"s_mul_i32 s78, s{S_B}, 129024")
    a(f"s_lshl_b32 s79, s{S_H}, 9")
    a(f"s_mov_b32 s{S_X+2}, 129024")
    a(f"s_mov_b32 s{S_X+3}, 0x20000")
    a(f"s_sub_u32 s{S_WQ+2}, {448*8192}, s79")
    a(f"s_mov_b32 s{S_WQ+3}, 0x20000")
    a("s_waitcnt lgkmcnt(0)")
    a(f"s_cmp_eq_u32 s{S_BR}, 0")
    a(f"s_cselect_b32 s{S_X}, s44, s54")
    a(f"s_cselect_b32 s{S_X+1}, s45, s55")
    a(f"s_cselect_b32 s{S_WQ}, s50, s68")
    a(f"s_cselect_b32 s{S_WQ+1}, s51, s69")
    a(f"s_cselect_b32 s{S_K}, s46, s64")
    a(f"s_cselect_b32 s{S_K+1}, s47, s65")
    a(f"s_cselect_b32 s{S_V}, s48, s66")
    a(f"s_cselect_b32 s{S_V+1}, s49, s67")
    a(f"s_cselect_b32 s{S_WO}, s52, s70")
    a(f"s_cselect_b32 s{S_WO+1}, s53, s71")
    a(f"s_add_u32 s{S_X}, s{S_X}, s78")
    a(f"s_addc_u32 s{S_X+1}, s{S_X+1}, 0")
    a(f"s_add_u32 s{S_WQ}, s{S_WQ}, s79")
    a(f"s_addc_u32 s{S_WQ+1}, s{S_WQ+1}, 0")
    a(f"s_cmp_eq_u32 s{S_WID}, 3")
    a("s_cbranch_scc1 L_loader")

def emit_setup_late(a, cfg, loader):
    a(f"s_lshl_b32 s74, s{S_B}, 4")
    a(f"s_add_u32 s74, s74, s{S_H}")
    if loader:
        a("s_lshl_b32 s75, s74, 19")
        for S in (S_K, S_V):
            a(f"s_add_u32 s{S}, s{S}, s75")
            a(f"s_addc_u32 s{S+1}, s{S+1}, 0")
            a(f"s_mov_b32 s{S+2}, 524288")
            a(f"s_mov_b32 s{S+3}, 0x20000")
        a(f"s_mul_i32 s75, s{S_H}, {256*896}")
        a(f"s_add_u32 s{S_WO}, s{S_WO}, s75")
        a(f"s_addc_u32 s{S_WO+1}, s{S_WO+1}, 0")
        a(f"s_mov_b32 s{S_WO+2}, {256*896}")
        a(f"s_mov_b32 s{S_WO+3}, 0x20000")
    else:
        a(f"s_lshl_b32 s75, s{S_BR}, 7")
        a("s_add_u32 s74, s74, s75")
        a("s_mul_i32 s74, s74, 129024")
        a(f"s_add_u32 s{S_WS}, s72, s74")
        a(f"s_addc_u32 s{S_WS+1}, s73, 0")
        a(f"s_mov_b32 s{S_WS+2}, 129024")
        a(f"s_mov_b32 s{S_WS+3}, 0x20000")

def ntb(cfg): return 9 if (cfg.fused and not cfg.dump) else 14
def barrier_list(cfg):
    L = [("PB", s) for s in range(14)]
    L += [("B", t) for t in range(-1, 32)]
    L += [("TB", j) for j in range(ntb(cfg))]
    return L

XBSCHED = {"a": {1: [0], 2: [1], 3: [2]}, "b": {1: [0, 1], 2: [2]}, "c": {1: [0, 1, 2]}}
KVSCHED = {
    "f": {3: [("K", 0)], 4: [("K", 1)], 6: [("K", 2)], 7: [("V", 0)], 8: [("K", 3)], 9: [("V", 1)], 11: [("V", 2)], 12: [("V", 3)]},
    "g": {2: [("K", 0)], 3: [("K", 1)], 5: [("K", 2)], 6: [("V", 0)], 8: [("K", 3)], 9: [("V", 1)], 11: [("V", 2)], 12: [("V", 3)]},
    "h": {1: [("K", 0)], 3: [("K", 1)], 5: [("K", 2)], 6: [("V", 0)], 7: [("K", 3)], 9: [("V", 1)], 11: [("V", 2)], 12: [("V", 3)]},
    "a": {1: [("K", 0)], 2: [("V", 0)], 3: [("K", 1)], 4: [("K", 2)], 6: [("V", 1)], 7: [("K", 3)], 11: [("V", 2)], 12: [("V", 3)]},
    "b": {1: [("K", 0), ("V", 0)], 2: [("K", 1)], 3: [("K", 2)], 4: [("V", 1)], 5: [("K", 3)], 11: [("V", 2)], 12: [("V", 3)]},
    "d": {4: [("K", 0)], 5: [("K", 1)], 7: [("K", 2), ("V", 0)], 8: [("K", 3)], 9: [("V", 1)], 11: [("V", 2)], 12: [("V", 3)]},
    "e": {3: [("K", 0)], 5: [("K", 1)], 7: [("V", 0)], 8: [("K", 2)], 9: [("K", 3)], 10: [("V", 1)], 11: [("V", 2)], 12: [("V", 3)]},
    "c": {1: [("K", 0)], 3: [("V", 0)], 4: [("K", 1)], 6: [("K", 2)], 7: [("V", 1)], 9: [("K", 3)], 11: [("V", 2)], 12: [("V", 3)]},
}

def emit_code_prefetch(a, cfg, vm, vaddr, lo, hi, dst):
    a(f"s_getpc_b64 s[{S_PC}:{S_PC+1}]")
    lab = f"L_pc_{lo}"
    a.label(lab)
    a(f"s_add_u32 s{S_PC}, s{S_PC}, {lo}-{lab}")
    a(f"s_addc_u32 s{S_PC+1}, s{S_PC+1}, 0")
    a(f"s_mov_b32 s{S_PC+2}, {hi}-{lo}")
    a(f"s_mov_b32 s{S_PC+3}, 0x20000")
    return

def emit_loader(a, cfg):
    a.label("L_loader")
    vm = Vm(a)
    LH, LP = 2, 3
    VK, VV, VW, VO, VO3 = 8, 16, 20, 24, 28
    T0, T1 = 4, 5
    stamp_idx = [0]
    def xstamp(i):
        if cfg.stamps:
            a("s_memrealtime s[62:63]")
            a("s_waitcnt lgkmcnt(0)")
            a(f"v_writelane_b32 v58, s62, {i}")
    if cfg.stamps:
        a(f"v_writelane_b32 v56, s{S_TS}, 0")
    xstamp(0)
    a(f"v_lshrrev_b32 v{LH}, 5, v{V_LANE}")
    a(f"v_and_b32 v{LP}, 31, v{V_LANE}")
    a(f"v_lshlrev_b32 v32, 4, v{V_LANE}")
    def chunkpat(i):
        a(f"v_add_u32 v{T0}, {2*i}, v{LH}")
        a(f"v_lshlrev_b32 v{T0}, 1, v{T0}")
        a(f"v_xor_b32 v{T0}, v{T0}, v{LP}")
    for i in range(4):
        chunkpat(i)
        a(f"v_lshlrev_b32 v{T1}, 4, v{T0}")
        a(f"v_lshl_add_u32 v{VW+i}, v{LH}, 13, v{T1}")
    ntkv = " nt" if cfg.nt_kv else ""
    ntw = " nt" if cfg.nt_w else ""
    ntwo = " nt" if cfg.nt_wo else ""
    ntwarm = " nt" if cfg.nt_warm else ""

    clsn = [0]
    def class_wait():
        if not cfg.stagger: return
        clsn[0] += 1; n = clsn[0]
        for c in range(1, cfg.ncls):
            a(f"s_cmp_lt_u32 s53, {c}")
            a(f"s_cbranch_scc1 L_cls{n}")
            a(f"s_waitcnt vmcnt({47 - cfg.stagger * c})")
        a.label(f"L_cls{n}")
    def tile_kv(kind, t):
        srd = S_K if kind == "K" else S_V
        lds = KS[t % 4] if kind == "K" else VS[t % 4]
        vm.room(16)
        if t >= 4 and t <= cfg.stag_tmax: class_wait()
        for m in range(4):
            a(f"s_mov_b32 m0, {lds + m*4096}")
            a(f"s_mov_b32 s{S_SO}, {t*16384 + m*4096}")
            for n in range(4):
                i = 4*m + n
                vo = VK + (i & 7) if kind == "K" else VV + (i & 3)
                vm.issue(f"buffer_load_dwordx4 v{vo}, s[{srd}:{srd+3}], s{S_SO} offen offset:{n*1024}{ntkv} lds", (kind, t))
    def tile_w(s):
        lds = WRING[s % 4]
        vm.room(16)
        for i in range(16):
            sig0 = 8*((i & 7) >> 1) + 4*(i >> 3) + 2*(i & 1)
            a(f"s_mov_b32 m0, {lds + i*1024}")
            a(f"s_mov_b32 s{S_SO}, {(s*32 + sig0)*8192}")
            vm.issue(f"buffer_load_dwordx4 v{VW + (i & 3)}, s[{S_WQ}:{S_WQ+3}], s{S_SO} offen{ntw} lds", ("W", s))
    VX = 40
    def setup_xb():
        a(f"v_lshrrev_b32 v{T0}, 3, v{V_LANE}")
        a(f"v_and_b32 v{T1}, 7, v{V_LANE}")
        a(f"v_lshrrev_b32 v6, 1, v{T0}")
        a(f"v_xor_b32 v6, v6, v{T1}")
        a(f"v_mul_u32_u24 v7, 896, v{T0}")
        a(f"v_lshl_add_u32 v{VX}, v6, 4, v7")
        a(f"v_xor_b32 v6, 4, v6")
        a(f"v_lshl_add_u32 v{VX+1}, v6, 4, v7")
        a(f"v_add_u32 v{VX+1}, {8*896}, v{VX+1}")
    def tile_xb(part):
        vm.room(18)
        ntx = " nt" if cfg.nt_x else ""
        for w in range(3):
            for qt in range(3):
                for hb in range(2):
                    a(f"s_mov_b32 m0, {XBB + w*XBW + ((qt*2 + hb)*3 + part)*1024}")
                    a(f"s_mov_b32 s{S_SO}, {w*XW + qt*14336 + (4 + part)*128}")
                    vm.issue(f"buffer_load_dwordx4 v{VX+hb}, s[{S_X}:{S_X+3}], s{S_SO} offen{ntx} lds", ("XB", part))
    def tile_wo(j):
        lds = WOSLOT[j]
        vm.room(16)
        for i in range(16):
            if j < 12:
                p, T0_ = j // 4, (j % 4) * 2
                so = (32*T0_ + 2*i)*896 + p*256
                vo = VO + (i & 3)
            else:
                T0_ = (j - 12) * 4
                so = (32*T0_ + 2*i)*896 + 768
                vo = VO3 + (i & 3)
            a(f"s_mov_b32 m0, {lds + i*1024}")
            a(f"s_mov_b32 s{S_SO}, {so}")
            vm.issue(f"buffer_load_dwordx4 v{vo}, s[{S_WO}:{S_WO+3}], s{S_SO} offen{ntwo} lds", ("WO", j))
    NREG0 = cfg.wo_reg0
    def wo_quad(j, i):
        k = (j - NREG0) * 16 + i
        return ar(4*k, 4) if k < 64 else v(64 + 4*(k - 64), 4)
    def wo_addr(j, i):
        if j < 12:
            p, T0_ = j // 4, (j % 4) * 2
            return (32*T0_ + 2*i)*896 + p*256, VO + (i & 3)
        T0_ = (j - 12) * 4
        return (32*T0_ + 2*i)*896 + 768, VO3 + (i & 3)
    def load_wo_reg(j, i0, n):
        vm.room(n)
        for i in range(i0, i0 + n):
            so, vo = wo_addr(j, i)
            a(f"s_mov_b32 s{S_SO}, {so}")
            vm.issue(f"buffer_load_dwordx4 {wo_quad(j, i)}, v{vo}, s[{S_WO}:{S_WO+3}], s{S_SO} offen{ntwo}", ("WOR", j))
    def put_wo(j):
        vm.need(("WOR", j))
        a(f"v_add_u32 v33, {WOSLOT[j]}, v32")
        for i in range(16):
            a(f"ds_write_b128 v33, {wo_quad(j, i)} offset:{i*1024}")
            if cfg.wr_pace and i % cfg.wr_pace == cfg.wr_pace - 1 and i < 15: a("s_waitcnt lgkmcnt(0)")
        wo_written.append(j)
    wo_written = []
    wr_queue = []
    def put_wo_some(n):
        done = 0
        while wr_queue and done < n:
            j, i = wr_queue.pop(0)
            if i == 0 or done == 0:
                if i == 0: vm.need(("WOR", j))
                a(f"v_add_u32 v33, {WOSLOT[j]}, v32")
            a(f"ds_write_b128 v33, {wo_quad(j, i)} offset:{i*1024}")
            if i == 15: wo_written.append(j)
            done += 1
            if wr_queue and wr_queue[0][1] == 0 and done < n:
                pass
    def need_wo(j):
        if j >= NREG0:
            if j in wo_written:
                a("s_waitcnt lgkmcnt(0)")
                while wo_written: wo_written.pop()
        else:
            vm.need(("WO", j))
    def tile_wo_any(j):
        if j >= NREG0:
            if cfg.wr_spread: wr_queue.extend((j, i) for i in range(16))
            else: put_wo(j)
        else: tile_wo(j)
    def warm_wo(i0, n):
        vm.room(n)
        for i in range(i0, i0 + n):
            a(f"s_mul_i32 s{S_SO}, s{S_B}, 28672")
            a(f"s_add_u32 s{S_SO}, s{S_SO}, {i*1024}")
            vm.issue(f"buffer_load_dwordx4 v[36:39], v32, s[{S_WO}:{S_WO+3}], s{S_SO} offen{ntwarm}", ("warm", i))
    def code_pf(lo, hi, tagn):
        a(f"s_getpc_b64 s[{S_PC}:{S_PC+1}]")
        lab = f"L_pc_{tagn}"
        a.label(lab)
        a(f"s_add_u32 s{S_PC}, s{S_PC}, {lo}-{lab}")
        a(f"s_addc_u32 s{S_PC+1}, s{S_PC+1}, -1" if False else f"s_addc_u32 s{S_PC+1}, s{S_PC+1}, ({lo}-{lab})>>32")
        a(f"s_mov_b32 s{S_PC+2}, {hi}-{lo}")
        a(f"s_mov_b32 s{S_PC+3}, 0x20000")
        a(f"s_lshr_b32 s{S_SO2}, s2, 3")
        a(f"s_mul_i32 s{S_SO2}, s{S_SO2}, 3072")
        vm.room(3)
        for i in range(3):
            vm.issue(f"buffer_load_dwordx4 v[36:39], v32, s[{S_PC}:{S_PC+3}], s{S_SO2} offen offset:{i*1024}", ("pf", tagn, i))

    fused = cfg.fused and not cfg.dump
    if fused:
        emit_cnt_srd(a)
        a("s_mov_b32 s48, s82"); a("s_mov_b32 s49, s83")
        a("s_mov_b32 s50, 256"); a("s_mov_b32 s51, 0x20000")
        a(f"s_lshl_b32 s52, s{S_BR}, 3")
        a(f"s_add_u32 s52, s52, s{S_B}")
        a("s_lshl_b32 s52, s52, 4")
        a(f"s_cmp_lg_u32 s{S_H}, 0")
        a("s_cbranch_scc1 L_noinit")
        a(f"v_lshlrev_b32 v33, 12, v{V_LANE}")
        a("v_mov_b32 v34, 0")
        a("s_mov_b64 exec, 7")
        a("buffer_store_dword v34, v33, s[84:87], 0 offen sc1")
        a("s_mov_b64 exec, -1")
        a.label("L_noinit")
    if cfg.warm2:
        a(f"v_lshlrev_b32 v34, 4, v{LP}")
        a(f"v_lshl_add_u32 v34, v{LH}, 13, v34")
        a(f"s_mul_i32 s76, s{S_B}, {56*8192}")
        a(f"s_add_u32 s76, s76, {28*8192}")
        for i in range(14):
            vm.issue(f"buffer_load_dwordx4 v[36:39], v34, s[{S_WQ}:{S_WQ+3}], s76 offen{ntwarm}", ("warm2", i))
            if i < 13: a(f"s_add_u32 s76, s76, {2*8192}")
    tile_w(0); xstamp(1)
    if cfg.code_pf: code_pf(KNAME, "L_code_end", "all")
    tile_w(1); xstamp(2)
    emit_setup_late(a, cfg, True)
    for i in range(8):
        a(f"v_add_u32 v{T0}, {2*i}, v{LH}")
        a(f"v_xor_b32 v{T0}, v{T0}, v{LP}")
        a(f"v_lshlrev_b32 v{T0}, 4, v{T0}")
        a(f"v_lshl_add_u32 v{VK+i}, v{LH}, 9, v{T0}")
    for i in range(4):
        chunkpat(i)
        a(f"v_lshlrev_b32 v{T1}, 4, v{T0}")
        a(f"v_lshl_add_u32 v{VV+i}, v{LH}, 9, v{T1}")
        a(f"v_lshrrev_b32 v6, 4, v{T0}")
        a(f"v_lshl_add_u32 v6, v6, 5, v{LH}")
        a(f"v_mul_u32_u24 v6, 896, v6")
        a(f"v_and_b32 v7, 15, v{T0}")
        a(f"v_lshl_add_u32 v{VO+i}, v7, 4, v6")
        a(f"v_lshrrev_b32 v6, 3, v{T0}")
        a(f"v_lshl_add_u32 v6, v6, 5, v{LH}")
        a(f"v_mul_u32_u24 v6, 896, v6")
        a(f"v_and_b32 v7, 7, v{T0}")
        a(f"v_lshl_add_u32 v{VO3+i}, v7, 4, v6")
    setup_xb()
    if cfg.stagger:
        if cfg.cls_mode == "b":
            a(f"s_mul_i32 s53, s{S_B}, {cfg.ncls}")
            a("s_lshr_b32 s53, s53, 3")
        else:
            a(f"s_mov_b32 s53, s{S_BR}")
    tile_w(2)
    xstamp(3)
    kv_after_pb = KVSCHED[cfg.kvsched]
    for name, idx in barrier_list(cfg):
        if name == "PB":
            if idx == 0: vm.need(("W", 0)); vm.need(("W", 1))
            elif idx + 1 <= 13: vm.need(("W", idx + 1))
            if idx == cfg.xb_read: vm.need(("XB", 2))
        elif name == "B":
            t = idx
            if t == -1:
                vm.need(("K", 0)); vm.need(("K", 1))
            else:
                if t + 2 <= 31: vm.need(("K", t + 2))
                vm.need(("V", t))
            if t == 31:
                need_wo(0); need_wo(1)
        else:
            j = idx
            need_wo(min(j + 1, 13))
            if j == ntb(cfg) - 1:
                assert not wr_queue
                for jj in range(14): need_wo(jj)
        a("s_barrier")
        if cfg.stamps:
            stamp_idx[0] += 1
            a("s_memrealtime s[62:63]")
            a("s_waitcnt lgkmcnt(0)")
            a(f"v_writelane_b32 v56, s62, {stamp_idx[0]}")
            a("s_memtime s[62:63]")
            a("s_waitcnt lgkmcnt(0)")
            a(f"v_writelane_b32 v59, s62, {stamp_idx[0]}")
        if name == "PB" and idx == 0 and fused:
            a(f"s_cmp_lg_u32 s{S_H}, 0")
            a("s_cbranch_scc1 L_noinit2")
            a("v_mov_b32 v34, 1")
            a("s_mov_b64 exec, 1")
            a("buffer_atomic_add v34, off, s[48:51], s52")
            a("s_mov_b64 exec, -1")
            a.label("L_noinit2")
        if name == "PB":
            if idx + 3 <= 13: tile_w(idx + 3)
            for part in XBSCHED[cfg.xbsched].get(idx, []): tile_xb(part)
            for k, t in kv_after_pb.get(idx, []): tile_kv(k, t)
        elif name == "B":
            t = idx
            if t >= 0:
                if t + 4 <= 31: tile_kv("K", t + 4)
                if t >= 1 and t + 3 <= 31: tile_kv("V", t + 3)
            if cfg.warm_wo and cfg.warm_t0 <= t <= cfg.warm_t0 + 6:
                warm_wo((t - cfg.warm_t0) * 4, 4)
            if cfg.code_pf and t == 25: code_pf("L_tail_code", "L_tail_end", "tail")
            if fused and t == 10:
                vm.room(1)
                a("s_mov_b64 exec, 1")
                vm.issue(f"buffer_load_dword v35, off, s[48:51], s52 sc1", ("initflag",))
                a("s_mov_b64 exec, -1")
            if fused and t == 14:
                vm.need(("initflag",))
                a("v_readfirstlane_b32 s90, v35")
                a("s_nop 3")
                a("s_cmp_ge_u32 s90, 1")
                a("s_cbranch_scc1 L_init_ok")
                a("s_mov_b64 exec, 1")
                a("s_mov_b32 s89, 0")
                a.label("L_init_poll")
                a("buffer_load_dword v35, off, s[48:51], s52 sc1")
                a("s_waitcnt vmcnt(0)")
                a("v_readfirstlane_b32 s90, v35")
                a("s_add_u32 s89, s89, 1")
                a("s_cmp_ge_u32 s90, 1")
                a("s_cbranch_scc1 L_init_done")
                a("s_cmp_ge_u32 s89, 0x40000")
                a("s_cbranch_scc1 L_init_done")
                a("s_sleep 8")
                a("s_branch L_init_poll")
                a.label("L_init_done")
                a("s_mov_b64 exec, -1")
                a.label("L_init_ok")
            nreg = 14 - NREG0
            k = t - cfg.wo_reg_t0
            if 0 <= k < 2 * nreg:
                load_wo_reg(NREG0 + k // 2, 8 * (k & 1), 8)
            if t == 26: tile_wo_any(0)
            if t == 27: tile_wo_any(1)
            if t == 28: tile_wo_any(2)
            if t == 29: tile_wo_any(3); tile_wo_any(4)
            if t == 30: tile_wo_any(5); tile_wo_any(6)
            if t == 31: tile_wo_any(7); tile_wo_any(8)
        else:
            j = idx
            if j == 0: tile_wo_any(9)
            if 1 <= j <= 4: tile_wo_any(9 + j)
            if cfg.wr_spread and j < ntb(cfg) - 1:
                put_wo_some(cfg.wr_spread if j < ntb(cfg) - 2 else 999)
            if j == 5 and cfg.fused and not cfg.dump:
                a(f"v_lshlrev_b32 v33, 2, v{V_LANE}")
                a(f"v_add_u32 v33, {VS[0]}, v33")
                a("v_mov_b32 v34, 0")
                a("ds_write_b32 v33, v34")
                a("s_waitcnt lgkmcnt(0)")
    a("s_waitcnt vmcnt(0)")
    if cfg.fused and not cfg.dump:
        emit_red_setup(a, cfg)
        for p in range(2):
            emit_poll(a, cfg, p)
            xstamp(4 + p)
            for e in range(2):
                a(f"s_add_u32 s90, s{S_H}, {16*e}")
                a(f"s_lshr_b32 s{96+2*e}, s90, 2")
                a("s_and_b32 s90, s90, 3")
                a(f"s_add_u32 s{97+2*e}, s90, {4*p}")
            emit_reduce_frags(a, cfg, 2)
        emit_poll(a, cfg, 2)
        xstamp(6)
        if not cfg.decouple: a("s_barrier")
        emit_final_reduce(a, cfg)
        xstamp(7)
    if cfg.stamps:
        if not (cfg.fused and not cfg.dump): a("s_barrier")
        a("s_memrealtime s[62:63]")
        a("s_waitcnt lgkmcnt(0)")
        a(f"v_writelane_b32 v56, s62, 62")
        a("s_mov_b32 s76, s72"); a("s_mov_b32 s77, s73")
        a("s_mov_b32 s78, 0x10000000"); a("s_mov_b32 s79, 0x20000")
        a("s_lshl_b32 s74, s2, 8")
        a("s_add_u32 s74, s74, 0x4000000")
        a(f"v_lshlrev_b32 v57, 2, v{V_LANE}")
        a("buffer_store_dword v56, v57, s[76:79], s74 offen")
        a("s_add_u32 s74, s74, 0x100000")
        a("buffer_store_dword v58, v57, s[76:79], s74 offen")
        a("s_add_u32 s74, s74, 0x100000")
        a("buffer_store_dword v59, v57, s[76:79], s74 offen")
        a("s_waitcnt vmcnt(0)")
        if cfg.dbg_stamps >= 0:
            a(f"s_cmp_lg_u32 s2, {cfg.dbg_stamps}")
            a("s_cbranch_scc1 L_nodbg")
            sel = [(56, 1), (56, 16), (56, 24), (56, 32), (56, 40), (56, 47), (56, 48), (56, 56), (58, 4), (58, 5), (58, 6), (58, 7)]
            slots = [1, 2, 3, 5, 6, 7, 9, 10, 11, 13, 14, 15]
            a("v_readlane_b32 s91, v56, 0")
            for (r, ln), sl in zip(sel, slots):
                a(f"v_readlane_b32 s90, v{r}, {ln}")
                a("s_nop 3")
                a("s_sub_u32 s90, s90, s91")
                a("v_mov_b32 v60, s90")
                a(f"s_mov_b32 s89, {4*sl}")
                a("s_mov_b64 exec, 1")
                a("buffer_store_dword v60, off, s[48:51], s89")
                a("s_mov_b64 exec, -1")
                a("s_nop 1")
            a("s_waitcnt vmcnt(0)")
            a.label("L_nodbg")
    a("s_branch L_end")

def emit_cnt_srd(a):
    a(f"s_lshl_b32 s84, s{S_BR}, 3")
    a(f"s_add_u32 s84, s84, s{S_B}")
    a("s_lshl_b32 s84, s84, 14")
    a(f"s_add_u32 s84, s84, {CNT_OFF}")
    a("s_add_u32 s84, s72, s84")
    a("s_addc_u32 s85, s73, 0")
    a("s_mov_b32 s86, 16384"); a("s_mov_b32 s87, 0x20000")

def emit_red_setup(a, cfg):
    lane = V_LANE
    emit_cnt_srd(a)
    a(f"s_lshl_b32 s88, s{S_BR}, 3")
    a(f"s_add_u32 s88, s88, s{S_B}")
    a(f"s_mul_i32 s45, s88, {16*129024}")
    a("s_add_u32 s44, s72, s45")
    a("s_addc_u32 s45, s73, 0")
    a(f"s_mov_b32 s46, {16*129024}")
    a("s_mov_b32 s47, 0x20000")
    a("s_mov_b32 s92, s80"); a("s_mov_b32 s93, s81")
    a(f"s_mov_b32 s94, {8*144*896*2}"); a("s_mov_b32 s95, 0x20000")
    a(f"s_mul_i32 s64, s88, 9216")
    a(f"s_add_u32 s64, s64, {SCL_OFF}")
    a("s_add_u32 s64, s72, s64")
    a("s_addc_u32 s65, s73, 0")
    a("s_mov_b32 s66, 9216"); a("s_mov_b32 s67, 0x20000")

_lab = [0]
def emit_poll(a, cfg, p):
    _lab[0] += 1; n = _lab[0]
    a("s_mov_b64 exec, 1")
    a("s_mov_b32 s89, 0")
    a.label(f"L_poll{n}")
    a(f"s_mov_b32 s88, {4096*p}")
    a(f"buffer_load_dword v2, off, s[84:87], s88{cfg.poll_flags}")
    a("s_waitcnt vmcnt(0)")
    a("v_readfirstlane_b32 s90, v2")
    a("s_add_u32 s89, s89, 1")
    a("s_cmp_ge_u32 s90, 16")
    a(f"s_cbranch_scc1 L_poll_done{n}")
    a("s_cmp_ge_u32 s89, 0x40000")
    a(f"s_cbranch_scc1 L_poll_done{n}")
    a(f"s_sleep {cfg.poll_sleep}")
    a(f"s_branch L_poll{n}")
    a.label(f"L_poll_done{n}")
    a("s_mov_b64 exec, -1")

def emit_reduce_frags(a, cfg, nf):
    lane = V_LANE
    sc = cfg.scale_red
    nper = 20 if sc else 16
    a(f"v_lshlrev_b32 v2, 4, v{lane}")
    if sc:
        a(f"v_and_b32 v5, 15, v{lane}")
        a("v_lshlrev_b32 v5, 6, v5")
    for e in range(nf):
        if sc:
            a(f"s_lshl_b32 s91, s{96+2*e}, 10")
            for j in range(4):
                r = 192 + 16*e + 4*j
                a(f"buffer_load_dwordx4 v[{r}:{r+3}], v5, s[64:67], s91 offen offset:{16*j}{cfg.rd_flags}")
        a(f"s_mul_i32 s90, s{96+2*e}, 14")
        a(f"s_add_u32 s90, s90, s{97+2*e}")
        a("s_lshl_b32 s91, s90, 10")
        for hh in range(16):
            r = 64 + 64*e + 4*hh
            a(f"buffer_load_dwordx4 v[{r}:{r+3}], v2, s[44:47], s91 offen{cfg.rd_flags}")
            if hh < 15: a(f"s_add_u32 s91, s91, 129024")
    a(f"v_and_b32 v3, 15, v{lane}")
    a("v_mul_u32_u24 v3, 1792, v3")
    a(f"v_lshrrev_b32 v4, 4, v{lane}")
    a("v_lshl_add_u32 v3, v4, 3, v3")
    for e in range(nf):
        a(f"s_mul_i32 s100, s{S_B}, 144")
        a(f"s_lshl_b32 s90, s{96+2*e}, 4")
        a("s_add_u32 s100, s100, s90")
        a("s_mul_i32 s100, s100, 1792")
        a(f"s_lshl_b32 s90, s{97+2*e}, 6")
        a("s_add_u32 s100, s100, s90")
        a(f"s_mul_i32 s90, s{S_BR}, 896")
        a(f"s_add_u32 s{96+2*e}, s100, s90")
    for e in range(nf):
        acc = 32 + 8*e
        for hh in range(16):
            a(f"s_waitcnt vmcnt({nper*nf - 1 - nper*e - (nper - 16) - hh})")
            for r in range(4):
                src = 64 + 64*e + 4*hh + r
                if hh == 0 and not sc:
                    a(f"v_lshlrev_b32 v{acc+2*r}, 16, v{src}")
                    a(f"v_and_b32 v{acc+2*r+1}, 0xffff0000, v{src}")
                else:
                    t = 8 + 2*r
                    a(f"v_lshlrev_b32 v{t}, 16, v{src}")
                    a(f"v_and_b32 v{t+1}, 0xffff0000, v{src}")
            for r in range(4):
                t = 8 + 2*r
                A, T_ = f"v[{acc+2*r}:{acc+2*r+1}]", f"v[{t}:{t+1}]"
                if sc:
                    q = 192 + 16*e + hh
                    q0 = q & ~1
                    sel = q & 1
                    S_ = f"v[{q0}:{q0+1}]"
                    if hh == 0:
                        a(f"v_pk_mul_f32 {A}, {T_}, {S_} op_sel:[0,{sel}] op_sel_hi:[1,{sel}]")
                    else:
                        a(f"v_pk_fma_f32 {A}, {T_}, {S_}, {A} op_sel:[0,{sel},0] op_sel_hi:[1,{sel},1]")
                elif hh > 0:
                    a(f"v_pk_add_f32 {A}, {A}, {T_}")
        for r in range(4):
            a(f"v_cvt_pk_bf16_f32 v{48+4*e+r}, v{acc+2*r}, v{acc+2*r+1}")
    for e in range(nf):
        a(f"buffer_store_dwordx2 v[{48+4*e}:{49+4*e}], v3, s[92:95], s{96+2*e} offen{cfg.out_flags}")
        a(f"buffer_store_dwordx2 v[{50+4*e}:{51+4*e}], v3, s[92:95], s{96+2*e} offen offset:32{cfg.out_flags}")

def emit_final_reduce(a, cfg):
    _lab[0] += 1; n = _lab[0]
    a(f"s_lshl_b32 s90, s{S_WID}, 4")
    a(f"s_add_u32 s90, s90, s{S_H}")
    a("s_cmp_ge_u32 s90, 62")
    a(f"s_cbranch_scc1 L_fin_done{n}")
    a("s_lshr_b32 s96, s90, 2")
    a("s_and_b32 s97, s90, 3")
    a("s_add_u32 s97, s97, 8")
    a("s_sub_u32 s91, s90, 36")
    a("s_lshr_b32 s98, s91, 1")
    a("s_and_b32 s99, s91, 1")
    a("s_add_u32 s99, s99, 12")
    a("s_cmp_ge_u32 s90, 36")
    a("s_cselect_b32 s96, s98, s96")
    a("s_cselect_b32 s97, s99, s97")
    a("s_sub_u32 s91, s90, 54")
    a("s_cmp_ge_u32 s90, 54")
    a("s_cselect_b32 s96, 8, s96")
    a("s_cselect_b32 s97, s91, s97")
    emit_reduce_frags(a, cfg, 1)
    a.label(f"L_fin_done{n}")

def mfma(a, D, A, B, C=None):
    a(f"v_mfma_f32_16x16x32_bf16 {D}, {A}, {B}, {C if C is not None else D}")

def xlane_max(a, r, tmp):
    a(f"v_mov_b32 v{tmp}, v{r}")
    a("s_nop 1")
    a(f"v_permlane32_swap_b32 v{r}, v{tmp}")
    a("s_nop 1")
    a(f"v_max_f32 v{r}, v{r}, v{tmp}")
    a(f"v_mov_b32 v{tmp}, v{r}")
    a("s_nop 1")
    a(f"v_permlane16_swap_b32 v{r}, v{tmp}")
    a("s_nop 1")
    a(f"v_max_f32 v{r}, v{r}, v{tmp}")

def emit_compute(a, cfg):
    rare_blocks = []
    emit_compute_main(a, cfg, rare_blocks)
    emit_rare(a, cfg, rare_blocks)

def emit_compute_main(a, cfg, rare_blocks):
    lg = Lgkm(a)
    lane = V_LANE
    T0, T1 = V_T0, V_T1
    NKP, NVP = cfg.nkp, cfg.nvp
    a(f"v_lshrrev_b32 v{T0}, 3, v{lane}")
    a(f"v_and_b32 v{T1}, 7, v{lane}")
    a(f"v_lshrrev_b32 v22, 1, v{T0}")
    a(f"v_xor_b32 v22, v22, v{T1}")
    a(f"v_mul_u32_u24 v23, 896, v{T0}")
    a(f"v_lshl_add_u32 v24, v22, 4, v23")
    a(f"v_xor_b32 v22, 4, v22")
    a(f"v_lshl_add_u32 v25, v22, 4, v23")
    a(f"v_add_u32 v25, {8*896}, v25")
    a(f"s_mul_i32 s74, s{S_WID}, {XAW}")
    a(f"s_mul_i32 s75, s{S_WID}, {XW}")
    vm = Vm(a)
    ntx = " nt" if cfg.nt_x else ""
    if cfg.warm2:
        ntwarm = " nt" if cfg.nt_warm else ""
        a(f"v_lshlrev_b32 v26, 4, v{lane}")
        a(f"s_cmp_eq_u32 s{S_WID}, 2")
        a("s_cbranch_scc1 L_w2q")
        a(f"s_and_b32 s76, s{S_H}, 3")
        a("s_mul_i32 s76, s76, 32256")
        a(f"s_lshl_b32 s77, s{S_WID}, 14")
        a("s_add_u32 s76, s76, s77")
        for i in range(16):
            a(f"buffer_load_dwordx4 {ar(A_DUMMY,4)}, v26, s[{S_X}:{S_X+3}], s76 offen{ntwarm}")
            if i < 15: a("s_add_u32 s76, s76, 1024")
        a("s_branch L_w2done")
        a.label("L_w2q")
        a(f"v_lshrrev_b32 v27, 5, v{lane}")
        a(f"v_and_b32 v26, 31, v{lane}")
        a("v_lshlrev_b32 v26, 4, v26")
        a("v_lshl_add_u32 v26, v27, 13, v26")
        a(f"s_mul_i32 s76, s{S_B}, {56*8192}")
        for i in range(14):
            a(f"buffer_load_dwordx4 {ar(A_DUMMY,4)}, v26, s[{S_WQ}:{S_WQ+3}], s76 offen{ntwarm}")
            if i < 13: a(f"s_add_u32 s76, s76, {2*8192}")
        a.label("L_w2done")
    for sp in range(4):
        for qt in range(3):
            for hb in range(2):
                a(f"s_add_u32 m0, s74, {((qt*2 + hb)*4 + sp)*1024}")
                a(f"s_add_u32 s{S_SO}, s75, {qt*14336 + sp*128}")
                vm.issue(f"buffer_load_dwordx4 v{24+hb}, s[{S_X}:{S_X+3}], s{S_SO} offen{ntx} lds", ("x",))
    if cfg.warm_wq and not cfg.warm2:
        ntwarm = " nt" if cfg.nt_warm else ""
        a(f"v_lshrrev_b32 v{T0}, 5, v{lane}")
        a(f"v_and_b32 v{T1}, 31, v{lane}")
        a(f"v_lshlrev_b32 v{T1}, 4, v{T1}")
        a(f"v_lshl_add_u32 v26, v{T0}, 13, v{T1}")
        a(f"s_mul_i32 s75, s{S_B}, 48")
        a(f"s_lshl_b32 s76, s{S_WID}, 4")
        a("s_add_u32 s75, s75, s76")
        a("s_add_u32 s75, s75, 64")
        a("s_lshl_b32 s75, s75, 13")
        for i in range(8):
            vm.issue(f"buffer_load_dwordx4 {ar(A_DUMMY,4)}, v26, s[{S_WQ}:{S_WQ+3}], s75 offen{ntwarm}", ("warm", i))
            if i < 7: a(f"s_add_u32 s75, s75, {2*8192}")
    emit_setup_late(a, cfg, False)
    g_, i15 = 22, 23
    a(f"v_lshrrev_b32 v{g_}, 4, v{lane}")
    a(f"v_and_b32 v{i15}, 15, v{lane}")
    a(f"v_lshrrev_b32 v26, 1, v{i15}")
    a(f"v_lshrrev_b32 v27, 3, v{i15}")
    a(f"v_and_b32 v28, 7, v{i15}")
    a(f"v_lshlrev_b32 v28, 7, v28")
    a(f"s_mul_i32 s74, s{S_WID}, {XAW}")
    a(f"s_mul_i32 s75, s{S_WID}, {XBW}")
    a(f"s_add_u32 s75, s75, {XBB}")
    a(f"v_lshl_add_u32 v29, v27, 12, v28")
    a(f"v_add_u32 v29, s74, v29")
    a(f"v_mul_u32_u24 v27, 3072, v27")
    a(f"v_add_u32 v27, v27, v28")
    a(f"v_add_u32 v27, s75, v27")
    for e in range(2):
        a(f"v_add_u32 v{T0}, {4*e}, v{g_}")
        a(f"v_xor_b32 v{T0}, v{T0}, v26")
        a(f"v_lshl_add_u32 v{V_XB+e}, v{T0}, 4, v29")
        a(f"v_lshl_add_u32 v{V_XB2+e}, v{T0}, 4, v27")
    for j in range(4):
        a(f"v_add_u32 v{T0}, {4*j}, v{g_}")
        a(f"v_xor_b32 v{T0}, v{T0}, v{i15}")
        a(f"v_lshlrev_b32 v{T0}, 4, v{T0}")
        a(f"v_lshl_add_u32 v{V_KB+j}, v{i15}, 9, v{T0}")
    rp, cc, row, rho = 26, 27, 28, 29
    a(f"v_lshrrev_b32 v{rp}, 2, v{i15}")
    a(f"v_and_b32 v{cc}, 3, v{i15}")
    a(f"v_lshl_add_u32 v{row}, v{g_}, 2, v{rp}")
    a(f"v_and_b32 v{rho}, 7, v{row}")
    a(f"v_lshrrev_b32 v{T0}, 1, v{cc}")
    a(f"v_lshlrev_b32 v{T0}, 4, v{T0}")
    a(f"v_and_b32 v{T1}, 1, v{cc}")
    a(f"v_lshl_add_u32 v{T0}, v{T1}, 3, v{T0}")
    a(f"v_lshl_add_u32 v30, v{row}, 9, v{T0}")
    for j in range(8):
        a(f"v_xor_b32 v{T0}, {j}, v{rho}")
        a(f"v_lshl_add_u32 v{T0}, v{T0}, 5, v30")
        a(f"v_add_u32 v{V_VB+j}, {VREG}, v{T0}")
    a(f"v_lshlrev_b32 v31, 1, v{rho}")
    a(f"v_lshlrev_b32 v30, 9, v{row}")
    for j in range(4):
        a(f"v_add_u32 v{T0}, {4*j}, v{cc}")
        a(f"v_xor_b32 v{T0}, v{T0}, v31")
        a(f"v_lshl_add_u32 v{T0}, v{T0}, 4, v30")
        a(f"v_add_u32 v{V_WB+j}, {WBASE}, v{T0}")
    a(f"s_mov_b32 s{S_THR}, {hex(f2u(cfg.thr))}")

    def wread(s, u, half):
        T = u >> 1
        off = (WRING[s % 4] - WBASE) + (T >> 2) * 256 + (u & 1) * 8 + half * 8192
        r = A_W + 4 * u + 2 * half
        lg.issue(f"ds_read_b64_tr_b16 {ar(r,2)}, v{V_WB + (T & 3)} offset:{off}", ("w", s, u, half))
    def xread(s, qt):
        sp = s >> 1
        if sp < 4:
            off, base = qt * 8192 + sp * 1024, V_XB
        else:
            off, base = qt * 6144 + (sp - 4) * 1024, V_XB2
        lg.issue(f"ds_read_b128 {ar(Xreg(s, qt), 4)}, v{base + (s & 1)} offset:{off}", ("x", s, qt))
    NWP = 6
    n_after = 8 if (cfg.warm_wq and not cfg.warm2) else 0
    a(f"s_waitcnt vmcnt({n_after})")
    for qt in range(3): xread(0, qt)
    for s in range(14):
        a("s_barrier")
        pre_done = s >= 1
        if not pre_done:
            if s == 0: lg.need(("x", 0, 2))
            for u in range(NWP - (2 if s == 0 else 0)):
                wread(s, u, 0); wread(s, u, 1)
        nfirst = NWP - (2 if s == 0 else 0)
        mf = []
        for u in range(16):
            for qt in range(3):
                pre = None
                if qt == 0 and u % 2 == 0:
                    pre = (lambda s=s, u=u: lg.need(("w", s, u + 1, 1)))
                D = v(QAcc(u, qt), 4)
                mf.append((pre, (lambda D=D, s=s, u=u, qt=qt: mfma(a, D, ar(A_W + 4*u, 4), ar(Xreg(s, qt), 4), "0" if s == 0 else None))))
        st = []
        for u in range(nfirst, 16):
            for h in range(2):
                st.append(It((lambda s=s, u=u, h=h: wread(s, u, h)), 4, max(0, 3*(u - NWP) + h), max(0, 3*(u - 3))))
        nxt_pre = (s + 1 <= 13)
        if nxt_pre:
            for u in range(NWP):
                for h in range(2):
                    st.append(It((lambda s=s, u=u, h=h: wread(s + 1, u, h)), 4, 3*(16 + u - NWP) + h))
        streams = [st]
        if s == 0:
            xs = [It((lambda ss=ss, qt=qt: xread(ss, qt)), 4, ((ss - 1)*3 + qt) * 2) for ss in range(1, 8) for qt in range(3)]
            streams.append(xs)
        if s in (cfg.xb_read, cfg.xb_read + 1) and cfg.xb_one == 0:
            lo = 8 + 3*(s - cfg.xb_read)
            xs = [It((lambda ss=ss, qt=qt: xread(ss, qt)), 4, ((ss - lo)*3 + qt) * 5) for ss in range(lo, lo + 3) for qt in range(3)]
            streams.append(xs)
        if s == cfg.xb_read and cfg.xb_one:
            xs = [It((lambda ss=ss, qt=qt: xread(ss, qt)), 4, ((ss - 8)*3 + qt) * 2) for ss in range(8, 14) for qt in range(3)]
            streams.append(xs)
        sched(a, mf, streams)
        if s == 0:
            lg.need(("x", 7, 2))
        if s == cfg.xb_read + (0 if cfg.xb_one else 1):
            lg.need(("x", 13, 2))
    lg.drain()
    if cfg.dump == "qacc":
        emit_dump_v(a, cfg, V_QACC, 192); return
    a(f"s_mov_b32 s74, {hex(f2u(QSCALE))}")
    a(f"s_mov_b32 s75, {hex(f2u(QSCALE))}")
    a(f"v_mov_b32 v{T0}, 0x3f803f80")
    for r in range(4):
        a(f"v_accvgpr_write_b32 a{A_ONES+r}, v{T0}")
    a("s_nop 3")
    for i in range(23, -1, -1):
        src = V_QACC + 8 * i
        dst = V_Q + 4 * i
        for r in range(4):
            a(f"v_pk_mul_f32 {v(src + 2*r, 2)}, {v(src + 2*r, 2)}, s[74:75]")
        for r in range(3, -1, -1):
            a(f"v_cvt_pk_bf16_f32 v{dst + r}, v{src + 2*r}, v{src + 2*r + 1}")
    if cfg.dump == "q":
        emit_dump_v(a, cfg, V_Q, 96); return

    def kread(t, f):
        aa, T = f >> 3, f & 7
        off = KS[t % 4] + aa * 8192 + (T >> 2) * 256
        lg.issue(f"ds_read_b128 {v(V_KBUF + 4*(f % 8), 4)}, v{V_KB + (T & 3)} offset:{off}", ("k", t, f))
    def vread(t, u, half):
        off = (VS[t % 4] - VREG) + (u >> 3) * 256 + half * 8192
        r = V_VBUF + 4 * (u % 8) + 2 * half
        lg.issue(f"ds_read_b64_tr_b16 {v(r,2)}, v{V_VB + (u & 7)} offset:{off}", ("v", t, u, half))

    def exp_items(t):
        par = t & 1
        st = []
        for qt in range(3):
            for aa in range(2):
                s = Sreg(par, qt, aa)
                for hh in range(2):
                    e0, e1 = s + 2*hh, s + 2*hh + 1
                    pr = V_P + qt*4 + aa*2 + hh
                    st.append(It((lambda e=e0: a(f"v_exp_f32 v{e}, v{e}")), 8))
                    st.append(It((lambda e=e1: a(f"v_exp_f32 v{e}, v{e}")), 8))
                    st.append(("cvt", It((lambda pr=pr, e0=e0, e1=e1: a(f"v_cvt_pk_bf16_f32 v{pr}, v{e0}, v{e1}")), 4)))
        exps = [x for x in st if not isinstance(x, tuple)]
        cvts = [x[1] for x in st if isinstance(x, tuple)]
        return exps, cvts

    def phaseA(t):
        doqk = t + 1 <= 31
        doexp = t >= 0
        if doexp: exps, cvts = exp_items(t)
        if not doqk:
            vq = [(u, h) for u in range(NVP) for h in range(2)]
            for grp in range(12):
                exps[2*grp].fn(); exps[2*grp+1].fn()
                if grp > 0: cvts[grp-1].fn()
                if vq: vread(t, *vq.pop(0))
            a("s_nop 0")
            cvts[11].fn()
            while vq: vread(t, *vq.pop(0))
            return
        par1 = (t + 1) & 1
        mf = []
        for m in range(48):
            aa, T, qt = m // 24, (m % 24) // 3, m % 3
            f = aa * 8 + T
            pre = None
            if qt == 0 and f % 2 == 0:
                pre = (lambda f=f: lg.need(("k", t + 1, f + 1)))
            C = None
            if T == 0: C = "0" if t == -1 else v(V_CM + 4*qt, 4)
            D = v(Sreg(par1, qt, aa), 4)
            mf.append((pre, (lambda D=D, f=f, qt=qt, T=T, C=C: mfma(a, D, v(V_KBUF + 4*(f % 8), 4), v(Qreg(qt, T), 4), C))))
        ks = [It((lambda f=f: kread(t + 1, f)), 4, max(0, 3*(f - 8) + 2), 3*f - 8) for f in range(NKP, 16)]
        streams = [ks]
        if doexp:
            for i, e in enumerate(exps):
                e.earliest = 4*(i // 2) + (i & 1); e.deadline = e.earliest
            for i, c in enumerate(cvts):
                c.earliest = 4*i + 2; c.deadline = min(4*i + 5, 47)
            vs = [It((lambda u=u, h=h: vread(t, u, h)), 4, 26) for u in range(NVP) for h in range(2)]
            streams = [exps, cvts, ks, vs]
        sched(a, mf, streams)

    def phaseB(t, extra=None):
        first = (t == 0)
        docheck = t + 1 <= 31
        par1 = (t + 1) & 1
        Z = "0" if first else None
        mf = []
        for qt in range(3):
            mf.append((None, (lambda qt=qt: mfma(a, ar(A_L + 4*qt, 4), ar(A_ONES, 4), v(V_P + 4*qt, 4), Z))))
        for m in range(48):
            u, qt = m // 3, m % 3
            pre = None
            if qt == 0 and u % 2 == 0:
                pre = (lambda u=u: lg.need(("v", t, u + 1, 1)))
            mf.append((pre, (lambda u=u, qt=qt: mfma(a, ar(Oreg(u, qt), 4), v(V_VBUF + 4*(u % 8), 4), v(V_P + 4*qt, 4), Z))))
        vs = []
        for u in range(NVP, 16):
            e = max(0 if u < 8 else 3 + 3*(u - 8) + 2, 3 + 3*(u - NVP - 1))
            for h in range(2):
                vs.append(It((lambda u=u, h=h: vread(t, u, h)), 4, e + h, 3 + 3*u - 9))
        streams = [vs]
        if docheck:
            s0 = V_S[par1]; mx = V_TMP
            chk = [f"v_max3_f32 v{mx}, v{s0}, v{s0+1}, v{s0+2}"]
            for k in range(10):
                chk.append(f"v_max3_f32 v{mx}, v{mx}, v{s0+3+2*k}, v{s0+4+2*k}")
            chk.append(f"v_max_f32 v{mx}, v{mx}, v{s0+23}")
            chk.append(f"v_cmp_lt_f32 vcc, s{S_THR}, v{mx}")
            streams.append([It((lambda c=c: a(c)), 4, 6 + 2*i) for i, c in enumerate(chk)])
        if t + 2 <= 31:
            streams.append([It((lambda f=f: kread(t + 2, f)), 4, 30 + 2*f) for f in range(NKP)])
        if extra: streams += extra
        a("s_nop 1")
        sched(a, mf, streams)

    def check_branch(t, tag):
        a(f"s_cbranch_vccnz L_rare_{tag}")
        a.label(f"L_back_{tag}")
        rare_blocks.append((tag, (t + 1) & 1))

    a("s_barrier")
    for f in range(NKP): kread(0, f)
    phaseA(-1)
    for f in range(NKP): kread(1, f)
    a("s_nop 1")
    for qt in range(3):
        s0 = Sreg(0, qt, 0)
        mx = V_TMP + qt
        a(f"v_max3_f32 v{mx}, v{s0}, v{s0+1}, v{s0+2}")
        a(f"v_max3_f32 v{mx}, v{mx}, v{s0+3}, v{s0+4}")
        a(f"v_max3_f32 v{mx}, v{mx}, v{s0+5}, v{s0+6}")
        a(f"v_max_f32 v{mx}, v{mx}, v{s0+7}")
    for step in range(2):
        for qt in range(3): a(f"v_mov_b32 v{V_TMP+4+qt}, v{V_TMP+qt}")
        a("s_nop 0")
        for qt in range(3):
            a(f"v_permlane{32 if step == 0 else 16}_swap_b32 v{V_TMP+qt}, v{V_TMP+4+qt}")
        a("s_nop 0")
        for qt in range(3): a(f"v_max_f32 v{V_TMP+qt}, v{V_TMP+qt}, v{V_TMP+4+qt}")
    for qt in range(3):
        s0 = Sreg(0, qt, 0); mx = V_TMP + qt
        for r in range(8):
            a(f"v_sub_f32 v{s0+r}, v{s0+r}, v{mx}")
        for r in range(4):
            a(f"v_sub_f32 v{V_CM + 4*qt + r}, 0, v{mx}")
    if cfg.dump == "s0":
        lg.drain()
        emit_dump_v(a, cfg, V_S[0], 24, extra=(V_CM, 12)); return

    def iteration(t, tag):
        a("s_barrier")
        phaseA(t)
        phaseB(t)
        if t + 1 <= 31:
            check_branch(t, tag)

    iteration(0, "p0")
    q0 = list(lg.q)
    a(f"s_mov_b32 s{S_CNT}, 7")
    a.label("L_loop")
    for t in range(1, 5):
        iteration(t, f"l{t}")
    q1 = [(x[0], x[1] - 4) + x[2:] for x in lg.q]
    assert q0 == q1, (q0, q1)
    a(f"s_sub_u32 s{S_CNT}, s{S_CNT}, 1")
    a(f"s_cmp_lg_u32 s{S_CNT}, 0")
    a("s_cbranch_scc1 L_loop")
    lg.q = [(x[0], x[1] + 28) + x[2:] for x in q0]
    for x in lg.q: lg.issued.add(x)
    for f in range(16): lg.issued.add(("k", 30, f))
    a.label("L_tail_code")
    for t in range(29, 31):
        iteration(t, f"e{t}")

    def oconv_items(T, earliest=0):
        its = []
        for qt in range(3):
            tb = V_CT + 8 * qt
            for h in range(2):
                o = Oreg(2*T + h, qt)
                for r in range(4):
                    its.append(It((lambda d=tb + 4*h + r, s=o + r: a(f"v_accvgpr_read_b32 v{d}, a{s}")), 4, earliest))
            q = Qreg(qt, T)
            for r in range(4):
                its.append(It((lambda d=q + r, s=tb + 2*r: a(f"v_cvt_pk_bf16_f32 v{d}, v{s}, v{s+1}")), 4, earliest))
        return its

    def wo_base(j, jj):
        addr = WOSLOT[j]
        if addr < VREG: return VBK + jj, addr
        if addr < VREG + 65536: return V_VB + jj, addr - VREG
        return VBE + jj, addr - VREG - 65536
    steps = []
    for p in range(3):
        for T in range(8):
            steps.append((p, T, 4*p + T//2, T & 1, 8))
    for T in range(8):
        steps.append((3, T, 12 + T//4, T & 3, 4))
    frs = []
    for si, (p, T, j, tau, nu) in enumerate(steps):
        for u in range(nu):
            frs.append((si, p, T, j, tau, nu, u))
    FBN = 12
    def oread(k, half):
        si, p, T, j, tau, nu, u = frs[k]
        tp = (8*tau + u) if p < 3 else (4*tau + u)
        br, off = wo_base(j, tp & 7)
        off += (tp >> 3) * 256 + half * 8192
        r = A_WO + 4 * (k % FBN) + 2 * half
        lg.issue(f"ds_read_b64_tr_b16 {ar(r,2)}, v{br} offset:{off}", ("o", k, half))
    def accreg(p, u, qt):
        i = (u * 3 + qt) * 4
        if p == 0 or p == 2: return ("v", V_P0 + i)
        return ("a", i)
    def accstr(p, u, qt):
        f, r = accreg(p, u, qt)
        return v(r, 4) if f == "v" else ar(r, 4)
    slotc = [0]
    slog = []
    scale_red = cfg.fused and cfg.scale_red
    def conv_items(p, packed=False):
        its = []
        nu = 8 if p < 3 else 4
        for up in range(nu // 2):
            for qt in range(3):
                rl = V_RL + qt * 0
                rlp = f"v[{V_RL + 2*qt}:{V_RL + 2*qt + 1}]"
                f, _ = accreg(p, 0, 0)
                tb = V_CT + 12 * (slotc[0] % 2); slotc[0] += 1
                out = tb + 8
                if f == "a":
                    for h in range(2):
                        o = accreg(p, 2*up + h, qt)[1]
                        for r in range(4):
                            its.append(It((lambda d=tb + 4*h + r, s=o + r: a(f"v_accvgpr_read_b32 v{d}, a{s}"))))
                    srcs = [tb + 2*r for r in range(4)]
                else:
                    o0 = accreg(p, 2*up, qt)[1]; o1 = accreg(p, 2*up + 1, qt)[1]
                    srcs = [o0, o0 + 2, o1, o1 + 2]
                for sreg in (srcs if not scale_red else []):
                    if packed:
                        its.append(It((lambda s=sreg, rlp=rlp: a(f"v_pk_mul_f32 {v(s,2)}, {v(s,2)}, {rlp}"))))
                    else:
                        for k in range(2):
                            its.append(It((lambda s=sreg + k, qt=qt: a(f"v_mul_f32 v{s}, v{V_RL + 2*qt}, v{s}"))))
                for r, sreg in enumerate(srcs):
                    its.append(It((lambda d=out + r, s=sreg: a(f"v_cvt_pk_bf16_f32 v{d}, v{s}, v{s+1}"))))
                upair = 4*p + up
                its.append(It((lambda c=(qt*14 + upair)*1024: a(f"s_add_u32 s{S_SO}, s{S_WOFF}, {c}")), 4))
                its.append(It((lambda o=out, p=p: (a(f"buffer_store_dwordx4 {v(o,4)}, v{V_ST}, s[{S_WS}:{S_WS+3}], s{S_SO} offen{cfg.st_flags}"), slog.append(p))), 4))
        return its

    def cstamp(i):
        if cfg.stamps and cfg.cstamps:
            lg.drain()
            a("s_memrealtime s[62:63]")
            a("s_waitcnt lgkmcnt(0)")
            a(f"v_writelane_b32 v7, s62, {i}")
    svm = Vm(a)
    def signal_a(p, nafter):
        a(f"s_waitcnt vmcnt({nafter})")
        a("s_mov_b64 exec, 1")
        lg.issue(f"ds_add_rtn_u32 v6, v4, v5 offset:{4*p}", ("sig", p))
        a("s_mov_b64 exec, -1")
    def signal_b(p):
        lg.need(("sig", p))
        a("v_readfirstlane_b32 s90, v6")
        a("s_nop 3")
        a("s_cmp_eq_u32 s90, 2")
        a(f"s_cbranch_scc0 L_nosig{p}")
        a("s_mov_b64 exec, 1")
        a(f"s_mov_b32 s88, {4096*p}")
        a(f"buffer_atomic_add v5, off, s[84:87], s88")
        a("s_mov_b64 exec, -1")
        a.label(f"L_nosig{p}")
    a("s_barrier")
    phaseA(31)
    setup_its = []
    for j in range(8):
        setup_its.append(It((lambda j=j: a(f"v_subrev_u32 v{VBK+j}, {VREG}, v{V_VB+j}")), 4, 0))
        setup_its.append(It((lambda j=j: a(f"v_add_u32 v{VBE+j}, {VREG}, v{V_VB+j}")), 4, 0))
    NOP_ = cfg.nop
    ex1 = oconv_items(0, earliest=3 + 3*1 + 2 + 8)
    ex2 = oconv_items(1, earliest=3 + 3*3 + 2 + 8)
    pre_o = [It((lambda k=k, h=h: oread(k, h)), 4, 42) for k in range(NOP_) for h in range(2)]
    phaseB(31, extra=[setup_its, ex1 + ex2, pre_o])
    if cfg.dump == "o":
        a("s_nop 7")
        emit_dump_acc(a, cfg, 204); return
    a(f"v_lshlrev_b32 v{V_ST}, 4, v{lane}")
    a(f"s_mul_i32 s{S_WOFF}, s{S_WID}, {3*14*1024}")
    for qt in range(3):
        a(f"v_accvgpr_read_b32 v{V_RL+2*qt}, a{A_L + 4*qt}")
    for qt in range(3):
        a(f"v_rcp_f32 v{V_RL+2*qt}, v{V_RL+2*qt}")
    a("s_nop 0")
    for qt in range(3):
        a(f"v_mov_b32 v{V_RL+2*qt+1}, v{V_RL+2*qt}")
    if cfg.fused:
        a(f"v_mov_b32 v4, {VS[0]}")
        a("v_mov_b32 v5, 1")
        emit_red_setup(a, cfg)
    if scale_red:
        a(f"v_and_b32 v6, 15, v{lane}")
        a("v_lshlrev_b32 v6, 6, v6")
        a(f"s_mul_i32 s90, s{S_WID}, 3072")
        a(f"s_lshl_b32 s91, s{S_H}, 2")
        a("s_add_u32 s90, s90, s91")
        a("s_mov_b64 exec, 0xffff")
        for qt in range(3):
            a(f"buffer_store_dword v{V_RL+2*qt}, v6, s[64:67], s90 offen offset:{1024*qt}{cfg.st_flags}")
            slog.append(-1)
        a("s_mov_b64 exec, -1")

    cur_slot = -1
    nxt = NOP_
    pend = []
    store_log = slog
    stores_since = {q: (lambda q=q: sum(1 for i, x in enumerate(store_log) if i > max(k for k, y in enumerate(store_log) if y == q))) for q in range(4)}
    for si, (p, T, j, tau, nu) in enumerate(steps):
        if j != cur_slot:
            if j < ntb(cfg): a("s_barrier")
            cur_slot = j
        if T == 0: cstamp(p)
        if cfg.fused and p == 2 and T == cfg.sig_t:
            signal_a(0, stores_since[0]())
            cstamp(4)
        if cfg.fused and p == 2 and T == cfg.sig_t + 1:
            signal_b(0)
        if cfg.fused and p == 3 and T == cfg.sig_t1:
            cstamp(5)
            signal_a(1, stores_since[1]())
            cstamp(6)
        if cfg.fused and p == 3 and T == cfg.sig_t1 + 1:
            signal_b(1)
        k0 = sum(s[4] for s in steps[:si])
        if T == 0 and p > 0:
            assert not pend
            pend = conv_items(p - 1)
            for it in pend[:1]: pass
        mf = []
        for u in range(nu):
            k = k0 + u
            for qt in range(3):
                pre = None
                if qt == 0 and u % 2 == 0:
                    pre = (lambda k=k: lg.need(("o", k + 1, 1)))
                mf.append((pre, (lambda u=u, qt=qt, k=k: mfma(a, accstr(p, u, qt), ar(A_WO + 4*(k % FBN), 4), v(Qreg(qt, T), 4), "0" if T == 0 else None))))
        rs = []
        lim = k0 + nu + NOP_
        while nxt < len(frs) and nxt < lim and frs[nxt][3] <= j + 1:
            kk = nxt
            use = 3 * (kk - k0)
            e = max(0, 3 * (kk - FBN - k0) + 2)
            for h in range(2):
                rs.append(It((lambda kk=kk, h=h: oread(kk, h)), 4, max(e, use - 3*NOP_ - 3), max(0, use - 10)))
            nxt += 1
        streams = [rs]
        if p == 0 and T + 2 <= 7:
            streams.append(oconv_items(T + 2))
        if pend:
            if T == 0:
                for it in pend: it.earliest = 4
            streams.append(pend)
            last_of_pass = (T == 7)
            sched(a, mf, [rs] + [pend], flush=False)
            while rs: rs.pop(0).fn()
            if last_of_pass:
                while pend: pend.pop(0).fn()
            for it in pend: it.earliest = 0
        else:
            sched(a, mf, streams)
    cstamp(7)
    a("s_nop 7")
    for it in conv_items(3, packed=True): it.fn()
    cstamp(8)
    a.label("L_tail_end")
    print("lds throttles:", lg.throttled, file=sys.stderr)
    if cfg.fused:
        signal_a(2, 0); cstamp(9); signal_b(2)
        if cfg.decouple: emit_poll(a, cfg, 2)
        else: a("s_barrier")
        cstamp(10)
        emit_final_reduce(a, cfg)
        if cfg.stamps and cfg.cstamps:
            a("s_waitcnt vmcnt(0)")
            cstamp(11)
            a("s_mov_b32 s76, s72"); a("s_mov_b32 s77, s73")
            a("s_mov_b32 s78, 0x10000000"); a("s_mov_b32 s79, 0x20000")
            a("s_mul_i32 s74, s2, 3")
            a(f"s_add_u32 s74, s74, s{S_WID}")
            a("s_lshl_b32 s74, s74, 8")
            a("s_add_u32 s74, s74, 0x4400000")
            a(f"v_lshlrev_b32 v6, 2, v{V_LANE}")
            a("buffer_store_dword v7, v6, s[76:79], s74 offen")
    elif cfg.stamps:
        a("s_waitcnt vmcnt(0)")
        a("s_barrier")
    a("s_branch L_end")

def emit_rare(a, cfg, rare_blocks):
    for tag, par in rare_blocks:
        a.label(f"L_rare_{tag}")
        a("s_nop 7")
        for qt in range(3):
            s0 = Sreg(par, qt, 0)
            mx = V_TMP + qt
            a(f"v_max3_f32 v{mx}, v{s0}, v{s0+1}, v{s0+2}")
            a(f"v_max3_f32 v{mx}, v{mx}, v{s0+3}, v{s0+4}")
            a(f"v_max3_f32 v{mx}, v{mx}, v{s0+5}, v{s0+6}")
            a(f"v_max_f32 v{mx}, v{mx}, v{s0+7}")
            xlane_max(a, mx, V_TMP + 4)
            a(f"v_max_f32 v{mx}, 0, v{mx}")
            for r in range(8):
                a(f"v_sub_f32 v{s0+r}, v{s0+r}, v{mx}")
            for r in range(4):
                a(f"v_sub_f32 v{V_CM + 4*qt + r}, v{V_CM + 4*qt + r}, v{mx}")
            a(f"v_sub_f32 v{mx}, 0, v{mx}")
            a(f"v_exp_f32 v{mx}, v{mx}")
        a(f"s_getpc_b64 s[{S_TGT}:{S_TGT+1}]")
        a.label(f"L_pc_{tag}")
        a(f"s_add_u32 s{S_TGT}, s{S_TGT}, L_rescale-L_pc_{tag}")
        a(f"s_addc_u32 s{S_TGT+1}, s{S_TGT+1}, 0")
        a(f"s_swappc_b64 s[{S_RET}:{S_RET+1}], s[{S_TGT}:{S_TGT+1}]")
        a(f"s_branch L_back_{tag}")
    if not rare_blocks: return
    a.label("L_rescale")
    a("s_nop 7")
    for qt in range(3):
        regs = [Oreg(u, qt) + r for u in range(16) for r in range(4)] + [A_L + 4*qt + r for r in range(4)]
        for i in range(0, len(regs), 4):
            for k in range(4):
                a(f"v_accvgpr_read_b32 v{V_TMP+4+k}, a{regs[i+k]}")
            for k in range(4):
                a(f"v_mul_f32 v{V_TMP+4+k}, v{V_TMP+qt}, v{V_TMP+4+k}")
            for k in range(4):
                a(f"v_accvgpr_write_b32 a{regs[i+k]}, v{V_TMP+4+k}")
    a("s_nop 1")
    a(f"s_setpc_b64 s[{S_RET}:{S_RET+1}]")

def emit_dump_common(a, cfg, regs, isacc):
    a("s_mov_b32 s76, s72"); a("s_mov_b32 s77, s73")
    a("s_mov_b32 s78, 0x10000000"); a("s_mov_b32 s79, 0x20000")
    a(f"s_mul_i32 s74, s2, 3")
    a(f"s_add_u32 s74, s74, s{S_WID}")
    a("s_lshl_b32 s74, s74, 16")
    a(f"v_lshlrev_b32 v{V_T0}, 2, v{V_LANE}")
    for i, r in enumerate(regs):
        if isacc:
            a(f"v_accvgpr_read_b32 v{V_T1}, a{r}")
            src = V_T1
        else:
            src = r
        a(f"buffer_store_dword v{src}, v{V_T0}, s[76:79], s74 offen")
        a("s_add_u32 s74, s74, 256")
        if isacc: a("s_waitcnt vmcnt(0)")
    a("s_waitcnt vmcnt(0)")
    n = {"qacc": 33 + 14, "q": 33 + 14, "s0": 32 + 14, "o": 14}[cfg.dump]
    for _ in range(n): a("s_barrier")
    if cfg.stamps: a("s_barrier")
    a.label("L_tail_end")
    if cfg.dump != "o": a.label("L_tail_code")
    a("s_branch L_end")
def emit_dump_acc(a, cfg, n):
    a("s_nop 7")
    emit_dump_common(a, cfg, list(range(n)), True)
def emit_dump_v(a, cfg, base, n, extra=None):
    regs = list(range(base, base + n))
    if extra: regs += list(range(extra[0], extra[0] + extra[1]))
    emit_dump_common(a, cfg, regs, False)

def emit_reduce(a, cfg):
    a.raw(f".globl {RNAME}")
    a.raw(".p2align 8")
    a.raw(f".type {RNAME},@function")
    a.label(RNAME)
    a("s_cmp_ge_u32 s2, 504")
    a("s_cbranch_scc1 LR_end")
    a("s_load_dwordx2 s[4:5], s[0:1], 96")
    a("s_load_dwordx2 s[8:9], s[0:1], 80")
    a("v_lshrrev_b32 v1, 6, v0")
    a("v_and_b32 v2, 63, v0")
    a("v_readfirstlane_b32 s3, v1")
    a("s_lshl_b32 s12, s2, 2")
    a("s_add_u32 s12, s12, s3")
    a(f"s_mul_hi_u32 s13, s12, {(2**32 + 125)//126}")
    a("s_mul_i32 s14, s13, 126")
    a("s_sub_u32 s14, s12, s14")
    a(f"s_mul_hi_u32 s15, s14, {(2**32 + 13)//14}")
    a("s_mul_i32 s16, s15, 14")
    a("s_sub_u32 s16, s14, s16")
    a("s_waitcnt lgkmcnt(0)")
    a(f"s_mul_i32 s17, s13, {16*129024}")
    a("s_lshl_b32 s18, s14, 10")
    a("s_add_u32 s17, s17, s18")
    a("s_add_u32 s4, s4, s17")
    a("s_addc_u32 s5, s5, 0")
    a(f"s_mov_b32 s6, {15*129024 + 1024}")
    a("s_mov_b32 s7, 0x20000")
    a("v_lshlrev_b32 v3, 4, v2")
    for h in range(16):
        a(f"s_mov_b32 s19, {h*129024}")
        a(f"buffer_load_dwordx4 v[{8+4*h}:{11+4*h}], v3, s[4:7], s19 offen{cfg.rd_flags}")
    a("s_and_b32 s20, s13, 7")
    a("s_lshr_b32 s21, s13, 3")
    a("s_mul_i32 s20, s20, 144")
    a("s_lshl_b32 s22, s15, 4")
    a("s_add_u32 s20, s20, s22")
    a("s_mul_i32 s20, s20, 1792")
    a("s_mul_i32 s21, s21, 896")
    a("s_lshl_b32 s22, s16, 6")
    a("s_add_u32 s20, s20, s21")
    a("s_add_u32 s20, s20, s22")
    a("v_and_b32 v4, 15, v2")
    a("v_mul_u32_u24 v4, 1792, v4")
    a("v_lshrrev_b32 v5, 4, v2")
    a("v_lshl_add_u32 v4, v5, 3, v4")
    a("s_mov_b32 s10, %d" % (8*144*896*2))
    a("s_mov_b32 s11, 0x20000")
    for h in range(16):
        a(f"s_waitcnt vmcnt({15-h})")
        for r in range(4):
            src = 8 + 4*h + r
            if h == 0:
                a(f"v_lshlrev_b32 v{72+2*r}, 16, v{src}")
                a(f"v_and_b32 v{73+2*r}, 0xffff0000, v{src}")
            else:
                a(f"v_lshlrev_b32 v80, 16, v{src}")
                a(f"v_and_b32 v81, 0xffff0000, v{src}")
                a(f"v_add_f32 v{72+2*r}, v{72+2*r}, v80")
                a(f"v_add_f32 v{73+2*r}, v{73+2*r}, v81")
    for r in range(4):
        a(f"v_cvt_pk_bf16_f32 v{84+r}, v{72+2*r}, v{73+2*r}")
    a("buffer_store_dwordx2 v[84:85], v4, s[8:11], s20 offen")
    a("buffer_store_dwordx2 v[86:87], v4, s[8:11], s20 offen offset:32")
    a.label("LR_end")
    a("s_endpgm")

def kd(a, name, vg, acc, sg=102):
    a.raw(f".amdhsa_kernel {name}")
    a.raw(f"  .amdhsa_next_free_vgpr {vg}")
    a.raw(f"  .amdhsa_next_free_sgpr {sg}")
    a.raw(f"  .amdhsa_accum_offset {acc}")
    a.raw("  .amdhsa_group_segment_fixed_size 0")
    a.raw("  .amdhsa_kernarg_size 104")
    a.raw("  .amdhsa_user_sgpr_count 2")
    a.raw("  .amdhsa_user_sgpr_kernarg_segment_ptr 1")
    a.raw("  .amdhsa_system_sgpr_workgroup_id_x 1")
    a.raw(".end_amdhsa_kernel")

HEADER = """; Fused MHA block (two branches): Q-proj + flash attention + partial out-proj per (branch,batch,head) workgroup,
"""
def generate(cfg):
    a = Asm()
    a.raw(HEADER.rstrip())
    if cfg.fused and not cfg.aslist:
        a.raw(f"; @launch grid=(256,1,1) block=(256,1,1) lds=163840")
    else:
        a.raw(f"; @launch kernel={KNAME} grid=(256,1,1) block=(256,1,1) lds=163840")
    if not cfg.dump and not cfg.fused:
        a.raw(f"; @launch kernel={RNAME} grid=(504,1,1) block=(256,1,1) lds=0")
    a.raw('.amdgcn_target "amdgcn-amd-amdhsa--gfx950"')
    a.raw(".text")
    a.raw(f".globl {KNAME}")
    a.raw(".p2align 8")
    a.raw(f".type {KNAME},@function")
    a.label(KNAME)
    emit_setup(a, cfg)
    rare = []
    emit_compute_main(a, cfg, rare)
    emit_loader(a, cfg)
    a.label("L_code_end")
    emit_rare(a, cfg, rare)
    a.label("L_end")
    a("s_endpgm")
    if not cfg.dump and not cfg.fused:
        emit_reduce(a, cfg)
    a.raw('.section .rodata,"a"')
    a.raw(".p2align 6")
    kd(a, KNAME, 512, 256)
    if not cfg.dump and not cfg.fused:
        a.raw(".p2align 6")
        kd(a, RNAME, 96, 96, 32)
    return a.text()

if __name__ == "__main__":
    cfg = Cfg()
    out = sys.argv[1]
    for kv in sys.argv[2:]:
        k, val = kv.split("=", 1)
        cur = getattr(cfg, k)
        if isinstance(cur, bool): val = val in ("1", "True", "true")
        elif isinstance(cur, float): val = float(val)
        elif isinstance(cur, int): val = int(val)
        elif val == "None": val = None
        setattr(cfg, k, val)
    open(out, "w").write(generate(cfg))
```

```python
import sys, math, struct, re

KNAME = "concat_heads__mha_block_cached__mha_block_cached__near_ridge_kernel"
RNAME = "reduce_kernel"

class Asm:
    def __init__(self):
        self.L = []
    def __call__(self, s):
        self.L.append("    " + s)
    def label(self, s):
        self.L.append(s + ":")
    def raw(self, s):
        self.L.append(s)
    def text(self):
        return "\n".join(self.L) + "\n"

class Lgkm:
    def __init__(self, a):
        self.a = a; self.q = []; self.issued = set(); self.throttled = 0
    def issue(self, ins, tag):
        if len(self.q) >= 15:
            self.a("s_waitcnt lgkmcnt(14)"); self.q = self.q[len(self.q) - 14:]; self.throttled += 1
        self.a(ins); self.q.append(tag); self.issued.add(tag)
    def need(self, tag):
        assert tag in self.issued, ("not issued", tag)
        if tag in self.q:
            idx = len(self.q) - 1 - self.q[::-1].index(tag)
            n = len(self.q) - 1 - idx
            self.a(f"s_waitcnt lgkmcnt({n})")
            self.q = self.q[idx + 1:]
    def drain(self):
        if self.q:
            self.a("s_waitcnt lgkmcnt(0)")
            self.q = []

class Vm:
    def __init__(self, a):
        self.a = a; self.q = []
    def room(self, n):
        over = len(self.q) + n - 63
        if over > 0:
            keep = len(self.q) - over
            self.a(f"s_waitcnt vmcnt({keep})")
            self.q = self.q[over:]
    def issue(self, ins, tag):
        assert len(self.q) < 63
        self.a(ins); self.q.append(tag)
    def need(self, tag):
        if tag in self.q:
            idx = len(self.q) - 1 - self.q[::-1].index(tag)
            n = len(self.q) - 1 - idx
            self.a(f"s_waitcnt vmcnt({n})")
            self.q = self.q[idx + 1:]

class It:
    def __init__(self, fn, cost=4, earliest=0, deadline=10**9):
        self.fn, self.cost, self.earliest, self.deadline = fn, cost, earliest, deadline

def sched(a, mf, streams, budget=8, flush=True):
    n = len(mf)
    for m, (pre, emit) in enumerate(mf):
        if pre: pre()
        emit()
        b = budget
        if m + 1 < n and mf[m + 1][0] is not None: b -= 4
        for st in streams:
            while st and st[0].deadline <= m:
                it = st.pop(0); it.fn(); b -= it.cost
        for st in streams:
            while st and st[0].earliest <= m and st[0].cost <= b:
                it = st.pop(0); it.fn(); b -= it.cost
    if flush:
        prog = True
        while any(streams):
            for st in streams:
                if st:
                    it = st.pop(0); it.fn()

def v(n, cnt=1):
    return f"v{n}" if cnt == 1 else f"v[{n}:{n+cnt-1}]"
def ar(n, cnt=1):
    return f"a{n}" if cnt == 1 else f"a[{n}:{n+cnt-1}]"
def f2u(x): return struct.unpack("<I", struct.pack("<f", x))[0]

V_LANE = 1
V_T0, V_T1 = 2, 3
V_KB = 4
V_VB = 8
V_TMP = 16
V_S = [24, 48]
V_P = 72
V_CM = 84
V_KBUF = 96
V_VBUF = 128
V_Q = 160
A_O = 0
A_L = 192
A_ONES = 204
A_X = 0
A_W = 168
A_DUMMY = 232
V_QACC = 64
V_WB = 16
V_XB = 20
V_XB2 = 24
A_WO = 208
V_P0 = 64
VBK, VBE = 24, 32
V_RL = 16
V_ST = 22
V_CT = 40

def Qreg(qt, T): return V_Q + (qt * 8 + T) * 4
def Xreg(s, qt): return A_X + (s * 3 + qt) * 4
def QAcc(u, qt): return V_QACC + (qt * 8 + (u >> 1)) * 8 + 4 * (u & 1)
def Oreg(u, qt): return A_O + (u * 3 + qt) * 4
def Sreg(par, qt, a): return V_S[par] + (qt * 2 + a) * 4

KS = [i * 16384 for i in range(4)]
VREG = 65536
VS = [VREG + i * 16384 for i in range(4)]
ES = [131072, 147456]
WRING = [ES[0], ES[1], VS[2], VS[3]]
WBASE = VS[2]
XW = 43008
XAW = 24576
XBB = 32768
XBW = 18432
WOSLOT = [ES[0], ES[1], KS[0], KS[1], VS[0], KS[2], VS[1], KS[3], VS[2], VS[3], ES[0], ES[1], KS[0], KS[1]]

S_WID = 3
S_X, S_K, S_V, S_WQ, S_WO, S_WS = 4, 8, 12, 16, 20, 24
S_B, S_H, S_BR, S_THR = 28, 29, 30, 31
S_SO, S_SO2, S_CNT = 32, 33, 34
S_RET, S_TGT = 36, 38
S_WOFF = 40
S_PC = 56
S_TS = 60

QSCALE = math.log2(math.e) / 16.0
SCL_OFF = 0x2200000
CNT_OFF = 0x2100000

class Cfg:
    nt_kv = True
    nt_w = False
    nt_x = False
    nt_wo = False
    nt_warm = False
    st_flags = " sc0 sc1"
    rd_flags = " sc0 sc1"
    warm_wq = True
    warm_wo = False
    code_pf = True
    thr = 8.0
    dump = None
    stamps = False
    kvsched = "g"
    fused = True
    poll_flags = " sc1"
    out_flags = ""
    aslist = False
    sig_t = 0
    warm2 = False
    xbsched = "b"
    xb_read = 4
    xb_one = 1
    wr_pace = 0
    wr_spread = 10
    map_odd = False
    cstamps = False
    stagger = 0
    ncls = 4
    cls_mode = "b"
    stag_tmax = 31
    scale_red = True
    decouple = True
    nop = 6
    dbg_stamps = -1
    wo_reg0 = 9
    wo_reg_t0 = 14
    warm_t0 = 18
    poll_sleep = 2
    sig_t1 = 2
    nkp = 8
    nvp = 4

def emit_setup(a, cfg):
    a("s_cmp_ge_u32 s2, 256")
    a("s_cbranch_scc1 L_end")
    if cfg.stamps:
        a(f"s_memrealtime s[{S_TS}:{S_TS+1}]")
    a("s_load_dwordx4 s[44:47], s[0:1], 0")
    a("s_load_dwordx4 s[48:51], s[0:1], 16")
    a("s_load_dwordx2 s[52:53], s[0:1], 32")
    a("s_load_dwordx2 s[54:55], s[0:1], 40")
    a("s_load_dwordx4 s[64:67], s[0:1], 48")
    a("s_load_dwordx4 s[68:71], s[0:1], 64")
    a("s_load_dwordx2 s[72:73], s[0:1], 96")
    a("s_load_dwordx4 s[80:83], s[0:1], 80")
    a(f"v_lshrrev_b32 v{V_T0}, 6, v0")
    a(f"v_and_b32 v{V_LANE}, 63, v0")
    a(f"v_readfirstlane_b32 s{S_WID}, v{V_T0}")
    a("s_and_b32 s74, s2, 7")
    a("s_lshr_b32 s75, s2, 3")
    if cfg.map_odd:
        a(f"s_and_b32 s{S_BR}, s74, 1")
        a("s_lshr_b32 s76, s74, 1")
    else:
        a(f"s_lshr_b32 s{S_BR}, s74, 2")
        a("s_and_b32 s76, s74, 3")
    a("s_lshl_b32 s76, s76, 2")
    a("s_and_b32 s77, s75, 3")
    a(f"s_add_u32 s{S_H}, s76, s77")
    a(f"s_lshr_b32 s{S_B}, s75, 2")
    a(f"s_mul_i32 s78, s{S_B}, 129024")
    a(f"s_lshl_b32 s79, s{S_H}, 9")
    a(f"s_mov_b32 s{S_X+2}, 129024")
    a(f"s_mov_b32 s{S_X+3}, 0x20000")
    a(f"s_sub_u32 s{S_WQ+2}, {448*8192}, s79")
    a(f"s_mov_b32 s{S_WQ+3}, 0x20000")
    a("s_waitcnt lgkmcnt(0)")
    a(f"s_cmp_eq_u32 s{S_BR}, 0")
    a(f"s_cselect_b32 s{S_X}, s44, s54")
    a(f"s_cselect_b32 s{S_X+1}, s45, s55")
    a(f"s_cselect_b32 s{S_WQ}, s50, s68")
    a(f"s_cselect_b32 s{S_WQ+1}, s51, s69")
    a(f"s_cselect_b32 s{S_K}, s46, s64")
    a(f"s_cselect_b32 s{S_K+1}, s47, s65")
    a(f"s_cselect_b32 s{S_V}, s48, s66")
    a(f"s_cselect_b32 s{S_V+1}, s49, s67")
    a(f"s_cselect_b32 s{S_WO}, s52, s70")
    a(f"s_cselect_b32 s{S_WO+1}, s53, s71")
    a(f"s_add_u32 s{S_X}, s{S_X}, s78")
    a(f"s_addc_u32 s{S_X+1}, s{S_X+1}, 0")
    a(f"s_add_u32 s{S_WQ}, s{S_WQ}, s79")
    a(f"s_addc_u32 s{S_WQ+1}, s{S_WQ+1}, 0")
    a(f"s_cmp_eq_u32 s{S_WID}, 3")
    a("s_cbranch_scc1 L_loader")

def emit_setup_late(a, cfg, loader):
    a(f"s_lshl_b32 s74, s{S_B}, 4")
    a(f"s_add_u32 s74, s74, s{S_H}")
    if loader:
        a("s_lshl_b32 s75, s74, 19")
        for S in (S_K, S_V):
            a(f"s_add_u32 s{S}, s{S}, s75")
            a(f"s_addc_u32 s{S+1}, s{S+1}, 0")
            a(f"s_mov_b32 s{S+2}, 524288")
            a(f"s_mov_b32 s{S+3}, 0x20000")
        a(f"s_mul_i32 s75, s{S_H}, {256*896}")
        a(f"s_add_u32 s{S_WO}, s{S_WO}, s75")
        a(f"s_addc_u32 s{S_WO+1}, s{S_WO+1}, 0")
        a(f"s_mov_b32 s{S_WO+2}, {256*896}")
        a(f"s_mov_b32 s{S_WO+3}, 0x20000")
    else:
        a(f"s_lshl_b32 s75, s{S_BR}, 7")
        a("s_add_u32 s74, s74, s75")
        a("s_mul_i32 s74, s74, 129024")
        a(f"s_add_u32 s{S_WS}, s72, s74")
        a(f"s_addc_u32 s{S_WS+1}, s73, 0")
        a(f"s_mov_b32 s{S_WS+2}, 129024")
        a(f"s_mov_b32 s{S_WS+3}, 0x20000")

def ntb(cfg): return 9 if (cfg.fused and not cfg.dump) else 14
def barrier_list(cfg):
    L = [("PB", s) for s in range(14)]
    L += [("B", t) for t in range(-1, 32)]
    L += [("TB", j) for j in range(ntb(cfg))]
    return L

XBSCHED = {"a": {1: [0], 2: [1], 3: [2]}, "b": {1: [0, 1], 2: [2]}, "c": {1: [0, 1, 2]}}
KVSCHED = {
    "f": {3: [("K", 0)], 4: [("K", 1)], 6: [("K", 2)], 7: [("V", 0)], 8: [("K", 3)], 9: [("V", 1)], 11: [("V", 2)], 12: [("V", 3)]},
    "g": {2: [("K", 0)], 3: [("K", 1)], 5: [("K", 2)], 6: [("V", 0)], 8: [("K", 3)], 9: [("V", 1)], 11: [("V", 2)], 12: [("V", 3)]},
    "h": {1: [("K", 0)], 3: [("K", 1)], 5: [("K", 2)], 6: [("V", 0)], 7: [("K", 3)], 9: [("V", 1)], 11: [("V", 2)], 12: [("V", 3)]},
    "a": {1: [("K", 0)], 2: [("V", 0)], 3: [("K", 1)], 4: [("K", 2)], 6: [("V", 1)], 7: [("K", 3)], 11: [("V", 2)], 12: [("V", 3)]},
    "b": {1: [("K", 0), ("V", 0)], 2: [("K", 1)], 3: [("K", 2)], 4: [("V", 1)], 5: [("K", 3)], 11: [("V", 2)], 12: [("V", 3)]},
    "d": {4: [("K", 0)], 5: [("K", 1)], 7: [("K", 2), ("V", 0)], 8: [("K", 3)], 9: [("V", 1)], 11: [("V", 2)], 12: [("V", 3)]},
    "e": {3: [("K", 0)], 5: [("K", 1)], 7: [("V", 0)], 8: [("K", 2)], 9: [("K", 3)], 10: [("V", 1)], 11: [("V", 2)], 12: [("V", 3)]},
    "c": {1: [("K", 0)], 3: [("V", 0)], 4: [("K", 1)], 6: [("K", 2)], 7: [("V", 1)], 9: [("K", 3)], 11: [("V", 2)], 12: [("V", 3)]},
}

def emit_code_prefetch(a, cfg, vm, vaddr, lo, hi, dst):
    a(f"s_getpc_b64 s[{S_PC}:{S_PC+1}]")
    lab = f"L_pc_{lo}"
    a.label(lab)
    a(f"s_add_u32 s{S_PC}, s{S_PC}, {lo}-{lab}")
    a(f"s_addc_u32 s{S_PC+1}, s{S_PC+1}, 0")
    a(f"s_mov_b32 s{S_PC+2}, {hi}-{lo}")
    a(f"s_mov_b32 s{S_PC+3}, 0x20000")
    return

def emit_loader(a, cfg):
    a.label("L_loader")
    vm = Vm(a)
    LH, LP = 2, 3
    VK, VV, VW, VO, VO3 = 8, 16, 20, 24, 28
    T0, T1 = 4, 5
    stamp_idx = [0]
    def xstamp(i):
        if cfg.stamps:
            a("s_memrealtime s[62:63]")
            a("s_waitcnt lgkmcnt(0)")
            a(f"v_writelane_b32 v58, s62, {i}")
    if cfg.stamps:
        a(f"v_writelane_b32 v56, s{S_TS}, 0")
    xstamp(0)
    a(f"v_lshrrev_b32 v{LH}, 5, v{V_LANE}")
    a(f"v_and_b32 v{LP}, 31, v{V_LANE}")
    a(f"v_lshlrev_b32 v32, 4, v{V_LANE}")
    def chunkpat(i):
        a(f"v_add_u32 v{T0}, {2*i}, v{LH}")
        a(f"v_lshlrev_b32 v{T0}, 1, v{T0}")
        a(f"v_xor_b32 v{T0}, v{T0}, v{LP}")
    for i in range(4):
        chunkpat(i)
        a(f"v_lshlrev_b32 v{T1}, 4, v{T0}")
        a(f"v_lshl_add_u32 v{VW+i}, v{LH}, 13, v{T1}")
    ntkv = " nt" if cfg.nt_kv else ""
    ntw = " nt" if cfg.nt_w else ""
    ntwo = " nt" if cfg.nt_wo else ""
    ntwarm = " nt" if cfg.nt_warm else ""

    clsn = [0]
    def class_wait():
        if not cfg.stagger: return
        clsn[0] += 1; n = clsn[0]
        for c in range(1, cfg.ncls):
            a(f"s_cmp_lt_u32 s53, {c}")
            a(f"s_cbranch_scc1 L_cls{n}")
            a(f"s_waitcnt vmcnt({47 - cfg.stagger * c})")
        a.label(f"L_cls{n}")
    def tile_kv(kind, t):
        srd = S_K if kind == "K" else S_V
        lds = KS[t % 4] if kind == "K" else VS[t % 4]
        vm.room(16)
        if t >= 4 and t <= cfg.stag_tmax: class_wait()
        for m in range(4):
            a(f"s_mov_b32 m0, {lds + m*4096}")
            a(f"s_mov_b32 s{S_SO}, {t*16384 + m*4096}")
            for n in range(4):
                i = 4*m + n
                vo = VK + (i & 7) if kind == "K" else VV + (i & 3)
                vm.issue(f"buffer_load_dwordx4 v{vo}, s[{srd}:{srd+3}], s{S_SO} offen offset:{n*1024}{ntkv} lds", (kind, t))
    def tile_w(s):
        lds = WRING[s % 4]
        vm.room(16)
        for i in range(16):
            sig0 = 8*((i & 7) >> 1) + 4*(i >> 3) + 2*(i & 1)
            a(f"s_mov_b32 m0, {lds + i*1024}")
            a(f"s_mov_b32 s{S_SO}, {(s*32 + sig0)*8192}")
            vm.issue(f"buffer_load_dwordx4 v{VW + (i & 3)}, s[{S_WQ}:{S_WQ+3}], s{S_SO} offen{ntw} lds", ("W", s))
    VX = 40
    def setup_xb():
        a(f"v_lshrrev_b32 v{T0}, 3, v{V_LANE}")
        a(f"v_and_b32 v{T1}, 7, v{V_LANE}")
        a(f"v_lshrrev_b32 v6, 1, v{T0}")
        a(f"v_xor_b32 v6, v6, v{T1}")
        a(f"v_mul_u32_u24 v7, 896, v{T0}")
        a(f"v_lshl_add_u32 v{VX}, v6, 4, v7")
        a(f"v_xor_b32 v6, 4, v6")
        a(f"v_lshl_add_u32 v{VX+1}, v6, 4, v7")
        a(f"v_add_u32 v{VX+1}, {8*896}, v{VX+1}")
    def tile_xb(part):
        vm.room(18)
        ntx = " nt" if cfg.nt_x else ""
        for w in range(3):
            for qt in range(3):
                for hb in range(2):
                    a(f"s_mov_b32 m0, {XBB + w*XBW + ((qt*2 + hb)*3 + part)*1024}")
                    a(f"s_mov_b32 s{S_SO}, {w*XW + qt*14336 + (4 + part)*128}")
                    vm.issue(f"buffer_load_dwordx4 v{VX+hb}, s[{S_X}:{S_X+3}], s{S_SO} offen{ntx} lds", ("XB", part))
    def tile_wo(j):
        lds = WOSLOT[j]
        vm.room(16)
        for i in range(16):
            if j < 12:
                p, T0_ = j // 4, (j % 4) * 2
                so = (32*T0_ + 2*i)*896 + p*256
                vo = VO + (i & 3)
            else:
                T0_ = (j - 12) * 4
                so = (32*T0_ + 2*i)*896 + 768
                vo = VO3 + (i & 3)
            a(f"s_mov_b32 m0, {lds + i*1024}")
            a(f"s_mov_b32 s{S_SO}, {so}")
            vm.issue(f"buffer_load_dwordx4 v{vo}, s[{S_WO}:{S_WO+3}], s{S_SO} offen{ntwo} lds", ("WO", j))
    NREG0 = cfg.wo_reg0
    def wo_quad(j, i):
        k = (j - NREG0) * 16 + i
        return ar(4*k, 4) if k < 64 else v(64 + 4*(k - 64), 4)
    def wo_addr(j, i):
        if j < 12:
            p, T0_ = j // 4, (j % 4) * 2
            return (32*T0_ + 2*i)*896 + p*256, VO + (i & 3)
        T0_ = (j - 12) * 4
        return (32*T0_ + 2*i)*896 + 768, VO3 + (i & 3)
    def load_wo_reg(j, i0, n):
        vm.room(n)
        for i in range(i0, i0 + n):
            so, vo = wo_addr(j, i)
            a(f"s_mov_b32 s{S_SO}, {so}")
            vm.issue(f"buffer_load_dwordx4 {wo_quad(j, i)}, v{vo}, s[{S_WO}:{S_WO+3}], s{S_SO} offen{ntwo}", ("WOR", j))
    def put_wo(j):
        vm.need(("WOR", j))
        a(f"v_add_u32 v33, {WOSLOT[j]}, v32")
        for i in range(16):
            a(f"ds_write_b128 v33, {wo_quad(j, i)} offset:{i*1024}")
            if cfg.wr_pace and i % cfg.wr_pace == cfg.wr_pace - 1 and i < 15: a("s_waitcnt lgkmcnt(0)")
        wo_written.append(j)
    wo_written = []
    wr_queue = []
    def put_wo_some(n):
        done = 0
        while wr_queue and done < n:
            j, i = wr_queue.pop(0)
            if i == 0 or done == 0:
                if i == 0: vm.need(("WOR", j))
                a(f"v_add_u32 v33, {WOSLOT[j]}, v32")
            a(f"ds_write_b128 v33, {wo_quad(j, i)} offset:{i*1024}")
            if i == 15: wo_written.append(j)
            done += 1
            if wr_queue and wr_queue[0][1] == 0 and done < n:
                pass
    def need_wo(j):
        if j >= NREG0:
            if j in wo_written:
                a("s_waitcnt lgkmcnt(0)")
                while wo_written: wo_written.pop()
        else:
            vm.need(("WO", j))
    def tile_wo_any(j):
        if j >= NREG0:
            if cfg.wr_spread: wr_queue.extend((j, i) for i in range(16))
            else: put_wo(j)
        else: tile_wo(j)
    def warm_wo(i0, n):
        vm.room(n)
        for i in range(i0, i0 + n):
            a(f"s_mul_i32 s{S_SO}, s{S_B}, 28672")
            a(f"s_add_u32 s{S_SO}, s{S_SO}, {i*1024}")
            vm.issue(f"buffer_load_dwordx4 v[36:39], v32, s[{S_WO}:{S_WO+3}], s{S_SO} offen{ntwarm}", ("warm", i))
    def code_pf(lo, hi, tagn):
        a(f"s_getpc_b64 s[{S_PC}:{S_PC+1}]")
        lab = f"L_pc_{tagn}"
        a.label(lab)
        a(f"s_add_u32 s{S_PC}, s{S_PC}, {lo}-{lab}")
        a(f"s_addc_u32 s{S_PC+1}, s{S_PC+1}, -1" if False else f"s_addc_u32 s{S_PC+1}, s{S_PC+1}, ({lo}-{lab})>>32")
        a(f"s_mov_b32 s{S_PC+2}, {hi}-{lo}")
        a(f"s_mov_b32 s{S_PC+3}, 0x20000")
        a(f"s_lshr_b32 s{S_SO2}, s2, 3")
        a(f"s_mul_i32 s{S_SO2}, s{S_SO2}, 3072")
        vm.room(3)
        for i in range(3):
            vm.issue(f"buffer_load_dwordx4 v[36:39], v32, s[{S_PC}:{S_PC+3}], s{S_SO2} offen offset:{i*1024}", ("pf", tagn, i))

    fused = cfg.fused and not cfg.dump
    if fused:
        emit_cnt_srd(a)
        a("s_mov_b32 s48, s82"); a("s_mov_b32 s49, s83")
        a("s_mov_b32 s50, 256"); a("s_mov_b32 s51, 0x20000")
        a(f"s_lshl_b32 s52, s{S_BR}, 3")
        a(f"s_add_u32 s52, s52, s{S_B}")
        a("s_lshl_b32 s52, s52, 4")
        a(f"s_cmp_lg_u32 s{S_H}, 0")
        a("s_cbranch_scc1 L_noinit")
        a(f"v_lshlrev_b32 v33, 12, v{V_LANE}")
        a("v_mov_b32 v34, 0")
        a("s_mov_b64 exec, 7")
        a("buffer_store_dword v34, v33, s[84:87], 0 offen sc1")
        a("s_mov_b64 exec, -1")
        a.label("L_noinit")
    if cfg.warm2:
        a(f"v_lshlrev_b32 v34, 4, v{LP}")
        a(f"v_lshl_add_u32 v34, v{LH}, 13, v34")
        a(f"s_mul_i32 s76, s{S_B}, {56*8192}")
        a(f"s_add_u32 s76, s76, {28*8192}")
        for i in range(14):
            vm.issue(f"buffer_load_dwordx4 v[36:39], v34, s[{S_WQ}:{S_WQ+3}], s76 offen{ntwarm}", ("warm2", i))
            if i < 13: a(f"s_add_u32 s76, s76, {2*8192}")
    tile_w(0); xstamp(1)
    if cfg.code_pf: code_pf(KNAME, "L_code_end", "all")
    tile_w(1); xstamp(2)
    emit_setup_late(a, cfg, True)
    for i in range(8):
        a(f"v_add_u32 v{T0}, {2*i}, v{LH}")
        a(f"v_xor_b32 v{T0}, v{T0}, v{LP}")
        a(f"v_lshlrev_b32 v{T0}, 4, v{T0}")
        a(f"v_lshl_add_u32 v{VK+i}, v{LH}, 9, v{T0}")
    for i in range(4):
        chunkpat(i)
        a(f"v_lshlrev_b32 v{T1}, 4, v{T0}")
        a(f"v_lshl_add_u32 v{VV+i}, v{LH}, 9, v{T1}")
        a(f"v_lshrrev_b32 v6, 4, v{T0}")
        a(f"v_lshl_add_u32 v6, v6, 5, v{LH}")
        a(f"v_mul_u32_u24 v6, 896, v6")
        a(f"v_and_b32 v7, 15, v{T0}")
        a(f"v_lshl_add_u32 v{VO+i}, v7, 4, v6")
        a(f"v_lshrrev_b32 v6, 3, v{T0}")
        a(f"v_lshl_add_u32 v6, v6, 5, v{LH}")
        a(f"v_mul_u32_u24 v6, 896, v6")
        a(f"v_and_b32 v7, 7, v{T0}")
        a(f"v_lshl_add_u32 v{VO3+i}, v7, 4, v6")
    setup_xb()
    if cfg.stagger:
        if cfg.cls_mode == "b":
            a(f"s_mul_i32 s53, s{S_B}, {cfg.ncls}")
            a("s_lshr_b32 s53, s53, 3")
        else:
            a(f"s_mov_b32 s53, s{S_BR}")
    tile_w(2)
    xstamp(3)
    kv_after_pb = KVSCHED[cfg.kvsched]
    for name, idx in barrier_list(cfg):
        if name == "PB":
            if idx == 0: vm.need(("W", 0)); vm.need(("W", 1))
            elif idx + 1 <= 13: vm.need(("W", idx + 1))
            if idx == cfg.xb_read: vm.need(("XB", 2))
        elif name == "B":
            t = idx
            if t == -1:
                vm.need(("K", 0)); vm.need(("K", 1))
            else:
                if t + 2 <= 31: vm.need(("K", t + 2))
                vm.need(("V", t))
            if t == 31:
                need_wo(0); need_wo(1)
        else:
            j = idx
            need_wo(min(j + 1, 13))
            if j == ntb(cfg) - 1:
                assert not wr_queue
                for jj in range(14): need_wo(jj)
        a("s_barrier")
        if cfg.stamps:
            stamp_idx[0] += 1
            a("s_memrealtime s[62:63]")
            a("s_waitcnt lgkmcnt(0)")
            a(f"v_writelane_b32 v56, s62, {stamp_idx[0]}")
            a("s_memtime s[62:63]")
            a("s_waitcnt lgkmcnt(0)")
            a(f"v_writelane_b32 v59, s62, {stamp_idx[0]}")
        if name == "PB" and idx == 0 and fused:
            a(f"s_cmp_lg_u32 s{S_H}, 0")
            a("s_cbranch_scc1 L_noinit2")
            a("v_mov_b32 v34, 1")
            a("s_mov_b64 exec, 1")
            a("buffer_atomic_add v34, off, s[48:51], s52")
            a("s_mov_b64 exec, -1")
            a.label("L_noinit2")
        if name == "PB":
            if idx + 3 <= 13: tile_w(idx + 3)
            for part in XBSCHED[cfg.xbsched].get(idx, []): tile_xb(part)
            for k, t in kv_after_pb.get(idx, []): tile_kv(k, t)
        elif name == "B":
            t = idx
            if t >= 0:
                if t + 4 <= 31: tile_kv("K", t + 4)
                if t >= 1 and t + 3 <= 31: tile_kv("V", t + 3)
            if cfg.warm_wo and cfg.warm_t0 <= t <= cfg.warm_t0 + 6:
                warm_wo((t - cfg.warm_t0) * 4, 4)
            if cfg.code_pf and t == 25: code_pf("L_tail_code", "L_tail_end", "tail")
            if fused and t == 10:
                vm.room(1)
                a("s_mov_b64 exec, 1")
                vm.issue(f"buffer_load_dword v35, off, s[48:51], s52 sc1", ("initflag",))
                a("s_mov_b64 exec, -1")
            if fused and t == 14:
                vm.need(("initflag",))
                a("v_readfirstlane_b32 s90, v35")
                a("s_nop 3")
                a("s_cmp_ge_u32 s90, 1")
                a("s_cbranch_scc1 L_init_ok")
                a("s_mov_b64 exec, 1")
                a("s_mov_b32 s89, 0")
                a.label("L_init_poll")
                a("buffer_load_dword v35, off, s[48:51], s52 sc1")
                a("s_waitcnt vmcnt(0)")
                a("v_readfirstlane_b32 s90, v35")
                a("s_add_u32 s89, s89, 1")
                a("s_cmp_ge_u32 s90, 1")
                a("s_cbranch_scc1 L_init_done")
                a("s_cmp_ge_u32 s89, 0x40000")
                a("s_cbranch_scc1 L_init_done")
                a("s_sleep 8")
                a("s_branch L_init_poll")
                a.label("L_init_done")
                a("s_mov_b64 exec, -1")
                a.label("L_init_ok")
            nreg = 14 - NREG0
            k = t - cfg.wo_reg_t0
            if 0 <= k < 2 * nreg:
                load_wo_reg(NREG0 + k // 2, 8 * (k & 1), 8)
            if t == 26: tile_wo_any(0)
            if t == 27: tile_wo_any(1)
            if t == 28: tile_wo_any(2)
            if t == 29: tile_wo_any(3); tile_wo_any(4)
            if t == 30: tile_wo_any(5); tile_wo_any(6)
            if t == 31: tile_wo_any(7); tile_wo_any(8)
        else:
            j = idx
            if j == 0: tile_wo_any(9)
            if 1 <= j <= 4: tile_wo_any(9 + j)
            if cfg.wr_spread and j < ntb(cfg) - 1:
                put_wo_some(cfg.wr_spread if j < ntb(cfg) - 2 else 999)
            if j == 5 and cfg.fused and not cfg.dump:
                a(f"v_lshlrev_b32 v33, 2, v{V_LANE}")
                a(f"v_add_u32 v33, {VS[0]}, v33")
                a("v_mov_b32 v34, 0")
                a("ds_write_b32 v33, v34")
                a("s_waitcnt lgkmcnt(0)")
    a("s_waitcnt vmcnt(0)")
    if cfg.fused and not cfg.dump:
        emit_red_setup(a, cfg)
        for p in range(2):
            emit_poll(a, cfg, p)
            xstamp(4 + p)
            for e in range(2):
                a(f"s_add_u32 s90, s{S_H}, {16*e}")
                a(f"s_lshr_b32 s{96+2*e}, s90, 2")
                a("s_and_b32 s90, s90, 3")
                a(f"s_add_u32 s{97+2*e}, s90, {4*p}")
            emit_reduce_frags(a, cfg, 2)
        emit_poll(a, cfg, 2)
        xstamp(6)
        if not cfg.decouple: a("s_barrier")
        emit_final_reduce(a, cfg)
        xstamp(7)
    if cfg.stamps:
        if not (cfg.fused and not cfg.dump): a("s_barrier")
        a("s_memrealtime s[62:63]")
        a("s_waitcnt lgkmcnt(0)")
        a(f"v_writelane_b32 v56, s62, 62")
        a("s_mov_b32 s76, s72"); a("s_mov_b32 s77, s73")
        a("s_mov_b32 s78, 0x10000000"); a("s_mov_b32 s79, 0x20000")
        a("s_lshl_b32 s74, s2, 8")
        a("s_add_u32 s74, s74, 0x4000000")
        a(f"v_lshlrev_b32 v57, 2, v{V_LANE}")
        a("buffer_store_dword v56, v57, s[76:79], s74 offen")
        a("s_add_u32 s74, s74, 0x100000")
        a("buffer_store_dword v58, v57, s[76:79], s74 offen")
        a("s_add_u32 s74, s74, 0x100000")
        a("buffer_store_dword v59, v57, s[76:79], s74 offen")
        a("s_waitcnt vmcnt(0)")
        if cfg.dbg_stamps >= 0:
            a(f"s_cmp_lg_u32 s2, {cfg.dbg_stamps}")
            a("s_cbranch_scc1 L_nodbg")
            sel = [(56, 1), (56, 16), (56, 24), (56, 32), (56, 40), (56, 47), (56, 48), (56, 56), (58, 4), (58, 5), (58, 6), (58, 7)]
            slots = [1, 2, 3, 5, 6, 7, 9, 10, 11, 13, 14, 15]
            a("v_readlane_b32 s91, v56, 0")
            for (r, ln), sl in zip(sel, slots):
                a(f"v_readlane_b32 s90, v{r}, {ln}")
                a("s_nop 3")
                a("s_sub_u32 s90, s90, s91")
                a("v_mov_b32 v60, s90")
                a(f"s_mov_b32 s89, {4*sl}")
                a("s_mov_b64 exec, 1")
                a("buffer_store_dword v60, off, s[48:51], s89")
                a("s_mov_b64 exec, -1")
                a("s_nop 1")
            a("s_waitcnt vmcnt(0)")
            a.label("L_nodbg")
    a("s_branch L_end")

def emit_cnt_srd(a):
    a(f"s_lshl_b32 s84, s{S_BR}, 3")
    a(f"s_add_u32 s84, s84, s{S_B}")
    a("s_lshl_b32 s84, s84, 14")
    a(f"s_add_u32 s84, s84, {CNT_OFF}")
    a("s_add_u32 s84, s72, s84")
    a("s_addc_u32 s85, s73, 0")
    a("s_mov_b32 s86, 16384"); a("s_mov_b32 s87, 0x20000")

def emit_red_setup(a, cfg):
    lane = V_LANE
    emit_cnt_srd(a)
    a(f"s_lshl_b32 s88, s{S_BR}, 3")
    a(f"s_add_u32 s88, s88, s{S_B}")
    a(f"s_mul_i32 s45, s88, {16*129024}")
    a("s_add_u32 s44, s72, s45")
    a("s_addc_u32 s45, s73, 0")
    a(f"s_mov_b32 s46, {16*129024}")
    a("s_mov_b32 s47, 0x20000")
    a("s_mov_b32 s92, s80"); a("s_mov_b32 s93, s81")
    a(f"s_mov_b32 s94, {8*144*896*2}"); a("s_mov_b32 s95, 0x20000")
    a(f"s_mul_i32 s64, s88, 9216")
    a(f"s_add_u32 s64, s64, {SCL_OFF}")
    a("s_add_u32 s64, s72, s64")
    a("s_addc_u32 s65, s73, 0")
    a("s_mov_b32 s66, 9216"); a("s_mov_b32 s67, 0x20000")

_lab = [0]
def emit_poll(a, cfg, p):
    _lab[0] += 1; n = _lab[0]
    a("s_mov_b64 exec, 1")
    a("s_mov_b32 s89, 0")
    a.label(f"L_poll{n}")
    a(f"s_mov_b32 s88, {4096*p}")
    a(f"buffer_load_dword v2, off, s[84:87], s88{cfg.poll_flags}")
    a("s_waitcnt vmcnt(0)")
    a("v_readfirstlane_b32 s90, v2")
    a("s_add_u32 s89, s89, 1")
    a("s_cmp_ge_u32 s90, 16")
    a(f"s_cbranch_scc1 L_poll_done{n}")
    a("s_cmp_ge_u32 s89, 0x40000")
    a(f"s_cbranch_scc1 L_poll_done{n}")
    a(f"s_sleep {cfg.poll_sleep}")
    a(f"s_branch L_poll{n}")
    a.label(f"L_poll_done{n}")
    a("s_mov_b64 exec, -1")

def emit_reduce_frags(a, cfg, nf):
    lane = V_LANE
    sc = cfg.scale_red
    nper = 20 if sc else 16
    a(f"v_lshlrev_b32 v2, 4, v{lane}")
    if sc:
        a(f"v_and_b32 v5, 15, v{lane}")
        a("v_lshlrev_b32 v5, 6, v5")
    for e in range(nf):
        if sc:
            a(f"s_lshl_b32 s91, s{96+2*e}, 10")
            for j in range(4):
                r = 192 + 16*e + 4*j
                a(f"buffer_load_dwordx4 v[{r}:{r+3}], v5, s[64:67], s91 offen offset:{16*j}{cfg.rd_flags}")
        a(f"s_mul_i32 s90, s{96+2*e}, 14")
        a(f"s_add_u32 s90, s90, s{97+2*e}")
        a("s_lshl_b32 s91, s90, 10")
        for hh in range(16):
            r = 64 + 64*e + 4*hh
            a(f"buffer_load_dwordx4 v[{r}:{r+3}], v2, s[44:47], s91 offen{cfg.rd_flags}")
            if hh < 15: a(f"s_add_u32 s91, s91, 129024")
    a(f"v_and_b32 v3, 15, v{lane}")
    a("v_mul_u32_u24 v3, 1792, v3")
    a(f"v_lshrrev_b32 v4, 4, v{lane}")
    a("v_lshl_add_u32 v3, v4, 3, v3")
    for e in range(nf):
        a(f"s_mul_i32 s100, s{S_B}, 144")
        a(f"s_lshl_b32 s90, s{96+2*e}, 4")
        a("s_add_u32 s100, s100, s90")
        a("s_mul_i32 s100, s100, 1792")
        a(f"s_lshl_b32 s90, s{97+2*e}, 6")
        a("s_add_u32 s100, s100, s90")
        a(f"s_mul_i32 s90, s{S_BR}, 896")
        a(f"s_add_u32 s{96+2*e}, s100, s90")
    for e in range(nf):
        acc = 32 + 8*e
        for hh in range(16):
            a(f"s_waitcnt vmcnt({nper*nf - 1 - nper*e - (nper - 16) - hh})")
            for r in range(4):
                src = 64 + 64*e + 4*hh + r
                if hh == 0 and not sc:
                    a(f"v_lshlrev_b32 v{acc+2*r}, 16, v{src}")
                    a(f"v_and_b32 v{acc+2*r+1}, 0xffff0000, v{src}")
                else:
                    t = 8 + 2*r
                    a(f"v_lshlrev_b32 v{t}, 16, v{src}")
                    a(f"v_and_b32 v{t+1}, 0xffff0000, v{src}")
            for r in range(4):
                t = 8 + 2*r
                A, T_ = f"v[{acc+2*r}:{acc+2*r+1}]", f"v[{t}:{t+1}]"
                if sc:
                    q = 192 + 16*e + hh
                    q0 = q & ~1
                    sel = q & 1
                    S_ = f"v[{q0}:{q0+1}]"
                    if hh == 0:
                        a(f"v_pk_mul_f32 {A}, {T_}, {S_} op_sel:[0,{sel}] op_sel_hi:[1,{sel}]")
                    else:
                        a(f"v_pk_fma_f32 {A}, {T_}, {S_}, {A} op_sel:[0,{sel},0] op_sel_hi:[1,{sel},1]")
                elif hh > 0:
                    a(f"v_pk_add_f32 {A}, {A}, {T_}")
        for r in range(4):
            a(f"v_cvt_pk_bf16_f32 v{48+4*e+r}, v{acc+2*r}, v{acc+2*r+1}")
    for e in range(nf):
        a(f"buffer_store_dwordx2 v[{48+4*e}:{49+4*e}], v3, s[92:95], s{96+2*e} offen{cfg.out_flags}")
        a(f"buffer_store_dwordx2 v[{50+4*e}:{51+4*e}], v3, s[92:95], s{96+2*e} offen offset:32{cfg.out_flags}")

def emit_final_reduce(a, cfg):
    _lab[0] += 1; n = _lab[0]
    a(f"s_lshl_b32 s90, s{S_WID}, 4")
    a(f"s_add_u32 s90, s90, s{S_H}")
    a("s_cmp_ge_u32 s90, 62")
    a(f"s_cbranch_scc1 L_fin_done{n}")
    a("s_lshr_b32 s96, s90, 2")
    a("s_and_b32 s97, s90, 3")
    a("s_add_u32 s97, s97, 8")
    a("s_sub_u32 s91, s90, 36")
    a("s_lshr_b32 s98, s91, 1")
    a("s_and_b32 s99, s91, 1")
    a("s_add_u32 s99, s99, 12")
    a("s_cmp_ge_u32 s90, 36")
    a("s_cselect_b32 s96, s98, s96")
    a("s_cselect_b32 s97, s99, s97")
    a("s_sub_u32 s91, s90, 54")
    a("s_cmp_ge_u32 s90, 54")
    a("s_cselect_b32 s96, 8, s96")
    a("s_cselect_b32 s97, s91, s97")
    emit_reduce_frags(a, cfg, 1)
    a.label(f"L_fin_done{n}")

def mfma(a, D, A, B, C=None):
    a(f"v_mfma_f32_16x16x32_bf16 {D}, {A}, {B}, {C if C is not None else D}")

def xlane_max(a, r, tmp):
    a(f"v_mov_b32 v{tmp}, v{r}")
    a("s_nop 1")
    a(f"v_permlane32_swap_b32 v{r}, v{tmp}")
    a("s_nop 1")
    a(f"v_max_f32 v{r}, v{r}, v{tmp}")
    a(f"v_mov_b32 v{tmp}, v{r}")
    a("s_nop 1")
    a(f"v_permlane16_swap_b32 v{r}, v{tmp}")
    a("s_nop 1")
    a(f"v_max_f32 v{r}, v{r}, v{tmp}")

def emit_compute(a, cfg):
    rare_blocks = []
    emit_compute_main(a, cfg, rare_blocks)
    emit_rare(a, cfg, rare_blocks)

def emit_compute_main(a, cfg, rare_blocks):
    lg = Lgkm(a)
    lane = V_LANE
    T0, T1 = V_T0, V_T1
    NKP, NVP = cfg.nkp, cfg.nvp
    a(f"v_lshrrev_b32 v{T0}, 3, v{lane}")
    a(f"v_and_b32 v{T1}, 7, v{lane}")
    a(f"v_lshrrev_b32 v22, 1, v{T0}")
    a(f"v_xor_b32 v22, v22, v{T1}")
    a(f"v_mul_u32_u24 v23, 896, v{T0}")
    a(f"v_lshl_add_u32 v24, v22, 4, v23")
    a(f"v_xor_b32 v22, 4, v22")
    a(f"v_lshl_add_u32 v25, v22, 4, v23")
    a(f"v_add_u32 v25, {8*896}, v25")
    a(f"s_mul_i32 s74, s{S_WID}, {XAW}")
    a(f"s_mul_i32 s75, s{S_WID}, {XW}")
    vm = Vm(a)
    ntx = " nt" if cfg.nt_x else ""
    if cfg.warm2:
        ntwarm = " nt" if cfg.nt_warm else ""
        a(f"v_lshlrev_b32 v26, 4, v{lane}")
        a(f"s_cmp_eq_u32 s{S_WID}, 2")
        a("s_cbranch_scc1 L_w2q")
        a(f"s_and_b32 s76, s{S_H}, 3")
        a("s_mul_i32 s76, s76, 32256")
        a(f"s_lshl_b32 s77, s{S_WID}, 14")
        a("s_add_u32 s76, s76, s77")
        for i in range(16):
            a(f"buffer_load_dwordx4 {ar(A_DUMMY,4)}, v26, s[{S_X}:{S_X+3}], s76 offen{ntwarm}")
            if i < 15: a("s_add_u32 s76, s76, 1024")
        a("s_branch L_w2done")
        a.label("L_w2q")
        a(f"v_lshrrev_b32 v27, 5, v{lane}")
        a(f"v_and_b32 v26, 31, v{lane}")
        a("v_lshlrev_b32 v26, 4, v26")
        a("v_lshl_add_u32 v26, v27, 13, v26")
        a(f"s_mul_i32 s76, s{S_B}, {56*8192}")
        for i in range(14):
            a(f"buffer_load_dwordx4 {ar(A_DUMMY,4)}, v26, s[{S_WQ}:{S_WQ+3}], s76 offen{ntwarm}")
            if i < 13: a(f"s_add_u32 s76, s76, {2*8192}")
        a.label("L_w2done")
    for sp in range(4):
        for qt in range(3):
            for hb in range(2):
                a(f"s_add_u32 m0, s74, {((qt*2 + hb)*4 + sp)*1024}")
                a(f"s_add_u32 s{S_SO}, s75, {qt*14336 + sp*128}")
                vm.issue(f"buffer_load_dwordx4 v{24+hb}, s[{S_X}:{S_X+3}], s{S_SO} offen{ntx} lds", ("x",))
    if cfg.warm_wq and not cfg.warm2:
        ntwarm = " nt" if cfg.nt_warm else ""
        a(f"v_lshrrev_b32 v{T0}, 5, v{lane}")
        a(f"v_and_b32 v{T1}, 31, v{lane}")
        a(f"v_lshlrev_b32 v{T1}, 4, v{T1}")
        a(f"v_lshl_add_u32 v26, v{T0}, 13, v{T1}")
        a(f"s_mul_i32 s75, s{S_B}, 48")
        a(f"s_lshl_b32 s76, s{S_WID}, 4")
        a("s_add_u32 s75, s75, s76")
        a("s_add_u32 s75, s75, 64")
        a("s_lshl_b32 s75, s75, 13")
        for i in range(8):
            vm.issue(f"buffer_load_dwordx4 {ar(A_DUMMY,4)}, v26, s[{S_WQ}:{S_WQ+3}], s75 offen{ntwarm}", ("warm", i))
            if i < 7: a(f"s_add_u32 s75, s75, {2*8192}")
    emit_setup_late(a, cfg, False)
    g_, i15 = 22, 23
    a(f"v_lshrrev_b32 v{g_}, 4, v{lane}")
    a(f"v_and_b32 v{i15}, 15, v{lane}")
    a(f"v_lshrrev_b32 v26, 1, v{i15}")
    a(f"v_lshrrev_b32 v27, 3, v{i15}")
    a(f"v_and_b32 v28, 7, v{i15}")
    a(f"v_lshlrev_b32 v28, 7, v28")
    a(f"s_mul_i32 s74, s{S_WID}, {XAW}")
    a(f"s_mul_i32 s75, s{S_WID}, {XBW}")
    a(f"s_add_u32 s75, s75, {XBB}")
    a(f"v_lshl_add_u32 v29, v27, 12, v28")
    a(f"v_add_u32 v29, s74, v29")
    a(f"v_mul_u32_u24 v27, 3072, v27")
    a(f"v_add_u32 v27, v27, v28")
    a(f"v_add_u32 v27, s75, v27")
    for e in range(2):
        a(f"v_add_u32 v{T0}, {4*e}, v{g_}")
        a(f"v_xor_b32 v{T0}, v{T0}, v26")
        a(f"v_lshl_add_u32 v{V_XB+e}, v{T0}, 4, v29")
        a(f"v_lshl_add_u32 v{V_XB2+e}, v{T0}, 4, v27")
    for j in range(4):
        a(f"v_add_u32 v{T0}, {4*j}, v{g_}")
        a(f"v_xor_b32 v{T0}, v{T0}, v{i15}")
        a(f"v_lshlrev_b32 v{T0}, 4, v{T0}")
        a(f"v_lshl_add_u32 v{V_KB+j}, v{i15}, 9, v{T0}")
    rp, cc, row, rho = 26, 27, 28, 29
    a(f"v_lshrrev_b32 v{rp}, 2, v{i15}")
    a(f"v_and_b32 v{cc}, 3, v{i15}")
    a(f"v_lshl_add_u32 v{row}, v{g_}, 2, v{rp}")
    a(f"v_and_b32 v{rho}, 7, v{row}")
    a(f"v_lshrrev_b32 v{T0}, 1, v{cc}")
    a(f"v_lshlrev_b32 v{T0}, 4, v{T0}")
    a(f"v_and_b32 v{T1}, 1, v{cc}")
    a(f"v_lshl_add_u32 v{T0}, v{T1}, 3, v{T0}")
    a(f"v_lshl_add_u32 v30, v{row}, 9, v{T0}")
    for j in range(8):
        a(f"v_xor_b32 v{T0}, {j}, v{rho}")
        a(f"v_lshl_add_u32 v{T0}, v{T0}, 5, v30")
        a(f"v_add_u32 v{V_VB+j}, {VREG}, v{T0}")
    a(f"v_lshlrev_b32 v31, 1, v{rho}")
    a(f"v_lshlrev_b32 v30, 9, v{row}")
    for j in range(4):
        a(f"v_add_u32 v{T0}, {4*j}, v{cc}")
        a(f"v_xor_b32 v{T0}, v{T0}, v31")
        a(f"v_lshl_add_u32 v{T0}, v{T0}, 4, v30")
        a(f"v_add_u32 v{V_WB+j}, {WBASE}, v{T0}")
    a(f"s_mov_b32 s{S_THR}, {hex(f2u(cfg.thr))}")

    def wread(s, u, half):
        T = u >> 1
        off = (WRING[s % 4] - WBASE) + (T >> 2) * 256 + (u & 1) * 8 + half * 8192
        r = A_W + 4 * u + 2 * half
        lg.issue(f"ds_read_b64_tr_b16 {ar(r,2)}, v{V_WB + (T & 3)} offset:{off}", ("w", s, u, half))
    def xread(s, qt):
        sp = s >> 1
        if sp < 4:
            off, base = qt * 8192 + sp * 1024, V_XB
        else:
            off, base = qt * 6144 + (sp - 4) * 1024, V_XB2
        lg.issue(f"ds_read_b128 {ar(Xreg(s, qt), 4)}, v{base + (s & 1)} offset:{off}", ("x", s, qt))
    NWP = 6
    n_after = 8 if (cfg.warm_wq and not cfg.warm2) else 0
    a(f"s_waitcnt vmcnt({n_after})")
    for qt in range(3): xread(0, qt)
    for s in range(14):
        a("s_barrier")
        pre_done = s >= 1
        if not pre_done:
            if s == 0: lg.need(("x", 0, 2))
            for u in range(NWP - (2 if s == 0 else 0)):
                wread(s, u, 0); wread(s, u, 1)
        nfirst = NWP - (2 if s == 0 else 0)
        mf = []
        for u in range(16):
            for qt in range(3):
                pre = None
                if qt == 0 and u % 2 == 0:
                    pre = (lambda s=s, u=u: lg.need(("w", s, u + 1, 1)))
                D = v(QAcc(u, qt), 4)
                mf.append((pre, (lambda D=D, s=s, u=u, qt=qt: mfma(a, D, ar(A_W + 4*u, 4), ar(Xreg(s, qt), 4), "0" if s == 0 else None))))
        st = []
        for u in range(nfirst, 16):
            for h in range(2):
                st.append(It((lambda s=s, u=u, h=h: wread(s, u, h)), 4, max(0, 3*(u - NWP) + h), max(0, 3*(u - 3))))
        nxt_pre = (s + 1 <= 13)
        if nxt_pre:
            for u in range(NWP):
                for h in range(2):
                    st.append(It((lambda s=s, u=u, h=h: wread(s + 1, u, h)), 4, 3*(16 + u - NWP) + h))
        streams = [st]
        if s == 0:
            xs = [It((lambda ss=ss, qt=qt: xread(ss, qt)), 4, ((ss - 1)*3 + qt) * 2) for ss in range(1, 8) for qt in range(3)]
            streams.append(xs)
        if s in (cfg.xb_read, cfg.xb_read + 1) and cfg.xb_one == 0:
            lo = 8 + 3*(s - cfg.xb_read)
            xs = [It((lambda ss=ss, qt=qt: xread(ss, qt)), 4, ((ss - lo)*3 + qt) * 5) for ss in range(lo, lo + 3) for qt in range(3)]
            streams.append(xs)
        if s == cfg.xb_read and cfg.xb_one:
            xs = [It((lambda ss=ss, qt=qt: xread(ss, qt)), 4, ((ss - 8)*3 + qt) * 2) for ss in range(8, 14) for qt in range(3)]
            streams.append(xs)
        sched(a, mf, streams)
        if s == 0:
            lg.need(("x", 7, 2))
        if s == cfg.xb_read + (0 if cfg.xb_one else 1):
            lg.need(("x", 13, 2))
    lg.drain()
    if cfg.dump == "qacc":
        emit_dump_v(a, cfg, V_QACC, 192); return
    a(f"s_mov_b32 s74, {hex(f2u(QSCALE))}")
    a(f"s_mov_b32 s75, {hex(f2u(QSCALE))}")
    a(f"v_mov_b32 v{T0}, 0x3f803f80")
    for r in range(4):
        a(f"v_accvgpr_write_b32 a{A_ONES+r}, v{T0}")
    a("s_nop 3")
    for i in range(23, -1, -1):
        src = V_QACC + 8 * i
        dst = V_Q + 4 * i
        for r in range(4):
            a(f"v_pk_mul_f32 {v(src + 2*r, 2)}, {v(src + 2*r, 2)}, s[74:75]")
        for r in range(3, -1, -1):
            a(f"v_cvt_pk_bf16_f32 v{dst + r}, v{src + 2*r}, v{src + 2*r + 1}")
    if cfg.dump == "q":
        emit_dump_v(a, cfg, V_Q, 96); return

    def kread(t, f):
        aa, T = f >> 3, f & 7
        off = KS[t % 4] + aa * 8192 + (T >> 2) * 256
        lg.issue(f"ds_read_b128 {v(V_KBUF + 4*(f % 8), 4)}, v{V_KB + (T & 3)} offset:{off}", ("k", t, f))
    def vread(t, u, half):
        off = (VS[t % 4] - VREG) + (u >> 3) * 256 + half * 8192
        r = V_VBUF + 4 * (u % 8) + 2 * half
        lg.issue(f"ds_read_b64_tr_b16 {v(r,2)}, v{V_VB + (u & 7)} offset:{off}", ("v", t, u, half))

    def exp_items(t):
        par = t & 1
        st = []
        for qt in range(3):
            for aa in range(2):
                s = Sreg(par, qt, aa)
                for hh in range(2):
                    e0, e1 = s + 2*hh, s + 2*hh + 1
                    pr = V_P + qt*4 + aa*2 + hh
                    st.append(It((lambda e=e0: a(f"v_exp_f32 v{e}, v{e}")), 8))
                    st.append(It((lambda e=e1: a(f"v_exp_f32 v{e}, v{e}")), 8))
                    st.append(("cvt", It((lambda pr=pr, e0=e0, e1=e1: a(f"v_cvt_pk_bf16_f32 v{pr}, v{e0}, v{e1}")), 4)))
        exps = [x for x in st if not isinstance(x, tuple)]
        cvts = [x[1] for x in st if isinstance(x, tuple)]
        return exps, cvts

    def phaseA(t):
        doqk = t + 1 <= 31
        doexp = t >= 0
        if doexp: exps, cvts = exp_items(t)
        if not doqk:
            vq = [(u, h) for u in range(NVP) for h in range(2)]
            for grp in range(12):
                exps[2*grp].fn(); exps[2*grp+1].fn()
                if grp > 0: cvts[grp-1].fn()
                if vq: vread(t, *vq.pop(0))
            a("s_nop 0")
            cvts[11].fn()
            while vq: vread(t, *vq.pop(0))
            return
        par1 = (t + 1) & 1
        mf = []
        for m in range(48):
            aa, T, qt = m // 24, (m % 24) // 3, m % 3
            f = aa * 8 + T
            pre = None
            if qt == 0 and f % 2 == 0:
                pre = (lambda f=f: lg.need(("k", t + 1, f + 1)))
            C = None
            if T == 0: C = "0" if t == -1 else v(V_CM + 4*qt, 4)
            D = v(Sreg(par1, qt, aa), 4)
            mf.append((pre, (lambda D=D, f=f, qt=qt, T=T, C=C: mfma(a, D, v(V_KBUF + 4*(f % 8), 4), v(Qreg(qt, T), 4), C))))
        ks = [It((lambda f=f: kread(t + 1, f)), 4, max(0, 3*(f - 8) + 2), 3*f - 8) for f in range(NKP, 16)]
        streams = [ks]
        if doexp:
            for i, e in enumerate(exps):
                e.earliest = 4*(i // 2) + (i & 1); e.deadline = e.earliest
            for i, c in enumerate(cvts):
                c.earliest = 4*i + 2; c.deadline = min(4*i + 5, 47)
            vs = [It((lambda u=u, h=h: vread(t, u, h)), 4, 26) for u in range(NVP) for h in range(2)]
            streams = [exps, cvts, ks, vs]
        sched(a, mf, streams)

    def phaseB(t, extra=None):
        first = (t == 0)
        docheck = t + 1 <= 31
        par1 = (t + 1) & 1
        Z = "0" if first else None
        mf = []
        for qt in range(3):
            mf.append((None, (lambda qt=qt: mfma(a, ar(A_L + 4*qt, 4), ar(A_ONES, 4), v(V_P + 4*qt, 4), Z))))
        for m in range(48):
            u, qt = m // 3, m % 3
            pre = None
            if qt == 0 and u % 2 == 0:
                pre = (lambda u=u: lg.need(("v", t, u + 1, 1)))
            mf.append((pre, (lambda u=u, qt=qt: mfma(a, ar(Oreg(u, qt), 4), v(V_VBUF + 4*(u % 8), 4), v(V_P + 4*qt, 4), Z))))
        vs = []
        for u in range(NVP, 16):
            e = max(0 if u < 8 else 3 + 3*(u - 8) + 2, 3 + 3*(u - NVP - 1))
            for h in range(2):
                vs.append(It((lambda u=u, h=h: vread(t, u, h)), 4, e + h, 3 + 3*u - 9))
        streams = [vs]
        if docheck:
            s0 = V_S[par1]; mx = V_TMP
            chk = [f"v_max3_f32 v{mx}, v{s0}, v{s0+1}, v{s0+2}"]
            for k in range(10):
                chk.append(f"v_max3_f32 v{mx}, v{mx}, v{s0+3+2*k}, v{s0+4+2*k}")
            chk.append(f"v_max_f32 v{mx}, v{mx}, v{s0+23}")
            chk.append(f"v_cmp_lt_f32 vcc, s{S_THR}, v{mx}")
            streams.append([It((lambda c=c: a(c)), 4, 6 + 2*i) for i, c in enumerate(chk)])
        if t + 2 <= 31:
            streams.append([It((lambda f=f: kread(t + 2, f)), 4, 30 + 2*f) for f in range(NKP)])
        if extra: streams += extra
        a("s_nop 1")
        sched(a, mf, streams)

    def check_branch(t, tag):
        a(f"s_cbranch_vccnz L_rare_{tag}")
        a.label(f"L_back_{tag}")
        rare_blocks.append((tag, (t + 1) & 1))

    a("s_barrier")
    for f in range(NKP): kread(0, f)
    phaseA(-1)
    for f in range(NKP): kread(1, f)
    a("s_nop 1")
    for qt in range(3):
        s0 = Sreg(0, qt, 0)
        mx = V_TMP + qt
        a(f"v_max3_f32 v{mx}, v{s0}, v{s0+1}, v{s0+2}")
        a(f"v_max3_f32 v{mx}, v{mx}, v{s0+3}, v{s0+4}")
        a(f"v_max3_f32 v{mx}, v{mx}, v{s0+5}, v{s0+6}")
        a(f"v_max_f32 v{mx}, v{mx}, v{s0+7}")
    for step in range(2):
        for qt in range(3): a(f"v_mov_b32 v{V_TMP+4+qt}, v{V_TMP+qt}")
        a("s_nop 0")
        for qt in range(3):
            a(f"v_permlane{32 if step == 0 else 16}_swap_b32 v{V_TMP+qt}, v{V_TMP+4+qt}")
        a("s_nop 0")
        for qt in range(3): a(f"v_max_f32 v{V_TMP+qt}, v{V_TMP+qt}, v{V_TMP+4+qt}")
    for qt in range(3):
        s0 = Sreg(0, qt, 0); mx = V_TMP + qt
        for r in range(8):
            a(f"v_sub_f32 v{s0+r}, v{s0+r}, v{mx}")
        for r in range(4):
            a(f"v_sub_f32 v{V_CM + 4*qt + r}, 0, v{mx}")
    if cfg.dump == "s0":
        lg.drain()
        emit_dump_v(a, cfg, V_S[0], 24, extra=(V_CM, 12)); return

    def iteration(t, tag):
        a("s_barrier")
        phaseA(t)
        phaseB(t)
        if t + 1 <= 31:
            check_branch(t, tag)

    iteration(0, "p0")
    q0 = list(lg.q)
    a(f"s_mov_b32 s{S_CNT}, 7")
    a.label("L_loop")
    for t in range(1, 5):
        iteration(t, f"l{t}")
    q1 = [(x[0], x[1] - 4) + x[2:] for x in lg.q]
    assert q0 == q1, (q0, q1)
    a(f"s_sub_u32 s{S_CNT}, s{S_CNT}, 1")
    a(f"s_cmp_lg_u32 s{S_CNT}, 0")
    a("s_cbranch_scc1 L_loop")
    lg.q = [(x[0], x[1] + 28) + x[2:] for x in q0]
    for x in lg.q: lg.issued.add(x)
    for f in range(16): lg.issued.add(("k", 30, f))
    a.label("L_tail_code")
    for t in range(29, 31):
        iteration(t, f"e{t}")

    def oconv_items(T, earliest=0):
        its = []
        for qt in range(3):
            tb = V_CT + 8 * qt
            for h in range(2):
                o = Oreg(2*T + h, qt)
                for r in range(4):
                    its.append(It((lambda d=tb + 4*h + r, s=o + r: a(f"v_accvgpr_read_b32 v{d}, a{s}")), 4, earliest))
            q = Qreg(qt, T)
            for r in range(4):
                its.append(It((lambda d=q + r, s=tb + 2*r: a(f"v_cvt_pk_bf16_f32 v{d}, v{s}, v{s+1}")), 4, earliest))
        return its

    def wo_base(j, jj):
        addr = WOSLOT[j]
        if addr < VREG: return VBK + jj, addr
        if addr < VREG + 65536: return V_VB + jj, addr - VREG
        return VBE + jj, addr - VREG - 65536
    steps = []
    for p in range(3):
        for T in range(8):
            steps.append((p, T, 4*p + T//2, T & 1, 8))
    for T in range(8):
        steps.append((3, T, 12 + T//4, T & 3, 4))
    frs = []
    for si, (p, T, j, tau, nu) in enumerate(steps):
        for u in range(nu):
            frs.append((si, p, T, j, tau, nu, u))
    FBN = 12
    def oread(k, half):
        si, p, T, j, tau, nu, u = frs[k]
        tp = (8*tau + u) if p < 3 else (4*tau + u)
        br, off = wo_base(j, tp & 7)
        off += (tp >> 3) * 256 + half * 8192
        r = A_WO + 4 * (k % FBN) + 2 * half
        lg.issue(f"ds_read_b64_tr_b16 {ar(r,2)}, v{br} offset:{off}", ("o", k, half))
    def accreg(p, u, qt):
        i = (u * 3 + qt) * 4
        if p == 0 or p == 2: return ("v", V_P0 + i)
        return ("a", i)
    def accstr(p, u, qt):
        f, r = accreg(p, u, qt)
        return v(r, 4) if f == "v" else ar(r, 4)
    slotc = [0]
    slog = []
    scale_red = cfg.fused and cfg.scale_red
    def conv_items(p, packed=False):
        its = []
        nu = 8 if p < 3 else 4
        for up in range(nu // 2):
            for qt in range(3):
                rl = V_RL + qt * 0
                rlp = f"v[{V_RL + 2*qt}:{V_RL + 2*qt + 1}]"
                f, _ = accreg(p, 0, 0)
                tb = V_CT + 12 * (slotc[0] % 2); slotc[0] += 1
                out = tb + 8
                if f == "a":
                    for h in range(2):
                        o = accreg(p, 2*up + h, qt)[1]
                        for r in range(4):
                            its.append(It((lambda d=tb + 4*h + r, s=o + r: a(f"v_accvgpr_read_b32 v{d}, a{s}"))))
                    srcs = [tb + 2*r for r in range(4)]
                else:
                    o0 = accreg(p, 2*up, qt)[1]; o1 = accreg(p, 2*up + 1, qt)[1]
                    srcs = [o0, o0 + 2, o1, o1 + 2]
                for sreg in (srcs if not scale_red else []):
                    if packed:
                        its.append(It((lambda s=sreg, rlp=rlp: a(f"v_pk_mul_f32 {v(s,2)}, {v(s,2)}, {rlp}"))))
                    else:
                        for k in range(2):
                            its.append(It((lambda s=sreg + k, qt=qt: a(f"v_mul_f32 v{s}, v{V_RL + 2*qt}, v{s}"))))
                for r, sreg in enumerate(srcs):
                    its.append(It((lambda d=out + r, s=sreg: a(f"v_cvt_pk_bf16_f32 v{d}, v{s}, v{s+1}"))))
                upair = 4*p + up
                its.append(It((lambda c=(qt*14 + upair)*1024: a(f"s_add_u32 s{S_SO}, s{S_WOFF}, {c}")), 4))
                its.append(It((lambda o=out, p=p: (a(f"buffer_store_dwordx4 {v(o,4)}, v{V_ST}, s[{S_WS}:{S_WS+3}], s{S_SO} offen{cfg.st_flags}"), slog.append(p))), 4))
        return its

    def cstamp(i):
        if cfg.stamps and cfg.cstamps:
            lg.drain()
            a("s_memrealtime s[62:63]")
            a("s_waitcnt lgkmcnt(0)")
            a(f"v_writelane_b32 v7, s62, {i}")
    svm = Vm(a)
    def signal_a(p, nafter):
        a(f"s_waitcnt vmcnt({nafter})")
        a("s_mov_b64 exec, 1")
        lg.issue(f"ds_add_rtn_u32 v6, v4, v5 offset:{4*p}", ("sig", p))
        a("s_mov_b64 exec, -1")
    def signal_b(p):
        lg.need(("sig", p))
        a("v_readfirstlane_b32 s90, v6")
        a("s_nop 3")
        a("s_cmp_eq_u32 s90, 2")
        a(f"s_cbranch_scc0 L_nosig{p}")
        a("s_mov_b64 exec, 1")
        a(f"s_mov_b32 s88, {4096*p}")
        a(f"buffer_atomic_add v5, off, s[84:87], s88")
        a("s_mov_b64 exec, -1")
        a.label(f"L_nosig{p}")
    a("s_barrier")
    phaseA(31)
    setup_its = []
    for j in range(8):
        setup_its.append(It((lambda j=j: a(f"v_subrev_u32 v{VBK+j}, {VREG}, v{V_VB+j}")), 4, 0))
        setup_its.append(It((lambda j=j: a(f"v_add_u32 v{VBE+j}, {VREG}, v{V_VB+j}")), 4, 0))
    NOP_ = cfg.nop
    ex1 = oconv_items(0, earliest=3 + 3*1 + 2 + 8)
    ex2 = oconv_items(1, earliest=3 + 3*3 + 2 + 8)
    pre_o = [It((lambda k=k, h=h: oread(k, h)), 4, 42) for k in range(NOP_) for h in range(2)]
    phaseB(31, extra=[setup_its, ex1 + ex2, pre_o])
    if cfg.dump == "o":
        a("s_nop 7")
        emit_dump_acc(a, cfg, 204); return
    a(f"v_lshlrev_b32 v{V_ST}, 4, v{lane}")
    a(f"s_mul_i32 s{S_WOFF}, s{S_WID}, {3*14*1024}")
    for qt in range(3):
        a(f"v_accvgpr_read_b32 v{V_RL+2*qt}, a{A_L + 4*qt}")
    for qt in range(3):
        a(f"v_rcp_f32 v{V_RL+2*qt}, v{V_RL+2*qt}")
    a("s_nop 0")
    for qt in range(3):
        a(f"v_mov_b32 v{V_RL+2*qt+1}, v{V_RL+2*qt}")
    if cfg.fused:
        a(f"v_mov_b32 v4, {VS[0]}")
        a("v_mov_b32 v5, 1")
        emit_red_setup(a, cfg)
    if scale_red:
        a(f"v_and_b32 v6, 15, v{lane}")
        a("v_lshlrev_b32 v6, 6, v6")
        a(f"s_mul_i32 s90, s{S_WID}, 3072")
        a(f"s_lshl_b32 s91, s{S_H}, 2")
        a("s_add_u32 s90, s90, s91")
        a("s_mov_b64 exec, 0xffff")
        for qt in range(3):
            a(f"buffer_store_dword v{V_RL+2*qt}, v6, s[64:67], s90 offen offset:{1024*qt}{cfg.st_flags}")
            slog.append(-1)
        a("s_mov_b64 exec, -1")

    cur_slot = -1
    nxt = NOP_
    pend = []
    store_log = slog
    stores_since = {q: (lambda q=q: sum(1 for i, x in enumerate(store_log) if i > max(k for k, y in enumerate(store_log) if y == q))) for q in range(4)}
    for si, (p, T, j, tau, nu) in enumerate(steps):
        if j != cur_slot:
            if j < ntb(cfg): a("s_barrier")
            cur_slot = j
        if T == 0: cstamp(p)
        if cfg.fused and p == 2 and T == cfg.sig_t:
            signal_a(0, stores_since[0]())
            cstamp(4)
        if cfg.fused and p == 2 and T == cfg.sig_t + 1:
            signal_b(0)
        if cfg.fused and p == 3 and T == cfg.sig_t1:
            cstamp(5)
            signal_a(1, stores_since[1]())
            cstamp(6)
        if cfg.fused and p == 3 and T == cfg.sig_t1 + 1:
            signal_b(1)
        k0 = sum(s[4] for s in steps[:si])
        if T == 0 and p > 0:
            assert not pend
            pend = conv_items(p - 1)
            for it in pend[:1]: pass
        mf = []
        for u in range(nu):
            k = k0 + u
            for qt in range(3):
                pre = None
                if qt == 0 and u % 2 == 0:
                    pre = (lambda k=k: lg.need(("o", k + 1, 1)))
                mf.append((pre, (lambda u=u, qt=qt, k=k: mfma(a, accstr(p, u, qt), ar(A_WO + 4*(k % FBN), 4), v(Qreg(qt, T), 4), "0" if T == 0 else None))))
        rs = []
        lim = k0 + nu + NOP_
        while nxt < len(frs) and nxt < lim and frs[nxt][3] <= j + 1:
            kk = nxt
            use = 3 * (kk - k0)
            e = max(0, 3 * (kk - FBN - k0) + 2)
            for h in range(2):
                rs.append(It((lambda kk=kk, h=h: oread(kk, h)), 4, max(e, use - 3*NOP_ - 3), max(0, use - 10)))
            nxt += 1
        streams = [rs]
        if p == 0 and T + 2 <= 7:
            streams.append(oconv_items(T + 2))
        if pend:
            if T == 0:
                for it in pend: it.earliest = 4
            streams.append(pend)
            last_of_pass = (T == 7)
            sched(a, mf, [rs] + [pend], flush=False)
            while rs: rs.pop(0).fn()
            if last_of_pass:
                while pend: pend.pop(0).fn()
            for it in pend: it.earliest = 0
        else:
            sched(a, mf, streams)
    cstamp(7)
    a("s_nop 7")
    for it in conv_items(3, packed=True): it.fn()
    cstamp(8)
    a.label("L_tail_end")
    print("lds throttles:", lg.throttled, file=sys.stderr)
    if cfg.fused:
        signal_a(2, 0); cstamp(9); signal_b(2)
        if cfg.decouple: emit_poll(a, cfg, 2)
        else: a("s_barrier")
        cstamp(10)
        emit_final_reduce(a, cfg)
        if cfg.stamps and cfg.cstamps:
            a("s_waitcnt vmcnt(0)")
            cstamp(11)
            a("s_mov_b32 s76, s72"); a("s_mov_b32 s77, s73")
            a("s_mov_b32 s78, 0x10000000"); a("s_mov_b32 s79, 0x20000")
            a("s_mul_i32 s74, s2, 3")
            a(f"s_add_u32 s74, s74, s{S_WID}")
            a("s_lshl_b32 s74, s74, 8")
            a("s_add_u32 s74, s74, 0x4400000")
            a(f"v_lshlrev_b32 v6, 2, v{V_LANE}")
            a("buffer_store_dword v7, v6, s[76:79], s74 offen")
    elif cfg.stamps:
        a("s_waitcnt vmcnt(0)")
        a("s_barrier")
    a("s_branch L_end")

def emit_rare(a, cfg, rare_blocks):
    for tag, par in rare_blocks:
        a.label(f"L_rare_{tag}")
        a("s_nop 7")
        for qt in range(3):
            s0 = Sreg(par, qt, 0)
            mx = V_TMP + qt
            a(f"v_max3_f32 v{mx}, v{s0}, v{s0+1}, v{s0+2}")
            a(f"v_max3_f32 v{mx}, v{mx}, v{s0+3}, v{s0+4}")
            a(f"v_max3_f32 v{mx}, v{mx}, v{s0+5}, v{s0+6}")
            a(f"v_max_f32 v{mx}, v{mx}, v{s0+7}")
            xlane_max(a, mx, V_TMP + 4)
            a(f"v_max_f32 v{mx}, 0, v{mx}")
            for r in range(8):
                a(f"v_sub_f32 v{s0+r}, v{s0+r}, v{mx}")
            for r in range(4):
                a(f"v_sub_f32 v{V_CM + 4*qt + r}, v{V_CM + 4*qt + r}, v{mx}")
            a(f"v_sub_f32 v{mx}, 0, v{mx}")
            a(f"v_exp_f32 v{mx}, v{mx}")
        a(f"s_getpc_b64 s[{S_TGT}:{S_TGT+1}]")
        a.label(f"L_pc_{tag}")
        a(f"s_add_u32 s{S_TGT}, s{S_TGT}, L_rescale-L_pc_{tag}")
        a(f"s_addc_u32 s{S_TGT+1}, s{S_TGT+1}, 0")
        a(f"s_swappc_b64 s[{S_RET}:{S_RET+1}], s[{S_TGT}:{S_TGT+1}]")
        a(f"s_branch L_back_{tag}")
    if not rare_blocks: return
    a.label("L_rescale")
    a("s_nop 7")
    for qt in range(3):
        regs = [Oreg(u, qt) + r for u in range(16) for r in range(4)] + [A_L + 4*qt + r for r in range(4)]
        for i in range(0, len(regs), 4):
            for k in range(4):
                a(f"v_accvgpr_read_b32 v{V_TMP+4+k}, a{regs[i+k]}")
            for k in range(4):
                a(f"v_mul_f32 v{V_TMP+4+k}, v{V_TMP+qt}, v{V_TMP+4+k}")
            for k in range(4):
                a(f"v_accvgpr_write_b32 a{regs[i+k]}, v{V_TMP+4+k}")
    a("s_nop 1")
    a(f"s_setpc_b64 s[{S_RET}:{S_RET+1}]")

def emit_dump_common(a, cfg, regs, isacc):
    a("s_mov_b32 s76, s72"); a("s_mov_b32 s77, s73")
    a("s_mov_b32 s78, 0x10000000"); a("s_mov_b32 s79, 0x20000")
    a(f"s_mul_i32 s74, s2, 3")
    a(f"s_add_u32 s74, s74, s{S_WID}")
    a("s_lshl_b32 s74, s74, 16")
    a(f"v_lshlrev_b32 v{V_T0}, 2, v{V_LANE}")
    for i, r in enumerate(regs):
        if isacc:
            a(f"v_accvgpr_read_b32 v{V_T1}, a{r}")
            src = V_T1
        else:
            src = r
        a(f"buffer_store_dword v{src}, v{V_T0}, s[76:79], s74 offen")
        a("s_add_u32 s74, s74, 256")
        if isacc: a("s_waitcnt vmcnt(0)")
    a("s_waitcnt vmcnt(0)")
    n = {"qacc": 33 + 14, "q": 33 + 14, "s0": 32 + 14, "o": 14}[cfg.dump]
    for _ in range(n): a("s_barrier")
    if cfg.stamps: a("s_barrier")
    a.label("L_tail_end")
    if cfg.dump != "o": a.label("L_tail_code")
    a("s_branch L_end")
def emit_dump_acc(a, cfg, n):
    a("s_nop 7")
    emit_dump_common(a, cfg, list(range(n)), True)
def emit_dump_v(a, cfg, base, n, extra=None):
    regs = list(range(base, base + n))
    if extra: regs += list(range(extra[0], extra[0] + extra[1]))
    emit_dump_common(a, cfg, regs, False)

def emit_reduce(a, cfg):
    a.raw(f".globl {RNAME}")
    a.raw(".p2align 8")
    a.raw(f".type {RNAME},@function")
    a.label(RNAME)
    a("s_cmp_ge_u32 s2, 504")
    a("s_cbranch_scc1 LR_end")
    a("s_load_dwordx2 s[4:5], s[0:1], 96")
    a("s_load_dwordx2 s[8:9], s[0:1], 80")
    a("v_lshrrev_b32 v1, 6, v0")
    a("v_and_b32 v2, 63, v0")
    a("v_readfirstlane_b32 s3, v1")
    a("s_lshl_b32 s12, s2, 2")
    a("s_add_u32 s12, s12, s3")
    a(f"s_mul_hi_u32 s13, s12, {(2**32 + 125)//126}")
    a("s_mul_i32 s14, s13, 126")
    a("s_sub_u32 s14, s12, s14")
    a(f"s_mul_hi_u32 s15, s14, {(2**32 + 13)//14}")
    a("s_mul_i32 s16, s15, 14")
    a("s_sub_u32 s16, s14, s16")
    a("s_waitcnt lgkmcnt(0)")
    a(f"s_mul_i32 s17, s13, {16*129024}")
    a("s_lshl_b32 s18, s14, 10")
    a("s_add_u32 s17, s17, s18")
    a("s_add_u32 s4, s4, s17")
    a("s_addc_u32 s5, s5, 0")
    a(f"s_mov_b32 s6, {15*129024 + 1024}")
    a("s_mov_b32 s7, 0x20000")
    a("v_lshlrev_b32 v3, 4, v2")
    for h in range(16):
        a(f"s_mov_b32 s19, {h*129024}")
        a(f"buffer_load_dwordx4 v[{8+4*h}:{11+4*h}], v3, s[4:7], s19 offen{cfg.rd_flags}")
    a("s_and_b32 s20, s13, 7")
    a("s_lshr_b32 s21, s13, 3")
    a("s_mul_i32 s20, s20, 144")
    a("s_lshl_b32 s22, s15, 4")
    a("s_add_u32 s20, s20, s22")
    a("s_mul_i32 s20, s20, 1792")
    a("s_mul_i32 s21, s21, 896")
    a("s_lshl_b32 s22, s16, 6")
    a("s_add_u32 s20, s20, s21")
    a("s_add_u32 s20, s20, s22")
    a("v_and_b32 v4, 15, v2")
    a("v_mul_u32_u24 v4, 1792, v4")
    a("v_lshrrev_b32 v5, 4, v2")
    a("v_lshl_add_u32 v4, v5, 3, v4")
    a("s_mov_b32 s10, %d" % (8*144*896*2))
    a("s_mov_b32 s11, 0x20000")
    for h in range(16):
        a(f"s_waitcnt vmcnt({15-h})")
        for r in range(4):
            src = 8 + 4*h + r
            if h == 0:
                a(f"v_lshlrev_b32 v{72+2*r}, 16, v{src}")
                a(f"v_and_b32 v{73+2*r}, 0xffff0000, v{src}")
            else:
                a(f"v_lshlrev_b32 v80, 16, v{src}")
                a(f"v_and_b32 v81, 0xffff0000, v{src}")
                a(f"v_add_f32 v{72+2*r}, v{72+2*r}, v80")
                a(f"v_add_f32 v{73+2*r}, v{73+2*r}, v81")
    for r in range(4):
        a(f"v_cvt_pk_bf16_f32 v{84+r}, v{72+2*r}, v{73+2*r}")
    a("buffer_store_dwordx2 v[84:85], v4, s[8:11], s20 offen")
    a("buffer_store_dwordx2 v[86:87], v4, s[8:11], s20 offen offset:32")
    a.label("LR_end")
    a("s_endpgm")

def kd(a, name, vg, acc, sg=102):
    a.raw(f".amdhsa_kernel {name}")
    a.raw(f"  .amdhsa_next_free_vgpr {vg}")
    a.raw(f"  .amdhsa_next_free_sgpr {sg}")
    a.raw(f"  .amdhsa_accum_offset {acc}")
    a.raw("  .amdhsa_group_segment_fixed_size 0")
    a.raw("  .amdhsa_kernarg_size 104")
    a.raw("  .amdhsa_user_sgpr_count 2")
    a.raw("  .amdhsa_user_sgpr_kernarg_segment_ptr 1")
    a.raw("  .amdhsa_system_sgpr_workgroup_id_x 1")
    a.raw(".end_amdhsa_kernel")

HEADER = """; Fused MHA block (two branches): Q-proj + flash attention + partial out-proj per (branch,batch,head) workgroup,
"""
def generate(cfg):
    a = Asm()
    a.raw(HEADER.rstrip())
    if cfg.fused and not cfg.aslist:
        a.raw(f"; @launch grid=(256,1,1) block=(256,1,1) lds=163840")
    else:
        a.raw(f"; @launch kernel={KNAME} grid=(256,1,1) block=(256,1,1) lds=163840")
    if not cfg.dump and not cfg.fused:
        a.raw(f"; @launch kernel={RNAME} grid=(504,1,1) block=(256,1,1) lds=0")
    a.raw('.amdgcn_target "amdgcn-amd-amdhsa--gfx950"')
    a.raw(".text")
    a.raw(f".globl {KNAME}")
    a.raw(".p2align 8")
    a.raw(f".type {KNAME},@function")
    a.label(KNAME)
    emit_setup(a, cfg)
    rare = []
    emit_compute_main(a, cfg, rare)
    emit_loader(a, cfg)
    a.label("L_code_end")
    emit_rare(a, cfg, rare)
    a.label("L_end")
    a("s_endpgm")
    if not cfg.dump and not cfg.fused:
        emit_reduce(a, cfg)
    a.raw('.section .rodata,"a"')
    a.raw(".p2align 6")
    kd(a, KNAME, 512, 256)
    if not cfg.dump and not cfg.fused:
        a.raw(".p2align 6")
        kd(a, RNAME, 96, 96, 32)
    return a.text()

if __name__ == "__main__":
    cfg = Cfg()
    out = sys.argv[1]
    for kv in sys.argv[2:]:
        k, val = kv.split("=", 1)
        cur = getattr(cfg, k)
        if isinstance(cur, bool): val = val in ("1", "True", "true")
        elif isinstance(cur, float): val = float(val)
        elif isinstance(cur, int): val = int(val)
        elif val == "None": val = None
        setattr(cfg, k, val)
    open(out, "w").write(generate(cfg))
```

```python
import sys, math, struct, re

KNAME = "concat_heads__mha_block_cached__mha_block_cached__near_ridge_kernel"
RNAME = "reduce_kernel"

class Asm:
    def __init__(self):
        self.L = []
    def __call__(self, s):
        self.L.append("    " + s)
    def label(self, s):
        self.L.append(s + ":")
    def raw(self, s):
        self.L.append(s)
    def text(self):
        return "\n".join(self.L) + "\n"

class Lgkm:
    def __init__(self, a):
        self.a = a; self.q = []; self.issued = set(); self.throttled = 0
    def issue(self, ins, tag):
        if len(self.q) >= 15:
            self.a("s_waitcnt lgkmcnt(14)"); self.q = self.q[len(self.q) - 14:]; self.throttled += 1
        self.a(ins); self.q.append(tag); self.issued.add(tag)
    def need(self, tag):
        assert tag in self.issued, ("not issued", tag)
        if tag in self.q:
            idx = len(self.q) - 1 - self.q[::-1].index(tag)
            n = len(self.q) - 1 - idx
            self.a(f"s_waitcnt lgkmcnt({n})")
            self.q = self.q[idx + 1:]
    def drain(self):
        if self.q:
            self.a("s_waitcnt lgkmcnt(0)")
            self.q = []

class Vm:
    def __init__(self, a):
        self.a = a; self.q = []
    def room(self, n):
        over = len(self.q) + n - 63
        if over > 0:
            keep = len(self.q) - over
            self.a(f"s_waitcnt vmcnt({keep})")
            self.q = self.q[over:]
    def issue(self, ins, tag):
        assert len(self.q) < 63
        self.a(ins); self.q.append(tag)
    def need(self, tag):
        if tag in self.q:
            idx = len(self.q) - 1 - self.q[::-1].index(tag)
            n = len(self.q) - 1 - idx
            self.a(f"s_waitcnt vmcnt({n})")
            self.q = self.q[idx + 1:]

class It:
    def __init__(self, fn, cost=4, earliest=0, deadline=10**9):
        self.fn, self.cost, self.earliest, self.deadline = fn, cost, earliest, deadline

def sched(a, mf, streams, budget=8, flush=True):
    n = len(mf)
    for m, (pre, emit) in enumerate(mf):
        if pre: pre()
        emit()
        b = budget
        if m + 1 < n and mf[m + 1][0] is not None: b -= 4
        for st in streams:
            while st and st[0].deadline <= m:
                it = st.pop(0); it.fn(); b -= it.cost
        for st in streams:
            while st and st[0].earliest <= m and st[0].cost <= b:
                it = st.pop(0); it.fn(); b -= it.cost
    if flush:
        prog = True
        while any(streams):
            for st in streams:
                if st:
                    it = st.pop(0); it.fn()

def v(n, cnt=1):
    return f"v{n}" if cnt == 1 else f"v[{n}:{n+cnt-1}]"
def ar(n, cnt=1):
    return f"a{n}" if cnt == 1 else f"a[{n}:{n+cnt-1}]"
def f2u(x): return struct.unpack("<I", struct.pack("<f", x))[0]

V_LANE = 1
V_T0, V_T1 = 2, 3
V_KB = 4
V_VB = 8
V_TMP = 16
V_S = [24, 48]
V_P = 72
V_CM = 84
V_KBUF = 96
V_VBUF = 128
V_Q = 160
A_O = 0
A_L = 192
A_ONES = 204
A_X = 0
A_W = 168
A_DUMMY = 232
V_QACC = 64
V_WB = 16
V_XB = 20
V_XB2 = 24
A_WO = 208
V_P0 = 64
VBK, VBE = 24, 32
V_RL = 16
V_ST = 22
V_CT = 40

def Qreg(qt, T): return V_Q + (qt * 8 + T) * 4
def Xreg(s, qt): return A_X + (s * 3 + qt) * 4
def QAcc(u, qt): return V_QACC + (qt * 8 + (u >> 1)) * 8 + 4 * (u & 1)
def Oreg(u, qt): return A_O + (u * 3 + qt) * 4
def Sreg(par, qt, a): return V_S[par] + (qt * 2 + a) * 4

KS = [i * 16384 for i in range(4)]
VREG = 65536
VS = [VREG + i * 16384 for i in range(4)]
ES = [131072, 147456]
WRING = [ES[0], ES[1], VS[2], VS[3]]
WBASE = VS[2]
XW = 43008
XAW = 24576
XBB = 32768
XBW = 18432
WOSLOT = [ES[0], ES[1], KS[0], KS[1], VS[0], KS[2], VS[1], KS[3], VS[2], VS[3], ES[0], ES[1], KS[0], KS[1]]

S_WID = 3
S_X, S_K, S_V, S_WQ, S_WO, S_WS = 4, 8, 12, 16, 20, 24
S_B, S_H, S_BR, S_THR = 28, 29, 30, 31
S_SO, S_SO2, S_CNT = 32, 33, 34
S_RET, S_TGT = 36, 38
S_WOFF = 40
S_PC = 56
S_TS = 60

QSCALE = math.log2(math.e) / 16.0
SCL_OFF = 0x2200000
CNT_OFF = 0x2100000

class Cfg:
    nt_kv = True
    nt_w = False
    nt_x = False
    nt_wo = False
    nt_warm = False
    st_flags = " sc0 sc1"
    rd_flags = " sc0 sc1"
    warm_wq = True
    warm_wo = False
    code_pf = True
    thr = 8.0
    dump = None
    stamps = False
    kvsched = "g"
    fused = True
    poll_flags = " sc1"
    out_flags = ""
    aslist = False
    sig_t = 0
    fast_start = True
    warm2 = False
    xbsched = "b"
    xb_read = 4
    xb_one = 1
    wr_pace = 0
    wr_spread = 10
    map_odd = False
    cstamps = False
    stagger = 0
    ncls = 4
    cls_mode = "b"
    stag_tmax = 31
    scale_red = True
    decouple = True
    nop = 6
    dbg_stamps = -1
    wo_reg0 = 9
    wo_reg_t0 = 14
    warm_t0 = 18
    poll_sleep = 2
    sig_t1 = 2
    nkp = 8
    nvp = 4

def emit_setup(a, cfg):
    a("s_cmp_ge_u32 s2, 256")
    a("s_cbranch_scc1 L_end")
    if cfg.stamps:
        a(f"s_memrealtime s[{S_TS}:{S_TS+1}]")
    a("s_load_dwordx4 s[44:47], s[0:1], 0")
    a("s_load_dwordx4 s[48:51], s[0:1], 16")
    a("s_load_dwordx2 s[54:55], s[0:1], 40")
    a("s_load_dwordx4 s[68:71], s[0:1], 64")
    a("s_load_dwordx2 s[52:53], s[0:1], 32")
    a("s_load_dwordx4 s[64:67], s[0:1], 48")
    a("s_load_dwordx2 s[72:73], s[0:1], 96")
    a("s_load_dwordx4 s[80:83], s[0:1], 80")
    a(f"v_lshrrev_b32 v{V_T0}, 6, v0")
    a(f"v_and_b32 v{V_LANE}, 63, v0")
    a(f"v_readfirstlane_b32 s{S_WID}, v{V_T0}")
    a("s_lshr_b32 s75, s2, 3")
    if cfg.code_pf and cfg.fast_start:
        a(f"s_getpc_b64 s[{S_PC}:{S_PC+1}]")
        a.label("L_pc_entry")
        a(f"s_sub_u32 s{S_PC}, s{S_PC}, L_pc_entry-{KNAME}")
        a(f"s_subb_u32 s{S_PC+1}, s{S_PC+1}, 0")
        a(f"s_mov_b32 s{S_PC+2}, L_code_end-{KNAME}")
        a(f"s_mov_b32 s{S_PC+3}, 0x20000")
        a(f"v_lshlrev_b32 v4, 4, v{V_LANE}")
        a("s_lshl_b32 s76, s75, 2")
        a(f"s_add_u32 s76, s76, s{S_WID}")
        a("s_lshl_b32 s76, s76, 10")
        a(f"buffer_load_dwordx4 a[236:239], v4, s[{S_PC}:{S_PC+3}], s76 offen")
    a("s_and_b32 s74, s2, 7")
    if cfg.map_odd:
        a(f"s_and_b32 s{S_BR}, s74, 1")
        a("s_lshr_b32 s76, s74, 1")
    else:
        a(f"s_lshr_b32 s{S_BR}, s74, 2")
        a("s_and_b32 s76, s74, 3")
    a("s_lshl_b32 s76, s76, 2")
    a("s_and_b32 s77, s75, 3")
    a(f"s_add_u32 s{S_H}, s76, s77")
    a(f"s_lshr_b32 s{S_B}, s75, 2")
    if not cfg.fast_start: emit_ptrs(a, cfg)
    a(f"s_cmp_eq_u32 s{S_WID}, 3")
    if cfg.fast_start: a("s_cbranch_scc0 L_compute")
    else: a("s_cbranch_scc1 L_loader")

def emit_ptrs(a, cfg):
    a(f"s_mul_i32 s78, s{S_B}, 129024")
    a(f"s_lshl_b32 s79, s{S_H}, 9")
    a(f"s_mov_b32 s{S_X+2}, 129024")
    a(f"s_mov_b32 s{S_X+3}, 0x20000")
    a(f"s_sub_u32 s{S_WQ+2}, {448*8192}, s79")
    a(f"s_mov_b32 s{S_WQ+3}, 0x20000")
    a("s_waitcnt lgkmcnt(0)")
    a(f"s_cmp_eq_u32 s{S_BR}, 0")
    a(f"s_cselect_b32 s{S_X}, s44, s54")
    a(f"s_cselect_b32 s{S_X+1}, s45, s55")
    a(f"s_cselect_b32 s{S_WQ}, s50, s68")
    a(f"s_cselect_b32 s{S_WQ+1}, s51, s69")
    a(f"s_cselect_b32 s{S_K}, s46, s64")
    a(f"s_cselect_b32 s{S_K+1}, s47, s65")
    a(f"s_cselect_b32 s{S_V}, s48, s66")
    a(f"s_cselect_b32 s{S_V+1}, s49, s67")
    a(f"s_cselect_b32 s{S_WO}, s52, s70")
    a(f"s_cselect_b32 s{S_WO+1}, s53, s71")
    a(f"s_add_u32 s{S_X}, s{S_X}, s78")
    a(f"s_addc_u32 s{S_X+1}, s{S_X+1}, 0")
    a(f"s_add_u32 s{S_WQ}, s{S_WQ}, s79")
    a(f"s_addc_u32 s{S_WQ+1}, s{S_WQ+1}, 0")

def emit_setup_late(a, cfg, loader):
    a(f"s_lshl_b32 s74, s{S_B}, 4")
    a(f"s_add_u32 s74, s74, s{S_H}")
    if loader:
        a("s_lshl_b32 s75, s74, 19")
        for S in (S_K, S_V):
            a(f"s_add_u32 s{S}, s{S}, s75")
            a(f"s_addc_u32 s{S+1}, s{S+1}, 0")
            a(f"s_mov_b32 s{S+2}, 524288")
            a(f"s_mov_b32 s{S+3}, 0x20000")
        a(f"s_mul_i32 s75, s{S_H}, {256*896}")
        a(f"s_add_u32 s{S_WO}, s{S_WO}, s75")
        a(f"s_addc_u32 s{S_WO+1}, s{S_WO+1}, 0")
        a(f"s_mov_b32 s{S_WO+2}, {256*896}")
        a(f"s_mov_b32 s{S_WO+3}, 0x20000")
    else:
        a(f"s_lshl_b32 s75, s{S_BR}, 7")
        a("s_add_u32 s74, s74, s75")
        a("s_mul_i32 s74, s74, 129024")
        a(f"s_add_u32 s{S_WS}, s72, s74")
        a(f"s_addc_u32 s{S_WS+1}, s73, 0")
        a(f"s_mov_b32 s{S_WS+2}, 129024")
        a(f"s_mov_b32 s{S_WS+3}, 0x20000")

def ntb(cfg): return 9 if (cfg.fused and not cfg.dump) else 14
def barrier_list(cfg):
    L = [("PB", s) for s in range(14)]
    L += [("B", t) for t in range(-1, 32)]
    L += [("TB", j) for j in range(ntb(cfg))]
    return L

XBSCHED = {"a": {1: [0], 2: [1], 3: [2]}, "b": {1: [0, 1], 2: [2]}, "c": {1: [0, 1, 2]}}
KVSCHED = {
    "f": {3: [("K", 0)], 4: [("K", 1)], 6: [("K", 2)], 7: [("V", 0)], 8: [("K", 3)], 9: [("V", 1)], 11: [("V", 2)], 12: [("V", 3)]},
    "g": {2: [("K", 0)], 3: [("K", 1)], 5: [("K", 2)], 6: [("V", 0)], 8: [("K", 3)], 9: [("V", 1)], 11: [("V", 2)], 12: [("V", 3)]},
    "h": {1: [("K", 0)], 3: [("K", 1)], 5: [("K", 2)], 6: [("V", 0)], 7: [("K", 3)], 9: [("V", 1)], 11: [("V", 2)], 12: [("V", 3)]},
    "a": {1: [("K", 0)], 2: [("V", 0)], 3: [("K", 1)], 4: [("K", 2)], 6: [("V", 1)], 7: [("K", 3)], 11: [("V", 2)], 12: [("V", 3)]},
    "b": {1: [("K", 0), ("V", 0)], 2: [("K", 1)], 3: [("K", 2)], 4: [("V", 1)], 5: [("K", 3)], 11: [("V", 2)], 12: [("V", 3)]},
    "d": {4: [("K", 0)], 5: [("K", 1)], 7: [("K", 2), ("V", 0)], 8: [("K", 3)], 9: [("V", 1)], 11: [("V", 2)], 12: [("V", 3)]},
    "e": {3: [("K", 0)], 5: [("K", 1)], 7: [("V", 0)], 8: [("K", 2)], 9: [("K", 3)], 10: [("V", 1)], 11: [("V", 2)], 12: [("V", 3)]},
    "c": {1: [("K", 0)], 3: [("V", 0)], 4: [("K", 1)], 6: [("K", 2)], 7: [("V", 1)], 9: [("K", 3)], 11: [("V", 2)], 12: [("V", 3)]},
}

def emit_code_prefetch(a, cfg, vm, vaddr, lo, hi, dst):
    a(f"s_getpc_b64 s[{S_PC}:{S_PC+1}]")
    lab = f"L_pc_{lo}"
    a.label(lab)
    a(f"s_add_u32 s{S_PC}, s{S_PC}, {lo}-{lab}")
    a(f"s_addc_u32 s{S_PC+1}, s{S_PC+1}, 0")
    a(f"s_mov_b32 s{S_PC+2}, {hi}-{lo}")
    a(f"s_mov_b32 s{S_PC+3}, 0x20000")
    return

def emit_loader(a, cfg):
    a.label("L_loader")
    vm = Vm(a)
    LH, LP = 2, 3
    VK, VV, VW, VO, VO3 = 8, 16, 20, 24, 28
    T0, T1 = 4, 5
    stamp_idx = [0]
    def xstamp(i):
        if cfg.stamps:
            a("s_memrealtime s[62:63]")
            a("s_waitcnt lgkmcnt(0)")
            a(f"v_writelane_b32 v58, s62, {i}")
    if cfg.stamps:
        a(f"v_writelane_b32 v56, s{S_TS}, 0")
    xstamp(0)
    a(f"v_lshrrev_b32 v{LH}, 5, v{V_LANE}")
    a(f"v_and_b32 v{LP}, 31, v{V_LANE}")
    a(f"v_lshlrev_b32 v32, 4, v{V_LANE}")
    def chunkpat(i):
        a(f"v_add_u32 v{T0}, {2*i}, v{LH}")
        a(f"v_lshlrev_b32 v{T0}, 1, v{T0}")
        a(f"v_xor_b32 v{T0}, v{T0}, v{LP}")
    for i in range(4):
        chunkpat(i)
        a(f"v_lshlrev_b32 v{T1}, 4, v{T0}")
        a(f"v_lshl_add_u32 v{VW+i}, v{LH}, 13, v{T1}")
    if cfg.fast_start: emit_ptrs(a, cfg)
    ntkv = " nt" if cfg.nt_kv else ""
    ntw = " nt" if cfg.nt_w else ""
    ntwo = " nt" if cfg.nt_wo else ""
    ntwarm = " nt" if cfg.nt_warm else ""

    clsn = [0]
    def class_wait():
        if not cfg.stagger: return
        clsn[0] += 1; n = clsn[0]
        for c in range(1, cfg.ncls):
            a(f"s_cmp_lt_u32 s53, {c}")
            a(f"s_cbranch_scc1 L_cls{n}")
            a(f"s_waitcnt vmcnt({47 - cfg.stagger * c})")
        a.label(f"L_cls{n}")
    def tile_kv(kind, t):
        srd = S_K if kind == "K" else S_V
        lds = KS[t % 4] if kind == "K" else VS[t % 4]
        vm.room(16)
        if t >= 4 and t <= cfg.stag_tmax: class_wait()
        for m in range(4):
            a(f"s_mov_b32 m0, {lds + m*4096}")
            a(f"s_mov_b32 s{S_SO}, {t*16384 + m*4096}")
            for n in range(4):
                i = 4*m + n
                vo = VK + (i & 7) if kind == "K" else VV + (i & 3)
                vm.issue(f"buffer_load_dwordx4 v{vo}, s[{srd}:{srd+3}], s{S_SO} offen offset:{n*1024}{ntkv} lds", (kind, t))
    def tile_w(s):
        lds = WRING[s % 4]
        vm.room(16)
        prev = 0
        for i in range(16):
            sig0 = 8*((i & 7) >> 1) + 4*(i >> 3) + 2*(i & 1)
            if i == 0 or not cfg.fast_start:
                a(f"s_mov_b32 m0, {lds + i*1024}")
                a(f"s_mov_b32 s{S_SO}, {(s*32 + sig0)*8192}")
            else:
                a("s_add_u32 m0, m0, s98")
                d = sig0 - prev
                if d == 2: a(f"s_add_u32 s{S_SO}, s{S_SO}, s99")
                elif d == 6: a(f"s_add_u32 s{S_SO}, s{S_SO}, s100")
                else: a(f"s_sub_u32 s{S_SO}, s{S_SO}, {-d*8192}")
            prev = sig0
            vm.issue(f"buffer_load_dwordx4 v{VW + (i & 3)}, s[{S_WQ}:{S_WQ+3}], s{S_SO} offen{ntw} lds", ("W", s))
    VX = 40
    def setup_xb():
        a(f"v_lshrrev_b32 v{T0}, 3, v{V_LANE}")
        a(f"v_and_b32 v{T1}, 7, v{V_LANE}")
        a(f"v_lshrrev_b32 v6, 1, v{T0}")
        a(f"v_xor_b32 v6, v6, v{T1}")
        a(f"v_mul_u32_u24 v7, 896, v{T0}")
        a(f"v_lshl_add_u32 v{VX}, v6, 4, v7")
        a(f"v_xor_b32 v6, 4, v6")
        a(f"v_lshl_add_u32 v{VX+1}, v6, 4, v7")
        a(f"v_add_u32 v{VX+1}, {8*896}, v{VX+1}")
    def tile_xb(part):
        vm.room(18)
        ntx = " nt" if cfg.nt_x else ""
        for w in range(3):
            for qt in range(3):
                for hb in range(2):
                    a(f"s_mov_b32 m0, {XBB + w*XBW + ((qt*2 + hb)*3 + part)*1024}")
                    a(f"s_mov_b32 s{S_SO}, {w*XW + qt*14336 + (4 + part)*128}")
                    vm.issue(f"buffer_load_dwordx4 v{VX+hb}, s[{S_X}:{S_X+3}], s{S_SO} offen{ntx} lds", ("XB", part))
    def tile_wo(j):
        lds = WOSLOT[j]
        vm.room(16)
        for i in range(16):
            if j < 12:
                p, T0_ = j // 4, (j % 4) * 2
                so = (32*T0_ + 2*i)*896 + p*256
                vo = VO + (i & 3)
            else:
                T0_ = (j - 12) * 4
                so = (32*T0_ + 2*i)*896 + 768
                vo = VO3 + (i & 3)
            a(f"s_mov_b32 m0, {lds + i*1024}")
            a(f"s_mov_b32 s{S_SO}, {so}")
            vm.issue(f"buffer_load_dwordx4 v{vo}, s[{S_WO}:{S_WO+3}], s{S_SO} offen{ntwo} lds", ("WO", j))
    NREG0 = cfg.wo_reg0
    def wo_quad(j, i):
        k = (j - NREG0) * 16 + i
        return ar(4*k, 4) if k < 64 else v(64 + 4*(k - 64), 4)
    def wo_addr(j, i):
        if j < 12:
            p, T0_ = j // 4, (j % 4) * 2
            return (32*T0_ + 2*i)*896 + p*256, VO + (i & 3)
        T0_ = (j - 12) * 4
        return (32*T0_ + 2*i)*896 + 768, VO3 + (i & 3)
    def load_wo_reg(j, i0, n):
        vm.room(n)
        for i in range(i0, i0 + n):
            so, vo = wo_addr(j, i)
            a(f"s_mov_b32 s{S_SO}, {so}")
            vm.issue(f"buffer_load_dwordx4 {wo_quad(j, i)}, v{vo}, s[{S_WO}:{S_WO+3}], s{S_SO} offen{ntwo}", ("WOR", j))
    def put_wo(j):
        vm.need(("WOR", j))
        a(f"v_add_u32 v33, {WOSLOT[j]}, v32")
        for i in range(16):
            a(f"ds_write_b128 v33, {wo_quad(j, i)} offset:{i*1024}")
            if cfg.wr_pace and i % cfg.wr_pace == cfg.wr_pace - 1 and i < 15: a("s_waitcnt lgkmcnt(0)")
        wo_written.append(j)
    wo_written = []
    wr_queue = []
    def put_wo_some(n):
        done = 0
        while wr_queue and done < n:
            j, i = wr_queue.pop(0)
            if i == 0 or done == 0:
                if i == 0: vm.need(("WOR", j))
                a(f"v_add_u32 v33, {WOSLOT[j]}, v32")
            a(f"ds_write_b128 v33, {wo_quad(j, i)} offset:{i*1024}")
            if i == 15: wo_written.append(j)
            done += 1
            if wr_queue and wr_queue[0][1] == 0 and done < n:
                pass
    def need_wo(j):
        if j >= NREG0:
            if j in wo_written:
                a("s_waitcnt lgkmcnt(0)")
                while wo_written: wo_written.pop()
        else:
            vm.need(("WO", j))
    def tile_wo_any(j):
        if j >= NREG0:
            if cfg.wr_spread: wr_queue.extend((j, i) for i in range(16))
            else: put_wo(j)
        else: tile_wo(j)
    def warm_wo(i0, n):
        vm.room(n)
        for i in range(i0, i0 + n):
            a(f"s_mul_i32 s{S_SO}, s{S_B}, 28672")
            a(f"s_add_u32 s{S_SO}, s{S_SO}, {i*1024}")
            vm.issue(f"buffer_load_dwordx4 v[36:39], v32, s[{S_WO}:{S_WO+3}], s{S_SO} offen{ntwarm}", ("warm", i))
    def code_pf(lo, hi, tagn):
        a(f"s_getpc_b64 s[{S_PC}:{S_PC+1}]")
        lab = f"L_pc_{tagn}"
        a.label(lab)
        a(f"s_add_u32 s{S_PC}, s{S_PC}, {lo}-{lab}")
        a(f"s_addc_u32 s{S_PC+1}, s{S_PC+1}, -1" if False else f"s_addc_u32 s{S_PC+1}, s{S_PC+1}, ({lo}-{lab})>>32")
        a(f"s_mov_b32 s{S_PC+2}, {hi}-{lo}")
        a(f"s_mov_b32 s{S_PC+3}, 0x20000")
        a(f"s_lshr_b32 s{S_SO2}, s2, 3")
        a(f"s_mul_i32 s{S_SO2}, s{S_SO2}, 3072")
        vm.room(3)
        for i in range(3):
            vm.issue(f"buffer_load_dwordx4 v[36:39], v32, s[{S_PC}:{S_PC+3}], s{S_SO2} offen offset:{i*1024}", ("pf", tagn, i))

    fused = cfg.fused and not cfg.dump
    if cfg.fast_start:
        a("s_mov_b32 s98, 1024"); a(f"s_mov_b32 s99, {2*8192}"); a(f"s_mov_b32 s100, {6*8192}")
        tile_w(0)
    if fused:
        emit_cnt_srd(a)
        a("s_mov_b32 s48, s82"); a("s_mov_b32 s49, s83")
        a("s_mov_b32 s50, 256"); a("s_mov_b32 s51, 0x20000")
        a(f"s_lshl_b32 s52, s{S_BR}, 3")
        a(f"s_add_u32 s52, s52, s{S_B}")
        a("s_lshl_b32 s52, s52, 4")
        a(f"s_cmp_lg_u32 s{S_H}, 0")
        a("s_cbranch_scc1 L_noinit")
        a(f"v_lshlrev_b32 v33, 12, v{V_LANE}")
        a("v_mov_b32 v34, 0")
        a("s_mov_b64 exec, 7")
        a("buffer_store_dword v34, v33, s[84:87], 0 offen sc1")
        a("s_mov_b64 exec, -1")
        a.label("L_noinit")
    if cfg.warm2:
        a(f"v_lshlrev_b32 v34, 4, v{LP}")
        a(f"v_lshl_add_u32 v34, v{LH}, 13, v34")
        a(f"s_mul_i32 s76, s{S_B}, {56*8192}")
        a(f"s_add_u32 s76, s76, {28*8192}")
        for i in range(14):
            vm.issue(f"buffer_load_dwordx4 v[36:39], v34, s[{S_WQ}:{S_WQ+3}], s76 offen{ntwarm}", ("warm2", i))
            if i < 13: a(f"s_add_u32 s76, s76, {2*8192}")
    if not cfg.fast_start: tile_w(0)
    xstamp(1)
    if cfg.code_pf and not cfg.fast_start: code_pf(KNAME, "L_code_end", "all")
    tile_w(1); xstamp(2)
    emit_setup_late(a, cfg, True)
    for i in range(8):
        a(f"v_add_u32 v{T0}, {2*i}, v{LH}")
        a(f"v_xor_b32 v{T0}, v{T0}, v{LP}")
        a(f"v_lshlrev_b32 v{T0}, 4, v{T0}")
        a(f"v_lshl_add_u32 v{VK+i}, v{LH}, 9, v{T0}")
    for i in range(4):
        chunkpat(i)
        a(f"v_lshlrev_b32 v{T1}, 4, v{T0}")
        a(f"v_lshl_add_u32 v{VV+i}, v{LH}, 9, v{T1}")
        a(f"v_lshrrev_b32 v6, 4, v{T0}")
        a(f"v_lshl_add_u32 v6, v6, 5, v{LH}")
        a(f"v_mul_u32_u24 v6, 896, v6")
        a(f"v_and_b32 v7, 15, v{T0}")
        a(f"v_lshl_add_u32 v{VO+i}, v7, 4, v6")
        a(f"v_lshrrev_b32 v6, 3, v{T0}")
        a(f"v_lshl_add_u32 v6, v6, 5, v{LH}")
        a(f"v_mul_u32_u24 v6, 896, v6")
        a(f"v_and_b32 v7, 7, v{T0}")
        a(f"v_lshl_add_u32 v{VO3+i}, v7, 4, v6")
    setup_xb()
    if cfg.stagger:
        if cfg.cls_mode == "b":
            a(f"s_mul_i32 s53, s{S_B}, {cfg.ncls}")
            a("s_lshr_b32 s53, s53, 3")
        else:
            a(f"s_mov_b32 s53, s{S_BR}")
    tile_w(2)
    xstamp(3)
    kv_after_pb = KVSCHED[cfg.kvsched]
    early = None
    if cfg.fast_start:
        a("s_branch L_loader2")
        early = a.L; a.L = []
        a.label("L_loader2")
    for name, idx in barrier_list(cfg):
        if name == "PB":
            if idx == 0: vm.need(("W", 0)); vm.need(("W", 1))
            elif idx + 1 <= 13: vm.need(("W", idx + 1))
            if idx == cfg.xb_read: vm.need(("XB", 2))
        elif name == "B":
            t = idx
            if t == -1:
                vm.need(("K", 0)); vm.need(("K", 1))
            else:
                if t + 2 <= 31: vm.need(("K", t + 2))
                vm.need(("V", t))
            if t == 31:
                need_wo(0); need_wo(1)
        else:
            j = idx
            need_wo(min(j + 1, 13))
            if j == ntb(cfg) - 1:
                assert not wr_queue
                for jj in range(14): need_wo(jj)
        a("s_barrier")
        if cfg.stamps:
            stamp_idx[0] += 1
            a("s_memrealtime s[62:63]")
            a("s_waitcnt lgkmcnt(0)")
            a(f"v_writelane_b32 v56, s62, {stamp_idx[0]}")
            a("s_memtime s[62:63]")
            a("s_waitcnt lgkmcnt(0)")
            a(f"v_writelane_b32 v59, s62, {stamp_idx[0]}")
        if name == "PB" and idx == 0 and fused:
            a(f"s_cmp_lg_u32 s{S_H}, 0")
            a("s_cbranch_scc1 L_noinit2")
            a("v_mov_b32 v34, 1")
            a("s_mov_b64 exec, 1")
            a("buffer_atomic_add v34, off, s[48:51], s52")
            a("s_mov_b64 exec, -1")
            a.label("L_noinit2")
        if name == "PB":
            if idx + 3 <= 13: tile_w(idx + 3)
            for part in XBSCHED[cfg.xbsched].get(idx, []): tile_xb(part)
            for k, t in kv_after_pb.get(idx, []): tile_kv(k, t)
        elif name == "B":
            t = idx
            if t >= 0:
                if t + 4 <= 31: tile_kv("K", t + 4)
                if t >= 1 and t + 3 <= 31: tile_kv("V", t + 3)
            if cfg.warm_wo and cfg.warm_t0 <= t <= cfg.warm_t0 + 6:
                warm_wo((t - cfg.warm_t0) * 4, 4)
            if cfg.code_pf and t == 25: code_pf("L_tail_code", "L_tail_end", "tail")
            if fused and t == 10:
                vm.room(1)
                a("s_mov_b64 exec, 1")
                vm.issue(f"buffer_load_dword v35, off, s[48:51], s52 sc1", ("initflag",))
                a("s_mov_b64 exec, -1")
            if fused and t == 14:
                vm.need(("initflag",))
                a("v_readfirstlane_b32 s90, v35")
                a("s_nop 3")
                a("s_cmp_ge_u32 s90, 1")
                a("s_cbranch_scc1 L_init_ok")
                a("s_mov_b64 exec, 1")
                a("s_mov_b32 s89, 0")
                a.label("L_init_poll")
                a("buffer_load_dword v35, off, s[48:51], s52 sc1")
                a("s_waitcnt vmcnt(0)")
                a("v_readfirstlane_b32 s90, v35")
                a("s_add_u32 s89, s89, 1")
                a("s_cmp_ge_u32 s90, 1")
                a("s_cbranch_scc1 L_init_done")
                a("s_cmp_ge_u32 s89, 0x40000")
                a("s_cbranch_scc1 L_init_done")
                a("s_sleep 8")
                a("s_branch L_init_poll")
                a.label("L_init_done")
                a("s_mov_b64 exec, -1")
                a.label("L_init_ok")
            nreg = 14 - NREG0
            k = t - cfg.wo_reg_t0
            if 0 <= k < 2 * nreg:
                load_wo_reg(NREG0 + k // 2, 8 * (k & 1), 8)
            if t == 26: tile_wo_any(0)
            if t == 27: tile_wo_any(1)
            if t == 28: tile_wo_any(2)
            if t == 29: tile_wo_any(3); tile_wo_any(4)
            if t == 30: tile_wo_any(5); tile_wo_any(6)
            if t == 31: tile_wo_any(7); tile_wo_any(8)
        else:
            j = idx
            if j == 0: tile_wo_any(9)
            if 1 <= j <= 4: tile_wo_any(9 + j)
            if cfg.wr_spread and j < ntb(cfg) - 1:
                put_wo_some(cfg.wr_spread if j < ntb(cfg) - 2 else 999)
            if j == 5 and cfg.fused and not cfg.dump:
                a(f"v_lshlrev_b32 v33, 2, v{V_LANE}")
                a(f"v_add_u32 v33, {VS[0]}, v33")
                a("v_mov_b32 v34, 0")
                a("ds_write_b32 v33, v34")
                a("s_waitcnt lgkmcnt(0)")
    a("s_waitcnt vmcnt(0)")
    if cfg.fused and not cfg.dump:
        emit_red_setup(a, cfg)
        for p in range(2):
            emit_poll(a, cfg, p)
            xstamp(4 + p)
            for e in range(2):
                a(f"s_add_u32 s90, s{S_H}, {16*e}")
                a(f"s_lshr_b32 s{96+2*e}, s90, 2")
                a("s_and_b32 s90, s90, 3")
                a(f"s_add_u32 s{97+2*e}, s90, {4*p}")
            emit_reduce_frags(a, cfg, 2)
        emit_poll(a, cfg, 2)
        xstamp(6)
        if not cfg.decouple: a("s_barrier")
        emit_final_reduce(a, cfg)
        xstamp(7)
    if cfg.stamps:
        if not (cfg.fused and not cfg.dump): a("s_barrier")
        a("s_memrealtime s[62:63]")
        a("s_waitcnt lgkmcnt(0)")
        a(f"v_writelane_b32 v56, s62, 62")
        a("s_mov_b32 s76, s72"); a("s_mov_b32 s77, s73")
        a("s_mov_b32 s78, 0x10000000"); a("s_mov_b32 s79, 0x20000")
        a("s_lshl_b32 s74, s2, 8")
        a("s_add_u32 s74, s74, 0x4000000")
        a(f"v_lshlrev_b32 v57, 2, v{V_LANE}")
        a("buffer_store_dword v56, v57, s[76:79], s74 offen")
        a("s_add_u32 s74, s74, 0x100000")
        a("buffer_store_dword v58, v57, s[76:79], s74 offen")
        a("s_add_u32 s74, s74, 0x100000")
        a("buffer_store_dword v59, v57, s[76:79], s74 offen")
        a("s_waitcnt vmcnt(0)")
        if cfg.dbg_stamps >= 0:
            a(f"s_cmp_lg_u32 s2, {cfg.dbg_stamps}")
            a("s_cbranch_scc1 L_nodbg")
            sel = [(56, 1), (56, 16), (56, 24), (56, 32), (56, 40), (56, 47), (56, 48), (56, 56), (58, 4), (58, 5), (58, 6), (58, 7)]
            slots = [1, 2, 3, 5, 6, 7, 9, 10, 11, 13, 14, 15]
            a("v_readlane_b32 s91, v56, 0")
            for (r, ln), sl in zip(sel, slots):
                a(f"v_readlane_b32 s90, v{r}, {ln}")
                a("s_nop 3")
                a("s_sub_u32 s90, s90, s91")
                a("v_mov_b32 v60, s90")
                a(f"s_mov_b32 s89, {4*sl}")
                a("s_mov_b64 exec, 1")
                a("buffer_store_dword v60, off, s[48:51], s89")
                a("s_mov_b64 exec, -1")
                a("s_nop 1")
            a("s_waitcnt vmcnt(0)")
            a.label("L_nodbg")
    a("s_branch L_end")
    return early, a.L

def emit_cnt_srd(a):
    a(f"s_lshl_b32 s84, s{S_BR}, 3")
    a(f"s_add_u32 s84, s84, s{S_B}")
    a("s_lshl_b32 s84, s84, 14")
    a(f"s_add_u32 s84, s84, {CNT_OFF}")
    a("s_add_u32 s84, s72, s84")
    a("s_addc_u32 s85, s73, 0")
    a("s_mov_b32 s86, 16384"); a("s_mov_b32 s87, 0x20000")

def emit_red_setup(a, cfg):
    lane = V_LANE
    emit_cnt_srd(a)
    a(f"s_lshl_b32 s88, s{S_BR}, 3")
    a(f"s_add_u32 s88, s88, s{S_B}")
    a(f"s_mul_i32 s45, s88, {16*129024}")
    a("s_add_u32 s44, s72, s45")
    a("s_addc_u32 s45, s73, 0")
    a(f"s_mov_b32 s46, {16*129024}")
    a("s_mov_b32 s47, 0x20000")
    a("s_mov_b32 s92, s80"); a("s_mov_b32 s93, s81")
    a(f"s_mov_b32 s94, {8*144*896*2}"); a("s_mov_b32 s95, 0x20000")
    a(f"s_mul_i32 s64, s88, 9216")
    a(f"s_add_u32 s64, s64, {SCL_OFF}")
    a("s_add_u32 s64, s72, s64")
    a("s_addc_u32 s65, s73, 0")
    a("s_mov_b32 s66, 9216"); a("s_mov_b32 s67, 0x20000")

_lab = [0]
def emit_poll(a, cfg, p):
    _lab[0] += 1; n = _lab[0]
    a("s_mov_b64 exec, 1")
    a("s_mov_b32 s89, 0")
    a.label(f"L_poll{n}")
    a(f"s_mov_b32 s88, {4096*p}")
    a(f"buffer_load_dword v2, off, s[84:87], s88{cfg.poll_flags}")
    a("s_waitcnt vmcnt(0)")
    a("v_readfirstlane_b32 s90, v2")
    a("s_add_u32 s89, s89, 1")
    a("s_cmp_ge_u32 s90, 16")
    a(f"s_cbranch_scc1 L_poll_done{n}")
    a("s_cmp_ge_u32 s89, 0x40000")
    a(f"s_cbranch_scc1 L_poll_done{n}")
    a(f"s_sleep {cfg.poll_sleep}")
    a(f"s_branch L_poll{n}")
    a.label(f"L_poll_done{n}")
    a("s_mov_b64 exec, -1")

def emit_reduce_frags(a, cfg, nf):
    lane = V_LANE
    sc = cfg.scale_red
    nper = 20 if sc else 16
    a(f"v_lshlrev_b32 v2, 4, v{lane}")
    if sc:
        a(f"v_and_b32 v5, 15, v{lane}")
        a("v_lshlrev_b32 v5, 6, v5")
    for e in range(nf):
        if sc:
            a(f"s_lshl_b32 s91, s{96+2*e}, 10")
            for j in range(4):
                r = 192 + 16*e + 4*j
                a(f"buffer_load_dwordx4 v[{r}:{r+3}], v5, s[64:67], s91 offen offset:{16*j}{cfg.rd_flags}")
        a(f"s_mul_i32 s90, s{96+2*e}, 14")
        a(f"s_add_u32 s90, s90, s{97+2*e}")
        a("s_lshl_b32 s91, s90, 10")
        for hh in range(16):
            r = 64 + 64*e + 4*hh
            a(f"buffer_load_dwordx4 v[{r}:{r+3}], v2, s[44:47], s91 offen{cfg.rd_flags}")
            if hh < 15: a(f"s_add_u32 s91, s91, 129024")
    a(f"v_and_b32 v3, 15, v{lane}")
    a("v_mul_u32_u24 v3, 1792, v3")
    a(f"v_lshrrev_b32 v4, 4, v{lane}")
    a("v_lshl_add_u32 v3, v4, 3, v3")
    for e in range(nf):
        a(f"s_mul_i32 s100, s{S_B}, 144")
        a(f"s_lshl_b32 s90, s{96+2*e}, 4")
        a("s_add_u32 s100, s100, s90")
        a("s_mul_i32 s100, s100, 1792")
        a(f"s_lshl_b32 s90, s{97+2*e}, 6")
        a("s_add_u32 s100, s100, s90")
        a(f"s_mul_i32 s90, s{S_BR}, 896")
        a(f"s_add_u32 s{96+2*e}, s100, s90")
    for e in range(nf):
        acc = 32 + 8*e
        for hh in range(16):
            a(f"s_waitcnt vmcnt({nper*nf - 1 - nper*e - (nper - 16) - hh})")
            for r in range(4):
                src = 64 + 64*e + 4*hh + r
                if hh == 0 and not sc:
                    a(f"v_lshlrev_b32 v{acc+2*r}, 16, v{src}")
                    a(f"v_and_b32 v{acc+2*r+1}, 0xffff0000, v{src}")
                else:
                    t = 8 + 2*r
                    a(f"v_lshlrev_b32 v{t}, 16, v{src}")
                    a(f"v_and_b32 v{t+1}, 0xffff0000, v{src}")
            for r in range(4):
                t = 8 + 2*r
                A, T_ = f"v[{acc+2*r}:{acc+2*r+1}]", f"v[{t}:{t+1}]"
                if sc:
                    q = 192 + 16*e + hh
                    q0 = q & ~1
                    sel = q & 1
                    S_ = f"v[{q0}:{q0+1}]"
                    if hh == 0:
                        a(f"v_pk_mul_f32 {A}, {T_}, {S_} op_sel:[0,{sel}] op_sel_hi:[1,{sel}]")
                    else:
                        a(f"v_pk_fma_f32 {A}, {T_}, {S_}, {A} op_sel:[0,{sel},0] op_sel_hi:[1,{sel},1]")
                elif hh > 0:
                    a(f"v_pk_add_f32 {A}, {A}, {T_}")
        for r in range(4):
            a(f"v_cvt_pk_bf16_f32 v{48+4*e+r}, v{acc+2*r}, v{acc+2*r+1}")
    for e in range(nf):
        a(f"buffer_store_dwordx2 v[{48+4*e}:{49+4*e}], v3, s[92:95], s{96+2*e} offen{cfg.out_flags}")
        a(f"buffer_store_dwordx2 v[{50+4*e}:{51+4*e}], v3, s[92:95], s{96+2*e} offen offset:32{cfg.out_flags}")

def emit_final_reduce(a, cfg):
    _lab[0] += 1; n = _lab[0]
    a(f"s_lshl_b32 s90, s{S_WID}, 4")
    a(f"s_add_u32 s90, s90, s{S_H}")
    a("s_cmp_ge_u32 s90, 62")
    a(f"s_cbranch_scc1 L_fin_done{n}")
    a("s_lshr_b32 s96, s90, 2")
    a("s_and_b32 s97, s90, 3")
    a("s_add_u32 s97, s97, 8")
    a("s_sub_u32 s91, s90, 36")
    a("s_lshr_b32 s98, s91, 1")
    a("s_and_b32 s99, s91, 1")
    a("s_add_u32 s99, s99, 12")
    a("s_cmp_ge_u32 s90, 36")
    a("s_cselect_b32 s96, s98, s96")
    a("s_cselect_b32 s97, s99, s97")
    a("s_sub_u32 s91, s90, 54")
    a("s_cmp_ge_u32 s90, 54")
    a("s_cselect_b32 s96, 8, s96")
    a("s_cselect_b32 s97, s91, s97")
    emit_reduce_frags(a, cfg, 1)
    a.label(f"L_fin_done{n}")

def mfma(a, D, A, B, C=None):
    a(f"v_mfma_f32_16x16x32_bf16 {D}, {A}, {B}, {C if C is not None else D}")

def xlane_max(a, r, tmp):
    a(f"v_mov_b32 v{tmp}, v{r}")
    a("s_nop 1")
    a(f"v_permlane32_swap_b32 v{r}, v{tmp}")
    a("s_nop 1")
    a(f"v_max_f32 v{r}, v{r}, v{tmp}")
    a(f"v_mov_b32 v{tmp}, v{r}")
    a("s_nop 1")
    a(f"v_permlane16_swap_b32 v{r}, v{tmp}")
    a("s_nop 1")
    a(f"v_max_f32 v{r}, v{r}, v{tmp}")

def emit_compute(a, cfg):
    rare_blocks = []
    emit_compute_main(a, cfg, rare_blocks)
    emit_rare(a, cfg, rare_blocks)

def emit_compute_main(a, cfg, rare_blocks):
    lg = Lgkm(a)
    lane = V_LANE
    T0, T1 = V_T0, V_T1
    NKP, NVP = cfg.nkp, cfg.nvp
    a(f"v_lshrrev_b32 v{T0}, 3, v{lane}")
    a(f"v_and_b32 v{T1}, 7, v{lane}")
    a(f"v_lshrrev_b32 v22, 1, v{T0}")
    a(f"v_xor_b32 v22, v22, v{T1}")
    a(f"v_mul_u32_u24 v23, 896, v{T0}")
    a(f"v_lshl_add_u32 v24, v22, 4, v23")
    a(f"v_xor_b32 v22, 4, v22")
    a(f"v_lshl_add_u32 v25, v22, 4, v23")
    a(f"v_add_u32 v25, {8*896}, v25")
    if cfg.fast_start: emit_ptrs(a, cfg)
    a(f"s_mul_i32 s74, s{S_WID}, {XAW}")
    a(f"s_mul_i32 s75, s{S_WID}, {XW}")
    vm = Vm(a)
    ntx = " nt" if cfg.nt_x else ""
    if cfg.warm2:
        ntwarm = " nt" if cfg.nt_warm else ""
        a(f"v_lshlrev_b32 v26, 4, v{lane}")
        a(f"s_cmp_eq_u32 s{S_WID}, 2")
        a("s_cbranch_scc1 L_w2q")
        a(f"s_and_b32 s76, s{S_H}, 3")
        a("s_mul_i32 s76, s76, 32256")
        a(f"s_lshl_b32 s77, s{S_WID}, 14")
        a("s_add_u32 s76, s76, s77")
        for i in range(16):
            a(f"buffer_load_dwordx4 {ar(A_DUMMY,4)}, v26, s[{S_X}:{S_X+3}], s76 offen{ntwarm}")
            if i < 15: a("s_add_u32 s76, s76, 1024")
        a("s_branch L_w2done")
        a.label("L_w2q")
        a(f"v_lshrrev_b32 v27, 5, v{lane}")
        a(f"v_and_b32 v26, 31, v{lane}")
        a("v_lshlrev_b32 v26, 4, v26")
        a("v_lshl_add_u32 v26, v27, 13, v26")
        a(f"s_mul_i32 s76, s{S_B}, {56*8192}")
        for i in range(14):
            a(f"buffer_load_dwordx4 {ar(A_DUMMY,4)}, v26, s[{S_WQ}:{S_WQ+3}], s76 offen{ntwarm}")
            if i < 13: a(f"s_add_u32 s76, s76, {2*8192}")
        a.label("L_w2done")
    for sp in range(4):
        for qt in range(3):
            for hb in range(2):
                a(f"s_add_u32 m0, s74, {((qt*2 + hb)*4 + sp)*1024}")
                a(f"s_add_u32 s{S_SO}, s75, {qt*14336 + sp*128}")
                vm.issue(f"buffer_load_dwordx4 v{24+hb}, s[{S_X}:{S_X+3}], s{S_SO} offen{ntx} lds", ("x",))
    if cfg.warm_wq and not cfg.warm2:
        ntwarm = " nt" if cfg.nt_warm else ""
        a(f"v_lshrrev_b32 v{T0}, 5, v{lane}")
        a(f"v_and_b32 v{T1}, 31, v{lane}")
        a(f"v_lshlrev_b32 v{T1}, 4, v{T1}")
        a(f"v_lshl_add_u32 v26, v{T0}, 13, v{T1}")
        a(f"s_mul_i32 s75, s{S_B}, 48")
        a(f"s_lshl_b32 s76, s{S_WID}, 4")
        a("s_add_u32 s75, s75, s76")
        a("s_add_u32 s75, s75, 64")
        a("s_lshl_b32 s75, s75, 13")
        for i in range(8):
            vm.issue(f"buffer_load_dwordx4 {ar(A_DUMMY,4)}, v26, s[{S_WQ}:{S_WQ+3}], s75 offen{ntwarm}", ("warm", i))
            if i < 7: a(f"s_add_u32 s75, s75, {2*8192}")
    emit_setup_late(a, cfg, False)
    g_, i15 = 22, 23
    a(f"v_lshrrev_b32 v{g_}, 4, v{lane}")
    a(f"v_and_b32 v{i15}, 15, v{lane}")
    a(f"v_lshrrev_b32 v26, 1, v{i15}")
    a(f"v_lshrrev_b32 v27, 3, v{i15}")
    a(f"v_and_b32 v28, 7, v{i15}")
    a(f"v_lshlrev_b32 v28, 7, v28")
    a(f"s_mul_i32 s74, s{S_WID}, {XAW}")
    a(f"s_mul_i32 s75, s{S_WID}, {XBW}")
    a(f"s_add_u32 s75, s75, {XBB}")
    a(f"v_lshl_add_u32 v29, v27, 12, v28")
    a(f"v_add_u32 v29, s74, v29")
    a(f"v_mul_u32_u24 v27, 3072, v27")
    a(f"v_add_u32 v27, v27, v28")
    a(f"v_add_u32 v27, s75, v27")
    for e in range(2):
        a(f"v_add_u32 v{T0}, {4*e}, v{g_}")
        a(f"v_xor_b32 v{T0}, v{T0}, v26")
        a(f"v_lshl_add_u32 v{V_XB+e}, v{T0}, 4, v29")
        a(f"v_lshl_add_u32 v{V_XB2+e}, v{T0}, 4, v27")
    for j in range(4):
        a(f"v_add_u32 v{T0}, {4*j}, v{g_}")
        a(f"v_xor_b32 v{T0}, v{T0}, v{i15}")
        a(f"v_lshlrev_b32 v{T0}, 4, v{T0}")
        a(f"v_lshl_add_u32 v{V_KB+j}, v{i15}, 9, v{T0}")
    rp, cc, row, rho = 26, 27, 28, 29
    a(f"v_lshrrev_b32 v{rp}, 2, v{i15}")
    a(f"v_and_b32 v{cc}, 3, v{i15}")
    a(f"v_lshl_add_u32 v{row}, v{g_}, 2, v{rp}")
    a(f"v_and_b32 v{rho}, 7, v{row}")
    a(f"v_lshrrev_b32 v{T0}, 1, v{cc}")
    a(f"v_lshlrev_b32 v{T0}, 4, v{T0}")
    a(f"v_and_b32 v{T1}, 1, v{cc}")
    a(f"v_lshl_add_u32 v{T0}, v{T1}, 3, v{T0}")
    a(f"v_lshl_add_u32 v30, v{row}, 9, v{T0}")
    for j in range(8):
        a(f"v_xor_b32 v{T0}, {j}, v{rho}")
        a(f"v_lshl_add_u32 v{T0}, v{T0}, 5, v30")
        a(f"v_add_u32 v{V_VB+j}, {VREG}, v{T0}")
    a(f"v_lshlrev_b32 v31, 1, v{rho}")
    a(f"v_lshlrev_b32 v30, 9, v{row}")
    for j in range(4):
        a(f"v_add_u32 v{T0}, {4*j}, v{cc}")
        a(f"v_xor_b32 v{T0}, v{T0}, v31")
        a(f"v_lshl_add_u32 v{T0}, v{T0}, 4, v30")
        a(f"v_add_u32 v{V_WB+j}, {WBASE}, v{T0}")
    a(f"s_mov_b32 s{S_THR}, {hex(f2u(cfg.thr))}")

    def wread(s, u, half):
        T = u >> 1
        off = (WRING[s % 4] - WBASE) + (T >> 2) * 256 + (u & 1) * 8 + half * 8192
        r = A_W + 4 * u + 2 * half
        lg.issue(f"ds_read_b64_tr_b16 {ar(r,2)}, v{V_WB + (T & 3)} offset:{off}", ("w", s, u, half))
    def xread(s, qt):
        sp = s >> 1
        if sp < 4:
            off, base = qt * 8192 + sp * 1024, V_XB
        else:
            off, base = qt * 6144 + (sp - 4) * 1024, V_XB2
        lg.issue(f"ds_read_b128 {ar(Xreg(s, qt), 4)}, v{base + (s & 1)} offset:{off}", ("x", s, qt))
    NWP = 6
    n_after = 8 if (cfg.warm_wq and not cfg.warm2) else 0
    a(f"s_waitcnt vmcnt({n_after})")
    for qt in range(3): xread(0, qt)
    for s in range(14):
        a("s_barrier")
        pre_done = s >= 1
        if not pre_done:
            if s == 0: lg.need(("x", 0, 2))
            for u in range(NWP - (2 if s == 0 else 0)):
                wread(s, u, 0); wread(s, u, 1)
        nfirst = NWP - (2 if s == 0 else 0)
        mf = []
        for u in range(16):
            for qt in range(3):
                pre = None
                if qt == 0 and u % 2 == 0:
                    pre = (lambda s=s, u=u: lg.need(("w", s, u + 1, 1)))
                D = v(QAcc(u, qt), 4)
                mf.append((pre, (lambda D=D, s=s, u=u, qt=qt: mfma(a, D, ar(A_W + 4*u, 4), ar(Xreg(s, qt), 4), "0" if s == 0 else None))))
        st = []
        for u in range(nfirst, 16):
            for h in range(2):
                st.append(It((lambda s=s, u=u, h=h: wread(s, u, h)), 4, max(0, 3*(u - NWP) + h), max(0, 3*(u - 3))))
        nxt_pre = (s + 1 <= 13)
        if nxt_pre:
            for u in range(NWP):
                for h in range(2):
                    st.append(It((lambda s=s, u=u, h=h: wread(s + 1, u, h)), 4, 3*(16 + u - NWP) + h))
        streams = [st]
        if s == 0:
            xs = [It((lambda ss=ss, qt=qt: xread(ss, qt)), 4, ((ss - 1)*3 + qt) * 2) for ss in range(1, 8) for qt in range(3)]
            streams.append(xs)
        if s in (cfg.xb_read, cfg.xb_read + 1) and cfg.xb_one == 0:
            lo = 8 + 3*(s - cfg.xb_read)
            xs = [It((lambda ss=ss, qt=qt: xread(ss, qt)), 4, ((ss - lo)*3 + qt) * 5) for ss in range(lo, lo + 3) for qt in range(3)]
            streams.append(xs)
        if s == cfg.xb_read and cfg.xb_one:
            xs = [It((lambda ss=ss, qt=qt: xread(ss, qt)), 4, ((ss - 8)*3 + qt) * 2) for ss in range(8, 14) for qt in range(3)]
            streams.append(xs)
        sched(a, mf, streams)
        if s == 0:
            lg.need(("x", 7, 2))
        if s == cfg.xb_read + (0 if cfg.xb_one else 1):
            lg.need(("x", 13, 2))
    lg.drain()
    if cfg.dump == "qacc":
        emit_dump_v(a, cfg, V_QACC, 192); return
    a(f"s_mov_b32 s74, {hex(f2u(QSCALE))}")
    a(f"s_mov_b32 s75, {hex(f2u(QSCALE))}")
    a(f"v_mov_b32 v{T0}, 0x3f803f80")
    for r in range(4):
        a(f"v_accvgpr_write_b32 a{A_ONES+r}, v{T0}")
    a("s_nop 3")
    for i in range(23, -1, -1):
        src = V_QACC + 8 * i
        dst = V_Q + 4 * i
        for r in range(4):
            a(f"v_pk_mul_f32 {v(src + 2*r, 2)}, {v(src + 2*r, 2)}, s[74:75]")
        for r in range(3, -1, -1):
            a(f"v_cvt_pk_bf16_f32 v{dst + r}, v{src + 2*r}, v{src + 2*r + 1}")
    if cfg.dump == "q":
        emit_dump_v(a, cfg, V_Q, 96); return

    def kread(t, f):
        aa, T = f >> 3, f & 7
        off = KS[t % 4] + aa * 8192 + (T >> 2) * 256
        lg.issue(f"ds_read_b128 {v(V_KBUF + 4*(f % 8), 4)}, v{V_KB + (T & 3)} offset:{off}", ("k", t, f))
    def vread(t, u, half):
        off = (VS[t % 4] - VREG) + (u >> 3) * 256 + half * 8192
        r = V_VBUF + 4 * (u % 8) + 2 * half
        lg.issue(f"ds_read_b64_tr_b16 {v(r,2)}, v{V_VB + (u & 7)} offset:{off}", ("v", t, u, half))

    def exp_items(t):
        par = t & 1
        st = []
        for qt in range(3):
            for aa in range(2):
                s = Sreg(par, qt, aa)
                for hh in range(2):
                    e0, e1 = s + 2*hh, s + 2*hh + 1
                    pr = V_P + qt*4 + aa*2 + hh
                    st.append(It((lambda e=e0: a(f"v_exp_f32 v{e}, v{e}")), 8))
                    st.append(It((lambda e=e1: a(f"v_exp_f32 v{e}, v{e}")), 8))
                    st.append(("cvt", It((lambda pr=pr, e0=e0, e1=e1: a(f"v_cvt_pk_bf16_f32 v{pr}, v{e0}, v{e1}")), 4)))
        exps = [x for x in st if not isinstance(x, tuple)]
        cvts = [x[1] for x in st if isinstance(x, tuple)]
        return exps, cvts

    def phaseA(t):
        doqk = t + 1 <= 31
        doexp = t >= 0
        if doexp: exps, cvts = exp_items(t)
        if not doqk:
            vq = [(u, h) for u in range(NVP) for h in range(2)]
            for grp in range(12):
                exps[2*grp].fn(); exps[2*grp+1].fn()
                if grp > 0: cvts[grp-1].fn()
                if vq: vread(t, *vq.pop(0))
            a("s_nop 0")
            cvts[11].fn()
            while vq: vread(t, *vq.pop(0))
            return
        par1 = (t + 1) & 1
        mf = []
        for m in range(48):
            aa, T, qt = m // 24, (m % 24) // 3, m % 3
            f = aa * 8 + T
            pre = None
            if qt == 0 and f % 2 == 0:
                pre = (lambda f=f: lg.need(("k", t + 1, f + 1)))
            C = None
            if T == 0: C = "0" if t == -1 else v(V_CM + 4*qt, 4)
            D = v(Sreg(par1, qt, aa), 4)
            mf.append((pre, (lambda D=D, f=f, qt=qt, T=T, C=C: mfma(a, D, v(V_KBUF + 4*(f % 8), 4), v(Qreg(qt, T), 4), C))))
        ks = [It((lambda f=f: kread(t + 1, f)), 4, max(0, 3*(f - 8) + 2), 3*f - 8) for f in range(NKP, 16)]
        streams = [ks]
        if doexp:
            for i, e in enumerate(exps):
                e.earliest = 4*(i // 2) + (i & 1); e.deadline = e.earliest
            for i, c in enumerate(cvts):
                c.earliest = 4*i + 2; c.deadline = min(4*i + 5, 47)
            vs = [It((lambda u=u, h=h: vread(t, u, h)), 4, 26) for u in range(NVP) for h in range(2)]
            streams = [exps, cvts, ks, vs]
        sched(a, mf, streams)

    def phaseB(t, extra=None):
        first = (t == 0)
        docheck = t + 1 <= 31
        par1 = (t + 1) & 1
        Z = "0" if first else None
        mf = []
        for qt in range(3):
            mf.append((None, (lambda qt=qt: mfma(a, ar(A_L + 4*qt, 4), ar(A_ONES, 4), v(V_P + 4*qt, 4), Z))))
        for m in range(48):
            u, qt = m // 3, m % 3
            pre = None
            if qt == 0 and u % 2 == 0:
                pre = (lambda u=u: lg.need(("v", t, u + 1, 1)))
            mf.append((pre, (lambda u=u, qt=qt: mfma(a, ar(Oreg(u, qt), 4), v(V_VBUF + 4*(u % 8), 4), v(V_P + 4*qt, 4), Z))))
        vs = []
        for u in range(NVP, 16):
            e = max(0 if u < 8 else 3 + 3*(u - 8) + 2, 3 + 3*(u - NVP - 1))
            for h in range(2):
                vs.append(It((lambda u=u, h=h: vread(t, u, h)), 4, e + h, 3 + 3*u - 9))
        streams = [vs]
        if docheck:
            s0 = V_S[par1]; mx = V_TMP
            chk = [f"v_max3_f32 v{mx}, v{s0}, v{s0+1}, v{s0+2}"]
            for k in range(10):
                chk.append(f"v_max3_f32 v{mx}, v{mx}, v{s0+3+2*k}, v{s0+4+2*k}")
            chk.append(f"v_max_f32 v{mx}, v{mx}, v{s0+23}")
            chk.append(f"v_cmp_lt_f32 vcc, s{S_THR}, v{mx}")
            streams.append([It((lambda c=c: a(c)), 4, 6 + 2*i) for i, c in enumerate(chk)])
        if t + 2 <= 31:
            streams.append([It((lambda f=f: kread(t + 2, f)), 4, 30 + 2*f) for f in range(NKP)])
        if extra: streams += extra
        a("s_nop 1")
        sched(a, mf, streams)

    def check_branch(t, tag):
        a(f"s_cbranch_vccnz L_rare_{tag}")
        a.label(f"L_back_{tag}")
        rare_blocks.append((tag, (t + 1) & 1))

    a("s_barrier")
    for f in range(NKP): kread(0, f)
    phaseA(-1)
    for f in range(NKP): kread(1, f)
    a("s_nop 1")
    for qt in range(3):
        s0 = Sreg(0, qt, 0)
        mx = V_TMP + qt
        a(f"v_max3_f32 v{mx}, v{s0}, v{s0+1}, v{s0+2}")
        a(f"v_max3_f32 v{mx}, v{mx}, v{s0+3}, v{s0+4}")
        a(f"v_max3_f32 v{mx}, v{mx}, v{s0+5}, v{s0+6}")
        a(f"v_max_f32 v{mx}, v{mx}, v{s0+7}")
    for step in range(2):
        for qt in range(3): a(f"v_mov_b32 v{V_TMP+4+qt}, v{V_TMP+qt}")
        a("s_nop 0")
        for qt in range(3):
            a(f"v_permlane{32 if step == 0 else 16}_swap_b32 v{V_TMP+qt}, v{V_TMP+4+qt}")
        a("s_nop 0")
        for qt in range(3): a(f"v_max_f32 v{V_TMP+qt}, v{V_TMP+qt}, v{V_TMP+4+qt}")
    for qt in range(3):
        s0 = Sreg(0, qt, 0); mx = V_TMP + qt
        for r in range(8):
            a(f"v_sub_f32 v{s0+r}, v{s0+r}, v{mx}")
        for r in range(4):
            a(f"v_sub_f32 v{V_CM + 4*qt + r}, 0, v{mx}")
    if cfg.dump == "s0":
        lg.drain()
        emit_dump_v(a, cfg, V_S[0], 24, extra=(V_CM, 12)); return

    def iteration(t, tag):
        a("s_barrier")
        phaseA(t)
        phaseB(t)
        if t + 1 <= 31:
            check_branch(t, tag)

    iteration(0, "p0")
    q0 = list(lg.q)
    a(f"s_mov_b32 s{S_CNT}, 7")
    a.label("L_loop")
    for t in range(1, 5):
        iteration(t, f"l{t}")
    q1 = [(x[0], x[1] - 4) + x[2:] for x in lg.q]
    assert q0 == q1, (q0, q1)
    a(f"s_sub_u32 s{S_CNT}, s{S_CNT}, 1")
    a(f"s_cmp_lg_u32 s{S_CNT}, 0")
    a("s_cbranch_scc1 L_loop")
    lg.q = [(x[0], x[1] + 28) + x[2:] for x in q0]
    for x in lg.q: lg.issued.add(x)
    for f in range(16): lg.issued.add(("k", 30, f))
    a.label("L_tail_code")
    for t in range(29, 31):
        iteration(t, f"e{t}")

    def oconv_items(T, earliest=0):
        its = []
        for qt in range(3):
            tb = V_CT + 8 * qt
            for h in range(2):
                o = Oreg(2*T + h, qt)
                for r in range(4):
                    its.append(It((lambda d=tb + 4*h + r, s=o + r: a(f"v_accvgpr_read_b32 v{d}, a{s}")), 4, earliest))
            q = Qreg(qt, T)
            for r in range(4):
                its.append(It((lambda d=q + r, s=tb + 2*r: a(f"v_cvt_pk_bf16_f32 v{d}, v{s}, v{s+1}")), 4, earliest))
        return its

    def wo_base(j, jj):
        addr = WOSLOT[j]
        if addr < VREG: return VBK + jj, addr
        if addr < VREG + 65536: return V_VB + jj, addr - VREG
        return VBE + jj, addr - VREG - 65536
    steps = []
    for p in range(3):
        for T in range(8):
            steps.append((p, T, 4*p + T//2, T & 1, 8))
    for T in range(8):
        steps.append((3, T, 12 + T//4, T & 3, 4))
    frs = []
    for si, (p, T, j, tau, nu) in enumerate(steps):
        for u in range(nu):
            frs.append((si, p, T, j, tau, nu, u))
    FBN = 12
    def oread(k, half):
        si, p, T, j, tau, nu, u = frs[k]
        tp = (8*tau + u) if p < 3 else (4*tau + u)
        br, off = wo_base(j, tp & 7)
        off += (tp >> 3) * 256 + half * 8192
        r = A_WO + 4 * (k % FBN) + 2 * half
        lg.issue(f"ds_read_b64_tr_b16 {ar(r,2)}, v{br} offset:{off}", ("o", k, half))
    def accreg(p, u, qt):
        i = (u * 3 + qt) * 4
        if p == 0 or p == 2: return ("v", V_P0 + i)
        return ("a", i)
    def accstr(p, u, qt):
        f, r = accreg(p, u, qt)
        return v(r, 4) if f == "v" else ar(r, 4)
    slotc = [0]
    slog = []
    scale_red = cfg.fused and cfg.scale_red
    def conv_items(p, packed=False):
        its = []
        nu = 8 if p < 3 else 4
        for up in range(nu // 2):
            for qt in range(3):
                rl = V_RL + qt * 0
                rlp = f"v[{V_RL + 2*qt}:{V_RL + 2*qt + 1}]"
                f, _ = accreg(p, 0, 0)
                tb = V_CT + 12 * (slotc[0] % 2); slotc[0] += 1
                out = tb + 8
                if f == "a":
                    for h in range(2):
                        o = accreg(p, 2*up + h, qt)[1]
                        for r in range(4):
                            its.append(It((lambda d=tb + 4*h + r, s=o + r: a(f"v_accvgpr_read_b32 v{d}, a{s}"))))
                    srcs = [tb + 2*r for r in range(4)]
                else:
                    o0 = accreg(p, 2*up, qt)[1]; o1 = accreg(p, 2*up + 1, qt)[1]
                    srcs = [o0, o0 + 2, o1, o1 + 2]
                for sreg in (srcs if not scale_red else []):
                    if packed:
                        its.append(It((lambda s=sreg, rlp=rlp: a(f"v_pk_mul_f32 {v(s,2)}, {v(s,2)}, {rlp}"))))
                    else:
                        for k in range(2):
                            its.append(It((lambda s=sreg + k, qt=qt: a(f"v_mul_f32 v{s}, v{V_RL + 2*qt}, v{s}"))))
                for r, sreg in enumerate(srcs):
                    its.append(It((lambda d=out + r, s=sreg: a(f"v_cvt_pk_bf16_f32 v{d}, v{s}, v{s+1}"))))
                upair = 4*p + up
                its.append(It((lambda c=(qt*14 + upair)*1024: a(f"s_add_u32 s{S_SO}, s{S_WOFF}, {c}")), 4))
                its.append(It((lambda o=out, p=p: (a(f"buffer_store_dwordx4 {v(o,4)}, v{V_ST}, s[{S_WS}:{S_WS+3}], s{S_SO} offen{cfg.st_flags}"), slog.append(p))), 4))
        return its

    def cstamp(i):
        if cfg.stamps and cfg.cstamps:
            lg.drain()
            a("s_memrealtime s[62:63]")
            a("s_waitcnt lgkmcnt(0)")
            a(f"v_writelane_b32 v7, s62, {i}")
    svm = Vm(a)
    def signal_a(p, nafter):
        a(f"s_waitcnt vmcnt({nafter})")
        a("s_mov_b64 exec, 1")
        lg.issue(f"ds_add_rtn_u32 v6, v4, v5 offset:{4*p}", ("sig", p))
        a("s_mov_b64 exec, -1")
    def signal_b(p):
        lg.need(("sig", p))
        a("v_readfirstlane_b32 s90, v6")
        a("s_nop 3")
        a("s_cmp_eq_u32 s90, 2")
        a(f"s_cbranch_scc0 L_nosig{p}")
        a("s_mov_b64 exec, 1")
        a(f"s_mov_b32 s88, {4096*p}")
        a(f"buffer_atomic_add v5, off, s[84:87], s88")
        a("s_mov_b64 exec, -1")
        a.label(f"L_nosig{p}")
    a("s_barrier")
    phaseA(31)
    setup_its = []
    for j in range(8):
        setup_its.append(It((lambda j=j: a(f"v_subrev_u32 v{VBK+j}, {VREG}, v{V_VB+j}")), 4, 0))
        setup_its.append(It((lambda j=j: a(f"v_add_u32 v{VBE+j}, {VREG}, v{V_VB+j}")), 4, 0))
    NOP_ = cfg.nop
    ex1 = oconv_items(0, earliest=3 + 3*1 + 2 + 8)
    ex2 = oconv_items(1, earliest=3 + 3*3 + 2 + 8)
    pre_o = [It((lambda k=k, h=h: oread(k, h)), 4, 42) for k in range(NOP_) for h in range(2)]
    phaseB(31, extra=[setup_its, ex1 + ex2, pre_o])
    if cfg.dump == "o":
        a("s_nop 7")
        emit_dump_acc(a, cfg, 204); return
    a(f"v_lshlrev_b32 v{V_ST}, 4, v{lane}")
    a(f"s_mul_i32 s{S_WOFF}, s{S_WID}, {3*14*1024}")
    for qt in range(3):
        a(f"v_accvgpr_read_b32 v{V_RL+2*qt}, a{A_L + 4*qt}")
    for qt in range(3):
        a(f"v_rcp_f32 v{V_RL+2*qt}, v{V_RL+2*qt}")
    a("s_nop 0")
    for qt in range(3):
        a(f"v_mov_b32 v{V_RL+2*qt+1}, v{V_RL+2*qt}")
    if cfg.fused:
        a(f"v_mov_b32 v4, {VS[0]}")
        a("v_mov_b32 v5, 1")
        emit_red_setup(a, cfg)
    if scale_red:
        a(f"v_and_b32 v6, 15, v{lane}")
        a("v_lshlrev_b32 v6, 6, v6")
        a(f"s_mul_i32 s90, s{S_WID}, 3072")
        a(f"s_lshl_b32 s91, s{S_H}, 2")
        a("s_add_u32 s90, s90, s91")
        a("s_mov_b64 exec, 0xffff")
        for qt in range(3):
            a(f"buffer_store_dword v{V_RL+2*qt}, v6, s[64:67], s90 offen offset:{1024*qt}{cfg.st_flags}")
            slog.append(-1)
        a("s_mov_b64 exec, -1")

    cur_slot = -1
    nxt = NOP_
    pend = []
    store_log = slog
    stores_since = {q: (lambda q=q: sum(1 for i, x in enumerate(store_log) if i > max(k for k, y in enumerate(store_log) if y == q))) for q in range(4)}
    for si, (p, T, j, tau, nu) in enumerate(steps):
        if j != cur_slot:
            if j < ntb(cfg): a("s_barrier")
            cur_slot = j
        if T == 0: cstamp(p)
        if cfg.fused and p == 2 and T == cfg.sig_t:
            signal_a(0, stores_since[0]())
            cstamp(4)
        if cfg.fused and p == 2 and T == cfg.sig_t + 1:
            signal_b(0)
        if cfg.fused and p == 3 and T == cfg.sig_t1:
            cstamp(5)
            signal_a(1, stores_since[1]())
            cstamp(6)
        if cfg.fused and p == 3 and T == cfg.sig_t1 + 1:
            signal_b(1)
        k0 = sum(s[4] for s in steps[:si])
        if T == 0 and p > 0:
            assert not pend
            pend = conv_items(p - 1)
            for it in pend[:1]: pass
        mf = []
        for u in range(nu):
            k = k0 + u
            for qt in range(3):
                pre = None
                if qt == 0 and u % 2 == 0:
                    pre = (lambda k=k: lg.need(("o", k + 1, 1)))
                mf.append((pre, (lambda u=u, qt=qt, k=k: mfma(a, accstr(p, u, qt), ar(A_WO + 4*(k % FBN), 4), v(Qreg(qt, T), 4), "0" if T == 0 else None))))
        rs = []
        lim = k0 + nu + NOP_
        while nxt < len(frs) and nxt < lim and frs[nxt][3] <= j + 1:
            kk = nxt
            use = 3 * (kk - k0)
            e = max(0, 3 * (kk - FBN - k0) + 2)
            for h in range(2):
                rs.append(It((lambda kk=kk, h=h: oread(kk, h)), 4, max(e, use - 3*NOP_ - 3), max(0, use - 10)))
            nxt += 1
        streams = [rs]
        if p == 0 and T + 2 <= 7:
            streams.append(oconv_items(T + 2))
        if pend:
            if T == 0:
                for it in pend: it.earliest = 4
            streams.append(pend)
            last_of_pass = (T == 7)
            sched(a, mf, [rs] + [pend], flush=False)
            while rs: rs.pop(0).fn()
            if last_of_pass:
                while pend: pend.pop(0).fn()
            for it in pend: it.earliest = 0
        else:
            sched(a, mf, streams)
    cstamp(7)
    a("s_nop 7")
    for it in conv_items(3, packed=True): it.fn()
    cstamp(8)
    a.label("L_tail_end")
    print("lds throttles:", lg.throttled, file=sys.stderr)
    if cfg.fused:
        signal_a(2, 0); cstamp(9); signal_b(2)
        if cfg.decouple: emit_poll(a, cfg, 2)
        else: a("s_barrier")
        cstamp(10)
        emit_final_reduce(a, cfg)
        if cfg.stamps and cfg.cstamps:
            a("s_waitcnt vmcnt(0)")
            cstamp(11)
            a("s_mov_b32 s76, s72"); a("s_mov_b32 s77, s73")
            a("s_mov_b32 s78, 0x10000000"); a("s_mov_b32 s79, 0x20000")
            a("s_mul_i32 s74, s2, 3")
            a(f"s_add_u32 s74, s74, s{S_WID}")
            a("s_lshl_b32 s74, s74, 8")
            a("s_add_u32 s74, s74, 0x4400000")
            a(f"v_lshlrev_b32 v6, 2, v{V_LANE}")
            a("buffer_store_dword v7, v6, s[76:79], s74 offen")
    elif cfg.stamps:
        a("s_waitcnt vmcnt(0)")
        a("s_barrier")
    a("s_branch L_end")

def emit_rare(a, cfg, rare_blocks):
    for tag, par in rare_blocks:
        a.label(f"L_rare_{tag}")
        a("s_nop 7")
        for qt in range(3):
            s0 = Sreg(par, qt, 0)
            mx = V_TMP + qt
            a(f"v_max3_f32 v{mx}, v{s0}, v{s0+1}, v{s0+2}")
            a(f"v_max3_f32 v{mx}, v{mx}, v{s0+3}, v{s0+4}")
            a(f"v_max3_f32 v{mx}, v{mx}, v{s0+5}, v{s0+6}")
            a(f"v_max_f32 v{mx}, v{mx}, v{s0+7}")
            xlane_max(a, mx, V_TMP + 4)
            a(f"v_max_f32 v{mx}, 0, v{mx}")
            for r in range(8):
                a(f"v_sub_f32 v{s0+r}, v{s0+r}, v{mx}")
            for r in range(4):
                a(f"v_sub_f32 v{V_CM + 4*qt + r}, v{V_CM + 4*qt + r}, v{mx}")
            a(f"v_sub_f32 v{mx}, 0, v{mx}")
            a(f"v_exp_f32 v{mx}, v{mx}")
        a(f"s_getpc_b64 s[{S_TGT}:{S_TGT+1}]")
        a.label(f"L_pc_{tag}")
        a(f"s_add_u32 s{S_TGT}, s{S_TGT}, L_rescale-L_pc_{tag}")
        a(f"s_addc_u32 s{S_TGT+1}, s{S_TGT+1}, 0")
        a(f"s_swappc_b64 s[{S_RET}:{S_RET+1}], s[{S_TGT}:{S_TGT+1}]")
        a(f"s_branch L_back_{tag}")
    if not rare_blocks: return
    a.label("L_rescale")
    a("s_nop 7")
    for qt in range(3):
        regs = [Oreg(u, qt) + r for u in range(16) for r in range(4)] + [A_L + 4*qt + r for r in range(4)]
        for i in range(0, len(regs), 4):
            for k in range(4):
                a(f"v_accvgpr_read_b32 v{V_TMP+4+k}, a{regs[i+k]}")
            for k in range(4):
                a(f"v_mul_f32 v{V_TMP+4+k}, v{V_TMP+qt}, v{V_TMP+4+k}")
            for k in range(4):
                a(f"v_accvgpr_write_b32 a{regs[i+k]}, v{V_TMP+4+k}")
    a("s_nop 1")
    a(f"s_setpc_b64 s[{S_RET}:{S_RET+1}]")

def emit_dump_common(a, cfg, regs, isacc):
    a("s_mov_b32 s76, s72"); a("s_mov_b32 s77, s73")
    a("s_mov_b32 s78, 0x10000000"); a("s_mov_b32 s79, 0x20000")
    a(f"s_mul_i32 s74, s2, 3")
    a(f"s_add_u32 s74, s74, s{S_WID}")
    a("s_lshl_b32 s74, s74, 16")
    a(f"v_lshlrev_b32 v{V_T0}, 2, v{V_LANE}")
    for i, r in enumerate(regs):
        if isacc:
            a(f"v_accvgpr_read_b32 v{V_T1}, a{r}")
            src = V_T1
        else:
            src = r
        a(f"buffer_store_dword v{src}, v{V_T0}, s[76:79], s74 offen")
        a("s_add_u32 s74, s74, 256")
        if isacc: a("s_waitcnt vmcnt(0)")
    a("s_waitcnt vmcnt(0)")
    n = {"qacc": 33 + 14, "q": 33 + 14, "s0": 32 + 14, "o": 14}[cfg.dump]
    for _ in range(n): a("s_barrier")
    if cfg.stamps: a("s_barrier")
    a.label("L_tail_end")
    if cfg.dump != "o": a.label("L_tail_code")
    a("s_branch L_end")
def emit_dump_acc(a, cfg, n):
    a("s_nop 7")
    emit_dump_common(a, cfg, list(range(n)), True)
def emit_dump_v(a, cfg, base, n, extra=None):
    regs = list(range(base, base + n))
    if extra: regs += list(range(extra[0], extra[0] + extra[1]))
    emit_dump_common(a, cfg, regs, False)

def emit_reduce(a, cfg):
    a.raw(f".globl {RNAME}")
    a.raw(".p2align 8")
    a.raw(f".type {RNAME},@function")
    a.label(RNAME)
    a("s_cmp_ge_u32 s2, 504")
    a("s_cbranch_scc1 LR_end")
    a("s_load_dwordx2 s[4:5], s[0:1], 96")
    a("s_load_dwordx2 s[8:9], s[0:1], 80")
    a("v_lshrrev_b32 v1, 6, v0")
    a("v_and_b32 v2, 63, v0")
    a("v_readfirstlane_b32 s3, v1")
    a("s_lshl_b32 s12, s2, 2")
    a("s_add_u32 s12, s12, s3")
    a(f"s_mul_hi_u32 s13, s12, {(2**32 + 125)//126}")
    a("s_mul_i32 s14, s13, 126")
    a("s_sub_u32 s14, s12, s14")
    a(f"s_mul_hi_u32 s15, s14, {(2**32 + 13)//14}")
    a("s_mul_i32 s16, s15, 14")
    a("s_sub_u32 s16, s14, s16")
    a("s_waitcnt lgkmcnt(0)")
    a(f"s_mul_i32 s17, s13, {16*129024}")
    a("s_lshl_b32 s18, s14, 10")
    a("s_add_u32 s17, s17, s18")
    a("s_add_u32 s4, s4, s17")
    a("s_addc_u32 s5, s5, 0")
    a(f"s_mov_b32 s6, {15*129024 + 1024}")
    a("s_mov_b32 s7, 0x20000")
    a("v_lshlrev_b32 v3, 4, v2")
    for h in range(16):
        a(f"s_mov_b32 s19, {h*129024}")
        a(f"buffer_load_dwordx4 v[{8+4*h}:{11+4*h}], v3, s[4:7], s19 offen{cfg.rd_flags}")
    a("s_and_b32 s20, s13, 7")
    a("s_lshr_b32 s21, s13, 3")
    a("s_mul_i32 s20, s20, 144")
    a("s_lshl_b32 s22, s15, 4")
    a("s_add_u32 s20, s20, s22")
    a("s_mul_i32 s20, s20, 1792")
    a("s_mul_i32 s21, s21, 896")
    a("s_lshl_b32 s22, s16, 6")
    a("s_add_u32 s20, s20, s21")
    a("s_add_u32 s20, s20, s22")
    a("v_and_b32 v4, 15, v2")
    a("v_mul_u32_u24 v4, 1792, v4")
    a("v_lshrrev_b32 v5, 4, v2")
    a("v_lshl_add_u32 v4, v5, 3, v4")
    a("s_mov_b32 s10, %d" % (8*144*896*2))
    a("s_mov_b32 s11, 0x20000")
    for h in range(16):
        a(f"s_waitcnt vmcnt({15-h})")
        for r in range(4):
            src = 8 + 4*h + r
            if h == 0:
                a(f"v_lshlrev_b32 v{72+2*r}, 16, v{src}")
                a(f"v_and_b32 v{73+2*r}, 0xffff0000, v{src}")
            else:
                a(f"v_lshlrev_b32 v80, 16, v{src}")
                a(f"v_and_b32 v81, 0xffff0000, v{src}")
                a(f"v_add_f32 v{72+2*r}, v{72+2*r}, v80")
                a(f"v_add_f32 v{73+2*r}, v{73+2*r}, v81")
    for r in range(4):
        a(f"v_cvt_pk_bf16_f32 v{84+r}, v{72+2*r}, v{73+2*r}")
    a("buffer_store_dwordx2 v[84:85], v4, s[8:11], s20 offen")
    a("buffer_store_dwordx2 v[86:87], v4, s[8:11], s20 offen offset:32")
    a.label("LR_end")
    a("s_endpgm")

def kd(a, name, vg, acc, sg=102):
    a.raw(f".amdhsa_kernel {name}")
    a.raw(f"  .amdhsa_next_free_vgpr {vg}")
    a.raw(f"  .amdhsa_next_free_sgpr {sg}")
    a.raw(f"  .amdhsa_accum_offset {acc}")
    a.raw("  .amdhsa_group_segment_fixed_size 0")
    a.raw("  .amdhsa_kernarg_size 104")
    a.raw("  .amdhsa_user_sgpr_count 2")
    a.raw("  .amdhsa_user_sgpr_kernarg_segment_ptr 1")
    a.raw("  .amdhsa_system_sgpr_workgroup_id_x 1")
    a.raw(".end_amdhsa_kernel")

HEADER = """; Fused MHA block (two branches): Q-proj + flash attention + partial out-proj per (branch,batch,head) workgroup,
"""
def generate(cfg):
    a = Asm()
    a.raw(HEADER.rstrip())
    if cfg.fused and not cfg.aslist:
        a.raw(f"; @launch grid=(256,1,1) block=(256,1,1) lds=163840")
    else:
        a.raw(f"; @launch kernel={KNAME} grid=(256,1,1) block=(256,1,1) lds=163840")
    if not cfg.dump and not cfg.fused:
        a.raw(f"; @launch kernel={RNAME} grid=(504,1,1) block=(256,1,1) lds=0")
    a.raw('.amdgcn_target "amdgcn-amd-amdhsa--gfx950"')
    a.raw(".text")
    a.raw(f".globl {KNAME}")
    a.raw(".p2align 8")
    a.raw(f".type {KNAME},@function")
    a.label(KNAME)
    emit_setup(a, cfg)
    rare = []
    if cfg.fast_start:
        head = a.L; a.L = []
        early, late = emit_loader(a, cfg)
        a.L = []
        a.label("L_compute")
        emit_compute_main(a, cfg, rare)
        a.L = head + early + a.L + late
    else:
        emit_compute_main(a, cfg, rare)
        emit_loader(a, cfg)
    a.label("L_code_end")
    emit_rare(a, cfg, rare)
    a.label("L_end")
    a("s_endpgm")
    if not cfg.dump and not cfg.fused:
        emit_reduce(a, cfg)
    a.raw('.section .rodata,"a"')
    a.raw(".p2align 6")
    kd(a, KNAME, 512, 256)
    if not cfg.dump and not cfg.fused:
        a.raw(".p2align 6")
        kd(a, RNAME, 96, 96, 32)
    return a.text()

if __name__ == "__main__":
    cfg = Cfg()
    out = sys.argv[1]
    for kv in sys.argv[2:]:
        k, val = kv.split("=", 1)
        cur = getattr(cfg, k)
        if isinstance(cur, bool): val = val in ("1", "True", "true")
        elif isinstance(cur, float): val = float(val)
        elif isinstance(cur, int): val = int(val)
        elif val == "None": val = None
        setattr(cfg, k, val)
    open(out, "w").write(generate(cfg))
```

```python
import sys, math, struct, re

KNAME = "concat_heads__mha_block_cached__mha_block_cached__near_ridge_kernel"
RNAME = "reduce_kernel"

class Asm:
    def __init__(self):
        self.L = []
    def __call__(self, s):
        self.L.append("    " + s)
    def label(self, s):
        self.L.append(s + ":")
    def raw(self, s):
        self.L.append(s)
    def text(self):
        return "\n".join(self.L) + "\n"

class Lgkm:
    def __init__(self, a):
        self.a = a; self.q = []; self.issued = set(); self.throttled = 0
    def issue(self, ins, tag):
        if len(self.q) >= 15:
            self.a("s_waitcnt lgkmcnt(14)"); self.q = self.q[len(self.q) - 14:]; self.throttled += 1
        self.a(ins); self.q.append(tag); self.issued.add(tag)
    def need(self, tag):
        assert tag in self.issued, ("not issued", tag)
        if tag in self.q:
            idx = len(self.q) - 1 - self.q[::-1].index(tag)
            n = len(self.q) - 1 - idx
            self.a(f"s_waitcnt lgkmcnt({n})")
            self.q = self.q[idx + 1:]
    def drain(self):
        if self.q:
            self.a("s_waitcnt lgkmcnt(0)")
            self.q = []

class Vm:
    def __init__(self, a):
        self.a = a; self.q = []
    def room(self, n):
        over = len(self.q) + n - 63
        if over > 0:
            keep = len(self.q) - over
            self.a(f"s_waitcnt vmcnt({keep})")
            self.q = self.q[over:]
    def issue(self, ins, tag):
        assert len(self.q) < 63
        self.a(ins); self.q.append(tag)
    def need(self, tag):
        if tag in self.q:
            idx = len(self.q) - 1 - self.q[::-1].index(tag)
            n = len(self.q) - 1 - idx
            self.a(f"s_waitcnt vmcnt({n})")
            self.q = self.q[idx + 1:]

class It:
    def __init__(self, fn, cost=4, earliest=0, deadline=10**9):
        self.fn, self.cost, self.earliest, self.deadline = fn, cost, earliest, deadline

def sched(a, mf, streams, budget=8, flush=True):
    n = len(mf)
    for m, (pre, emit) in enumerate(mf):
        if pre: pre()
        emit()
        b = budget
        if m + 1 < n and mf[m + 1][0] is not None: b -= 4
        for st in streams:
            while st and st[0].deadline <= m:
                it = st.pop(0); it.fn(); b -= it.cost
        for st in streams:
            while st and st[0].earliest <= m and st[0].cost <= b:
                it = st.pop(0); it.fn(); b -= it.cost
    if flush:
        prog = True
        while any(streams):
            for st in streams:
                if st:
                    it = st.pop(0); it.fn()

def v(n, cnt=1):
    return f"v{n}" if cnt == 1 else f"v[{n}:{n+cnt-1}]"
def ar(n, cnt=1):
    return f"a{n}" if cnt == 1 else f"a[{n}:{n+cnt-1}]"
def f2u(x): return struct.unpack("<I", struct.pack("<f", x))[0]

V_LANE = 1
V_T0, V_T1 = 2, 3
V_KB = 4
V_VB = 8
V_TMP = 16
V_S = [24, 48]
V_P = 72
V_CM = 84
V_KBUF = 96
V_VBUF = 128
V_Q = 160
A_O = 0
A_L = 192
A_ONES = 204
A_X = 0
A_W = 168
A_DUMMY = 232
V_QACC = 64
V_WB = 16
V_XB = 20
V_XB2 = 24
A_WO = 208
V_P0 = 64
VBK, VBE = 24, 32
V_RL = 16
V_ST = 22
V_CT = 40

def Qreg(qt, T): return V_Q + (qt * 8 + T) * 4
def Xreg(s, qt): return A_X + (s * 3 + qt) * 4
def QAcc(u, qt): return V_QACC + (qt * 8 + (u >> 1)) * 8 + 4 * (u & 1)
def Oreg(u, qt): return A_O + (u * 3 + qt) * 4
def Sreg(par, qt, a): return V_S[par] + (qt * 2 + a) * 4

KS = [i * 16384 for i in range(4)]
VREG = 65536
VS = [VREG + i * 16384 for i in range(4)]
ES = [131072, 147456]
WRING = [ES[0], ES[1], VS[2], VS[3]]
WBASE = VS[2]
XW = 43008
XAW = 24576
XBB = 32768
XBW = 18432
WOSLOT = [ES[0], ES[1], KS[0], KS[1], VS[0], KS[2], VS[1], KS[3], VS[2], VS[3], ES[0], ES[1], KS[0], KS[1]]

S_WID = 3
S_X, S_K, S_V, S_WQ, S_WO, S_WS = 4, 8, 12, 16, 20, 24
S_B, S_H, S_BR, S_THR = 28, 29, 30, 31
S_SO, S_SO2, S_CNT = 32, 33, 34
S_RET, S_TGT = 36, 38
S_WOFF = 40
S_PC = 56
S_TS = 60

QSCALE = math.log2(math.e) / 16.0
SCL_OFF = 0x2200000
CNT_OFF = 0x2100000

class Cfg:
    nt_kv = True
    nt_w = False
    nt_x = False
    nt_wo = False
    nt_warm = False
    st_flags = " sc0 sc1"
    rd_flags = " sc0 sc1"
    warm_wq = True
    warm_wo = False
    code_pf = True
    thr = 8.0
    dump = None
    stamps = False
    kvsched = "g"
    fused = True
    poll_flags = " sc1"
    out_flags = ""
    aslist = False
    sig_t = 0
    t_jit = 99
    t_mid = 99
    mid_a = 26
    mid_b = 30
    jit_pre = 4
    fast_start = True
    warm2 = False
    xbsched = "b"
    xb_read = 4
    xb_one = 1
    wr_pace = 0
    wr_spread = 10
    map_odd = False
    cstamps = False
    stagger = 0
    ncls = 4
    cls_mode = "b"
    stag_tmax = 31
    scale_red = True
    decouple = True
    nop = 6
    dbg_stamps = -1
    wo_reg0 = 9
    wo_reg_t0 = 14
    warm_t0 = 18
    poll_sleep = 2
    sig_t1 = 2
    nkp = 8
    nvp = 4

def emit_setup(a, cfg):
    a("s_cmp_ge_u32 s2, 256")
    a("s_cbranch_scc1 L_end")
    if cfg.stamps:
        a(f"s_memrealtime s[{S_TS}:{S_TS+1}]")
    a("s_load_dwordx4 s[44:47], s[0:1], 0")
    a("s_load_dwordx4 s[48:51], s[0:1], 16")
    a("s_load_dwordx2 s[54:55], s[0:1], 40")
    a("s_load_dwordx4 s[68:71], s[0:1], 64")
    a("s_load_dwordx2 s[52:53], s[0:1], 32")
    a("s_load_dwordx4 s[64:67], s[0:1], 48")
    a("s_load_dwordx2 s[72:73], s[0:1], 96")
    a("s_load_dwordx4 s[80:83], s[0:1], 80")
    a(f"v_lshrrev_b32 v{V_T0}, 6, v0")
    a(f"v_and_b32 v{V_LANE}, 63, v0")
    a(f"v_readfirstlane_b32 s{S_WID}, v{V_T0}")
    a("s_lshr_b32 s75, s2, 3")
    if cfg.code_pf and cfg.fast_start:
        a(f"s_getpc_b64 s[{S_PC}:{S_PC+1}]")
        a.label("L_pc_entry")
        a(f"s_sub_u32 s{S_PC}, s{S_PC}, L_pc_entry-{KNAME}")
        a(f"s_subb_u32 s{S_PC+1}, s{S_PC+1}, 0")
        a(f"s_mov_b32 s{S_PC+2}, L_code_end-{KNAME}")
        a(f"s_mov_b32 s{S_PC+3}, 0x20000")
        a(f"v_lshlrev_b32 v4, 4, v{V_LANE}")
        a("s_lshl_b32 s76, s75, 2")
        a(f"s_add_u32 s76, s76, s{S_WID}")
        a("s_lshl_b32 s76, s76, 10")
        a(f"buffer_load_dwordx4 a[236:239], v4, s[{S_PC}:{S_PC+3}], s76 offen")
    a("s_and_b32 s74, s2, 7")
    if cfg.map_odd:
        a(f"s_and_b32 s{S_BR}, s74, 1")
        a("s_lshr_b32 s76, s74, 1")
    else:
        a(f"s_lshr_b32 s{S_BR}, s74, 2")
        a("s_and_b32 s76, s74, 3")
    a("s_lshl_b32 s76, s76, 2")
    a("s_and_b32 s77, s75, 3")
    a(f"s_add_u32 s{S_H}, s76, s77")
    a(f"s_lshr_b32 s{S_B}, s75, 2")
    if not cfg.fast_start: emit_ptrs(a, cfg)
    a(f"s_cmp_eq_u32 s{S_WID}, 3")
    if cfg.fast_start: a("s_cbranch_scc0 L_compute")
    else: a("s_cbranch_scc1 L_loader")

def emit_ptrs(a, cfg):
    a(f"s_mul_i32 s78, s{S_B}, 129024")
    a(f"s_lshl_b32 s79, s{S_H}, 9")
    a(f"s_mov_b32 s{S_X+2}, 129024")
    a(f"s_mov_b32 s{S_X+3}, 0x20000")
    a(f"s_sub_u32 s{S_WQ+2}, {448*8192}, s79")
    a(f"s_mov_b32 s{S_WQ+3}, 0x20000")
    a("s_waitcnt lgkmcnt(0)")
    a(f"s_cmp_eq_u32 s{S_BR}, 0")
    a(f"s_cselect_b32 s{S_X}, s44, s54")
    a(f"s_cselect_b32 s{S_X+1}, s45, s55")
    a(f"s_cselect_b32 s{S_WQ}, s50, s68")
    a(f"s_cselect_b32 s{S_WQ+1}, s51, s69")
    a(f"s_cselect_b32 s{S_K}, s46, s64")
    a(f"s_cselect_b32 s{S_K+1}, s47, s65")
    a(f"s_cselect_b32 s{S_V}, s48, s66")
    a(f"s_cselect_b32 s{S_V+1}, s49, s67")
    a(f"s_cselect_b32 s{S_WO}, s52, s70")
    a(f"s_cselect_b32 s{S_WO+1}, s53, s71")
    a(f"s_add_u32 s{S_X}, s{S_X}, s78")
    a(f"s_addc_u32 s{S_X+1}, s{S_X+1}, 0")
    a(f"s_add_u32 s{S_WQ}, s{S_WQ}, s79")
    a(f"s_addc_u32 s{S_WQ+1}, s{S_WQ+1}, 0")

def emit_setup_late(a, cfg, loader):
    a(f"s_lshl_b32 s74, s{S_B}, 4")
    a(f"s_add_u32 s74, s74, s{S_H}")
    if loader:
        a("s_lshl_b32 s75, s74, 19")
        for S in (S_K, S_V):
            a(f"s_add_u32 s{S}, s{S}, s75")
            a(f"s_addc_u32 s{S+1}, s{S+1}, 0")
            a(f"s_mov_b32 s{S+2}, 524288")
            a(f"s_mov_b32 s{S+3}, 0x20000")
        a(f"s_mul_i32 s75, s{S_H}, {256*896}")
        a(f"s_add_u32 s{S_WO}, s{S_WO}, s75")
        a(f"s_addc_u32 s{S_WO+1}, s{S_WO+1}, 0")
        a(f"s_mov_b32 s{S_WO+2}, {256*896}")
        a(f"s_mov_b32 s{S_WO+3}, 0x20000")
    else:
        a(f"s_lshl_b32 s75, s{S_BR}, 7")
        a("s_add_u32 s74, s74, s75")
        a("s_mul_i32 s74, s74, 129024")
        a(f"s_add_u32 s{S_WS}, s72, s74")
        a(f"s_addc_u32 s{S_WS+1}, s73, 0")
        a(f"s_mov_b32 s{S_WS+2}, 129024")
        a(f"s_mov_b32 s{S_WS+3}, 0x20000")

def ntb(cfg): return 9 if (cfg.fused and not cfg.dump) else 14
def barrier_list(cfg):
    L = [("PB", s) for s in range(14)]
    for t in range(-1, 32):
        if t >= cfg.t_mid:
            L.append(("MB", t))
            if t + 2 <= 31: L.append(("MA", t))
            continue
        L.append(("B", t))
        if t >= cfg.t_jit: L.append(("BB", t))
    L += [("TB", j) for j in range(ntb(cfg))]
    return L

XBSCHED = {"a": {1: [0], 2: [1], 3: [2]}, "b": {1: [0, 1], 2: [2]}, "c": {1: [0, 1, 2]}}
KVSCHED = {
    "f": {3: [("K", 0)], 4: [("K", 1)], 6: [("K", 2)], 7: [("V", 0)], 8: [("K", 3)], 9: [("V", 1)], 11: [("V", 2)], 12: [("V", 3)]},
    "g": {2: [("K", 0)], 3: [("K", 1)], 5: [("K", 2)], 6: [("V", 0)], 8: [("K", 3)], 9: [("V", 1)], 11: [("V", 2)], 12: [("V", 3)]},
    "h": {1: [("K", 0)], 3: [("K", 1)], 5: [("K", 2)], 6: [("V", 0)], 7: [("K", 3)], 9: [("V", 1)], 11: [("V", 2)], 12: [("V", 3)]},
    "a": {1: [("K", 0)], 2: [("V", 0)], 3: [("K", 1)], 4: [("K", 2)], 6: [("V", 1)], 7: [("K", 3)], 11: [("V", 2)], 12: [("V", 3)]},
    "b": {1: [("K", 0), ("V", 0)], 2: [("K", 1)], 3: [("K", 2)], 4: [("V", 1)], 5: [("K", 3)], 11: [("V", 2)], 12: [("V", 3)]},
    "d": {4: [("K", 0)], 5: [("K", 1)], 7: [("K", 2), ("V", 0)], 8: [("K", 3)], 9: [("V", 1)], 11: [("V", 2)], 12: [("V", 3)]},
    "e": {3: [("K", 0)], 5: [("K", 1)], 7: [("V", 0)], 8: [("K", 2)], 9: [("K", 3)], 10: [("V", 1)], 11: [("V", 2)], 12: [("V", 3)]},
    "c": {1: [("K", 0)], 3: [("V", 0)], 4: [("K", 1)], 6: [("K", 2)], 7: [("V", 1)], 9: [("K", 3)], 11: [("V", 2)], 12: [("V", 3)]},
}

def emit_code_prefetch(a, cfg, vm, vaddr, lo, hi, dst):
    a(f"s_getpc_b64 s[{S_PC}:{S_PC+1}]")
    lab = f"L_pc_{lo}"
    a.label(lab)
    a(f"s_add_u32 s{S_PC}, s{S_PC}, {lo}-{lab}")
    a(f"s_addc_u32 s{S_PC+1}, s{S_PC+1}, 0")
    a(f"s_mov_b32 s{S_PC+2}, {hi}-{lo}")
    a(f"s_mov_b32 s{S_PC+3}, 0x20000")
    return

def emit_loader(a, cfg):
    a.label("L_loader")
    vm = Vm(a)
    LH, LP = 2, 3
    VK, VV, VW, VO, VO3 = 8, 16, 20, 24, 28
    T0, T1 = 4, 5
    stamp_idx = [0]
    def xstamp(i):
        if cfg.stamps:
            a("s_memrealtime s[62:63]")
            a("s_waitcnt lgkmcnt(0)")
            a(f"v_writelane_b32 v58, s62, {i}")
    if cfg.stamps:
        a(f"v_writelane_b32 v56, s{S_TS}, 0")
    xstamp(0)
    a(f"v_lshrrev_b32 v{LH}, 5, v{V_LANE}")
    a(f"v_and_b32 v{LP}, 31, v{V_LANE}")
    a(f"v_lshlrev_b32 v32, 4, v{V_LANE}")
    def chunkpat(i):
        a(f"v_add_u32 v{T0}, {2*i}, v{LH}")
        a(f"v_lshlrev_b32 v{T0}, 1, v{T0}")
        a(f"v_xor_b32 v{T0}, v{T0}, v{LP}")
    for i in range(4):
        chunkpat(i)
        a(f"v_lshlrev_b32 v{T1}, 4, v{T0}")
        a(f"v_lshl_add_u32 v{VW+i}, v{LH}, 13, v{T1}")
    if cfg.fast_start: emit_ptrs(a, cfg)
    ntkv = " nt" if cfg.nt_kv else ""
    ntw = " nt" if cfg.nt_w else ""
    ntwo = " nt" if cfg.nt_wo else ""
    ntwarm = " nt" if cfg.nt_warm else ""

    clsn = [0]
    def class_wait():
        if not cfg.stagger: return
        clsn[0] += 1; n = clsn[0]
        for c in range(1, cfg.ncls):
            a(f"s_cmp_lt_u32 s53, {c}")
            a(f"s_cbranch_scc1 L_cls{n}")
            a(f"s_waitcnt vmcnt({47 - cfg.stagger * c})")
        a.label(f"L_cls{n}")
    def tile_kv(kind, t):
        srd = S_K if kind == "K" else S_V
        lds = KS[t % 4] if kind == "K" else VS[t % 4]
        vm.room(16)
        if t >= 4 and t <= cfg.stag_tmax: class_wait()
        for m in range(4):
            a(f"s_mov_b32 m0, {lds + m*4096}")
            a(f"s_mov_b32 s{S_SO}, {t*16384 + m*4096}")
            for n in range(4):
                i = 4*m + n
                vo = VK + (i & 7) if kind == "K" else VV + (i & 3)
                vm.issue(f"buffer_load_dwordx4 v{vo}, s[{srd}:{srd+3}], s{S_SO} offen offset:{n*1024}{ntkv} lds", (kind, t))
    def tile_w(s):
        lds = WRING[s % 4]
        vm.room(16)
        prev = 0
        for i in range(16):
            sig0 = 8*((i & 7) >> 1) + 4*(i >> 3) + 2*(i & 1)
            if i == 0 or not cfg.fast_start:
                a(f"s_mov_b32 m0, {lds + i*1024}")
                a(f"s_mov_b32 s{S_SO}, {(s*32 + sig0)*8192}")
            else:
                a("s_add_u32 m0, m0, s98")
                d = sig0 - prev
                if d == 2: a(f"s_add_u32 s{S_SO}, s{S_SO}, s99")
                elif d == 6: a(f"s_add_u32 s{S_SO}, s{S_SO}, s100")
                else: a(f"s_sub_u32 s{S_SO}, s{S_SO}, {-d*8192}")
            prev = sig0
            vm.issue(f"buffer_load_dwordx4 v{VW + (i & 3)}, s[{S_WQ}:{S_WQ+3}], s{S_SO} offen{ntw} lds", ("W", s))
    VX = 40
    def setup_xb():
        a(f"v_lshrrev_b32 v{T0}, 3, v{V_LANE}")
        a(f"v_and_b32 v{T1}, 7, v{V_LANE}")
        a(f"v_lshrrev_b32 v6, 1, v{T0}")
        a(f"v_xor_b32 v6, v6, v{T1}")
        a(f"v_mul_u32_u24 v7, 896, v{T0}")
        a(f"v_lshl_add_u32 v{VX}, v6, 4, v7")
        a(f"v_xor_b32 v6, 4, v6")
        a(f"v_lshl_add_u32 v{VX+1}, v6, 4, v7")
        a(f"v_add_u32 v{VX+1}, {8*896}, v{VX+1}")
    def tile_xb(part):
        vm.room(18)
        ntx = " nt" if cfg.nt_x else ""
        for w in range(3):
            for qt in range(3):
                for hb in range(2):
                    a(f"s_mov_b32 m0, {XBB + w*XBW + ((qt*2 + hb)*3 + part)*1024}")
                    a(f"s_mov_b32 s{S_SO}, {w*XW + qt*14336 + (4 + part)*128}")
                    vm.issue(f"buffer_load_dwordx4 v{VX+hb}, s[{S_X}:{S_X+3}], s{S_SO} offen{ntx} lds", ("XB", part))
    def tile_wo(j):
        lds = WOSLOT[j]
        vm.room(16)
        for i in range(16):
            if j < 12:
                p, T0_ = j // 4, (j % 4) * 2
                so = (32*T0_ + 2*i)*896 + p*256
                vo = VO + (i & 3)
            else:
                T0_ = (j - 12) * 4
                so = (32*T0_ + 2*i)*896 + 768
                vo = VO3 + (i & 3)
            a(f"s_mov_b32 m0, {lds + i*1024}")
            a(f"s_mov_b32 s{S_SO}, {so}")
            vm.issue(f"buffer_load_dwordx4 v{vo}, s[{S_WO}:{S_WO+3}], s{S_SO} offen{ntwo} lds", ("WO", j))
    NREG0 = cfg.wo_reg0
    def wo_quad(j, i):
        k = (j - NREG0) * 16 + i
        return ar(4*k, 4) if k < 64 else v(64 + 4*(k - 64), 4)
    def wo_addr(j, i):
        if j < 12:
            p, T0_ = j // 4, (j % 4) * 2
            return (32*T0_ + 2*i)*896 + p*256, VO + (i & 3)
        T0_ = (j - 12) * 4
        return (32*T0_ + 2*i)*896 + 768, VO3 + (i & 3)
    def load_wo_reg(j, i0, n):
        vm.room(n)
        for i in range(i0, i0 + n):
            so, vo = wo_addr(j, i)
            a(f"s_mov_b32 s{S_SO}, {so}")
            vm.issue(f"buffer_load_dwordx4 {wo_quad(j, i)}, v{vo}, s[{S_WO}:{S_WO+3}], s{S_SO} offen{ntwo}", ("WOR", j))
    def put_wo(j):
        vm.need(("WOR", j))
        a(f"v_add_u32 v33, {WOSLOT[j]}, v32")
        for i in range(16):
            a(f"ds_write_b128 v33, {wo_quad(j, i)} offset:{i*1024}")
            if cfg.wr_pace and i % cfg.wr_pace == cfg.wr_pace - 1 and i < 15: a("s_waitcnt lgkmcnt(0)")
        wo_written.append(j)
    wo_written = []
    wr_queue = []
    def put_wo_some(n):
        done = 0
        while wr_queue and done < n:
            j, i = wr_queue.pop(0)
            if i == 0 or done == 0:
                if i == 0: vm.need(("WOR", j))
                a(f"v_add_u32 v33, {WOSLOT[j]}, v32")
            a(f"ds_write_b128 v33, {wo_quad(j, i)} offset:{i*1024}")
            if i == 15: wo_written.append(j)
            done += 1
            if wr_queue and wr_queue[0][1] == 0 and done < n:
                pass
    def need_wo(j):
        if j >= NREG0:
            if j in wo_written:
                a("s_waitcnt lgkmcnt(0)")
                while wo_written: wo_written.pop()
        else:
            vm.need(("WO", j))
    def tile_wo_any(j):
        if j >= NREG0:
            if cfg.wr_spread: wr_queue.extend((j, i) for i in range(16))
            else: put_wo(j)
        else: tile_wo(j)
    def warm_wo(i0, n):
        vm.room(n)
        for i in range(i0, i0 + n):
            a(f"s_mul_i32 s{S_SO}, s{S_B}, 28672")
            a(f"s_add_u32 s{S_SO}, s{S_SO}, {i*1024}")
            vm.issue(f"buffer_load_dwordx4 v[36:39], v32, s[{S_WO}:{S_WO+3}], s{S_SO} offen{ntwarm}", ("warm", i))
    def code_pf(lo, hi, tagn):
        a(f"s_getpc_b64 s[{S_PC}:{S_PC+1}]")
        lab = f"L_pc_{tagn}"
        a.label(lab)
        a(f"s_add_u32 s{S_PC}, s{S_PC}, {lo}-{lab}")
        a(f"s_addc_u32 s{S_PC+1}, s{S_PC+1}, -1" if False else f"s_addc_u32 s{S_PC+1}, s{S_PC+1}, ({lo}-{lab})>>32")
        a(f"s_mov_b32 s{S_PC+2}, {hi}-{lo}")
        a(f"s_mov_b32 s{S_PC+3}, 0x20000")
        a(f"s_lshr_b32 s{S_SO2}, s2, 3")
        a(f"s_mul_i32 s{S_SO2}, s{S_SO2}, 3072")
        vm.room(3)
        for i in range(3):
            vm.issue(f"buffer_load_dwordx4 v[36:39], v32, s[{S_PC}:{S_PC+3}], s{S_SO2} offen offset:{i*1024}", ("pf", tagn, i))

    fused = cfg.fused and not cfg.dump
    if cfg.fast_start:
        a("s_mov_b32 s98, 1024"); a(f"s_mov_b32 s99, {2*8192}"); a(f"s_mov_b32 s100, {6*8192}")
        tile_w(0)
    if fused:
        emit_cnt_srd(a)
        a("s_mov_b32 s48, s82"); a("s_mov_b32 s49, s83")
        a("s_mov_b32 s50, 256"); a("s_mov_b32 s51, 0x20000")
        a(f"s_lshl_b32 s52, s{S_BR}, 3")
        a(f"s_add_u32 s52, s52, s{S_B}")
        a("s_lshl_b32 s52, s52, 4")
        a(f"s_cmp_lg_u32 s{S_H}, 0")
        a("s_cbranch_scc1 L_noinit")
        a(f"v_lshlrev_b32 v33, 12, v{V_LANE}")
        a("v_mov_b32 v34, 0")
        a("s_mov_b64 exec, 7")
        a("buffer_store_dword v34, v33, s[84:87], 0 offen sc1")
        a("s_mov_b64 exec, -1")
        a.label("L_noinit")
    if cfg.warm2:
        a(f"v_lshlrev_b32 v34, 4, v{LP}")
        a(f"v_lshl_add_u32 v34, v{LH}, 13, v34")
        a(f"s_mul_i32 s76, s{S_B}, {56*8192}")
        a(f"s_add_u32 s76, s76, {28*8192}")
        for i in range(14):
            vm.issue(f"buffer_load_dwordx4 v[36:39], v34, s[{S_WQ}:{S_WQ+3}], s76 offen{ntwarm}", ("warm2", i))
            if i < 13: a(f"s_add_u32 s76, s76, {2*8192}")
    if not cfg.fast_start: tile_w(0)
    xstamp(1)
    if cfg.code_pf and not cfg.fast_start: code_pf(KNAME, "L_code_end", "all")
    tile_w(1); xstamp(2)
    emit_setup_late(a, cfg, True)
    for i in range(8):
        a(f"v_add_u32 v{T0}, {2*i}, v{LH}")
        a(f"v_xor_b32 v{T0}, v{T0}, v{LP}")
        a(f"v_lshlrev_b32 v{T0}, 4, v{T0}")
        a(f"v_lshl_add_u32 v{VK+i}, v{LH}, 9, v{T0}")
    for i in range(4):
        chunkpat(i)
        a(f"v_lshlrev_b32 v{T1}, 4, v{T0}")
        a(f"v_lshl_add_u32 v{VV+i}, v{LH}, 9, v{T1}")
        a(f"v_lshrrev_b32 v6, 4, v{T0}")
        a(f"v_lshl_add_u32 v6, v6, 5, v{LH}")
        a(f"v_mul_u32_u24 v6, 896, v6")
        a(f"v_and_b32 v7, 15, v{T0}")
        a(f"v_lshl_add_u32 v{VO+i}, v7, 4, v6")
        a(f"v_lshrrev_b32 v6, 3, v{T0}")
        a(f"v_lshl_add_u32 v6, v6, 5, v{LH}")
        a(f"v_mul_u32_u24 v6, 896, v6")
        a(f"v_and_b32 v7, 7, v{T0}")
        a(f"v_lshl_add_u32 v{VO3+i}, v7, 4, v6")
    setup_xb()
    if cfg.stagger:
        if cfg.cls_mode == "b":
            a(f"s_mul_i32 s53, s{S_B}, {cfg.ncls}")
            a("s_lshr_b32 s53, s53, 3")
        else:
            a(f"s_mov_b32 s53, s{S_BR}")
    tile_w(2)
    xstamp(3)
    def iter_extras(t):
            if cfg.warm_wo and cfg.warm_t0 <= t <= cfg.warm_t0 + 6:
                warm_wo((t - cfg.warm_t0) * 4, 4)
            if cfg.code_pf and t == 25: code_pf("L_tail_code", "L_tail_end", "tail")
            if fused and t == 10:
                vm.room(1)
                a("s_mov_b64 exec, 1")
                vm.issue(f"buffer_load_dword v35, off, s[48:51], s52 sc1", ("initflag",))
                a("s_mov_b64 exec, -1")
            if fused and t == 14:
                vm.need(("initflag",))
                a("v_readfirstlane_b32 s90, v35")
                a("s_nop 3")
                a("s_cmp_ge_u32 s90, 1")
                a("s_cbranch_scc1 L_init_ok")
                a("s_mov_b64 exec, 1")
                a("s_mov_b32 s89, 0")
                a.label("L_init_poll")
                a("buffer_load_dword v35, off, s[48:51], s52 sc1")
                a("s_waitcnt vmcnt(0)")
                a("v_readfirstlane_b32 s90, v35")
                a("s_add_u32 s89, s89, 1")
                a("s_cmp_ge_u32 s90, 1")
                a("s_cbranch_scc1 L_init_done")
                a("s_cmp_ge_u32 s89, 0x40000")
                a("s_cbranch_scc1 L_init_done")
                a("s_sleep 8")
                a("s_branch L_init_poll")
                a.label("L_init_done")
                a("s_mov_b64 exec, -1")
                a.label("L_init_ok")
            nreg = 14 - NREG0
            k = t - cfg.wo_reg_t0
            if 0 <= k < 2 * nreg:
                load_wo_reg(NREG0 + k // 2, 8 * (k & 1), 8)
    kv_after_pb = KVSCHED[cfg.kvsched]
    early = None
    if cfg.fast_start:
        a("s_branch L_loader2")
        early = a.L; a.L = []
        a.label("L_loader2")
    for name, idx in barrier_list(cfg):
        if name == "PB":
            if idx == 0: vm.need(("W", 0)); vm.need(("W", 1))
            elif idx + 1 <= 13: vm.need(("W", idx + 1))
            if idx == cfg.xb_read: vm.need(("XB", 2))
        elif name == "B":
            t = idx
            if t == -1:
                vm.need(("K", 0)); vm.need(("K", 1))
            elif t >= cfg.t_jit:
                if t + 1 <= 31: vm.need(("K", t + 1))
            else:
                if t + 2 <= 31: vm.need(("K", t + 2))
                vm.need(("V", t))
            if t == 31 and t < cfg.t_jit:
                need_wo(0); need_wo(1)
        elif name == "BB" or name == "MB":
            vm.need(("V", idx))
            if idx == 31:
                need_wo(0); need_wo(1)
        elif name == "MA":
            vm.need(("K", idx + 2))
        else:
            j = idx
            need_wo(min(j + 1, 13))
            if j == ntb(cfg) - 1:
                assert not wr_queue
                for jj in range(14): need_wo(jj)
        a("s_barrier")
        if cfg.stamps and name not in ("BB", "MA"):
            stamp_idx[0] += 1
            a("s_memrealtime s[62:63]")
            a("s_waitcnt lgkmcnt(0)")
            a(f"v_writelane_b32 v56, s62, {stamp_idx[0]}")
            a("s_memtime s[62:63]")
            a("s_waitcnt lgkmcnt(0)")
            a(f"v_writelane_b32 v59, s62, {stamp_idx[0]}")
        if name == "PB" and idx == 0 and fused:
            a(f"s_cmp_lg_u32 s{S_H}, 0")
            a("s_cbranch_scc1 L_noinit2")
            a("v_mov_b32 v34, 1")
            a("s_mov_b64 exec, 1")
            a("buffer_atomic_add v34, off, s[48:51], s52")
            a("s_mov_b64 exec, -1")
            a.label("L_noinit2")
        if name == "PB":
            if idx + 3 <= 13: tile_w(idx + 3)
            for part in XBSCHED[cfg.xbsched].get(idx, []): tile_xb(part)
            for k, t in kv_after_pb.get(idx, []): tile_kv(k, t)
        elif name == "B":
            t = idx
            if t >= cfg.t_jit:
                if t > cfg.t_jit and t + 3 <= 31: tile_kv("K", t + 3)
            elif t >= 0:
                if t + 4 <= 31: tile_kv("K", t + 4)
                if t >= 1 and t + 3 <= 31: tile_kv("V", t + 3)
            iter_extras(t)
            if t == 26: tile_wo_any(0)
            if t == 27: tile_wo_any(1)
            if t == 28: tile_wo_any(2)
            if t == 29: tile_wo_any(3); tile_wo_any(4)
            if t == 30: tile_wo_any(5); tile_wo_any(6)
            if t == 31: tile_wo_any(7); tile_wo_any(8)
        elif name == "BB":
            t = idx
            if t > cfg.t_jit and t + 2 <= 31: tile_kv("V", t + 2)
        elif name == "MB":
            t = idx
            if t > cfg.t_mid and t + 2 <= 31: tile_kv("V", t + 2)
            iter_extras(t)
            if t == 29: tile_wo_any(4)
            if t == 30: tile_wo_any(6)
            if t == 31: tile_wo_any(7); tile_wo_any(8)
        elif name == "MA":
            t = idx
            if t + 4 <= 31: tile_kv("K", t + 4)
            if t + 1 == 26: tile_wo_any(0)
            if t + 1 == 27: tile_wo_any(1)
            if t + 1 == 28: tile_wo_any(2)
            if t + 1 == 29: tile_wo_any(3)
            if t + 1 == 30: tile_wo_any(5)
        else:
            j = idx
            if j == 0: tile_wo_any(9)
            if 1 <= j <= 4: tile_wo_any(9 + j)
            if cfg.wr_spread and j < ntb(cfg) - 1:
                put_wo_some(cfg.wr_spread if j < ntb(cfg) - 2 else 999)
            if j == 5 and cfg.fused and not cfg.dump:
                a(f"v_lshlrev_b32 v33, 2, v{V_LANE}")
                a(f"v_add_u32 v33, {VS[0]}, v33")
                a("v_mov_b32 v34, 0")
                a("ds_write_b32 v33, v34")
                a("s_waitcnt lgkmcnt(0)")
    a("s_waitcnt vmcnt(0)")
    if cfg.fused and not cfg.dump:
        emit_red_setup(a, cfg)
        for p in range(2):
            emit_poll(a, cfg, p)
            xstamp(4 + p)
            for e in range(2):
                a(f"s_add_u32 s90, s{S_H}, {16*e}")
                a(f"s_lshr_b32 s{96+2*e}, s90, 2")
                a("s_and_b32 s90, s90, 3")
                a(f"s_add_u32 s{97+2*e}, s90, {4*p}")
            emit_reduce_frags(a, cfg, 2)
        emit_poll(a, cfg, 2)
        xstamp(6)
        if not cfg.decouple: a("s_barrier")
        emit_final_reduce(a, cfg)
        xstamp(7)
    if cfg.stamps:
        if not (cfg.fused and not cfg.dump): a("s_barrier")
        a("s_memrealtime s[62:63]")
        a("s_waitcnt lgkmcnt(0)")
        a(f"v_writelane_b32 v56, s62, 62")
        a("s_mov_b32 s76, s72"); a("s_mov_b32 s77, s73")
        a("s_mov_b32 s78, 0x10000000"); a("s_mov_b32 s79, 0x20000")
        a("s_lshl_b32 s74, s2, 8")
        a("s_add_u32 s74, s74, 0x4000000")
        a(f"v_lshlrev_b32 v57, 2, v{V_LANE}")
        a("buffer_store_dword v56, v57, s[76:79], s74 offen")
        a("s_add_u32 s74, s74, 0x100000")
        a("buffer_store_dword v58, v57, s[76:79], s74 offen")
        a("s_add_u32 s74, s74, 0x100000")
        a("buffer_store_dword v59, v57, s[76:79], s74 offen")
        a("s_waitcnt vmcnt(0)")
        if cfg.dbg_stamps >= 0:
            a(f"s_cmp_lg_u32 s2, {cfg.dbg_stamps}")
            a("s_cbranch_scc1 L_nodbg")
            sel = [(56, 1), (56, 16), (56, 24), (56, 32), (56, 40), (56, 47), (56, 48), (56, 56), (58, 4), (58, 5), (58, 6), (58, 7)]
            slots = [1, 2, 3, 5, 6, 7, 9, 10, 11, 13, 14, 15]
            a("v_readlane_b32 s91, v56, 0")
            for (r, ln), sl in zip(sel, slots):
                a(f"v_readlane_b32 s90, v{r}, {ln}")
                a("s_nop 3")
                a("s_sub_u32 s90, s90, s91")
                a("v_mov_b32 v60, s90")
                a(f"s_mov_b32 s89, {4*sl}")
                a("s_mov_b64 exec, 1")
                a("buffer_store_dword v60, off, s[48:51], s89")
                a("s_mov_b64 exec, -1")
                a("s_nop 1")
            a("s_waitcnt vmcnt(0)")
            a.label("L_nodbg")
    a("s_branch L_end")
    return early, a.L

def emit_cnt_srd(a):
    a(f"s_lshl_b32 s84, s{S_BR}, 3")
    a(f"s_add_u32 s84, s84, s{S_B}")
    a("s_lshl_b32 s84, s84, 14")
    a(f"s_add_u32 s84, s84, {CNT_OFF}")
    a("s_add_u32 s84, s72, s84")
    a("s_addc_u32 s85, s73, 0")
    a("s_mov_b32 s86, 16384"); a("s_mov_b32 s87, 0x20000")

def emit_red_setup(a, cfg):
    lane = V_LANE
    emit_cnt_srd(a)
    a(f"s_lshl_b32 s88, s{S_BR}, 3")
    a(f"s_add_u32 s88, s88, s{S_B}")
    a(f"s_mul_i32 s45, s88, {16*129024}")
    a("s_add_u32 s44, s72, s45")
    a("s_addc_u32 s45, s73, 0")
    a(f"s_mov_b32 s46, {16*129024}")
    a("s_mov_b32 s47, 0x20000")
    a("s_mov_b32 s92, s80"); a("s_mov_b32 s93, s81")
    a(f"s_mov_b32 s94, {8*144*896*2}"); a("s_mov_b32 s95, 0x20000")
    a(f"s_mul_i32 s64, s88, 9216")
    a(f"s_add_u32 s64, s64, {SCL_OFF}")
    a("s_add_u32 s64, s72, s64")
    a("s_addc_u32 s65, s73, 0")
    a("s_mov_b32 s66, 9216"); a("s_mov_b32 s67, 0x20000")

_lab = [0]
def emit_poll(a, cfg, p):
    _lab[0] += 1; n = _lab[0]
    a("s_mov_b64 exec, 1")
    a("s_mov_b32 s89, 0")
    a.label(f"L_poll{n}")
    a(f"s_mov_b32 s88, {4096*p}")
    a(f"buffer_load_dword v2, off, s[84:87], s88{cfg.poll_flags}")
    a("s_waitcnt vmcnt(0)")
    a("v_readfirstlane_b32 s90, v2")
    a("s_add_u32 s89, s89, 1")
    a("s_cmp_ge_u32 s90, 16")
    a(f"s_cbranch_scc1 L_poll_done{n}")
    a("s_cmp_ge_u32 s89, 0x40000")
    a(f"s_cbranch_scc1 L_poll_done{n}")
    a(f"s_sleep {cfg.poll_sleep}")
    a(f"s_branch L_poll{n}")
    a.label(f"L_poll_done{n}")
    a("s_mov_b64 exec, -1")

def emit_reduce_frags(a, cfg, nf):
    lane = V_LANE
    sc = cfg.scale_red
    nper = 20 if sc else 16
    a(f"v_lshlrev_b32 v2, 4, v{lane}")
    if sc:
        a(f"v_and_b32 v5, 15, v{lane}")
        a("v_lshlrev_b32 v5, 6, v5")
    for e in range(nf):
        if sc:
            a(f"s_lshl_b32 s91, s{96+2*e}, 10")
            for j in range(4):
                r = 192 + 16*e + 4*j
                a(f"buffer_load_dwordx4 v[{r}:{r+3}], v5, s[64:67], s91 offen offset:{16*j}{cfg.rd_flags}")
        a(f"s_mul_i32 s90, s{96+2*e}, 14")
        a(f"s_add_u32 s90, s90, s{97+2*e}")
        a("s_lshl_b32 s91, s90, 10")
        for hh in range(16):
            r = 64 + 64*e + 4*hh
            a(f"buffer_load_dwordx4 v[{r}:{r+3}], v2, s[44:47], s91 offen{cfg.rd_flags}")
            if hh < 15: a(f"s_add_u32 s91, s91, 129024")
    a(f"v_and_b32 v3, 15, v{lane}")
    a("v_mul_u32_u24 v3, 1792, v3")
    a(f"v_lshrrev_b32 v4, 4, v{lane}")
    a("v_lshl_add_u32 v3, v4, 3, v3")
    for e in range(nf):
        a(f"s_mul_i32 s100, s{S_B}, 144")
        a(f"s_lshl_b32 s90, s{96+2*e}, 4")
        a("s_add_u32 s100, s100, s90")
        a("s_mul_i32 s100, s100, 1792")
        a(f"s_lshl_b32 s90, s{97+2*e}, 6")
        a("s_add_u32 s100, s100, s90")
        a(f"s_mul_i32 s90, s{S_BR}, 896")
        a(f"s_add_u32 s{96+2*e}, s100, s90")
    for e in range(nf):
        acc = 32 + 8*e
        for hh in range(16):
            a(f"s_waitcnt vmcnt({nper*nf - 1 - nper*e - (nper - 16) - hh})")
            for r in range(4):
                src = 64 + 64*e + 4*hh + r
                if hh == 0 and not sc:
                    a(f"v_lshlrev_b32 v{acc+2*r}, 16, v{src}")
                    a(f"v_and_b32 v{acc+2*r+1}, 0xffff0000, v{src}")
                else:
                    t = 8 + 2*r
                    a(f"v_lshlrev_b32 v{t}, 16, v{src}")
                    a(f"v_and_b32 v{t+1}, 0xffff0000, v{src}")
            for r in range(4):
                t = 8 + 2*r
                A, T_ = f"v[{acc+2*r}:{acc+2*r+1}]", f"v[{t}:{t+1}]"
                if sc:
                    q = 192 + 16*e + hh
                    q0 = q & ~1
                    sel = q & 1
                    S_ = f"v[{q0}:{q0+1}]"
                    if hh == 0:
                        a(f"v_pk_mul_f32 {A}, {T_}, {S_} op_sel:[0,{sel}] op_sel_hi:[1,{sel}]")
                    else:
                        a(f"v_pk_fma_f32 {A}, {T_}, {S_}, {A} op_sel:[0,{sel},0] op_sel_hi:[1,{sel},1]")
                elif hh > 0:
                    a(f"v_pk_add_f32 {A}, {A}, {T_}")
        for r in range(4):
            a(f"v_cvt_pk_bf16_f32 v{48+4*e+r}, v{acc+2*r}, v{acc+2*r+1}")
    for e in range(nf):
        a(f"buffer_store_dwordx2 v[{48+4*e}:{49+4*e}], v3, s[92:95], s{96+2*e} offen{cfg.out_flags}")
        a(f"buffer_store_dwordx2 v[{50+4*e}:{51+4*e}], v3, s[92:95], s{96+2*e} offen offset:32{cfg.out_flags}")

def emit_final_reduce(a, cfg):
    _lab[0] += 1; n = _lab[0]
    a(f"s_lshl_b32 s90, s{S_WID}, 4")
    a(f"s_add_u32 s90, s90, s{S_H}")
    a("s_cmp_ge_u32 s90, 62")
    a(f"s_cbranch_scc1 L_fin_done{n}")
    a("s_lshr_b32 s96, s90, 2")
    a("s_and_b32 s97, s90, 3")
    a("s_add_u32 s97, s97, 8")
    a("s_sub_u32 s91, s90, 36")
    a("s_lshr_b32 s98, s91, 1")
    a("s_and_b32 s99, s91, 1")
    a("s_add_u32 s99, s99, 12")
    a("s_cmp_ge_u32 s90, 36")
    a("s_cselect_b32 s96, s98, s96")
    a("s_cselect_b32 s97, s99, s97")
    a("s_sub_u32 s91, s90, 54")
    a("s_cmp_ge_u32 s90, 54")
    a("s_cselect_b32 s96, 8, s96")
    a("s_cselect_b32 s97, s91, s97")
    emit_reduce_frags(a, cfg, 1)
    a.label(f"L_fin_done{n}")

def mfma(a, D, A, B, C=None):
    a(f"v_mfma_f32_16x16x32_bf16 {D}, {A}, {B}, {C if C is not None else D}")

def xlane_max(a, r, tmp):
    a(f"v_mov_b32 v{tmp}, v{r}")
    a("s_nop 1")
    a(f"v_permlane32_swap_b32 v{r}, v{tmp}")
    a("s_nop 1")
    a(f"v_max_f32 v{r}, v{r}, v{tmp}")
    a(f"v_mov_b32 v{tmp}, v{r}")
    a("s_nop 1")
    a(f"v_permlane16_swap_b32 v{r}, v{tmp}")
    a("s_nop 1")
    a(f"v_max_f32 v{r}, v{r}, v{tmp}")

def emit_compute(a, cfg):
    rare_blocks = []
    emit_compute_main(a, cfg, rare_blocks)
    emit_rare(a, cfg, rare_blocks)

def emit_compute_main(a, cfg, rare_blocks):
    lg = Lgkm(a)
    lane = V_LANE
    T0, T1 = V_T0, V_T1
    NKP, NVP = cfg.nkp, cfg.nvp
    a(f"v_lshrrev_b32 v{T0}, 3, v{lane}")
    a(f"v_and_b32 v{T1}, 7, v{lane}")
    a(f"v_lshrrev_b32 v22, 1, v{T0}")
    a(f"v_xor_b32 v22, v22, v{T1}")
    a(f"v_mul_u32_u24 v23, 896, v{T0}")
    a(f"v_lshl_add_u32 v24, v22, 4, v23")
    a(f"v_xor_b32 v22, 4, v22")
    a(f"v_lshl_add_u32 v25, v22, 4, v23")
    a(f"v_add_u32 v25, {8*896}, v25")
    if cfg.fast_start: emit_ptrs(a, cfg)
    a(f"s_mul_i32 s74, s{S_WID}, {XAW}")
    a(f"s_mul_i32 s75, s{S_WID}, {XW}")
    vm = Vm(a)
    ntx = " nt" if cfg.nt_x else ""
    if cfg.warm2:
        ntwarm = " nt" if cfg.nt_warm else ""
        a(f"v_lshlrev_b32 v26, 4, v{lane}")
        a(f"s_cmp_eq_u32 s{S_WID}, 2")
        a("s_cbranch_scc1 L_w2q")
        a(f"s_and_b32 s76, s{S_H}, 3")
        a("s_mul_i32 s76, s76, 32256")
        a(f"s_lshl_b32 s77, s{S_WID}, 14")
        a("s_add_u32 s76, s76, s77")
        for i in range(16):
            a(f"buffer_load_dwordx4 {ar(A_DUMMY,4)}, v26, s[{S_X}:{S_X+3}], s76 offen{ntwarm}")
            if i < 15: a("s_add_u32 s76, s76, 1024")
        a("s_branch L_w2done")
        a.label("L_w2q")
        a(f"v_lshrrev_b32 v27, 5, v{lane}")
        a(f"v_and_b32 v26, 31, v{lane}")
        a("v_lshlrev_b32 v26, 4, v26")
        a("v_lshl_add_u32 v26, v27, 13, v26")
        a(f"s_mul_i32 s76, s{S_B}, {56*8192}")
        for i in range(14):
            a(f"buffer_load_dwordx4 {ar(A_DUMMY,4)}, v26, s[{S_WQ}:{S_WQ+3}], s76 offen{ntwarm}")
            if i < 13: a(f"s_add_u32 s76, s76, {2*8192}")
        a.label("L_w2done")
    for sp in range(4):
        for qt in range(3):
            for hb in range(2):
                a(f"s_add_u32 m0, s74, {((qt*2 + hb)*4 + sp)*1024}")
                a(f"s_add_u32 s{S_SO}, s75, {qt*14336 + sp*128}")
                vm.issue(f"buffer_load_dwordx4 v{24+hb}, s[{S_X}:{S_X+3}], s{S_SO} offen{ntx} lds", ("x",))
    if cfg.warm_wq and not cfg.warm2:
        ntwarm = " nt" if cfg.nt_warm else ""
        a(f"v_lshrrev_b32 v{T0}, 5, v{lane}")
        a(f"v_and_b32 v{T1}, 31, v{lane}")
        a(f"v_lshlrev_b32 v{T1}, 4, v{T1}")
        a(f"v_lshl_add_u32 v26, v{T0}, 13, v{T1}")
        a(f"s_mul_i32 s75, s{S_B}, 48")
        a(f"s_lshl_b32 s76, s{S_WID}, 4")
        a("s_add_u32 s75, s75, s76")
        a("s_add_u32 s75, s75, 64")
        a("s_lshl_b32 s75, s75, 13")
        for i in range(8):
            vm.issue(f"buffer_load_dwordx4 {ar(A_DUMMY,4)}, v26, s[{S_WQ}:{S_WQ+3}], s75 offen{ntwarm}", ("warm", i))
            if i < 7: a(f"s_add_u32 s75, s75, {2*8192}")
    emit_setup_late(a, cfg, False)
    g_, i15 = 22, 23
    a(f"v_lshrrev_b32 v{g_}, 4, v{lane}")
    a(f"v_and_b32 v{i15}, 15, v{lane}")
    a(f"v_lshrrev_b32 v26, 1, v{i15}")
    a(f"v_lshrrev_b32 v27, 3, v{i15}")
    a(f"v_and_b32 v28, 7, v{i15}")
    a(f"v_lshlrev_b32 v28, 7, v28")
    a(f"s_mul_i32 s74, s{S_WID}, {XAW}")
    a(f"s_mul_i32 s75, s{S_WID}, {XBW}")
    a(f"s_add_u32 s75, s75, {XBB}")
    a(f"v_lshl_add_u32 v29, v27, 12, v28")
    a(f"v_add_u32 v29, s74, v29")
    a(f"v_mul_u32_u24 v27, 3072, v27")
    a(f"v_add_u32 v27, v27, v28")
    a(f"v_add_u32 v27, s75, v27")
    for e in range(2):
        a(f"v_add_u32 v{T0}, {4*e}, v{g_}")
        a(f"v_xor_b32 v{T0}, v{T0}, v26")
        a(f"v_lshl_add_u32 v{V_XB+e}, v{T0}, 4, v29")
        a(f"v_lshl_add_u32 v{V_XB2+e}, v{T0}, 4, v27")
    for j in range(4):
        a(f"v_add_u32 v{T0}, {4*j}, v{g_}")
        a(f"v_xor_b32 v{T0}, v{T0}, v{i15}")
        a(f"v_lshlrev_b32 v{T0}, 4, v{T0}")
        a(f"v_lshl_add_u32 v{V_KB+j}, v{i15}, 9, v{T0}")
    rp, cc, row, rho = 26, 27, 28, 29
    a(f"v_lshrrev_b32 v{rp}, 2, v{i15}")
    a(f"v_and_b32 v{cc}, 3, v{i15}")
    a(f"v_lshl_add_u32 v{row}, v{g_}, 2, v{rp}")
    a(f"v_and_b32 v{rho}, 7, v{row}")
    a(f"v_lshrrev_b32 v{T0}, 1, v{cc}")
    a(f"v_lshlrev_b32 v{T0}, 4, v{T0}")
    a(f"v_and_b32 v{T1}, 1, v{cc}")
    a(f"v_lshl_add_u32 v{T0}, v{T1}, 3, v{T0}")
    a(f"v_lshl_add_u32 v30, v{row}, 9, v{T0}")
    for j in range(8):
        a(f"v_xor_b32 v{T0}, {j}, v{rho}")
        a(f"v_lshl_add_u32 v{T0}, v{T0}, 5, v30")
        a(f"v_add_u32 v{V_VB+j}, {VREG}, v{T0}")
    a(f"v_lshlrev_b32 v31, 1, v{rho}")
    a(f"v_lshlrev_b32 v30, 9, v{row}")
    for j in range(4):
        a(f"v_add_u32 v{T0}, {4*j}, v{cc}")
        a(f"v_xor_b32 v{T0}, v{T0}, v31")
        a(f"v_lshl_add_u32 v{T0}, v{T0}, 4, v30")
        a(f"v_add_u32 v{V_WB+j}, {WBASE}, v{T0}")
    a(f"s_mov_b32 s{S_THR}, {hex(f2u(cfg.thr))}")

    def wread(s, u, half):
        T = u >> 1
        off = (WRING[s % 4] - WBASE) + (T >> 2) * 256 + (u & 1) * 8 + half * 8192
        r = A_W + 4 * u + 2 * half
        lg.issue(f"ds_read_b64_tr_b16 {ar(r,2)}, v{V_WB + (T & 3)} offset:{off}", ("w", s, u, half))
    def xread(s, qt):
        sp = s >> 1
        if sp < 4:
            off, base = qt * 8192 + sp * 1024, V_XB
        else:
            off, base = qt * 6144 + (sp - 4) * 1024, V_XB2
        lg.issue(f"ds_read_b128 {ar(Xreg(s, qt), 4)}, v{base + (s & 1)} offset:{off}", ("x", s, qt))
    NWP = 6
    n_after = 8 if (cfg.warm_wq and not cfg.warm2) else 0
    a(f"s_waitcnt vmcnt({n_after})")
    for qt in range(3): xread(0, qt)
    for s in range(14):
        a("s_barrier")
        pre_done = s >= 1
        if not pre_done:
            if s == 0: lg.need(("x", 0, 2))
            for u in range(NWP - (2 if s == 0 else 0)):
                wread(s, u, 0); wread(s, u, 1)
        nfirst = NWP - (2 if s == 0 else 0)
        mf = []
        for u in range(16):
            for qt in range(3):
                pre = None
                if qt == 0 and u % 2 == 0:
                    pre = (lambda s=s, u=u: lg.need(("w", s, u + 1, 1)))
                D = v(QAcc(u, qt), 4)
                mf.append((pre, (lambda D=D, s=s, u=u, qt=qt: mfma(a, D, ar(A_W + 4*u, 4), ar(Xreg(s, qt), 4), "0" if s == 0 else None))))
        st = []
        for u in range(nfirst, 16):
            for h in range(2):
                st.append(It((lambda s=s, u=u, h=h: wread(s, u, h)), 4, max(0, 3*(u - NWP) + h), max(0, 3*(u - 3))))
        nxt_pre = (s + 1 <= 13)
        if nxt_pre:
            for u in range(NWP):
                for h in range(2):
                    st.append(It((lambda s=s, u=u, h=h: wread(s + 1, u, h)), 4, 3*(16 + u - NWP) + h))
        streams = [st]
        if s == 0:
            xs = [It((lambda ss=ss, qt=qt: xread(ss, qt)), 4, ((ss - 1)*3 + qt) * 2) for ss in range(1, 8) for qt in range(3)]
            streams.append(xs)
        if s in (cfg.xb_read, cfg.xb_read + 1) and cfg.xb_one == 0:
            lo = 8 + 3*(s - cfg.xb_read)
            xs = [It((lambda ss=ss, qt=qt: xread(ss, qt)), 4, ((ss - lo)*3 + qt) * 5) for ss in range(lo, lo + 3) for qt in range(3)]
            streams.append(xs)
        if s == cfg.xb_read and cfg.xb_one:
            xs = [It((lambda ss=ss, qt=qt: xread(ss, qt)), 4, ((ss - 8)*3 + qt) * 2) for ss in range(8, 14) for qt in range(3)]
            streams.append(xs)
        sched(a, mf, streams)
        if s == 0:
            lg.need(("x", 7, 2))
        if s == cfg.xb_read + (0 if cfg.xb_one else 1):
            lg.need(("x", 13, 2))
    lg.drain()
    if cfg.dump == "qacc":
        emit_dump_v(a, cfg, V_QACC, 192); return
    a(f"s_mov_b32 s74, {hex(f2u(QSCALE))}")
    a(f"s_mov_b32 s75, {hex(f2u(QSCALE))}")
    a(f"v_mov_b32 v{T0}, 0x3f803f80")
    for r in range(4):
        a(f"v_accvgpr_write_b32 a{A_ONES+r}, v{T0}")
    a("s_nop 3")
    for i in range(23, -1, -1):
        src = V_QACC + 8 * i
        dst = V_Q + 4 * i
        for r in range(4):
            a(f"v_pk_mul_f32 {v(src + 2*r, 2)}, {v(src + 2*r, 2)}, s[74:75]")
        for r in range(3, -1, -1):
            a(f"v_cvt_pk_bf16_f32 v{dst + r}, v{src + 2*r}, v{src + 2*r + 1}")
    if cfg.dump == "q":
        emit_dump_v(a, cfg, V_Q, 96); return

    def kread(t, f):
        aa, T = f >> 3, f & 7
        off = KS[t % 4] + aa * 8192 + (T >> 2) * 256
        lg.issue(f"ds_read_b128 {v(V_KBUF + 4*(f % 8), 4)}, v{V_KB + (T & 3)} offset:{off}", ("k", t, f))
    def vread(t, u, half):
        off = (VS[t % 4] - VREG) + (u >> 3) * 256 + half * 8192
        r = V_VBUF + 4 * (u % 8) + 2 * half
        lg.issue(f"ds_read_b64_tr_b16 {v(r,2)}, v{V_VB + (u & 7)} offset:{off}", ("v", t, u, half))

    def exp_items(t):
        par = t & 1
        st = []
        for qt in range(3):
            for aa in range(2):
                s = Sreg(par, qt, aa)
                for hh in range(2):
                    e0, e1 = s + 2*hh, s + 2*hh + 1
                    pr = V_P + qt*4 + aa*2 + hh
                    st.append(It((lambda e=e0: a(f"v_exp_f32 v{e}, v{e}")), 8))
                    st.append(It((lambda e=e1: a(f"v_exp_f32 v{e}, v{e}")), 8))
                    st.append(("cvt", It((lambda pr=pr, e0=e0, e1=e1: a(f"v_cvt_pk_bf16_f32 v{pr}, v{e0}, v{e1}")), 4)))
        exps = [x for x in st if not isinstance(x, tuple)]
        cvts = [x[1] for x in st if isinstance(x, tuple)]
        return exps, cvts

    def phaseA(t):
        jit = t >= cfg.t_jit
        doqk = t + 1 <= 31
        doexp = t >= 0
        if doexp: exps, cvts = exp_items(t)
        if not doqk:
            vq = [(u, h) for u in range(NVP) for h in range(2)] if not jit else []
            if t >= cfg.t_mid:
                for grp in range(12):
                    exps[2*grp].fn(); exps[2*grp+1].fn()
                    if grp > 0: cvts[grp-1].fn()
                a("s_barrier")
                for (u, h) in vq: vread(t, u, h)
                cvts[11].fn()
                return
            for grp in range(12):
                exps[2*grp].fn(); exps[2*grp+1].fn()
                if grp > 0: cvts[grp-1].fn()
                if vq: vread(t, *vq.pop(0))
            a("s_nop 0")
            cvts[11].fn()
            while vq: vread(t, *vq.pop(0))
            return
        par1 = (t + 1) & 1
        mf = []
        for m in range(48):
            aa, T, qt = m // 24, (m % 24) // 3, m % 3
            f = aa * 8 + T
            pre = None
            if qt == 0 and f % 2 == 0:
                pre = (lambda f=f: lg.need(("k", t + 1, f + 1)))
            C = None
            if T == 0: C = "0" if t == -1 else v(V_CM + 4*qt, 4)
            D = v(Sreg(par1, qt, aa), 4)
            mf.append((pre, (lambda D=D, f=f, qt=qt, T=T, C=C: mfma(a, D, v(V_KBUF + 4*(f % 8), 4), v(Qreg(qt, T), 4), C))))
        ks = [It((lambda f=f: kread(t + 1, f)), 4, max(0, 3*(f - 8) + 2), 3*f - 8) for f in range(NKP, 16)]
        streams = [ks]
        if jit:
            for f in range(NKP): kread(t + 1, f)
            npre = cfg.jit_pre
            for g in range(npre):
                exps[2*g].fn(); exps[2*g+1].fn()
                if g > 0: cvts[g-1].fn()
            exps = exps[2*npre:]
            rest = 12 - npre
            step = 46 // rest
            for i, e in enumerate(exps):
                e.earliest = step*(i // 2) + (i & 1); e.deadline = e.earliest
            cv = cvts[npre-1:]
            cv[0].earliest = 0; cv[0].deadline = 1
            for i, c in enumerate(cv[1:]):
                c.earliest = step*i + 2; c.deadline = min(step*i + 5, 47)
            streams = [exps, cv, ks]
        elif doexp:
            for i, e in enumerate(exps):
                e.earliest = 4*(i // 2) + (i & 1); e.deadline = e.earliest
            for i, c in enumerate(cvts):
                c.earliest = 4*i + 2; c.deadline = min(4*i + 5, 47)
            vs = [It((lambda u=u, h=h: vread(t, u, h)), 4, cfg.mid_a + 1 if t >= cfg.t_mid else 26) for u in range(NVP) for h in range(2)]
            streams = [exps, cvts, ks, vs]
            if t >= cfg.t_mid:
                streams = [[It((lambda: a("s_barrier")), 4, cfg.mid_a, cfg.mid_a)]] + streams
        sched(a, mf, streams)

    def phaseB(t, extra=None):
        jit = t >= cfg.t_jit
        first = (t == 0)
        docheck = t + 1 <= 31
        par1 = (t + 1) & 1
        Z = "0" if first else None
        mf = []
        for qt in range(3):
            mf.append((None, (lambda qt=qt: mfma(a, ar(A_L + 4*qt, 4), ar(A_ONES, 4), v(V_P + 4*qt, 4), Z))))
        for m in range(48):
            u, qt = m // 3, m % 3
            pre = None
            if qt == 0 and u % 2 == 0:
                pre = (lambda u=u: lg.need(("v", t, u + 1, 1)))
            mf.append((pre, (lambda u=u, qt=qt: mfma(a, ar(Oreg(u, qt), 4), v(V_VBUF + 4*(u % 8), 4), v(V_P + 4*qt, 4), Z))))
        if jit:
            a("s_barrier")
            for u in range(NVP):
                vread(t, u, 0); vread(t, u, 1)
        vs = []
        for u in range(NVP, 16):
            e = max(0 if u < 8 else 3 + 3*(u - 8) + 2, 3 + 3*(u - NVP - 1))
            for h in range(2):
                vs.append(It((lambda u=u, h=h: vread(t, u, h)), 4, e + h, 3 + 3*u - 9))
        streams = [vs]
        if docheck:
            s0 = V_S[par1]; mx = V_TMP
            chk = [f"v_max3_f32 v{mx}, v{s0}, v{s0+1}, v{s0+2}"]
            for k in range(10):
                chk.append(f"v_max3_f32 v{mx}, v{mx}, v{s0+3+2*k}, v{s0+4+2*k}")
            chk.append(f"v_max_f32 v{mx}, v{mx}, v{s0+23}")
            chk.append(f"v_cmp_lt_f32 vcc, s{S_THR}, v{mx}")
            streams.append([It((lambda c=c: a(c)), 4, (6 + 2*i) if not jit else (i // 2 if i < 6 else 2*i)) for i, c in enumerate(chk)])
        if t + 2 <= 31 and not (t + 1 >= cfg.t_jit):
            if t >= cfg.t_mid:
                streams.insert(0, [It((lambda: a("s_barrier")), 4, cfg.mid_b, cfg.mid_b)])
                streams.append([It((lambda f=f: kread(t + 2, f)), 4, cfg.mid_b + 1 + 2*f) for f in range(NKP)])
            else:
                streams.append([It((lambda f=f: kread(t + 2, f)), 4, 30 + 2*f) for f in range(NKP)])
        if extra: streams += extra
        a("s_nop 1")
        sched(a, mf, streams)

    def check_branch(t, tag):
        a(f"s_cbranch_vccnz L_rare_{tag}")
        a.label(f"L_back_{tag}")
        rare_blocks.append((tag, (t + 1) & 1))

    a("s_barrier")
    for f in range(NKP): kread(0, f)
    phaseA(-1)
    for f in range(NKP): kread(1, f)
    a("s_nop 1")
    for qt in range(3):
        s0 = Sreg(0, qt, 0)
        mx = V_TMP + qt
        a(f"v_max3_f32 v{mx}, v{s0}, v{s0+1}, v{s0+2}")
        a(f"v_max3_f32 v{mx}, v{mx}, v{s0+3}, v{s0+4}")
        a(f"v_max3_f32 v{mx}, v{mx}, v{s0+5}, v{s0+6}")
        a(f"v_max_f32 v{mx}, v{mx}, v{s0+7}")
    for step in range(2):
        for qt in range(3): a(f"v_mov_b32 v{V_TMP+4+qt}, v{V_TMP+qt}")
        a("s_nop 0")
        for qt in range(3):
            a(f"v_permlane{32 if step == 0 else 16}_swap_b32 v{V_TMP+qt}, v{V_TMP+4+qt}")
        a("s_nop 0")
        for qt in range(3): a(f"v_max_f32 v{V_TMP+qt}, v{V_TMP+qt}, v{V_TMP+4+qt}")
    for qt in range(3):
        s0 = Sreg(0, qt, 0); mx = V_TMP + qt
        for r in range(8):
            a(f"v_sub_f32 v{s0+r}, v{s0+r}, v{mx}")
        for r in range(4):
            a(f"v_sub_f32 v{V_CM + 4*qt + r}, 0, v{mx}")
    if cfg.dump == "s0":
        lg.drain()
        emit_dump_v(a, cfg, V_S[0], 24, extra=(V_CM, 12)); return

    def iteration(t, tag):
        if t < cfg.t_mid: a("s_barrier")
        phaseA(t)
        phaseB(t)
        if t + 1 <= 31:
            check_branch(t, tag)

    def loop(t_first, ntrips, name):
        q0 = list(lg.q)
        a(f"s_mov_b32 s{S_CNT}, {ntrips}")
        a.label(name)
        for t in range(t_first, t_first + 4):
            iteration(t, f"{name}_{t}")
        q1 = [(x[0], x[1] - 4) + x[2:] for x in lg.q]
        assert q0 == q1, (q0, q1)
        a(f"s_sub_u32 s{S_CNT}, s{S_CNT}, 1")
        a(f"s_cmp_lg_u32 s{S_CNT}, 0")
        a(f"s_cbranch_scc1 {name}")
        d = 4 * ntrips
        lg.q = [(x[0], x[1] + d) + x[2:] for x in q0]
        for x in lg.q: lg.issued.add(x)
        for f in range(16): lg.issued.add(("k", t_first + d + 1, f))
    iteration(0, "p0")
    tj = cfg.t_jit
    if cfg.t_mid <= 28:
        tm = cfg.t_mid
        assert (tm - 1) % 4 == 0
        if tm > 1:
            save = cfg.t_mid; cfg.t_mid = 99
            loop(1, (tm - 1) // 4, "L_loop")
            cfg.t_mid = save
        loop(tm, (29 - tm) // 4, "L_loopm")
    elif tj > 28:
        loop(1, 7, "L_loop")
    else:
        assert (tj - 1) % 4 == 0 and (29 - tj) % 4 == 0
        if tj > 1:
            save = cfg.t_jit; cfg.t_jit = 99
            loop(1, (tj - 1) // 4, "L_loop")
            cfg.t_jit = save
        lg.drain()
        loop(tj, (29 - tj) // 4, "L_loopj")
    a.label("L_tail_code")
    for t in range(29, 31):
        iteration(t, f"e{t}")

    def oconv_items(T, earliest=0):
        its = []
        for qt in range(3):
            tb = V_CT + 8 * qt
            for h in range(2):
                o = Oreg(2*T + h, qt)
                for r in range(4):
                    its.append(It((lambda d=tb + 4*h + r, s=o + r: a(f"v_accvgpr_read_b32 v{d}, a{s}")), 4, earliest))
            q = Qreg(qt, T)
            for r in range(4):
                its.append(It((lambda d=q + r, s=tb + 2*r: a(f"v_cvt_pk_bf16_f32 v{d}, v{s}, v{s+1}")), 4, earliest))
        return its

    def wo_base(j, jj):
        addr = WOSLOT[j]
        if addr < VREG: return VBK + jj, addr
        if addr < VREG + 65536: return V_VB + jj, addr - VREG
        return VBE + jj, addr - VREG - 65536
    steps = []
    for p in range(3):
        for T in range(8):
            steps.append((p, T, 4*p + T//2, T & 1, 8))
    for T in range(8):
        steps.append((3, T, 12 + T//4, T & 3, 4))
    frs = []
    for si, (p, T, j, tau, nu) in enumerate(steps):
        for u in range(nu):
            frs.append((si, p, T, j, tau, nu, u))
    FBN = 12
    def oread(k, half):
        si, p, T, j, tau, nu, u = frs[k]
        tp = (8*tau + u) if p < 3 else (4*tau + u)
        br, off = wo_base(j, tp & 7)
        off += (tp >> 3) * 256 + half * 8192
        r = A_WO + 4 * (k % FBN) + 2 * half
        lg.issue(f"ds_read_b64_tr_b16 {ar(r,2)}, v{br} offset:{off}", ("o", k, half))
    def accreg(p, u, qt):
        i = (u * 3 + qt) * 4
        if p == 0 or p == 2: return ("v", V_P0 + i)
        return ("a", i)
    def accstr(p, u, qt):
        f, r = accreg(p, u, qt)
        return v(r, 4) if f == "v" else ar(r, 4)
    slotc = [0]
    slog = []
    scale_red = cfg.fused and cfg.scale_red
    def conv_items(p, packed=False):
        its = []
        nu = 8 if p < 3 else 4
        for up in range(nu // 2):
            for qt in range(3):
                rl = V_RL + qt * 0
                rlp = f"v[{V_RL + 2*qt}:{V_RL + 2*qt + 1}]"
                f, _ = accreg(p, 0, 0)
                tb = V_CT + 12 * (slotc[0] % 2); slotc[0] += 1
                out = tb + 8
                if f == "a":
                    for h in range(2):
                        o = accreg(p, 2*up + h, qt)[1]
                        for r in range(4):
                            its.append(It((lambda d=tb + 4*h + r, s=o + r: a(f"v_accvgpr_read_b32 v{d}, a{s}"))))
                    srcs = [tb + 2*r for r in range(4)]
                else:
                    o0 = accreg(p, 2*up, qt)[1]; o1 = accreg(p, 2*up + 1, qt)[1]
                    srcs = [o0, o0 + 2, o1, o1 + 2]
                for sreg in (srcs if not scale_red else []):
                    if packed:
                        its.append(It((lambda s=sreg, rlp=rlp: a(f"v_pk_mul_f32 {v(s,2)}, {v(s,2)}, {rlp}"))))
                    else:
                        for k in range(2):
                            its.append(It((lambda s=sreg + k, qt=qt: a(f"v_mul_f32 v{s}, v{V_RL + 2*qt}, v{s}"))))
                for r, sreg in enumerate(srcs):
                    its.append(It((lambda d=out + r, s=sreg: a(f"v_cvt_pk_bf16_f32 v{d}, v{s}, v{s+1}"))))
                upair = 4*p + up
                its.append(It((lambda c=(qt*14 + upair)*1024: a(f"s_add_u32 s{S_SO}, s{S_WOFF}, {c}")), 4))
                its.append(It((lambda o=out, p=p: (a(f"buffer_store_dwordx4 {v(o,4)}, v{V_ST}, s[{S_WS}:{S_WS+3}], s{S_SO} offen{cfg.st_flags}"), slog.append(p))), 4))
        return its

    def cstamp(i):
        if cfg.stamps and cfg.cstamps:
            lg.drain()
            a("s_memrealtime s[62:63]")
            a("s_waitcnt lgkmcnt(0)")
            a(f"v_writelane_b32 v7, s62, {i}")
    svm = Vm(a)
    def signal_a(p, nafter):
        a(f"s_waitcnt vmcnt({nafter})")
        a("s_mov_b64 exec, 1")
        lg.issue(f"ds_add_rtn_u32 v6, v4, v5 offset:{4*p}", ("sig", p))
        a("s_mov_b64 exec, -1")
    def signal_b(p):
        lg.need(("sig", p))
        a("v_readfirstlane_b32 s90, v6")
        a("s_nop 3")
        a("s_cmp_eq_u32 s90, 2")
        a(f"s_cbranch_scc0 L_nosig{p}")
        a("s_mov_b64 exec, 1")
        a(f"s_mov_b32 s88, {4096*p}")
        a(f"buffer_atomic_add v5, off, s[84:87], s88")
        a("s_mov_b64 exec, -1")
        a.label(f"L_nosig{p}")
    if 31 < cfg.t_mid: a("s_barrier")
    phaseA(31)
    setup_its = []
    for j in range(8):
        setup_its.append(It((lambda j=j: a(f"v_subrev_u32 v{VBK+j}, {VREG}, v{V_VB+j}")), 4, 0))
        setup_its.append(It((lambda j=j: a(f"v_add_u32 v{VBE+j}, {VREG}, v{V_VB+j}")), 4, 0))
    NOP_ = cfg.nop
    ex1 = oconv_items(0, earliest=3 + 3*1 + 2 + 8)
    ex2 = oconv_items(1, earliest=3 + 3*3 + 2 + 8)
    pre_o = [It((lambda k=k, h=h: oread(k, h)), 4, 42) for k in range(NOP_) for h in range(2)]
    phaseB(31, extra=[setup_its, ex1 + ex2, pre_o])
    if cfg.dump == "o":
        a("s_nop 7")
        emit_dump_acc(a, cfg, 204); return
    a(f"v_lshlrev_b32 v{V_ST}, 4, v{lane}")
    a(f"s_mul_i32 s{S_WOFF}, s{S_WID}, {3*14*1024}")
    for qt in range(3):
        a(f"v_accvgpr_read_b32 v{V_RL+2*qt}, a{A_L + 4*qt}")
    for qt in range(3):
        a(f"v_rcp_f32 v{V_RL+2*qt}, v{V_RL+2*qt}")
    a("s_nop 0")
    for qt in range(3):
        a(f"v_mov_b32 v{V_RL+2*qt+1}, v{V_RL+2*qt}")
    if cfg.fused:
        a(f"v_mov_b32 v4, {VS[0]}")
        a("v_mov_b32 v5, 1")
        emit_red_setup(a, cfg)
    if scale_red:
        a(f"v_and_b32 v6, 15, v{lane}")
        a("v_lshlrev_b32 v6, 6, v6")
        a(f"s_mul_i32 s90, s{S_WID}, 3072")
        a(f"s_lshl_b32 s91, s{S_H}, 2")
        a("s_add_u32 s90, s90, s91")
        a("s_mov_b64 exec, 0xffff")
        for qt in range(3):
            a(f"buffer_store_dword v{V_RL+2*qt}, v6, s[64:67], s90 offen offset:{1024*qt}{cfg.st_flags}")
            slog.append(-1)
        a("s_mov_b64 exec, -1")

    cur_slot = -1
    nxt = NOP_
    pend = []
    store_log = slog
    stores_since = {q: (lambda q=q: sum(1 for i, x in enumerate(store_log) if i > max(k for k, y in enumerate(store_log) if y == q))) for q in range(4)}
    for si, (p, T, j, tau, nu) in enumerate(steps):
        if j != cur_slot:
            if j < ntb(cfg): a("s_barrier")
            cur_slot = j
        if T == 0: cstamp(p)
        if cfg.fused and p == 2 and T == cfg.sig_t:
            signal_a(0, stores_since[0]())
            cstamp(4)
        if cfg.fused and p == 2 and T == cfg.sig_t + 1:
            signal_b(0)
        if cfg.fused and p == 3 and T == cfg.sig_t1:
            cstamp(5)
            signal_a(1, stores_since[1]())
            cstamp(6)
        if cfg.fused and p == 3 and T == cfg.sig_t1 + 1:
            signal_b(1)
        k0 = sum(s[4] for s in steps[:si])
        if T == 0 and p > 0:
            assert not pend
            pend = conv_items(p - 1)
            for it in pend[:1]: pass
        mf = []
        for u in range(nu):
            k = k0 + u
            for qt in range(3):
                pre = None
                if qt == 0 and u % 2 == 0:
                    pre = (lambda k=k: lg.need(("o", k + 1, 1)))
                mf.append((pre, (lambda u=u, qt=qt, k=k: mfma(a, accstr(p, u, qt), ar(A_WO + 4*(k % FBN), 4), v(Qreg(qt, T), 4), "0" if T == 0 else None))))
        rs = []
        lim = k0 + nu + NOP_
        while nxt < len(frs) and nxt < lim and frs[nxt][3] <= j + 1:
            kk = nxt
            use = 3 * (kk - k0)
            e = max(0, 3 * (kk - FBN - k0) + 2)
            for h in range(2):
                rs.append(It((lambda kk=kk, h=h: oread(kk, h)), 4, max(e, use - 3*NOP_ - 3), max(0, use - 10)))
            nxt += 1
        streams = [rs]
        if p == 0 and T + 2 <= 7:
            streams.append(oconv_items(T + 2))
        if pend:
            if T == 0:
                for it in pend: it.earliest = 4
            streams.append(pend)
            last_of_pass = (T == 7)
            sched(a, mf, [rs] + [pend], flush=False)
            while rs: rs.pop(0).fn()
            if last_of_pass:
                while pend: pend.pop(0).fn()
            for it in pend: it.earliest = 0
        else:
            sched(a, mf, streams)
    cstamp(7)
    a("s_nop 7")
    for it in conv_items(3, packed=True): it.fn()
    cstamp(8)
    a.label("L_tail_end")
    print("lds throttles:", lg.throttled, file=sys.stderr)
    if cfg.fused:
        signal_a(2, 0); cstamp(9); signal_b(2)
        if cfg.decouple: emit_poll(a, cfg, 2)
        else: a("s_barrier")
        cstamp(10)
        emit_final_reduce(a, cfg)
        if cfg.stamps and cfg.cstamps:
            a("s_waitcnt vmcnt(0)")
            cstamp(11)
            a("s_mov_b32 s76, s72"); a("s_mov_b32 s77, s73")
            a("s_mov_b32 s78, 0x10000000"); a("s_mov_b32 s79, 0x20000")
            a("s_mul_i32 s74, s2, 3")
            a(f"s_add_u32 s74, s74, s{S_WID}")
            a("s_lshl_b32 s74, s74, 8")
            a("s_add_u32 s74, s74, 0x4400000")
            a(f"v_lshlrev_b32 v6, 2, v{V_LANE}")
            a("buffer_store_dword v7, v6, s[76:79], s74 offen")
    elif cfg.stamps:
        a("s_waitcnt vmcnt(0)")
        a("s_barrier")
    a("s_branch L_end")

def emit_rare(a, cfg, rare_blocks):
    for tag, par in rare_blocks:
        a.label(f"L_rare_{tag}")
        a("s_nop 7")
        for qt in range(3):
            s0 = Sreg(par, qt, 0)
            mx = V_TMP + qt
            a(f"v_max3_f32 v{mx}, v{s0}, v{s0+1}, v{s0+2}")
            a(f"v_max3_f32 v{mx}, v{mx}, v{s0+3}, v{s0+4}")
            a(f"v_max3_f32 v{mx}, v{mx}, v{s0+5}, v{s0+6}")
            a(f"v_max_f32 v{mx}, v{mx}, v{s0+7}")
            xlane_max(a, mx, V_TMP + 4)
            a(f"v_max_f32 v{mx}, 0, v{mx}")
            for r in range(8):
                a(f"v_sub_f32 v{s0+r}, v{s0+r}, v{mx}")
            for r in range(4):
                a(f"v_sub_f32 v{V_CM + 4*qt + r}, v{V_CM + 4*qt + r}, v{mx}")
            a(f"v_sub_f32 v{mx}, 0, v{mx}")
            a(f"v_exp_f32 v{mx}, v{mx}")
        a(f"s_getpc_b64 s[{S_TGT}:{S_TGT+1}]")
        a.label(f"L_pc_{tag}")
        a(f"s_add_u32 s{S_TGT}, s{S_TGT}, L_rescale-L_pc_{tag}")
        a(f"s_addc_u32 s{S_TGT+1}, s{S_TGT+1}, 0")
        a(f"s_swappc_b64 s[{S_RET}:{S_RET+1}], s[{S_TGT}:{S_TGT+1}]")
        a(f"s_branch L_back_{tag}")
    if not rare_blocks: return
    a.label("L_rescale")
    a("s_nop 7")
    for qt in range(3):
        regs = [Oreg(u, qt) + r for u in range(16) for r in range(4)] + [A_L + 4*qt + r for r in range(4)]
        for i in range(0, len(regs), 4):
            for k in range(4):
                a(f"v_accvgpr_read_b32 v{V_TMP+4+k}, a{regs[i+k]}")
            for k in range(4):
                a(f"v_mul_f32 v{V_TMP+4+k}, v{V_TMP+qt}, v{V_TMP+4+k}")
            for k in range(4):
                a(f"v_accvgpr_write_b32 a{regs[i+k]}, v{V_TMP+4+k}")
    a("s_nop 1")
    a(f"s_setpc_b64 s[{S_RET}:{S_RET+1}]")

def emit_dump_common(a, cfg, regs, isacc):
    a("s_mov_b32 s76, s72"); a("s_mov_b32 s77, s73")
    a("s_mov_b32 s78, 0x10000000"); a("s_mov_b32 s79, 0x20000")
    a(f"s_mul_i32 s74, s2, 3")
    a(f"s_add_u32 s74, s74, s{S_WID}")
    a("s_lshl_b32 s74, s74, 16")
    a(f"v_lshlrev_b32 v{V_T0}, 2, v{V_LANE}")
    for i, r in enumerate(regs):
        if isacc:
            a(f"v_accvgpr_read_b32 v{V_T1}, a{r}")
            src = V_T1
        else:
            src = r
        a(f"buffer_store_dword v{src}, v{V_T0}, s[76:79], s74 offen")
        a("s_add_u32 s74, s74, 256")
        if isacc: a("s_waitcnt vmcnt(0)")
    a("s_waitcnt vmcnt(0)")
    n = {"qacc": 33 + 14, "q": 33 + 14, "s0": 32 + 14, "o": 14}[cfg.dump]
    for _ in range(n): a("s_barrier")
    if cfg.stamps: a("s_barrier")
    a.label("L_tail_end")
    if cfg.dump != "o": a.label("L_tail_code")
    a("s_branch L_end")
def emit_dump_acc(a, cfg, n):
    a("s_nop 7")
    emit_dump_common(a, cfg, list(range(n)), True)
def emit_dump_v(a, cfg, base, n, extra=None):
    regs = list(range(base, base + n))
    if extra: regs += list(range(extra[0], extra[0] + extra[1]))
    emit_dump_common(a, cfg, regs, False)

def emit_reduce(a, cfg):
    a.raw(f".globl {RNAME}")
    a.raw(".p2align 8")
    a.raw(f".type {RNAME},@function")
    a.label(RNAME)
    a("s_cmp_ge_u32 s2, 504")
    a("s_cbranch_scc1 LR_end")
    a("s_load_dwordx2 s[4:5], s[0:1], 96")
    a("s_load_dwordx2 s[8:9], s[0:1], 80")
    a("v_lshrrev_b32 v1, 6, v0")
    a("v_and_b32 v2, 63, v0")
    a("v_readfirstlane_b32 s3, v1")
    a("s_lshl_b32 s12, s2, 2")
    a("s_add_u32 s12, s12, s3")
    a(f"s_mul_hi_u32 s13, s12, {(2**32 + 125)//126}")
    a("s_mul_i32 s14, s13, 126")
    a("s_sub_u32 s14, s12, s14")
    a(f"s_mul_hi_u32 s15, s14, {(2**32 + 13)//14}")
    a("s_mul_i32 s16, s15, 14")
    a("s_sub_u32 s16, s14, s16")
    a("s_waitcnt lgkmcnt(0)")
    a(f"s_mul_i32 s17, s13, {16*129024}")
    a("s_lshl_b32 s18, s14, 10")
    a("s_add_u32 s17, s17, s18")
    a("s_add_u32 s4, s4, s17")
    a("s_addc_u32 s5, s5, 0")
    a(f"s_mov_b32 s6, {15*129024 + 1024}")
    a("s_mov_b32 s7, 0x20000")
    a("v_lshlrev_b32 v3, 4, v2")
    for h in range(16):
        a(f"s_mov_b32 s19, {h*129024}")
        a(f"buffer_load_dwordx4 v[{8+4*h}:{11+4*h}], v3, s[4:7], s19 offen{cfg.rd_flags}")
    a("s_and_b32 s20, s13, 7")
    a("s_lshr_b32 s21, s13, 3")
    a("s_mul_i32 s20, s20, 144")
    a("s_lshl_b32 s22, s15, 4")
    a("s_add_u32 s20, s20, s22")
    a("s_mul_i32 s20, s20, 1792")
    a("s_mul_i32 s21, s21, 896")
    a("s_lshl_b32 s22, s16, 6")
    a("s_add_u32 s20, s20, s21")
    a("s_add_u32 s20, s20, s22")
    a("v_and_b32 v4, 15, v2")
    a("v_mul_u32_u24 v4, 1792, v4")
    a("v_lshrrev_b32 v5, 4, v2")
    a("v_lshl_add_u32 v4, v5, 3, v4")
    a("s_mov_b32 s10, %d" % (8*144*896*2))
    a("s_mov_b32 s11, 0x20000")
    for h in range(16):
        a(f"s_waitcnt vmcnt({15-h})")
        for r in range(4):
            src = 8 + 4*h + r
            if h == 0:
                a(f"v_lshlrev_b32 v{72+2*r}, 16, v{src}")
                a(f"v_and_b32 v{73+2*r}, 0xffff0000, v{src}")
            else:
                a(f"v_lshlrev_b32 v80, 16, v{src}")
                a(f"v_and_b32 v81, 0xffff0000, v{src}")
                a(f"v_add_f32 v{72+2*r}, v{72+2*r}, v80")
                a(f"v_add_f32 v{73+2*r}, v{73+2*r}, v81")
    for r in range(4):
        a(f"v_cvt_pk_bf16_f32 v{84+r}, v{72+2*r}, v{73+2*r}")
    a("buffer_store_dwordx2 v[84:85], v4, s[8:11], s20 offen")
    a("buffer_store_dwordx2 v[86:87], v4, s[8:11], s20 offen offset:32")
    a.label("LR_end")
    a("s_endpgm")

def kd(a, name, vg, acc, sg=102):
    a.raw(f".amdhsa_kernel {name}")
    a.raw(f"  .amdhsa_next_free_vgpr {vg}")
    a.raw(f"  .amdhsa_next_free_sgpr {sg}")
    a.raw(f"  .amdhsa_accum_offset {acc}")
    a.raw("  .amdhsa_group_segment_fixed_size 0")
    a.raw("  .amdhsa_kernarg_size 104")
    a.raw("  .amdhsa_user_sgpr_count 2")
    a.raw("  .amdhsa_user_sgpr_kernarg_segment_ptr 1")
    a.raw("  .amdhsa_system_sgpr_workgroup_id_x 1")
    a.raw(".end_amdhsa_kernel")

HEADER = """; Fused MHA block (two branches): Q-proj + flash attention + partial out-proj per (branch,batch,head) workgroup,
"""
def generate(cfg):
    a = Asm()
    a.raw(HEADER.rstrip())
    if cfg.fused and not cfg.aslist:
        a.raw(f"; @launch grid=(256,1,1) block=(256,1,1) lds=163840")
    else:
        a.raw(f"; @launch kernel={KNAME} grid=(256,1,1) block=(256,1,1) lds=163840")
    if not cfg.dump and not cfg.fused:
        a.raw(f"; @launch kernel={RNAME} grid=(504,1,1) block=(256,1,1) lds=0")
    a.raw('.amdgcn_target "amdgcn-amd-amdhsa--gfx950"')
    a.raw(".text")
    a.raw(f".globl {KNAME}")
    a.raw(".p2align 8")
    a.raw(f".type {KNAME},@function")
    a.label(KNAME)
    emit_setup(a, cfg)
    rare = []
    if cfg.fast_start:
        head = a.L; a.L = []
        early, late = emit_loader(a, cfg)
        a.L = []
        a.label("L_compute")
        emit_compute_main(a, cfg, rare)
        a.L = head + early + a.L + late
    else:
        emit_compute_main(a, cfg, rare)
        emit_loader(a, cfg)
    a.label("L_code_end")
    emit_rare(a, cfg, rare)
    a.label("L_end")
    a("s_endpgm")
    if not cfg.dump and not cfg.fused:
        emit_reduce(a, cfg)
    a.raw('.section .rodata,"a"')
    a.raw(".p2align 6")
    kd(a, KNAME, 512, 256)
    if not cfg.dump and not cfg.fused:
        a.raw(".p2align 6")
        kd(a, RNAME, 96, 96, 32)
    return a.text()

if __name__ == "__main__":
    cfg = Cfg()
    out = sys.argv[1]
    for kv in sys.argv[2:]:
        k, val = kv.split("=", 1)
        cur = getattr(cfg, k)
        if isinstance(cur, bool): val = val in ("1", "True", "true")
        elif isinstance(cur, float): val = float(val)
        elif isinstance(cur, int): val = int(val)
        elif val == "None": val = None
        setattr(cfg, k, val)
    open(out, "w").write(generate(cfg))
```

```python
import sys, math, struct, re

KNAME = "concat_heads__mha_block_cached__mha_block_cached__near_ridge_kernel"
RNAME = "reduce_kernel"

class Asm:
    def __init__(self):
        self.L = []
    def __call__(self, s):
        self.L.append("    " + s)
    def label(self, s):
        self.L.append(s + ":")
    def raw(self, s):
        self.L.append(s)
    def text(self):
        return "\n".join(self.L) + "\n"

class Lgkm:
    def __init__(self, a):
        self.a = a; self.q = []; self.issued = set(); self.throttled = 0
    def issue(self, ins, tag):
        if len(self.q) >= 15:
            self.a("s_waitcnt lgkmcnt(14)"); self.q = self.q[len(self.q) - 14:]; self.throttled += 1
        self.a(ins); self.q.append(tag); self.issued.add(tag)
    def need(self, tag):
        assert tag in self.issued, ("not issued", tag)
        if tag in self.q:
            idx = len(self.q) - 1 - self.q[::-1].index(tag)
            n = len(self.q) - 1 - idx
            self.a(f"s_waitcnt lgkmcnt({n})")
            self.q = self.q[idx + 1:]
    def drain(self):
        if self.q:
            self.a("s_waitcnt lgkmcnt(0)")
            self.q = []

class Vm:
    def __init__(self, a):
        self.a = a; self.q = []
    def room(self, n):
        over = len(self.q) + n - 63
        if over > 0:
            keep = len(self.q) - over
            self.a(f"s_waitcnt vmcnt({keep})")
            self.q = self.q[over:]
    def issue(self, ins, tag):
        assert len(self.q) < 63
        self.a(ins); self.q.append(tag)
    def need(self, tag):
        if tag in self.q:
            idx = len(self.q) - 1 - self.q[::-1].index(tag)
            n = len(self.q) - 1 - idx
            self.a(f"s_waitcnt vmcnt({n})")
            self.q = self.q[idx + 1:]

class It:
    def __init__(self, fn, cost=4, earliest=0, deadline=10**9):
        self.fn, self.cost, self.earliest, self.deadline = fn, cost, earliest, deadline

def sched(a, mf, streams, budget=8, flush=True):
    n = len(mf)
    for m, (pre, emit) in enumerate(mf):
        if pre: pre()
        emit()
        b = budget
        if m + 1 < n and mf[m + 1][0] is not None: b -= 4
        for st in streams:
            while st and st[0].deadline <= m:
                it = st.pop(0); it.fn(); b -= it.cost
        for st in streams:
            while st and st[0].earliest <= m and st[0].cost <= b:
                it = st.pop(0); it.fn(); b -= it.cost
    if flush:
        prog = True
        while any(streams):
            for st in streams:
                if st:
                    it = st.pop(0); it.fn()

def v(n, cnt=1):
    return f"v{n}" if cnt == 1 else f"v[{n}:{n+cnt-1}]"
def ar(n, cnt=1):
    return f"a{n}" if cnt == 1 else f"a[{n}:{n+cnt-1}]"
def f2u(x): return struct.unpack("<I", struct.pack("<f", x))[0]

V_LANE = 1
V_T0, V_T1 = 2, 3
V_KB = 4
V_VB = 8
V_TMP = 16
V_S = [24, 48]
V_P = 72
V_CM = 84
V_KBUF = 96
V_VBUF = 128
V_Q = 160
A_O = 0
A_L = 192
A_ONES = 204
A_X = 0
A_W = 168
A_DUMMY = 232
V_QACC = 64
V_WB = 16
V_XB = 20
V_XB2 = 24
A_WO = 208
V_P0 = 64
VBK, VBE = 24, 32
V_RL = 16
V_ST = 22
V_CT = 40

def Qreg(qt, T): return V_Q + (qt * 8 + T) * 4
def Xreg(s, qt): return A_X + (s * 3 + qt) * 4
def QAcc(u, qt): return V_QACC + (qt * 8 + (u >> 1)) * 8 + 4 * (u & 1)
def Oreg(u, qt): return A_O + (u * 3 + qt) * 4
def Sreg(par, qt, a): return V_S[par] + (qt * 2 + a) * 4

KS = [i * 16384 for i in range(4)]
VREG = 65536
VS = [VREG + i * 16384 for i in range(4)]
ES = [131072, 147456]
WRING = [ES[0], ES[1], VS[2], VS[3]]
WBASE = VS[2]
XW = 43008
XAW = 24576
XBB = 32768
XBW = 18432
WOSLOT = [ES[0], ES[1], KS[0], KS[1], VS[0], KS[2], VS[1], KS[3], VS[2], VS[3], ES[0], ES[1], KS[0], KS[1]]

S_WID = 3
S_X, S_K, S_V, S_WQ, S_WO, S_WS = 4, 8, 12, 16, 20, 24
S_B, S_H, S_BR, S_THR = 28, 29, 30, 31
S_SO, S_SO2, S_CNT = 32, 33, 34
S_RET, S_TGT = 36, 38
S_WOFF = 40
S_PC = 56
S_TS = 60

QSCALE = math.log2(math.e) / 16.0
SCL_OFF = 0x2200000
CNT_OFF = 0x2100000

class Cfg:
    nt_kv = True
    nt_w = False
    nt_x = False
    nt_wo = False
    nt_warm = False
    st_flags = " sc0 sc1"
    rd_flags = " sc0 sc1"
    warm_wq = True
    warm_wo = False
    code_pf = True
    thr = 8.0
    dump = None
    stamps = False
    kvsched = "g"
    fused = True
    poll_flags = " sc1"
    out_flags = ""
    aslist = False
    sig_t = 0
    fine = False
    sig_f0 = 2
    sig_f1 = 2
    t_jit = 99
    t_mid = 99
    mid_a = 26
    mid_b = 30
    jit_pre = 4
    fast_start = True
    warm2 = False
    xbsched = "b"
    xb_read = 4
    xb_one = 1
    wr_pace = 0
    wr_spread = 10
    map_odd = False
    cstamps = False
    stagger = 0
    ncls = 4
    cls_mode = "b"
    stag_tmax = 31
    scale_red = True
    decouple = True
    nop = 6
    dbg_stamps = -1
    wo_reg0 = 9
    wo_reg_t0 = 14
    warm_t0 = 18
    poll_sleep = 2
    sig_t1 = 2
    nkp = 8
    nvp = 4

def emit_setup(a, cfg):
    a("s_cmp_ge_u32 s2, 256")
    a("s_cbranch_scc1 L_end")
    if cfg.stamps:
        a(f"s_memrealtime s[{S_TS}:{S_TS+1}]")
    a("s_load_dwordx4 s[44:47], s[0:1], 0")
    a("s_load_dwordx4 s[48:51], s[0:1], 16")
    a("s_load_dwordx2 s[54:55], s[0:1], 40")
    a("s_load_dwordx4 s[68:71], s[0:1], 64")
    a("s_load_dwordx2 s[52:53], s[0:1], 32")
    a("s_load_dwordx4 s[64:67], s[0:1], 48")
    a("s_load_dwordx2 s[72:73], s[0:1], 96")
    a("s_load_dwordx4 s[80:83], s[0:1], 80")
    a(f"v_lshrrev_b32 v{V_T0}, 6, v0")
    a(f"v_and_b32 v{V_LANE}, 63, v0")
    a(f"v_readfirstlane_b32 s{S_WID}, v{V_T0}")
    a("s_lshr_b32 s75, s2, 3")
    if cfg.code_pf and cfg.fast_start:
        a(f"s_getpc_b64 s[{S_PC}:{S_PC+1}]")
        a.label("L_pc_entry")
        a(f"s_sub_u32 s{S_PC}, s{S_PC}, L_pc_entry-{KNAME}")
        a(f"s_subb_u32 s{S_PC+1}, s{S_PC+1}, 0")
        a(f"s_mov_b32 s{S_PC+2}, L_code_end-{KNAME}")
        a(f"s_mov_b32 s{S_PC+3}, 0x20000")
        a(f"v_lshlrev_b32 v4, 4, v{V_LANE}")
        a("s_lshl_b32 s76, s75, 2")
        a(f"s_add_u32 s76, s76, s{S_WID}")
        a("s_lshl_b32 s76, s76, 10")
        a(f"buffer_load_dwordx4 a[236:239], v4, s[{S_PC}:{S_PC+3}], s76 offen")
    a("s_and_b32 s74, s2, 7")
    if cfg.map_odd:
        a(f"s_and_b32 s{S_BR}, s74, 1")
        a("s_lshr_b32 s76, s74, 1")
    else:
        a(f"s_lshr_b32 s{S_BR}, s74, 2")
        a("s_and_b32 s76, s74, 3")
    a("s_lshl_b32 s76, s76, 2")
    a("s_and_b32 s77, s75, 3")
    a(f"s_add_u32 s{S_H}, s76, s77")
    a(f"s_lshr_b32 s{S_B}, s75, 2")
    if not cfg.fast_start: emit_ptrs(a, cfg)
    a(f"s_cmp_eq_u32 s{S_WID}, 3")
    if cfg.fast_start: a("s_cbranch_scc0 L_compute")
    else: a("s_cbranch_scc1 L_loader")

def emit_ptrs(a, cfg):
    a(f"s_mul_i32 s78, s{S_B}, 129024")
    a(f"s_lshl_b32 s79, s{S_H}, 9")
    a(f"s_mov_b32 s{S_X+2}, 129024")
    a(f"s_mov_b32 s{S_X+3}, 0x20000")
    a(f"s_sub_u32 s{S_WQ+2}, {448*8192}, s79")
    a(f"s_mov_b32 s{S_WQ+3}, 0x20000")
    a("s_waitcnt lgkmcnt(0)")
    a(f"s_cmp_eq_u32 s{S_BR}, 0")
    a(f"s_cselect_b32 s{S_X}, s44, s54")
    a(f"s_cselect_b32 s{S_X+1}, s45, s55")
    a(f"s_cselect_b32 s{S_WQ}, s50, s68")
    a(f"s_cselect_b32 s{S_WQ+1}, s51, s69")
    a(f"s_cselect_b32 s{S_K}, s46, s64")
    a(f"s_cselect_b32 s{S_K+1}, s47, s65")
    a(f"s_cselect_b32 s{S_V}, s48, s66")
    a(f"s_cselect_b32 s{S_V+1}, s49, s67")
    a(f"s_cselect_b32 s{S_WO}, s52, s70")
    a(f"s_cselect_b32 s{S_WO+1}, s53, s71")
    a(f"s_add_u32 s{S_X}, s{S_X}, s78")
    a(f"s_addc_u32 s{S_X+1}, s{S_X+1}, 0")
    a(f"s_add_u32 s{S_WQ}, s{S_WQ}, s79")
    a(f"s_addc_u32 s{S_WQ+1}, s{S_WQ+1}, 0")

def emit_setup_late(a, cfg, loader):
    a(f"s_lshl_b32 s74, s{S_B}, 4")
    a(f"s_add_u32 s74, s74, s{S_H}")
    if loader:
        a("s_lshl_b32 s75, s74, 19")
        for S in (S_K, S_V):
            a(f"s_add_u32 s{S}, s{S}, s75")
            a(f"s_addc_u32 s{S+1}, s{S+1}, 0")
            a(f"s_mov_b32 s{S+2}, 524288")
            a(f"s_mov_b32 s{S+3}, 0x20000")
        a(f"s_mul_i32 s75, s{S_H}, {256*896}")
        a(f"s_add_u32 s{S_WO}, s{S_WO}, s75")
        a(f"s_addc_u32 s{S_WO+1}, s{S_WO+1}, 0")
        a(f"s_mov_b32 s{S_WO+2}, {256*896}")
        a(f"s_mov_b32 s{S_WO+3}, 0x20000")
    else:
        a(f"s_lshl_b32 s75, s{S_BR}, 7")
        a("s_add_u32 s74, s74, s75")
        a("s_mul_i32 s74, s74, 129024")
        a(f"s_add_u32 s{S_WS}, s72, s74")
        a(f"s_addc_u32 s{S_WS+1}, s73, 0")
        a(f"s_mov_b32 s{S_WS+2}, 129024")
        a(f"s_mov_b32 s{S_WS+3}, 0x20000")

def ntb(cfg): return 9 if (cfg.fused and not cfg.dump) else 14
def barrier_list(cfg):
    L = [("PB", s) for s in range(14)]
    for t in range(-1, 32):
        if t >= cfg.t_mid:
            L.append(("MB", t))
            if t + 2 <= 31: L.append(("MA", t))
            continue
        L.append(("B", t))
        if t >= cfg.t_jit: L.append(("BB", t))
    L += [("TB", j) for j in range(ntb(cfg))]
    return L

XBSCHED = {"a": {1: [0], 2: [1], 3: [2]}, "b": {1: [0, 1], 2: [2]}, "c": {1: [0, 1, 2]}}
KVSCHED = {
    "f": {3: [("K", 0)], 4: [("K", 1)], 6: [("K", 2)], 7: [("V", 0)], 8: [("K", 3)], 9: [("V", 1)], 11: [("V", 2)], 12: [("V", 3)]},
    "g": {2: [("K", 0)], 3: [("K", 1)], 5: [("K", 2)], 6: [("V", 0)], 8: [("K", 3)], 9: [("V", 1)], 11: [("V", 2)], 12: [("V", 3)]},
    "h": {1: [("K", 0)], 3: [("K", 1)], 5: [("K", 2)], 6: [("V", 0)], 7: [("K", 3)], 9: [("V", 1)], 11: [("V", 2)], 12: [("V", 3)]},
    "a": {1: [("K", 0)], 2: [("V", 0)], 3: [("K", 1)], 4: [("K", 2)], 6: [("V", 1)], 7: [("K", 3)], 11: [("V", 2)], 12: [("V", 3)]},
    "b": {1: [("K", 0), ("V", 0)], 2: [("K", 1)], 3: [("K", 2)], 4: [("V", 1)], 5: [("K", 3)], 11: [("V", 2)], 12: [("V", 3)]},
    "d": {4: [("K", 0)], 5: [("K", 1)], 7: [("K", 2), ("V", 0)], 8: [("K", 3)], 9: [("V", 1)], 11: [("V", 2)], 12: [("V", 3)]},
    "e": {3: [("K", 0)], 5: [("K", 1)], 7: [("V", 0)], 8: [("K", 2)], 9: [("K", 3)], 10: [("V", 1)], 11: [("V", 2)], 12: [("V", 3)]},
    "c": {1: [("K", 0)], 3: [("V", 0)], 4: [("K", 1)], 6: [("K", 2)], 7: [("V", 1)], 9: [("K", 3)], 11: [("V", 2)], 12: [("V", 3)]},
}

def emit_code_prefetch(a, cfg, vm, vaddr, lo, hi, dst):
    a(f"s_getpc_b64 s[{S_PC}:{S_PC+1}]")
    lab = f"L_pc_{lo}"
    a.label(lab)
    a(f"s_add_u32 s{S_PC}, s{S_PC}, {lo}-{lab}")
    a(f"s_addc_u32 s{S_PC+1}, s{S_PC+1}, 0")
    a(f"s_mov_b32 s{S_PC+2}, {hi}-{lo}")
    a(f"s_mov_b32 s{S_PC+3}, 0x20000")
    return

def emit_loader(a, cfg):
    a.label("L_loader")
    vm = Vm(a)
    LH, LP = 2, 3
    VK, VV, VW, VO, VO3 = 8, 16, 20, 24, 28
    T0, T1 = 4, 5
    stamp_idx = [0]
    def xstamp(i):
        if cfg.stamps:
            a("s_memrealtime s[62:63]")
            a("s_waitcnt lgkmcnt(0)")
            a(f"v_writelane_b32 v58, s62, {i}")
    if cfg.stamps:
        a(f"v_writelane_b32 v56, s{S_TS}, 0")
    xstamp(0)
    a(f"v_lshrrev_b32 v{LH}, 5, v{V_LANE}")
    a(f"v_and_b32 v{LP}, 31, v{V_LANE}")
    a(f"v_lshlrev_b32 v32, 4, v{V_LANE}")
    def chunkpat(i):
        a(f"v_add_u32 v{T0}, {2*i}, v{LH}")
        a(f"v_lshlrev_b32 v{T0}, 1, v{T0}")
        a(f"v_xor_b32 v{T0}, v{T0}, v{LP}")
    for i in range(4):
        chunkpat(i)
        a(f"v_lshlrev_b32 v{T1}, 4, v{T0}")
        a(f"v_lshl_add_u32 v{VW+i}, v{LH}, 13, v{T1}")
    if cfg.fast_start: emit_ptrs(a, cfg)
    ntkv = " nt" if cfg.nt_kv else ""
    ntw = " nt" if cfg.nt_w else ""
    ntwo = " nt" if cfg.nt_wo else ""
    ntwarm = " nt" if cfg.nt_warm else ""

    clsn = [0]
    def class_wait():
        if not cfg.stagger: return
        clsn[0] += 1; n = clsn[0]
        for c in range(1, cfg.ncls):
            a(f"s_cmp_lt_u32 s53, {c}")
            a(f"s_cbranch_scc1 L_cls{n}")
            a(f"s_waitcnt vmcnt({47 - cfg.stagger * c})")
        a.label(f"L_cls{n}")
    def tile_kv(kind, t):
        srd = S_K if kind == "K" else S_V
        lds = KS[t % 4] if kind == "K" else VS[t % 4]
        vm.room(16)
        if t >= 4 and t <= cfg.stag_tmax: class_wait()
        for m in range(4):
            a(f"s_mov_b32 m0, {lds + m*4096}")
            a(f"s_mov_b32 s{S_SO}, {t*16384 + m*4096}")
            for n in range(4):
                i = 4*m + n
                vo = VK + (i & 7) if kind == "K" else VV + (i & 3)
                vm.issue(f"buffer_load_dwordx4 v{vo}, s[{srd}:{srd+3}], s{S_SO} offen offset:{n*1024}{ntkv} lds", (kind, t))
    def tile_w(s):
        lds = WRING[s % 4]
        vm.room(16)
        prev = 0
        for i in range(16):
            sig0 = 8*((i & 7) >> 1) + 4*(i >> 3) + 2*(i & 1)
            if i == 0 or not cfg.fast_start:
                a(f"s_mov_b32 m0, {lds + i*1024}")
                a(f"s_mov_b32 s{S_SO}, {(s*32 + sig0)*8192}")
            else:
                a("s_add_u32 m0, m0, s98")
                d = sig0 - prev
                if d == 2: a(f"s_add_u32 s{S_SO}, s{S_SO}, s99")
                elif d == 6: a(f"s_add_u32 s{S_SO}, s{S_SO}, s100")
                else: a(f"s_sub_u32 s{S_SO}, s{S_SO}, {-d*8192}")
            prev = sig0
            vm.issue(f"buffer_load_dwordx4 v{VW + (i & 3)}, s[{S_WQ}:{S_WQ+3}], s{S_SO} offen{ntw} lds", ("W", s))
    VX = 40
    def setup_xb():
        a(f"v_lshrrev_b32 v{T0}, 3, v{V_LANE}")
        a(f"v_and_b32 v{T1}, 7, v{V_LANE}")
        a(f"v_lshrrev_b32 v6, 1, v{T0}")
        a(f"v_xor_b32 v6, v6, v{T1}")
        a(f"v_mul_u32_u24 v7, 896, v{T0}")
        a(f"v_lshl_add_u32 v{VX}, v6, 4, v7")
        a(f"v_xor_b32 v6, 4, v6")
        a(f"v_lshl_add_u32 v{VX+1}, v6, 4, v7")
        a(f"v_add_u32 v{VX+1}, {8*896}, v{VX+1}")
    def tile_xb(part):
        vm.room(18)
        ntx = " nt" if cfg.nt_x else ""
        for w in range(3):
            for qt in range(3):
                for hb in range(2):
                    a(f"s_mov_b32 m0, {XBB + w*XBW + ((qt*2 + hb)*3 + part)*1024}")
                    a(f"s_mov_b32 s{S_SO}, {w*XW + qt*14336 + (4 + part)*128}")
                    vm.issue(f"buffer_load_dwordx4 v{VX+hb}, s[{S_X}:{S_X+3}], s{S_SO} offen{ntx} lds", ("XB", part))
    def tile_wo(j):
        lds = WOSLOT[j]
        vm.room(16)
        for i in range(16):
            so, vo = wo_addr(j, i)
            a(f"s_mov_b32 m0, {lds + i*1024}")
            a(f"s_mov_b32 s{S_SO}, {so}")
            vm.issue(f"buffer_load_dwordx4 v{vo}, s[{S_WO}:{S_WO+3}], s{S_SO} offen{ntwo} lds", ("WO", j))
    NREG0 = cfg.wo_reg0
    def wo_quad(j, i):
        k = (j - NREG0) * 16 + i
        return ar(4*k, 4) if k < 64 else v(64 + 4*(k - 64), 4)
    def wo_addr(j, i):
        if cfg.fine:
            return (32*((j % 2) * 4) + 2*i)*896 + (j // 2)*128, VO3 + (i & 3)
        if j < 12:
            p, T0_ = j // 4, (j % 4) * 2
            return (32*T0_ + 2*i)*896 + p*256, VO + (i & 3)
        T0_ = (j - 12) * 4
        return (32*T0_ + 2*i)*896 + 768, VO3 + (i & 3)
    def load_wo_reg(j, i0, n):
        vm.room(n)
        for i in range(i0, i0 + n):
            so, vo = wo_addr(j, i)
            a(f"s_mov_b32 s{S_SO}, {so}")
            vm.issue(f"buffer_load_dwordx4 {wo_quad(j, i)}, v{vo}, s[{S_WO}:{S_WO+3}], s{S_SO} offen{ntwo}", ("WOR", j))
    def put_wo(j):
        vm.need(("WOR", j))
        a(f"v_add_u32 v33, {WOSLOT[j]}, v32")
        for i in range(16):
            a(f"ds_write_b128 v33, {wo_quad(j, i)} offset:{i*1024}")
            if cfg.wr_pace and i % cfg.wr_pace == cfg.wr_pace - 1 and i < 15: a("s_waitcnt lgkmcnt(0)")
        wo_written.append(j)
    wo_written = []
    wr_queue = []
    def put_wo_some(n):
        done = 0
        while wr_queue and done < n:
            j, i = wr_queue.pop(0)
            if i == 0 or done == 0:
                if i == 0: vm.need(("WOR", j))
                a(f"v_add_u32 v33, {WOSLOT[j]}, v32")
            a(f"ds_write_b128 v33, {wo_quad(j, i)} offset:{i*1024}")
            if i == 15: wo_written.append(j)
            done += 1
            if wr_queue and wr_queue[0][1] == 0 and done < n:
                pass
    def need_wo(j):
        if j >= NREG0:
            if j in wo_written:
                a("s_waitcnt lgkmcnt(0)")
                while wo_written: wo_written.pop()
        else:
            vm.need(("WO", j))
    def tile_wo_any(j):
        if j >= NREG0:
            if cfg.wr_spread: wr_queue.extend((j, i) for i in range(16))
            else: put_wo(j)
        else: tile_wo(j)
    def warm_wo(i0, n):
        vm.room(n)
        for i in range(i0, i0 + n):
            a(f"s_mul_i32 s{S_SO}, s{S_B}, 28672")
            a(f"s_add_u32 s{S_SO}, s{S_SO}, {i*1024}")
            vm.issue(f"buffer_load_dwordx4 v[36:39], v32, s[{S_WO}:{S_WO+3}], s{S_SO} offen{ntwarm}", ("warm", i))
    def code_pf(lo, hi, tagn):
        a(f"s_getpc_b64 s[{S_PC}:{S_PC+1}]")
        lab = f"L_pc_{tagn}"
        a.label(lab)
        a(f"s_add_u32 s{S_PC}, s{S_PC}, {lo}-{lab}")
        a(f"s_addc_u32 s{S_PC+1}, s{S_PC+1}, -1" if False else f"s_addc_u32 s{S_PC+1}, s{S_PC+1}, ({lo}-{lab})>>32")
        a(f"s_mov_b32 s{S_PC+2}, {hi}-{lo}")
        a(f"s_mov_b32 s{S_PC+3}, 0x20000")
        a(f"s_lshr_b32 s{S_SO2}, s2, 3")
        a(f"s_mul_i32 s{S_SO2}, s{S_SO2}, 3072")
        vm.room(3)
        for i in range(3):
            vm.issue(f"buffer_load_dwordx4 v[36:39], v32, s[{S_PC}:{S_PC+3}], s{S_SO2} offen offset:{i*1024}", ("pf", tagn, i))

    fused = cfg.fused and not cfg.dump
    if cfg.fast_start:
        a("s_mov_b32 s98, 1024"); a(f"s_mov_b32 s99, {2*8192}"); a(f"s_mov_b32 s100, {6*8192}")
        tile_w(0)
    if fused:
        emit_cnt_srd(a)
        a("s_mov_b32 s48, s82"); a("s_mov_b32 s49, s83")
        a("s_mov_b32 s50, 256"); a("s_mov_b32 s51, 0x20000")
        a(f"s_lshl_b32 s52, s{S_BR}, 3")
        a(f"s_add_u32 s52, s52, s{S_B}")
        a("s_lshl_b32 s52, s52, 4")
        a(f"s_cmp_lg_u32 s{S_H}, 0")
        a("s_cbranch_scc1 L_noinit")
        a(f"v_lshlrev_b32 v33, 12, v{V_LANE}")
        a("v_mov_b32 v34, 0")
        a("s_mov_b64 exec, 7")
        a("buffer_store_dword v34, v33, s[84:87], 0 offen sc1")
        a("s_mov_b64 exec, -1")
        a.label("L_noinit")
    if cfg.warm2:
        a(f"v_lshlrev_b32 v34, 4, v{LP}")
        a(f"v_lshl_add_u32 v34, v{LH}, 13, v34")
        a(f"s_mul_i32 s76, s{S_B}, {56*8192}")
        a(f"s_add_u32 s76, s76, {28*8192}")
        for i in range(14):
            vm.issue(f"buffer_load_dwordx4 v[36:39], v34, s[{S_WQ}:{S_WQ+3}], s76 offen{ntwarm}", ("warm2", i))
            if i < 13: a(f"s_add_u32 s76, s76, {2*8192}")
    if not cfg.fast_start: tile_w(0)
    xstamp(1)
    if cfg.code_pf and not cfg.fast_start: code_pf(KNAME, "L_code_end", "all")
    tile_w(1); xstamp(2)
    emit_setup_late(a, cfg, True)
    for i in range(8):
        a(f"v_add_u32 v{T0}, {2*i}, v{LH}")
        a(f"v_xor_b32 v{T0}, v{T0}, v{LP}")
        a(f"v_lshlrev_b32 v{T0}, 4, v{T0}")
        a(f"v_lshl_add_u32 v{VK+i}, v{LH}, 9, v{T0}")
    for i in range(4):
        chunkpat(i)
        a(f"v_lshlrev_b32 v{T1}, 4, v{T0}")
        a(f"v_lshl_add_u32 v{VV+i}, v{LH}, 9, v{T1}")
        a(f"v_lshrrev_b32 v6, 4, v{T0}")
        a(f"v_lshl_add_u32 v6, v6, 5, v{LH}")
        a(f"v_mul_u32_u24 v6, 896, v6")
        a(f"v_and_b32 v7, 15, v{T0}")
        a(f"v_lshl_add_u32 v{VO+i}, v7, 4, v6")
        a(f"v_lshrrev_b32 v6, 3, v{T0}")
        a(f"v_lshl_add_u32 v6, v6, 5, v{LH}")
        a(f"v_mul_u32_u24 v6, 896, v6")
        a(f"v_and_b32 v7, 7, v{T0}")
        a(f"v_lshl_add_u32 v{VO3+i}, v7, 4, v6")
    setup_xb()
    if cfg.stagger:
        if cfg.cls_mode == "b":
            a(f"s_mul_i32 s53, s{S_B}, {cfg.ncls}")
            a("s_lshr_b32 s53, s53, 3")
        else:
            a(f"s_mov_b32 s53, s{S_BR}")
    tile_w(2)
    xstamp(3)
    def iter_extras(t):
            if cfg.warm_wo and cfg.warm_t0 <= t <= cfg.warm_t0 + 6:
                warm_wo((t - cfg.warm_t0) * 4, 4)
            if cfg.code_pf and t == 25: code_pf("L_tail_code", "L_tail_end", "tail")
            if fused and t == 10:
                vm.room(1)
                a("s_mov_b64 exec, 1")
                vm.issue(f"buffer_load_dword v35, off, s[48:51], s52 sc1", ("initflag",))
                a("s_mov_b64 exec, -1")
            if fused and t == 14:
                vm.need(("initflag",))
                a("v_readfirstlane_b32 s90, v35")
                a("s_nop 3")
                a("s_cmp_ge_u32 s90, 1")
                a("s_cbranch_scc1 L_init_ok")
                a("s_mov_b64 exec, 1")
                a("s_mov_b32 s89, 0")
                a.label("L_init_poll")
                a("buffer_load_dword v35, off, s[48:51], s52 sc1")
                a("s_waitcnt vmcnt(0)")
                a("v_readfirstlane_b32 s90, v35")
                a("s_add_u32 s89, s89, 1")
                a("s_cmp_ge_u32 s90, 1")
                a("s_cbranch_scc1 L_init_done")
                a("s_cmp_ge_u32 s89, 0x40000")
                a("s_cbranch_scc1 L_init_done")
                a("s_sleep 8")
                a("s_branch L_init_poll")
                a.label("L_init_done")
                a("s_mov_b64 exec, -1")
                a.label("L_init_ok")
            nreg = 14 - NREG0
            k = t - cfg.wo_reg_t0
            if 0 <= k < 2 * nreg:
                load_wo_reg(NREG0 + k // 2, 8 * (k & 1), 8)
    kv_after_pb = KVSCHED[cfg.kvsched]
    early = None
    if cfg.fast_start:
        a("s_branch L_loader2")
        early = a.L; a.L = []
        a.label("L_loader2")
    for name, idx in barrier_list(cfg):
        if name == "PB":
            if idx == 0: vm.need(("W", 0)); vm.need(("W", 1))
            elif idx + 1 <= 13: vm.need(("W", idx + 1))
            if idx == cfg.xb_read: vm.need(("XB", 2))
        elif name == "B":
            t = idx
            if t == -1:
                vm.need(("K", 0)); vm.need(("K", 1))
            elif t >= cfg.t_jit:
                if t + 1 <= 31: vm.need(("K", t + 1))
            else:
                if t + 2 <= 31: vm.need(("K", t + 2))
                vm.need(("V", t))
            if t == 31 and t < cfg.t_jit:
                need_wo(0); need_wo(1)
        elif name == "BB" or name == "MB":
            vm.need(("V", idx))
            if idx == 31:
                need_wo(0); need_wo(1)
        elif name == "MA":
            vm.need(("K", idx + 2))
        else:
            j = idx
            need_wo(min(j + 1, 13))
            if j == ntb(cfg) - 1:
                assert not wr_queue
                for jj in range(14): need_wo(jj)
        a("s_barrier")
        if cfg.stamps and name not in ("BB", "MA"):
            stamp_idx[0] += 1
            a("s_memrealtime s[62:63]")
            a("s_waitcnt lgkmcnt(0)")
            a(f"v_writelane_b32 v56, s62, {stamp_idx[0]}")
            a("s_memtime s[62:63]")
            a("s_waitcnt lgkmcnt(0)")
            a(f"v_writelane_b32 v59, s62, {stamp_idx[0]}")
        if name == "PB" and idx == 0 and fused:
            a(f"s_cmp_lg_u32 s{S_H}, 0")
            a("s_cbranch_scc1 L_noinit2")
            a("v_mov_b32 v34, 1")
            a("s_mov_b64 exec, 1")
            a("buffer_atomic_add v34, off, s[48:51], s52")
            a("s_mov_b64 exec, -1")
            a.label("L_noinit2")
        if name == "PB":
            if idx + 3 <= 13: tile_w(idx + 3)
            for part in XBSCHED[cfg.xbsched].get(idx, []): tile_xb(part)
            for k, t in kv_after_pb.get(idx, []): tile_kv(k, t)
        elif name == "B":
            t = idx
            if t >= cfg.t_jit:
                if t > cfg.t_jit and t + 3 <= 31: tile_kv("K", t + 3)
            elif t >= 0:
                if t + 4 <= 31: tile_kv("K", t + 4)
                if t >= 1 and t + 3 <= 31: tile_kv("V", t + 3)
            iter_extras(t)
            if t == 26: tile_wo_any(0)
            if t == 27: tile_wo_any(1)
            if t == 28: tile_wo_any(2)
            if t == 29: tile_wo_any(3); tile_wo_any(4)
            if t == 30: tile_wo_any(5); tile_wo_any(6)
            if t == 31: tile_wo_any(7); tile_wo_any(8)
        elif name == "BB":
            t = idx
            if t > cfg.t_jit and t + 2 <= 31: tile_kv("V", t + 2)
        elif name == "MB":
            t = idx
            if t > cfg.t_mid and t + 2 <= 31: tile_kv("V", t + 2)
            iter_extras(t)
            if t == 29: tile_wo_any(4)
            if t == 30: tile_wo_any(6)
            if t == 31: tile_wo_any(7); tile_wo_any(8)
        elif name == "MA":
            t = idx
            if t + 4 <= 31: tile_kv("K", t + 4)
            if t + 1 == 26: tile_wo_any(0)
            if t + 1 == 27: tile_wo_any(1)
            if t + 1 == 28: tile_wo_any(2)
            if t + 1 == 29: tile_wo_any(3)
            if t + 1 == 30: tile_wo_any(5)
        else:
            j = idx
            if j == 0: tile_wo_any(9)
            if 1 <= j <= 4: tile_wo_any(9 + j)
            if cfg.wr_spread and j < ntb(cfg) - 1:
                put_wo_some(cfg.wr_spread if j < ntb(cfg) - 2 else 999)
            if j == 5 and cfg.fused and not cfg.dump:
                a(f"v_lshlrev_b32 v33, 2, v{V_LANE}")
                a(f"v_add_u32 v33, {VS[0]}, v33")
                a("v_mov_b32 v34, 0")
                a("ds_write_b32 v33, v34")
                a("s_waitcnt lgkmcnt(0)")
    a("s_waitcnt vmcnt(0)")
    if cfg.fused and not cfg.dump:
        emit_red_setup(a, cfg)
        for p in range(2):
            emit_poll(a, cfg, p)
            xstamp(4 + p)
            for e in range(2):
                a(f"s_add_u32 s90, s{S_H}, {16*e}")
                a(f"s_lshr_b32 s{96+2*e}, s90, 2")
                a("s_and_b32 s90, s90, 3")
                a(f"s_add_u32 s{97+2*e}, s90, {4*p}")
            emit_reduce_frags(a, cfg, 2)
        emit_poll(a, cfg, 2)
        xstamp(6)
        if not cfg.decouple: a("s_barrier")
        emit_final_reduce(a, cfg)
        xstamp(7)
    if cfg.stamps:
        if not (cfg.fused and not cfg.dump): a("s_barrier")
        a("s_memrealtime s[62:63]")
        a("s_waitcnt lgkmcnt(0)")
        a(f"v_writelane_b32 v56, s62, 62")
        a("s_mov_b32 s76, s72"); a("s_mov_b32 s77, s73")
        a("s_mov_b32 s78, 0x10000000"); a("s_mov_b32 s79, 0x20000")
        a("s_lshl_b32 s74, s2, 8")
        a("s_add_u32 s74, s74, 0x4000000")
        a(f"v_lshlrev_b32 v57, 2, v{V_LANE}")
        a("buffer_store_dword v56, v57, s[76:79], s74 offen")
        a("s_add_u32 s74, s74, 0x100000")
        a("buffer_store_dword v58, v57, s[76:79], s74 offen")
        a("s_add_u32 s74, s74, 0x100000")
        a("buffer_store_dword v59, v57, s[76:79], s74 offen")
        a("s_waitcnt vmcnt(0)")
        if cfg.dbg_stamps >= 0:
            a(f"s_cmp_lg_u32 s2, {cfg.dbg_stamps}")
            a("s_cbranch_scc1 L_nodbg")
            sel = [(56, 1), (56, 16), (56, 24), (56, 32), (56, 40), (56, 47), (56, 48), (56, 56), (58, 4), (58, 5), (58, 6), (58, 7)]
            slots = [1, 2, 3, 5, 6, 7, 9, 10, 11, 13, 14, 15]
            a("v_readlane_b32 s91, v56, 0")
            for (r, ln), sl in zip(sel, slots):
                a(f"v_readlane_b32 s90, v{r}, {ln}")
                a("s_nop 3")
                a("s_sub_u32 s90, s90, s91")
                a("v_mov_b32 v60, s90")
                a(f"s_mov_b32 s89, {4*sl}")
                a("s_mov_b64 exec, 1")
                a("buffer_store_dword v60, off, s[48:51], s89")
                a("s_mov_b64 exec, -1")
                a("s_nop 1")
            a("s_waitcnt vmcnt(0)")
            a.label("L_nodbg")
    a("s_branch L_end")
    return early, a.L

def emit_cnt_srd(a):
    a(f"s_lshl_b32 s84, s{S_BR}, 3")
    a(f"s_add_u32 s84, s84, s{S_B}")
    a("s_lshl_b32 s84, s84, 14")
    a(f"s_add_u32 s84, s84, {CNT_OFF}")
    a("s_add_u32 s84, s72, s84")
    a("s_addc_u32 s85, s73, 0")
    a("s_mov_b32 s86, 16384"); a("s_mov_b32 s87, 0x20000")

def emit_red_setup(a, cfg):
    lane = V_LANE
    emit_cnt_srd(a)
    a(f"s_lshl_b32 s88, s{S_BR}, 3")
    a(f"s_add_u32 s88, s88, s{S_B}")
    a(f"s_mul_i32 s45, s88, {16*129024}")
    a("s_add_u32 s44, s72, s45")
    a("s_addc_u32 s45, s73, 0")
    a(f"s_mov_b32 s46, {16*129024}")
    a("s_mov_b32 s47, 0x20000")
    a("s_mov_b32 s92, s80"); a("s_mov_b32 s93, s81")
    a(f"s_mov_b32 s94, {8*144*896*2}"); a("s_mov_b32 s95, 0x20000")
    a(f"s_mul_i32 s64, s88, 9216")
    a(f"s_add_u32 s64, s64, {SCL_OFF}")
    a("s_add_u32 s64, s72, s64")
    a("s_addc_u32 s65, s73, 0")
    a("s_mov_b32 s66, 9216"); a("s_mov_b32 s67, 0x20000")

_lab = [0]
def emit_poll(a, cfg, p):
    _lab[0] += 1; n = _lab[0]
    a("s_mov_b64 exec, 1")
    a("s_mov_b32 s89, 0")
    a.label(f"L_poll{n}")
    a(f"s_mov_b32 s88, {4096*p}")
    a(f"buffer_load_dword v2, off, s[84:87], s88{cfg.poll_flags}")
    a("s_waitcnt vmcnt(0)")
    a("v_readfirstlane_b32 s90, v2")
    a("s_add_u32 s89, s89, 1")
    a("s_cmp_ge_u32 s90, 16")
    a(f"s_cbranch_scc1 L_poll_done{n}")
    a("s_cmp_ge_u32 s89, 0x40000")
    a(f"s_cbranch_scc1 L_poll_done{n}")
    a(f"s_sleep {cfg.poll_sleep}")
    a(f"s_branch L_poll{n}")
    a.label(f"L_poll_done{n}")
    a("s_mov_b64 exec, -1")

def emit_reduce_frags(a, cfg, nf):
    lane = V_LANE
    sc = cfg.scale_red
    nper = 20 if sc else 16
    a(f"v_lshlrev_b32 v2, 4, v{lane}")
    if sc:
        a(f"v_and_b32 v5, 15, v{lane}")
        a("v_lshlrev_b32 v5, 6, v5")
    for e in range(nf):
        if sc:
            a(f"s_lshl_b32 s91, s{96+2*e}, 10")
            for j in range(4):
                r = 192 + 16*e + 4*j
                a(f"buffer_load_dwordx4 v[{r}:{r+3}], v5, s[64:67], s91 offen offset:{16*j}{cfg.rd_flags}")
        a(f"s_mul_i32 s90, s{96+2*e}, 14")
        a(f"s_add_u32 s90, s90, s{97+2*e}")
        a("s_lshl_b32 s91, s90, 10")
        for hh in range(16):
            r = 64 + 64*e + 4*hh
            a(f"buffer_load_dwordx4 v[{r}:{r+3}], v2, s[44:47], s91 offen{cfg.rd_flags}")
            if hh < 15: a(f"s_add_u32 s91, s91, 129024")
    a(f"v_and_b32 v3, 15, v{lane}")
    a("v_mul_u32_u24 v3, 1792, v3")
    a(f"v_lshrrev_b32 v4, 4, v{lane}")
    a("v_lshl_add_u32 v3, v4, 3, v3")
    for e in range(nf):
        a(f"s_mul_i32 s100, s{S_B}, 144")
        a(f"s_lshl_b32 s90, s{96+2*e}, 4")
        a("s_add_u32 s100, s100, s90")
        a("s_mul_i32 s100, s100, 1792")
        a(f"s_lshl_b32 s90, s{97+2*e}, 6")
        a("s_add_u32 s100, s100, s90")
        a(f"s_mul_i32 s90, s{S_BR}, 896")
        a(f"s_add_u32 s{96+2*e}, s100, s90")
    for e in range(nf):
        acc = 32 + 8*e
        for hh in range(16):
            a(f"s_waitcnt vmcnt({nper*nf - 1 - nper*e - (nper - 16) - hh})")
            for r in range(4):
                src = 64 + 64*e + 4*hh + r
                if hh == 0 and not sc:
                    a(f"v_lshlrev_b32 v{acc+2*r}, 16, v{src}")
                    a(f"v_and_b32 v{acc+2*r+1}, 0xffff0000, v{src}")
                else:
                    t = 8 + 2*r
                    a(f"v_lshlrev_b32 v{t}, 16, v{src}")
                    a(f"v_and_b32 v{t+1}, 0xffff0000, v{src}")
            for r in range(4):
                t = 8 + 2*r
                A, T_ = f"v[{acc+2*r}:{acc+2*r+1}]", f"v[{t}:{t+1}]"
                if sc:
                    q = 192 + 16*e + hh
                    q0 = q & ~1
                    sel = q & 1
                    S_ = f"v[{q0}:{q0+1}]"
                    if hh == 0:
                        a(f"v_pk_mul_f32 {A}, {T_}, {S_} op_sel:[0,{sel}] op_sel_hi:[1,{sel}]")
                    else:
                        a(f"v_pk_fma_f32 {A}, {T_}, {S_}, {A} op_sel:[0,{sel},0] op_sel_hi:[1,{sel},1]")
                elif hh > 0:
                    a(f"v_pk_add_f32 {A}, {A}, {T_}")
        for r in range(4):
            a(f"v_cvt_pk_bf16_f32 v{48+4*e+r}, v{acc+2*r}, v{acc+2*r+1}")
    for e in range(nf):
        a(f"buffer_store_dwordx2 v[{48+4*e}:{49+4*e}], v3, s[92:95], s{96+2*e} offen{cfg.out_flags}")
        a(f"buffer_store_dwordx2 v[{50+4*e}:{51+4*e}], v3, s[92:95], s{96+2*e} offen offset:32{cfg.out_flags}")

def emit_final_reduce(a, cfg):
    _lab[0] += 1; n = _lab[0]
    a(f"s_lshl_b32 s90, s{S_WID}, 4")
    a(f"s_add_u32 s90, s90, s{S_H}")
    a("s_cmp_ge_u32 s90, 62")
    a(f"s_cbranch_scc1 L_fin_done{n}")
    a("s_lshr_b32 s96, s90, 2")
    a("s_and_b32 s97, s90, 3")
    a("s_add_u32 s97, s97, 8")
    a("s_sub_u32 s91, s90, 36")
    a("s_lshr_b32 s98, s91, 1")
    a("s_and_b32 s99, s91, 1")
    a("s_add_u32 s99, s99, 12")
    a("s_cmp_ge_u32 s90, 36")
    a("s_cselect_b32 s96, s98, s96")
    a("s_cselect_b32 s97, s99, s97")
    a("s_sub_u32 s91, s90, 54")
    a("s_cmp_ge_u32 s90, 54")
    a("s_cselect_b32 s96, 8, s96")
    a("s_cselect_b32 s97, s91, s97")
    emit_reduce_frags(a, cfg, 1)
    a.label(f"L_fin_done{n}")

def mfma(a, D, A, B, C=None):
    a(f"v_mfma_f32_16x16x32_bf16 {D}, {A}, {B}, {C if C is not None else D}")

def xlane_max(a, r, tmp):
    a(f"v_mov_b32 v{tmp}, v{r}")
    a("s_nop 1")
    a(f"v_permlane32_swap_b32 v{r}, v{tmp}")
    a("s_nop 1")
    a(f"v_max_f32 v{r}, v{r}, v{tmp}")
    a(f"v_mov_b32 v{tmp}, v{r}")
    a("s_nop 1")
    a(f"v_permlane16_swap_b32 v{r}, v{tmp}")
    a("s_nop 1")
    a(f"v_max_f32 v{r}, v{r}, v{tmp}")

def emit_compute(a, cfg):
    rare_blocks = []
    emit_compute_main(a, cfg, rare_blocks)
    emit_rare(a, cfg, rare_blocks)

def emit_compute_main(a, cfg, rare_blocks):
    lg = Lgkm(a)
    lane = V_LANE
    T0, T1 = V_T0, V_T1
    NKP, NVP = cfg.nkp, cfg.nvp
    a(f"v_lshrrev_b32 v{T0}, 3, v{lane}")
    a(f"v_and_b32 v{T1}, 7, v{lane}")
    a(f"v_lshrrev_b32 v22, 1, v{T0}")
    a(f"v_xor_b32 v22, v22, v{T1}")
    a(f"v_mul_u32_u24 v23, 896, v{T0}")
    a(f"v_lshl_add_u32 v24, v22, 4, v23")
    a(f"v_xor_b32 v22, 4, v22")
    a(f"v_lshl_add_u32 v25, v22, 4, v23")
    a(f"v_add_u32 v25, {8*896}, v25")
    if cfg.fast_start: emit_ptrs(a, cfg)
    a(f"s_mul_i32 s74, s{S_WID}, {XAW}")
    a(f"s_mul_i32 s75, s{S_WID}, {XW}")
    vm = Vm(a)
    ntx = " nt" if cfg.nt_x else ""
    if cfg.warm2:
        ntwarm = " nt" if cfg.nt_warm else ""
        a(f"v_lshlrev_b32 v26, 4, v{lane}")
        a(f"s_cmp_eq_u32 s{S_WID}, 2")
        a("s_cbranch_scc1 L_w2q")
        a(f"s_and_b32 s76, s{S_H}, 3")
        a("s_mul_i32 s76, s76, 32256")
        a(f"s_lshl_b32 s77, s{S_WID}, 14")
        a("s_add_u32 s76, s76, s77")
        for i in range(16):
            a(f"buffer_load_dwordx4 {ar(A_DUMMY,4)}, v26, s[{S_X}:{S_X+3}], s76 offen{ntwarm}")
            if i < 15: a("s_add_u32 s76, s76, 1024")
        a("s_branch L_w2done")
        a.label("L_w2q")
        a(f"v_lshrrev_b32 v27, 5, v{lane}")
        a(f"v_and_b32 v26, 31, v{lane}")
        a("v_lshlrev_b32 v26, 4, v26")
        a("v_lshl_add_u32 v26, v27, 13, v26")
        a(f"s_mul_i32 s76, s{S_B}, {56*8192}")
        for i in range(14):
            a(f"buffer_load_dwordx4 {ar(A_DUMMY,4)}, v26, s[{S_WQ}:{S_WQ+3}], s76 offen{ntwarm}")
            if i < 13: a(f"s_add_u32 s76, s76, {2*8192}")
        a.label("L_w2done")
    for sp in range(4):
        for qt in range(3):
            for hb in range(2):
                a(f"s_add_u32 m0, s74, {((qt*2 + hb)*4 + sp)*1024}")
                a(f"s_add_u32 s{S_SO}, s75, {qt*14336 + sp*128}")
                vm.issue(f"buffer_load_dwordx4 v{24+hb}, s[{S_X}:{S_X+3}], s{S_SO} offen{ntx} lds", ("x",))
    if cfg.warm_wq and not cfg.warm2:
        ntwarm = " nt" if cfg.nt_warm else ""
        a(f"v_lshrrev_b32 v{T0}, 5, v{lane}")
        a(f"v_and_b32 v{T1}, 31, v{lane}")
        a(f"v_lshlrev_b32 v{T1}, 4, v{T1}")
        a(f"v_lshl_add_u32 v26, v{T0}, 13, v{T1}")
        a(f"s_mul_i32 s75, s{S_B}, 48")
        a(f"s_lshl_b32 s76, s{S_WID}, 4")
        a("s_add_u32 s75, s75, s76")
        a("s_add_u32 s75, s75, 64")
        a("s_lshl_b32 s75, s75, 13")
        for i in range(8):
            vm.issue(f"buffer_load_dwordx4 {ar(A_DUMMY,4)}, v26, s[{S_WQ}:{S_WQ+3}], s75 offen{ntwarm}", ("warm", i))
            if i < 7: a(f"s_add_u32 s75, s75, {2*8192}")
    emit_setup_late(a, cfg, False)
    g_, i15 = 22, 23
    a(f"v_lshrrev_b32 v{g_}, 4, v{lane}")
    a(f"v_and_b32 v{i15}, 15, v{lane}")
    a(f"v_lshrrev_b32 v26, 1, v{i15}")
    a(f"v_lshrrev_b32 v27, 3, v{i15}")
    a(f"v_and_b32 v28, 7, v{i15}")
    a(f"v_lshlrev_b32 v28, 7, v28")
    a(f"s_mul_i32 s74, s{S_WID}, {XAW}")
    a(f"s_mul_i32 s75, s{S_WID}, {XBW}")
    a(f"s_add_u32 s75, s75, {XBB}")
    a(f"v_lshl_add_u32 v29, v27, 12, v28")
    a(f"v_add_u32 v29, s74, v29")
    a(f"v_mul_u32_u24 v27, 3072, v27")
    a(f"v_add_u32 v27, v27, v28")
    a(f"v_add_u32 v27, s75, v27")
    for e in range(2):
        a(f"v_add_u32 v{T0}, {4*e}, v{g_}")
        a(f"v_xor_b32 v{T0}, v{T0}, v26")
        a(f"v_lshl_add_u32 v{V_XB+e}, v{T0}, 4, v29")
        a(f"v_lshl_add_u32 v{V_XB2+e}, v{T0}, 4, v27")
    for j in range(4):
        a(f"v_add_u32 v{T0}, {4*j}, v{g_}")
        a(f"v_xor_b32 v{T0}, v{T0}, v{i15}")
        a(f"v_lshlrev_b32 v{T0}, 4, v{T0}")
        a(f"v_lshl_add_u32 v{V_KB+j}, v{i15}, 9, v{T0}")
    rp, cc, row, rho = 26, 27, 28, 29
    a(f"v_lshrrev_b32 v{rp}, 2, v{i15}")
    a(f"v_and_b32 v{cc}, 3, v{i15}")
    a(f"v_lshl_add_u32 v{row}, v{g_}, 2, v{rp}")
    a(f"v_and_b32 v{rho}, 7, v{row}")
    a(f"v_lshrrev_b32 v{T0}, 1, v{cc}")
    a(f"v_lshlrev_b32 v{T0}, 4, v{T0}")
    a(f"v_and_b32 v{T1}, 1, v{cc}")
    a(f"v_lshl_add_u32 v{T0}, v{T1}, 3, v{T0}")
    a(f"v_lshl_add_u32 v30, v{row}, 9, v{T0}")
    for j in range(8):
        a(f"v_xor_b32 v{T0}, {j}, v{rho}")
        a(f"v_lshl_add_u32 v{T0}, v{T0}, 5, v30")
        a(f"v_add_u32 v{V_VB+j}, {VREG}, v{T0}")
    a(f"v_lshlrev_b32 v31, 1, v{rho}")
    a(f"v_lshlrev_b32 v30, 9, v{row}")
    for j in range(4):
        a(f"v_add_u32 v{T0}, {4*j}, v{cc}")
        a(f"v_xor_b32 v{T0}, v{T0}, v31")
        a(f"v_lshl_add_u32 v{T0}, v{T0}, 4, v30")
        a(f"v_add_u32 v{V_WB+j}, {WBASE}, v{T0}")
    a(f"s_mov_b32 s{S_THR}, {hex(f2u(cfg.thr))}")

    def wread(s, u, half):
        T = u >> 1
        off = (WRING[s % 4] - WBASE) + (T >> 2) * 256 + (u & 1) * 8 + half * 8192
        r = A_W + 4 * u + 2 * half
        lg.issue(f"ds_read_b64_tr_b16 {ar(r,2)}, v{V_WB + (T & 3)} offset:{off}", ("w", s, u, half))
    def xread(s, qt):
        sp = s >> 1
        if sp < 4:
            off, base = qt * 8192 + sp * 1024, V_XB
        else:
            off, base = qt * 6144 + (sp - 4) * 1024, V_XB2
        lg.issue(f"ds_read_b128 {ar(Xreg(s, qt), 4)}, v{base + (s & 1)} offset:{off}", ("x", s, qt))
    NWP = 6
    n_after = 8 if (cfg.warm_wq and not cfg.warm2) else 0
    a(f"s_waitcnt vmcnt({n_after})")
    for qt in range(3): xread(0, qt)
    for s in range(14):
        a("s_barrier")
        pre_done = s >= 1
        if not pre_done:
            if s == 0: lg.need(("x", 0, 2))
            for u in range(NWP - (2 if s == 0 else 0)):
                wread(s, u, 0); wread(s, u, 1)
        nfirst = NWP - (2 if s == 0 else 0)
        mf = []
        for u in range(16):
            for qt in range(3):
                pre = None
                if qt == 0 and u % 2 == 0:
                    pre = (lambda s=s, u=u: lg.need(("w", s, u + 1, 1)))
                D = v(QAcc(u, qt), 4)
                mf.append((pre, (lambda D=D, s=s, u=u, qt=qt: mfma(a, D, ar(A_W + 4*u, 4), ar(Xreg(s, qt), 4), "0" if s == 0 else None))))
        st = []
        for u in range(nfirst, 16):
            for h in range(2):
                st.append(It((lambda s=s, u=u, h=h: wread(s, u, h)), 4, max(0, 3*(u - NWP) + h), max(0, 3*(u - 3))))
        nxt_pre = (s + 1 <= 13)
        if nxt_pre:
            for u in range(NWP):
                for h in range(2):
                    st.append(It((lambda s=s, u=u, h=h: wread(s + 1, u, h)), 4, 3*(16 + u - NWP) + h))
        streams = [st]
        if s == 0:
            xs = [It((lambda ss=ss, qt=qt: xread(ss, qt)), 4, ((ss - 1)*3 + qt) * 2) for ss in range(1, 8) for qt in range(3)]
            streams.append(xs)
        if s in (cfg.xb_read, cfg.xb_read + 1) and cfg.xb_one == 0:
            lo = 8 + 3*(s - cfg.xb_read)
            xs = [It((lambda ss=ss, qt=qt: xread(ss, qt)), 4, ((ss - lo)*3 + qt) * 5) for ss in range(lo, lo + 3) for qt in range(3)]
            streams.append(xs)
        if s == cfg.xb_read and cfg.xb_one:
            xs = [It((lambda ss=ss, qt=qt: xread(ss, qt)), 4, ((ss - 8)*3 + qt) * 2) for ss in range(8, 14) for qt in range(3)]
            streams.append(xs)
        sched(a, mf, streams)
        if s == 0:
            lg.need(("x", 7, 2))
        if s == cfg.xb_read + (0 if cfg.xb_one else 1):
            lg.need(("x", 13, 2))
    lg.drain()
    if cfg.dump == "qacc":
        emit_dump_v(a, cfg, V_QACC, 192); return
    a(f"s_mov_b32 s74, {hex(f2u(QSCALE))}")
    a(f"s_mov_b32 s75, {hex(f2u(QSCALE))}")
    a(f"v_mov_b32 v{T0}, 0x3f803f80")
    for r in range(4):
        a(f"v_accvgpr_write_b32 a{A_ONES+r}, v{T0}")
    a("s_nop 3")
    for i in range(23, -1, -1):
        src = V_QACC + 8 * i
        dst = V_Q + 4 * i
        for r in range(4):
            a(f"v_pk_mul_f32 {v(src + 2*r, 2)}, {v(src + 2*r, 2)}, s[74:75]")
        for r in range(3, -1, -1):
            a(f"v_cvt_pk_bf16_f32 v{dst + r}, v{src + 2*r}, v{src + 2*r + 1}")
    if cfg.dump == "q":
        emit_dump_v(a, cfg, V_Q, 96); return

    def kread(t, f):
        aa, T = f >> 3, f & 7
        off = KS[t % 4] + aa * 8192 + (T >> 2) * 256
        lg.issue(f"ds_read_b128 {v(V_KBUF + 4*(f % 8), 4)}, v{V_KB + (T & 3)} offset:{off}", ("k", t, f))
    def vread(t, u, half):
        off = (VS[t % 4] - VREG) + (u >> 3) * 256 + half * 8192
        r = V_VBUF + 4 * (u % 8) + 2 * half
        lg.issue(f"ds_read_b64_tr_b16 {v(r,2)}, v{V_VB + (u & 7)} offset:{off}", ("v", t, u, half))

    def exp_items(t):
        par = t & 1
        st = []
        for qt in range(3):
            for aa in range(2):
                s = Sreg(par, qt, aa)
                for hh in range(2):
                    e0, e1 = s + 2*hh, s + 2*hh + 1
                    pr = V_P + qt*4 + aa*2 + hh
                    st.append(It((lambda e=e0: a(f"v_exp_f32 v{e}, v{e}")), 8))
                    st.append(It((lambda e=e1: a(f"v_exp_f32 v{e}, v{e}")), 8))
                    st.append(("cvt", It((lambda pr=pr, e0=e0, e1=e1: a(f"v_cvt_pk_bf16_f32 v{pr}, v{e0}, v{e1}")), 4)))
        exps = [x for x in st if not isinstance(x, tuple)]
        cvts = [x[1] for x in st if isinstance(x, tuple)]
        return exps, cvts

    def phaseA(t):
        jit = t >= cfg.t_jit
        doqk = t + 1 <= 31
        doexp = t >= 0
        if doexp: exps, cvts = exp_items(t)
        if not doqk:
            vq = [(u, h) for u in range(NVP) for h in range(2)] if not jit else []
            if t >= cfg.t_mid:
                for grp in range(12):
                    exps[2*grp].fn(); exps[2*grp+1].fn()
                    if grp > 0: cvts[grp-1].fn()
                a("s_barrier")
                for (u, h) in vq: vread(t, u, h)
                cvts[11].fn()
                return
            for grp in range(12):
                exps[2*grp].fn(); exps[2*grp+1].fn()
                if grp > 0: cvts[grp-1].fn()
                if vq: vread(t, *vq.pop(0))
            a("s_nop 0")
            cvts[11].fn()
            while vq: vread(t, *vq.pop(0))
            return
        par1 = (t + 1) & 1
        mf = []
        for m in range(48):
            aa, T, qt = m // 24, (m % 24) // 3, m % 3
            f = aa * 8 + T
            pre = None
            if qt == 0 and f % 2 == 0:
                pre = (lambda f=f: lg.need(("k", t + 1, f + 1)))
            C = None
            if T == 0: C = "0" if t == -1 else v(V_CM + 4*qt, 4)
            D = v(Sreg(par1, qt, aa), 4)
            mf.append((pre, (lambda D=D, f=f, qt=qt, T=T, C=C: mfma(a, D, v(V_KBUF + 4*(f % 8), 4), v(Qreg(qt, T), 4), C))))
        ks = [It((lambda f=f: kread(t + 1, f)), 4, max(0, 3*(f - 8) + 2), 3*f - 8) for f in range(NKP, 16)]
        streams = [ks]
        if jit:
            for f in range(NKP): kread(t + 1, f)
            npre = cfg.jit_pre
            for g in range(npre):
                exps[2*g].fn(); exps[2*g+1].fn()
                if g > 0: cvts[g-1].fn()
            exps = exps[2*npre:]
            rest = 12 - npre
            step = 46 // rest
            for i, e in enumerate(exps):
                e.earliest = step*(i // 2) + (i & 1); e.deadline = e.earliest
            cv = cvts[npre-1:]
            cv[0].earliest = 0; cv[0].deadline = 1
            for i, c in enumerate(cv[1:]):
                c.earliest = step*i + 2; c.deadline = min(step*i + 5, 47)
            streams = [exps, cv, ks]
        elif doexp:
            for i, e in enumerate(exps):
                e.earliest = 4*(i // 2) + (i & 1); e.deadline = e.earliest
            for i, c in enumerate(cvts):
                c.earliest = 4*i + 2; c.deadline = min(4*i + 5, 47)
            vs = [It((lambda u=u, h=h: vread(t, u, h)), 4, cfg.mid_a + 1 if t >= cfg.t_mid else 26) for u in range(NVP) for h in range(2)]
            streams = [exps, cvts, ks, vs]
            if t >= cfg.t_mid:
                streams = [[It((lambda: a("s_barrier")), 4, cfg.mid_a, cfg.mid_a)]] + streams
        sched(a, mf, streams)

    def phaseB(t, extra=None):
        jit = t >= cfg.t_jit
        first = (t == 0)
        docheck = t + 1 <= 31
        par1 = (t + 1) & 1
        Z = "0" if first else None
        mf = []
        for qt in range(3):
            mf.append((None, (lambda qt=qt: mfma(a, ar(A_L + 4*qt, 4), ar(A_ONES, 4), v(V_P + 4*qt, 4), Z))))
        for m in range(48):
            u, qt = m // 3, m % 3
            pre = None
            if qt == 0 and u % 2 == 0:
                pre = (lambda u=u: lg.need(("v", t, u + 1, 1)))
            mf.append((pre, (lambda u=u, qt=qt: mfma(a, ar(Oreg(u, qt), 4), v(V_VBUF + 4*(u % 8), 4), v(V_P + 4*qt, 4), Z))))
        if jit:
            a("s_barrier")
            for u in range(NVP):
                vread(t, u, 0); vread(t, u, 1)
        vs = []
        for u in range(NVP, 16):
            e = max(0 if u < 8 else 3 + 3*(u - 8) + 2, 3 + 3*(u - NVP - 1))
            for h in range(2):
                vs.append(It((lambda u=u, h=h: vread(t, u, h)), 4, e + h, 3 + 3*u - 9))
        streams = [vs]
        if docheck:
            s0 = V_S[par1]; mx = V_TMP
            chk = [f"v_max3_f32 v{mx}, v{s0}, v{s0+1}, v{s0+2}"]
            for k in range(10):
                chk.append(f"v_max3_f32 v{mx}, v{mx}, v{s0+3+2*k}, v{s0+4+2*k}")
            chk.append(f"v_max_f32 v{mx}, v{mx}, v{s0+23}")
            chk.append(f"v_cmp_lt_f32 vcc, s{S_THR}, v{mx}")
            streams.append([It((lambda c=c: a(c)), 4, (6 + 2*i) if not jit else (i // 2 if i < 6 else 2*i)) for i, c in enumerate(chk)])
        if t + 2 <= 31 and not (t + 1 >= cfg.t_jit):
            if t >= cfg.t_mid:
                streams.insert(0, [It((lambda: a("s_barrier")), 4, cfg.mid_b, cfg.mid_b)])
                streams.append([It((lambda f=f: kread(t + 2, f)), 4, cfg.mid_b + 1 + 2*f) for f in range(NKP)])
            else:
                streams.append([It((lambda f=f: kread(t + 2, f)), 4, 30 + 2*f) for f in range(NKP)])
        if extra: streams += extra
        a("s_nop 1")
        sched(a, mf, streams)

    def check_branch(t, tag):
        a(f"s_cbranch_vccnz L_rare_{tag}")
        a.label(f"L_back_{tag}")
        rare_blocks.append((tag, (t + 1) & 1))

    a("s_barrier")
    for f in range(NKP): kread(0, f)
    phaseA(-1)
    for f in range(NKP): kread(1, f)
    a("s_nop 1")
    for qt in range(3):
        s0 = Sreg(0, qt, 0)
        mx = V_TMP + qt
        a(f"v_max3_f32 v{mx}, v{s0}, v{s0+1}, v{s0+2}")
        a(f"v_max3_f32 v{mx}, v{mx}, v{s0+3}, v{s0+4}")
        a(f"v_max3_f32 v{mx}, v{mx}, v{s0+5}, v{s0+6}")
        a(f"v_max_f32 v{mx}, v{mx}, v{s0+7}")
    for step in range(2):
        for qt in range(3): a(f"v_mov_b32 v{V_TMP+4+qt}, v{V_TMP+qt}")
        a("s_nop 0")
        for qt in range(3):
            a(f"v_permlane{32 if step == 0 else 16}_swap_b32 v{V_TMP+qt}, v{V_TMP+4+qt}")
        a("s_nop 0")
        for qt in range(3): a(f"v_max_f32 v{V_TMP+qt}, v{V_TMP+qt}, v{V_TMP+4+qt}")
    for qt in range(3):
        s0 = Sreg(0, qt, 0); mx = V_TMP + qt
        for r in range(8):
            a(f"v_sub_f32 v{s0+r}, v{s0+r}, v{mx}")
        for r in range(4):
            a(f"v_sub_f32 v{V_CM + 4*qt + r}, 0, v{mx}")
    if cfg.dump == "s0":
        lg.drain()
        emit_dump_v(a, cfg, V_S[0], 24, extra=(V_CM, 12)); return

    def iteration(t, tag):
        if t < cfg.t_mid: a("s_barrier")
        phaseA(t)
        phaseB(t)
        if t + 1 <= 31:
            check_branch(t, tag)

    def loop(t_first, ntrips, name):
        q0 = list(lg.q)
        a(f"s_mov_b32 s{S_CNT}, {ntrips}")
        a.label(name)
        for t in range(t_first, t_first + 4):
            iteration(t, f"{name}_{t}")
        q1 = [(x[0], x[1] - 4) + x[2:] for x in lg.q]
        assert q0 == q1, (q0, q1)
        a(f"s_sub_u32 s{S_CNT}, s{S_CNT}, 1")
        a(f"s_cmp_lg_u32 s{S_CNT}, 0")
        a(f"s_cbranch_scc1 {name}")
        d = 4 * ntrips
        lg.q = [(x[0], x[1] + d) + x[2:] for x in q0]
        for x in lg.q: lg.issued.add(x)
        for f in range(16): lg.issued.add(("k", t_first + d + 1, f))
    iteration(0, "p0")
    tj = cfg.t_jit
    if cfg.t_mid <= 28:
        tm = cfg.t_mid
        assert (tm - 1) % 4 == 0
        if tm > 1:
            save = cfg.t_mid; cfg.t_mid = 99
            loop(1, (tm - 1) // 4, "L_loop")
            cfg.t_mid = save
        loop(tm, (29 - tm) // 4, "L_loopm")
    elif tj > 28:
        loop(1, 7, "L_loop")
    else:
        assert (tj - 1) % 4 == 0 and (29 - tj) % 4 == 0
        if tj > 1:
            save = cfg.t_jit; cfg.t_jit = 99
            loop(1, (tj - 1) // 4, "L_loop")
            cfg.t_jit = save
        lg.drain()
        loop(tj, (29 - tj) // 4, "L_loopj")
    a.label("L_tail_code")
    for t in range(29, 31):
        iteration(t, f"e{t}")

    def oconv_items(T, earliest=0):
        its = []
        for qt in range(3):
            tb = V_CT + 8 * qt
            for h in range(2):
                o = Oreg(2*T + h, qt)
                for r in range(4):
                    its.append(It((lambda d=tb + 4*h + r, s=o + r: a(f"v_accvgpr_read_b32 v{d}, a{s}")), 4, earliest))
            q = Qreg(qt, T)
            for r in range(4):
                its.append(It((lambda d=q + r, s=tb + 2*r: a(f"v_cvt_pk_bf16_f32 v{d}, v{s}, v{s+1}")), 4, earliest))
        return its

    def wo_base(j, jj):
        addr = WOSLOT[j]
        if addr < VREG: return VBK + jj, addr
        if addr < VREG + 65536: return V_VB + jj, addr - VREG
        return VBE + jj, addr - VREG - 65536
    steps = []
    fine = cfg.fine
    NP = 7 if fine else 4
    if fine:
        for p in range(7):
            for T in range(8):
                steps.append((p, T, 2*p + T//4, T & 3, 4))
    else:
        for p in range(3):
            for T in range(8):
                steps.append((p, T, 4*p + T//2, T & 1, 8))
        for T in range(8):
            steps.append((3, T, 12 + T//4, T & 3, 4))
    frs = []
    for si, (p, T, j, tau, nu) in enumerate(steps):
        for u in range(nu):
            frs.append((si, p, T, j, tau, nu, u))
    FBN = 12
    def oread(k, half):
        si, p, T, j, tau, nu, u = frs[k]
        tp = (8*tau + u) if nu == 8 else (4*tau + u)
        br, off = wo_base(j, tp & 7)
        off += (tp >> 3) * 256 + half * 8192
        r = A_WO + 4 * (k % FBN) + 2 * half
        lg.issue(f"ds_read_b64_tr_b16 {ar(r,2)}, v{br} offset:{off}", ("o", k, half))
    def accreg(p, u, qt):
        i = (u * 3 + qt) * 4
        if fine: return ("v", V_P0 + 48 * (p & 1) + i)
        if p == 0 or p == 2: return ("v", V_P0 + i)
        return ("a", i)
    def accstr(p, u, qt):
        f, r = accreg(p, u, qt)
        return v(r, 4) if f == "v" else ar(r, 4)
    slotc = [0]
    slog = []
    scale_red = cfg.fused and cfg.scale_red
    def conv_items(p, packed=False):
        its = []
        nu = 8 if (p < 3 and not fine) else 4
        for up in range(nu // 2):
            for qt in range(3):
                rl = V_RL + qt * 0
                rlp = f"v[{V_RL + 2*qt}:{V_RL + 2*qt + 1}]"
                f, _ = accreg(p, 0, 0)
                tb = V_CT + 12 * (slotc[0] % 2); slotc[0] += 1
                out = tb + 8
                if f == "a":
                    for h in range(2):
                        o = accreg(p, 2*up + h, qt)[1]
                        for r in range(4):
                            its.append(It((lambda d=tb + 4*h + r, s=o + r: a(f"v_accvgpr_read_b32 v{d}, a{s}"))))
                    srcs = [tb + 2*r for r in range(4)]
                else:
                    o0 = accreg(p, 2*up, qt)[1]; o1 = accreg(p, 2*up + 1, qt)[1]
                    srcs = [o0, o0 + 2, o1, o1 + 2]
                for sreg in (srcs if not scale_red else []):
                    if packed:
                        its.append(It((lambda s=sreg, rlp=rlp: a(f"v_pk_mul_f32 {v(s,2)}, {v(s,2)}, {rlp}"))))
                    else:
                        for k in range(2):
                            its.append(It((lambda s=sreg + k, qt=qt: a(f"v_mul_f32 v{s}, v{V_RL + 2*qt}, v{s}"))))
                for r, sreg in enumerate(srcs):
                    its.append(It((lambda d=out + r, s=sreg: a(f"v_cvt_pk_bf16_f32 v{d}, v{s}, v{s+1}"))))
                upair = (2*p if fine else 4*p) + up
                its.append(It((lambda c=(qt*14 + upair)*1024: a(f"s_add_u32 s{S_SO}, s{S_WOFF}, {c}")), 4))
                its.append(It((lambda o=out, p=p: (a(f"buffer_store_dwordx4 {v(o,4)}, v{V_ST}, s[{S_WS}:{S_WS+3}], s{S_SO} offen{cfg.st_flags}"), slog.append(p))), 4))
        return its

    def cstamp(i):
        if cfg.stamps and cfg.cstamps:
            lg.drain()
            a("s_memrealtime s[62:63]")
            a("s_waitcnt lgkmcnt(0)")
            a(f"v_writelane_b32 v7, s62, {i}")
    svm = Vm(a)
    def signal_a(p, nafter):
        a(f"s_waitcnt vmcnt({nafter})")
        a("s_mov_b64 exec, 1")
        lg.issue(f"ds_add_rtn_u32 v6, v4, v5 offset:{4*p}", ("sig", p))
        a("s_mov_b64 exec, -1")
    def signal_b(p):
        lg.need(("sig", p))
        a("v_readfirstlane_b32 s90, v6")
        a("s_nop 3")
        a("s_cmp_eq_u32 s90, 2")
        a(f"s_cbranch_scc0 L_nosig{p}")
        a("s_mov_b64 exec, 1")
        a(f"s_mov_b32 s88, {4096*p}")
        a(f"buffer_atomic_add v5, off, s[84:87], s88")
        a("s_mov_b64 exec, -1")
        a.label(f"L_nosig{p}")
    if 31 < cfg.t_mid: a("s_barrier")
    phaseA(31)
    setup_its = []
    for j in range(8):
        setup_its.append(It((lambda j=j: a(f"v_subrev_u32 v{VBK+j}, {VREG}, v{V_VB+j}")), 4, 0))
        setup_its.append(It((lambda j=j: a(f"v_add_u32 v{VBE+j}, {VREG}, v{V_VB+j}")), 4, 0))
    NOP_ = cfg.nop
    ex1 = oconv_items(0, earliest=3 + 3*1 + 2 + 8)
    ex2 = oconv_items(1, earliest=3 + 3*3 + 2 + 8)
    pre_o = [It((lambda k=k, h=h: oread(k, h)), 4, 42) for k in range(NOP_) for h in range(2)]
    phaseB(31, extra=[setup_its, ex1 + ex2, pre_o])
    if cfg.dump == "o":
        a("s_nop 7")
        emit_dump_acc(a, cfg, 204); return
    a(f"v_lshlrev_b32 v{V_ST}, 4, v{lane}")
    a(f"s_mul_i32 s{S_WOFF}, s{S_WID}, {3*14*1024}")
    for qt in range(3):
        a(f"v_accvgpr_read_b32 v{V_RL+2*qt}, a{A_L + 4*qt}")
    for qt in range(3):
        a(f"v_rcp_f32 v{V_RL+2*qt}, v{V_RL+2*qt}")
    a("s_nop 0")
    for qt in range(3):
        a(f"v_mov_b32 v{V_RL+2*qt+1}, v{V_RL+2*qt}")
    if cfg.fused:
        a(f"v_mov_b32 v4, {VS[0]}")
        a("v_mov_b32 v5, 1")
        emit_red_setup(a, cfg)
    if scale_red:
        a(f"v_and_b32 v6, 15, v{lane}")
        a("v_lshlrev_b32 v6, 6, v6")
        a(f"s_mul_i32 s90, s{S_WID}, 3072")
        a(f"s_lshl_b32 s91, s{S_H}, 2")
        a("s_add_u32 s90, s90, s91")
        a("s_mov_b64 exec, 0xffff")
        for qt in range(3):
            a(f"buffer_store_dword v{V_RL+2*qt}, v6, s[64:67], s90 offen offset:{1024*qt}{cfg.st_flags}")
            slog.append(-1)
        a("s_mov_b64 exec, -1")

    cur_slot = -1
    nxt = NOP_
    pend = []
    store_log = slog
    stores_since = {q: (lambda q=q: sum(1 for i, x in enumerate(store_log) if i > max(k for k, y in enumerate(store_log) if y == q))) for q in range(NP)}
    sg0 = (3, cfg.sig_f0, 1) if fine else (2, cfg.sig_t, 0)
    sg1 = (5, cfg.sig_f1, 3) if fine else (3, cfg.sig_t1, 1)
    for si, (p, T, j, tau, nu) in enumerate(steps):
        if j != cur_slot:
            if j < ntb(cfg): a("s_barrier")
            cur_slot = j
        if T == 0 and not fine: cstamp(p)
        if cfg.fused and p == sg0[0] and T == sg0[1]:
            signal_a(0, stores_since[sg0[2]]())
            cstamp(4)
        if cfg.fused and p == sg0[0] and T == sg0[1] + 1:
            signal_b(0)
        if cfg.fused and p == sg1[0] and T == sg1[1]:
            cstamp(5)
            signal_a(1, stores_since[sg1[2]]())
            cstamp(6)
        if cfg.fused and p == sg1[0] and T == sg1[1] + 1:
            signal_b(1)
        k0 = sum(s[4] for s in steps[:si])
        if T == 0 and p > 0:
            assert not pend
            pend = conv_items(p - 1)
            for it in pend[:1]: pass
        mf = []
        for u in range(nu):
            k = k0 + u
            for qt in range(3):
                pre = None
                if qt == 0 and u % 2 == 0:
                    pre = (lambda k=k: lg.need(("o", k + 1, 1)))
                mf.append((pre, (lambda u=u, qt=qt, k=k: mfma(a, accstr(p, u, qt), ar(A_WO + 4*(k % FBN), 4), v(Qreg(qt, T), 4), "0" if T == 0 else None))))
        rs = []
        lim = k0 + nu + NOP_
        while nxt < len(frs) and nxt < lim and frs[nxt][3] <= j + 1:
            kk = nxt
            use = 3 * (kk - k0)
            e = max(0, 3 * (kk - FBN - k0) + 2)
            for h in range(2):
                rs.append(It((lambda kk=kk, h=h: oread(kk, h)), 4, max(e, use - 3*NOP_ - 3), max(0, use - 10)))
            nxt += 1
        streams = [rs]
        if p == 0 and T + 2 <= 7:
            streams.append(oconv_items(T + 2))
        if pend:
            if T == 0:
                for it in pend: it.earliest = 4
            streams.append(pend)
            last_of_pass = (T == 7)
            sched(a, mf, [rs] + [pend], flush=False)
            while rs: rs.pop(0).fn()
            if last_of_pass:
                while pend: pend.pop(0).fn()
            for it in pend: it.earliest = 0
        else:
            sched(a, mf, streams)
    cstamp(7)
    a("s_nop 7")
    for it in conv_items(NP - 1, packed=True): it.fn()
    cstamp(8)
    a.label("L_tail_end")
    print("lds throttles:", lg.throttled, file=sys.stderr)
    if cfg.fused:
        signal_a(2, 0); cstamp(9); signal_b(2)
        if cfg.decouple: emit_poll(a, cfg, 2)
        else: a("s_barrier")
        cstamp(10)
        emit_final_reduce(a, cfg)
        if cfg.stamps and cfg.cstamps:
            a("s_waitcnt vmcnt(0)")
            cstamp(11)
            a("s_mov_b32 s76, s72"); a("s_mov_b32 s77, s73")
            a("s_mov_b32 s78, 0x10000000"); a("s_mov_b32 s79, 0x20000")
            a("s_mul_i32 s74, s2, 3")
            a(f"s_add_u32 s74, s74, s{S_WID}")
            a("s_lshl_b32 s74, s74, 8")
            a("s_add_u32 s74, s74, 0x4400000")
            a(f"v_lshlrev_b32 v6, 2, v{V_LANE}")
            a("buffer_store_dword v7, v6, s[76:79], s74 offen")
    elif cfg.stamps:
        a("s_waitcnt vmcnt(0)")
        a("s_barrier")
    a("s_branch L_end")

def emit_rare(a, cfg, rare_blocks):
    for tag, par in rare_blocks:
        a.label(f"L_rare_{tag}")
        a("s_nop 7")
        for qt in range(3):
            s0 = Sreg(par, qt, 0)
            mx = V_TMP + qt
            a(f"v_max3_f32 v{mx}, v{s0}, v{s0+1}, v{s0+2}")
            a(f"v_max3_f32 v{mx}, v{mx}, v{s0+3}, v{s0+4}")
            a(f"v_max3_f32 v{mx}, v{mx}, v{s0+5}, v{s0+6}")
            a(f"v_max_f32 v{mx}, v{mx}, v{s0+7}")
            xlane_max(a, mx, V_TMP + 4)
            a(f"v_max_f32 v{mx}, 0, v{mx}")
            for r in range(8):
                a(f"v_sub_f32 v{s0+r}, v{s0+r}, v{mx}")
            for r in range(4):
                a(f"v_sub_f32 v{V_CM + 4*qt + r}, v{V_CM + 4*qt + r}, v{mx}")
            a(f"v_sub_f32 v{mx}, 0, v{mx}")
            a(f"v_exp_f32 v{mx}, v{mx}")
        a(f"s_getpc_b64 s[{S_TGT}:{S_TGT+1}]")
        a.label(f"L_pc_{tag}")
        a(f"s_add_u32 s{S_TGT}, s{S_TGT}, L_rescale-L_pc_{tag}")
        a(f"s_addc_u32 s{S_TGT+1}, s{S_TGT+1}, 0")
        a(f"s_swappc_b64 s[{S_RET}:{S_RET+1}], s[{S_TGT}:{S_TGT+1}]")
        a(f"s_branch L_back_{tag}")
    if not rare_blocks: return
    a.label("L_rescale")
    a("s_nop 7")
    for qt in range(3):
        regs = [Oreg(u, qt) + r for u in range(16) for r in range(4)] + [A_L + 4*qt + r for r in range(4)]
        for i in range(0, len(regs), 4):
            for k in range(4):
                a(f"v_accvgpr_read_b32 v{V_TMP+4+k}, a{regs[i+k]}")
            for k in range(4):
                a(f"v_mul_f32 v{V_TMP+4+k}, v{V_TMP+qt}, v{V_TMP+4+k}")
            for k in range(4):
                a(f"v_accvgpr_write_b32 a{regs[i+k]}, v{V_TMP+4+k}")
    a("s_nop 1")
    a(f"s_setpc_b64 s[{S_RET}:{S_RET+1}]")

def emit_dump_common(a, cfg, regs, isacc):
    a("s_mov_b32 s76, s72"); a("s_mov_b32 s77, s73")
    a("s_mov_b32 s78, 0x10000000"); a("s_mov_b32 s79, 0x20000")
    a(f"s_mul_i32 s74, s2, 3")
    a(f"s_add_u32 s74, s74, s{S_WID}")
    a("s_lshl_b32 s74, s74, 16")
    a(f"v_lshlrev_b32 v{V_T0}, 2, v{V_LANE}")
    for i, r in enumerate(regs):
        if isacc:
            a(f"v_accvgpr_read_b32 v{V_T1}, a{r}")
            src = V_T1
        else:
            src = r
        a(f"buffer_store_dword v{src}, v{V_T0}, s[76:79], s74 offen")
        a("s_add_u32 s74, s74, 256")
        if isacc: a("s_waitcnt vmcnt(0)")
    a("s_waitcnt vmcnt(0)")
    n = {"qacc": 33 + 14, "q": 33 + 14, "s0": 32 + 14, "o": 14}[cfg.dump]
    for _ in range(n): a("s_barrier")
    if cfg.stamps: a("s_barrier")
    a.label("L_tail_end")
    if cfg.dump != "o": a.label("L_tail_code")
    a("s_branch L_end")
def emit_dump_acc(a, cfg, n):
    a("s_nop 7")
    emit_dump_common(a, cfg, list(range(n)), True)
def emit_dump_v(a, cfg, base, n, extra=None):
    regs = list(range(base, base + n))
    if extra: regs += list(range(extra[0], extra[0] + extra[1]))
    emit_dump_common(a, cfg, regs, False)

def emit_reduce(a, cfg):
    a.raw(f".globl {RNAME}")
    a.raw(".p2align 8")
    a.raw(f".type {RNAME},@function")
    a.label(RNAME)
    a("s_cmp_ge_u32 s2, 504")
    a("s_cbranch_scc1 LR_end")
    a("s_load_dwordx2 s[4:5], s[0:1], 96")
    a("s_load_dwordx2 s[8:9], s[0:1], 80")
    a("v_lshrrev_b32 v1, 6, v0")
    a("v_and_b32 v2, 63, v0")
    a("v_readfirstlane_b32 s3, v1")
    a("s_lshl_b32 s12, s2, 2")
    a("s_add_u32 s12, s12, s3")
    a(f"s_mul_hi_u32 s13, s12, {(2**32 + 125)//126}")
    a("s_mul_i32 s14, s13, 126")
    a("s_sub_u32 s14, s12, s14")
    a(f"s_mul_hi_u32 s15, s14, {(2**32 + 13)//14}")
    a("s_mul_i32 s16, s15, 14")
    a("s_sub_u32 s16, s14, s16")
    a("s_waitcnt lgkmcnt(0)")
    a(f"s_mul_i32 s17, s13, {16*129024}")
    a("s_lshl_b32 s18, s14, 10")
    a("s_add_u32 s17, s17, s18")
    a("s_add_u32 s4, s4, s17")
    a("s_addc_u32 s5, s5, 0")
    a(f"s_mov_b32 s6, {15*129024 + 1024}")
    a("s_mov_b32 s7, 0x20000")
    a("v_lshlrev_b32 v3, 4, v2")
    for h in range(16):
        a(f"s_mov_b32 s19, {h*129024}")
        a(f"buffer_load_dwordx4 v[{8+4*h}:{11+4*h}], v3, s[4:7], s19 offen{cfg.rd_flags}")
    a("s_and_b32 s20, s13, 7")
    a("s_lshr_b32 s21, s13, 3")
    a("s_mul_i32 s20, s20, 144")
    a("s_lshl_b32 s22, s15, 4")
    a("s_add_u32 s20, s20, s22")
    a("s_mul_i32 s20, s20, 1792")
    a("s_mul_i32 s21, s21, 896")
    a("s_lshl_b32 s22, s16, 6")
    a("s_add_u32 s20, s20, s21")
    a("s_add_u32 s20, s20, s22")
    a("v_and_b32 v4, 15, v2")
    a("v_mul_u32_u24 v4, 1792, v4")
    a("v_lshrrev_b32 v5, 4, v2")
    a("v_lshl_add_u32 v4, v5, 3, v4")
    a("s_mov_b32 s10, %d" % (8*144*896*2))
    a("s_mov_b32 s11, 0x20000")
    for h in range(16):
        a(f"s_waitcnt vmcnt({15-h})")
        for r in range(4):
            src = 8 + 4*h + r
            if h == 0:
                a(f"v_lshlrev_b32 v{72+2*r}, 16, v{src}")
                a(f"v_and_b32 v{73+2*r}, 0xffff0000, v{src}")
            else:
                a(f"v_lshlrev_b32 v80, 16, v{src}")
                a(f"v_and_b32 v81, 0xffff0000, v{src}")
                a(f"v_add_f32 v{72+2*r}, v{72+2*r}, v80")
                a(f"v_add_f32 v{73+2*r}, v{73+2*r}, v81")
    for r in range(4):
        a(f"v_cvt_pk_bf16_f32 v{84+r}, v{72+2*r}, v{73+2*r}")
    a("buffer_store_dwordx2 v[84:85], v4, s[8:11], s20 offen")
    a("buffer_store_dwordx2 v[86:87], v4, s[8:11], s20 offen offset:32")
    a.label("LR_end")
    a("s_endpgm")

def kd(a, name, vg, acc, sg=102):
    a.raw(f".amdhsa_kernel {name}")
    a.raw(f"  .amdhsa_next_free_vgpr {vg}")
    a.raw(f"  .amdhsa_next_free_sgpr {sg}")
    a.raw(f"  .amdhsa_accum_offset {acc}")
    a.raw("  .amdhsa_group_segment_fixed_size 0")
    a.raw("  .amdhsa_kernarg_size 104")
    a.raw("  .amdhsa_user_sgpr_count 2")
    a.raw("  .amdhsa_user_sgpr_kernarg_segment_ptr 1")
    a.raw("  .amdhsa_system_sgpr_workgroup_id_x 1")
    a.raw(".end_amdhsa_kernel")

HEADER = """; Fused MHA block (two branches): Q-proj + flash attention + partial out-proj per (branch,batch,head) workgroup,
"""
def generate(cfg):
    a = Asm()
    a.raw(HEADER.rstrip())
    if cfg.fused and not cfg.aslist:
        a.raw(f"; @launch grid=(256,1,1) block=(256,1,1) lds=163840")
    else:
        a.raw(f"; @launch kernel={KNAME} grid=(256,1,1) block=(256,1,1) lds=163840")
    if not cfg.dump and not cfg.fused:
        a.raw(f"; @launch kernel={RNAME} grid=(504,1,1) block=(256,1,1) lds=0")
    a.raw('.amdgcn_target "amdgcn-amd-amdhsa--gfx950"')
    a.raw(".text")
    a.raw(f".globl {KNAME}")
    a.raw(".p2align 8")
    a.raw(f".type {KNAME},@function")
    a.label(KNAME)
    emit_setup(a, cfg)
    rare = []
    if cfg.fast_start:
        head = a.L; a.L = []
        early, late = emit_loader(a, cfg)
        a.L = []
        a.label("L_compute")
        emit_compute_main(a, cfg, rare)
        a.L = head + early + a.L + late
    else:
        emit_compute_main(a, cfg, rare)
        emit_loader(a, cfg)
    a.label("L_code_end")
    emit_rare(a, cfg, rare)
    a.label("L_end")
    a("s_endpgm")
    if not cfg.dump and not cfg.fused:
        emit_reduce(a, cfg)
    a.raw('.section .rodata,"a"')
    a.raw(".p2align 6")
    kd(a, KNAME, 512, 256)
    if not cfg.dump and not cfg.fused:
        a.raw(".p2align 6")
        kd(a, RNAME, 96, 96, 32)
    return a.text()

if __name__ == "__main__":
    cfg = Cfg()
    out = sys.argv[1]
    for kv in sys.argv[2:]:
        k, val = kv.split("=", 1)
        cur = getattr(cfg, k)
        if isinstance(cur, bool): val = val in ("1", "True", "true")
        elif isinstance(cur, float): val = float(val)
        elif isinstance(cur, int): val = int(val)
        elif val == "None": val = None
        setattr(cfg, k, val)
    open(out, "w").write(generate(cfg))
```

```python
import sys, math, struct, re

KNAME = "concat_heads__mha_block_cached__mha_block_cached__near_ridge_kernel"
RNAME = "reduce_kernel"

class Asm:
    def __init__(self):
        self.L = []
    def __call__(self, s):
        self.L.append("    " + s)
    def label(self, s):
        self.L.append(s + ":")
    def raw(self, s):
        self.L.append(s)
    def text(self):
        return "\n".join(self.L) + "\n"

class Lgkm:
    def __init__(self, a):
        self.a = a; self.q = []; self.issued = set(); self.throttled = 0
    def issue(self, ins, tag):
        if len(self.q) >= 15:
            self.a("s_waitcnt lgkmcnt(14)"); self.q = self.q[len(self.q) - 14:]; self.throttled += 1
        self.a(ins); self.q.append(tag); self.issued.add(tag)
    def need(self, tag):
        assert tag in self.issued, ("not issued", tag)
        if tag in self.q:
            idx = len(self.q) - 1 - self.q[::-1].index(tag)
            n = len(self.q) - 1 - idx
            self.a(f"s_waitcnt lgkmcnt({n})")
            self.q = self.q[idx + 1:]
    def drain(self):
        if self.q:
            self.a("s_waitcnt lgkmcnt(0)")
            self.q = []

class Vm:
    def __init__(self, a):
        self.a = a; self.q = []
    def room(self, n):
        over = len(self.q) + n - 63
        if over > 0:
            keep = len(self.q) - over
            self.a(f"s_waitcnt vmcnt({keep})")
            self.q = self.q[over:]
    def issue(self, ins, tag):
        assert len(self.q) < 63
        self.a(ins); self.q.append(tag)
    def need(self, tag):
        if tag in self.q:
            idx = len(self.q) - 1 - self.q[::-1].index(tag)
            n = len(self.q) - 1 - idx
            self.a(f"s_waitcnt vmcnt({n})")
            self.q = self.q[idx + 1:]

class It:
    def __init__(self, fn, cost=4, earliest=0, deadline=10**9, ds=False):
        self.fn, self.cost, self.earliest, self.deadline, self.ds = fn, cost, earliest, deadline, ds
ONE_DS = [True]

def sched(a, mf, streams, budget=8, flush=True):
    n = len(mf)
    for m, (pre, emit) in enumerate(mf):
        if pre: pre()
        emit()
        b = budget
        if m + 1 < n and mf[m + 1][0] is not None: b -= 4
        nds = 0
        for st in streams:
            while st and st[0].deadline <= m:
                it = st.pop(0); it.fn(); b -= it.cost; nds += it.ds
        for st in streams:
            while st and st[0].earliest <= m and st[0].cost <= b and not (st[0].ds and nds >= 1 and ONE_DS[0]):
                it = st.pop(0); it.fn(); b -= it.cost; nds += it.ds
    if flush:
        prog = True
        while any(streams):
            for st in streams:
                if st:
                    it = st.pop(0); it.fn()

def v(n, cnt=1):
    return f"v{n}" if cnt == 1 else f"v[{n}:{n+cnt-1}]"
def ar(n, cnt=1):
    return f"a{n}" if cnt == 1 else f"a[{n}:{n+cnt-1}]"
def f2u(x): return struct.unpack("<I", struct.pack("<f", x))[0]

V_LANE = 1
V_T0, V_T1 = 2, 3
V_KB = 4
V_VB = 8
V_TMP = 16
V_S = [24, 48]
V_P = 72
V_CM = 84
V_KBUF = 96
V_VBUF = 128
V_Q = 160
A_O = 0
A_L = 192
A_ONES = 204
A_X = 0
A_W = 168
A_DUMMY = 232
V_QACC = 64
V_WB = 16
V_XB = 20
V_XB2 = 24
A_WO = 208
V_P0 = 64
VBK, VBE = 24, 32
V_RL = 16
V_ST = 22
V_CT = 40

def Qreg(qt, T): return V_Q + (qt * 8 + T) * 4
def Xreg(s, qt): return A_X + (s * 3 + qt) * 4
def QAcc(u, qt): return V_QACC + (qt * 8 + (u >> 1)) * 8 + 4 * (u & 1)
def Oreg(u, qt): return A_O + (u * 3 + qt) * 4
def Sreg(par, qt, a): return V_S[par] + (qt * 2 + a) * 4

KS = [i * 16384 for i in range(4)]
VREG = 65536
VS = [VREG + i * 16384 for i in range(4)]
ES = [131072, 147456]
WRING = [ES[0], ES[1], VS[2], VS[3]]
WBASE = VS[2]
XW = 43008
XAW = 24576
XBB = 32768
XBW = 18432
WOSLOT = [ES[0], ES[1], KS[0], KS[1], VS[0], KS[2], VS[1], KS[3], VS[2], VS[3], ES[0], ES[1], KS[0], KS[1]]

S_WID = 3
S_X, S_K, S_V, S_WQ, S_WO, S_WS = 4, 8, 12, 16, 20, 24
S_B, S_H, S_BR, S_THR = 28, 29, 30, 31
S_SO, S_SO2, S_CNT = 32, 33, 34
S_RET, S_TGT = 36, 38
S_WOFF = 40
S_PC = 56
S_TS = 60

SLST = [4, 6, 8, 10, 12, 14, 16, 18, 20, 22, 48, 50, 52, 54, 56]
QSCALE = math.log2(math.e) / 16.0
SCL_OFF = 0x2200000
CNT_OFF = 0x2100000

class Cfg:
    nt_kv = True
    nt_w = False
    nt_x = False
    nt_wo = False
    nt_warm = False
    st_flags = " sc0 sc1"
    rd_flags = " sc0 sc1"
    warm_wq = True
    warm_wo = False
    code_pf = True
    thr = 8.0
    dump = None
    stamps = False
    kvsched = "g"
    fused = True
    poll_flags = " sc1"
    out_flags = ""
    aslist = False
    sig_t = 0
    merge0 = False
    slot_stamps = False
    lstamps = True
    cst_all = False
    xst_early = False
    fine = True
    sig_f0 = 2
    sig_f1 = 2
    t_jit = 99
    t_mid = 13
    mid_a = 26
    mid_b = 30
    jit_pre = 4
    fast_start = True
    warm2 = False
    xbsched = "b"
    xb_read = 4
    xb_one = 1
    wr_pace = 0
    wr_spread = 10
    map_odd = False
    cstamps = False
    stagger = 0
    ncls = 4
    cls_mode = "b"
    stag_tmax = 31
    scale_red = True
    decouple = True
    nop = 6
    dbg_stamps = -1
    wo_reg0 = 9
    wo_reg_t0 = 14
    warm_t0 = 18
    poll_sleep = 2
    sig_t1 = 2
    nkp = 8
    nvp = 4

def emit_setup(a, cfg):
    a("s_cmp_ge_u32 s2, 256")
    a("s_cbranch_scc1 L_end")
    if cfg.stamps:
        a(f"s_memrealtime s[{S_TS}:{S_TS+1}]")
    a("s_load_dwordx4 s[44:47], s[0:1], 0")
    a("s_load_dwordx4 s[48:51], s[0:1], 16")
    a("s_load_dwordx2 s[54:55], s[0:1], 40")
    a("s_load_dwordx4 s[68:71], s[0:1], 64")
    a("s_load_dwordx2 s[52:53], s[0:1], 32")
    a("s_load_dwordx4 s[64:67], s[0:1], 48")
    a("s_load_dwordx2 s[72:73], s[0:1], 96")
    a("s_load_dwordx4 s[80:83], s[0:1], 80")
    a(f"v_lshrrev_b32 v{V_T0}, 6, v0")
    a(f"v_and_b32 v{V_LANE}, 63, v0")
    a(f"v_readfirstlane_b32 s{S_WID}, v{V_T0}")
    a("s_lshr_b32 s75, s2, 3")
    if cfg.code_pf and cfg.fast_start:
        a(f"s_getpc_b64 s[{S_PC}:{S_PC+1}]")
        a.label("L_pc_entry")
        a(f"s_sub_u32 s{S_PC}, s{S_PC}, L_pc_entry-{KNAME}")
        a(f"s_subb_u32 s{S_PC+1}, s{S_PC+1}, 0")
        a(f"s_mov_b32 s{S_PC+2}, L_code_end-{KNAME}")
        a(f"s_mov_b32 s{S_PC+3}, 0x20000")
        a(f"v_lshlrev_b32 v4, 4, v{V_LANE}")
        a("s_lshl_b32 s76, s75, 2")
        a(f"s_add_u32 s76, s76, s{S_WID}")
        a("s_lshl_b32 s76, s76, 10")
        a(f"buffer_load_dwordx4 a[236:239], v4, s[{S_PC}:{S_PC+3}], s76 offen")
    a("s_and_b32 s74, s2, 7")
    if cfg.map_odd:
        a(f"s_and_b32 s{S_BR}, s74, 1")
        a("s_lshr_b32 s76, s74, 1")
    else:
        a(f"s_lshr_b32 s{S_BR}, s74, 2")
        a("s_and_b32 s76, s74, 3")
    a("s_lshl_b32 s76, s76, 2")
    a("s_and_b32 s77, s75, 3")
    a(f"s_add_u32 s{S_H}, s76, s77")
    a(f"s_lshr_b32 s{S_B}, s75, 2")
    if not cfg.fast_start: emit_ptrs(a, cfg)
    a(f"s_cmp_eq_u32 s{S_WID}, 3")
    if cfg.fast_start: a("s_cbranch_scc0 L_compute")
    else: a("s_cbranch_scc1 L_loader")

def emit_ptrs(a, cfg):
    a(f"s_mul_i32 s78, s{S_B}, 129024")
    a(f"s_lshl_b32 s79, s{S_H}, 9")
    a(f"s_mov_b32 s{S_X+2}, 129024")
    a(f"s_mov_b32 s{S_X+3}, 0x20000")
    a(f"s_sub_u32 s{S_WQ+2}, {448*8192}, s79")
    a(f"s_mov_b32 s{S_WQ+3}, 0x20000")
    a("s_waitcnt lgkmcnt(0)")
    a(f"s_cmp_eq_u32 s{S_BR}, 0")
    a(f"s_cselect_b32 s{S_X}, s44, s54")
    a(f"s_cselect_b32 s{S_X+1}, s45, s55")
    a(f"s_cselect_b32 s{S_WQ}, s50, s68")
    a(f"s_cselect_b32 s{S_WQ+1}, s51, s69")
    a(f"s_cselect_b32 s{S_K}, s46, s64")
    a(f"s_cselect_b32 s{S_K+1}, s47, s65")
    a(f"s_cselect_b32 s{S_V}, s48, s66")
    a(f"s_cselect_b32 s{S_V+1}, s49, s67")
    a(f"s_cselect_b32 s{S_WO}, s52, s70")
    a(f"s_cselect_b32 s{S_WO+1}, s53, s71")
    a(f"s_add_u32 s{S_X}, s{S_X}, s78")
    a(f"s_addc_u32 s{S_X+1}, s{S_X+1}, 0")
    a(f"s_add_u32 s{S_WQ}, s{S_WQ}, s79")
    a(f"s_addc_u32 s{S_WQ+1}, s{S_WQ+1}, 0")

def emit_setup_late(a, cfg, loader):
    a(f"s_lshl_b32 s74, s{S_B}, 4")
    a(f"s_add_u32 s74, s74, s{S_H}")
    if loader:
        a("s_lshl_b32 s75, s74, 19")
        for S in (S_K, S_V):
            a(f"s_add_u32 s{S}, s{S}, s75")
            a(f"s_addc_u32 s{S+1}, s{S+1}, 0")
            a(f"s_mov_b32 s{S+2}, 524288")
            a(f"s_mov_b32 s{S+3}, 0x20000")
        a(f"s_mul_i32 s75, s{S_H}, {256*896}")
        a(f"s_add_u32 s{S_WO}, s{S_WO}, s75")
        a(f"s_addc_u32 s{S_WO+1}, s{S_WO+1}, 0")
        a(f"s_mov_b32 s{S_WO+2}, {256*896}")
        a(f"s_mov_b32 s{S_WO+3}, 0x20000")
    else:
        a(f"s_lshl_b32 s75, s{S_BR}, 7")
        a("s_add_u32 s74, s74, s75")
        a("s_mul_i32 s74, s74, 129024")
        a(f"s_add_u32 s{S_WS}, s72, s74")
        a(f"s_addc_u32 s{S_WS+1}, s73, 0")
        a(f"s_mov_b32 s{S_WS+2}, 129024")
        a(f"s_mov_b32 s{S_WS+3}, 0x20000")

def ntb(cfg): return 9 if (cfg.fused and not cfg.dump) else 14
def barrier_list(cfg):
    L = [("PB", s) for s in range(14)]
    for t in range(-1, 32):
        if t >= cfg.t_mid:
            L.append(("MB", t))
            if t + 2 <= 31: L.append(("MA", t))
            continue
        L.append(("B", t))
        if t >= cfg.t_jit: L.append(("BB", t))
    L += [("TB", j) for j in range(ntb(cfg))]
    return L

XBSCHED = {"a": {1: [0], 2: [1], 3: [2]}, "b": {1: [0, 1], 2: [2]}, "c": {1: [0, 1, 2]}}
KVSCHED = {
    "f": {3: [("K", 0)], 4: [("K", 1)], 6: [("K", 2)], 7: [("V", 0)], 8: [("K", 3)], 9: [("V", 1)], 11: [("V", 2)], 12: [("V", 3)]},
    "g": {2: [("K", 0)], 3: [("K", 1)], 5: [("K", 2)], 6: [("V", 0)], 8: [("K", 3)], 9: [("V", 1)], 11: [("V", 2)], 12: [("V", 3)]},
    "h": {1: [("K", 0)], 3: [("K", 1)], 5: [("K", 2)], 6: [("V", 0)], 7: [("K", 3)], 9: [("V", 1)], 11: [("V", 2)], 12: [("V", 3)]},
    "a": {1: [("K", 0)], 2: [("V", 0)], 3: [("K", 1)], 4: [("K", 2)], 6: [("V", 1)], 7: [("K", 3)], 11: [("V", 2)], 12: [("V", 3)]},
    "b": {1: [("K", 0), ("V", 0)], 2: [("K", 1)], 3: [("K", 2)], 4: [("V", 1)], 5: [("K", 3)], 11: [("V", 2)], 12: [("V", 3)]},
    "d": {4: [("K", 0)], 5: [("K", 1)], 7: [("K", 2), ("V", 0)], 8: [("K", 3)], 9: [("V", 1)], 11: [("V", 2)], 12: [("V", 3)]},
    "e": {3: [("K", 0)], 5: [("K", 1)], 7: [("V", 0)], 8: [("K", 2)], 9: [("K", 3)], 10: [("V", 1)], 11: [("V", 2)], 12: [("V", 3)]},
    "c": {1: [("K", 0)], 3: [("V", 0)], 4: [("K", 1)], 6: [("K", 2)], 7: [("V", 1)], 9: [("K", 3)], 11: [("V", 2)], 12: [("V", 3)]},
}

def emit_code_prefetch(a, cfg, vm, vaddr, lo, hi, dst):
    a(f"s_getpc_b64 s[{S_PC}:{S_PC+1}]")
    lab = f"L_pc_{lo}"
    a.label(lab)
    a(f"s_add_u32 s{S_PC}, s{S_PC}, {lo}-{lab}")
    a(f"s_addc_u32 s{S_PC+1}, s{S_PC+1}, 0")
    a(f"s_mov_b32 s{S_PC+2}, {hi}-{lo}")
    a(f"s_mov_b32 s{S_PC+3}, 0x20000")
    return

def emit_loader(a, cfg):
    a.label("L_loader")
    vm = Vm(a)
    LH, LP = 2, 3
    VK, VV, VW, VO, VO3 = 8, 16, 20, 24, 28
    T0, T1 = 4, 5
    stamp_idx = [0]
    def xstamp(i):
        if cfg.stamps and (i >= 4 or cfg.xst_early):
            a("s_memrealtime s[62:63]")
            a("s_waitcnt lgkmcnt(0)")
            a(f"v_writelane_b32 v58, s62, {i}")
    xstamp(0)
    a(f"v_lshrrev_b32 v{LH}, 5, v{V_LANE}")
    a(f"v_and_b32 v{LP}, 31, v{V_LANE}")
    a(f"v_lshlrev_b32 v32, 4, v{V_LANE}")
    def chunkpat(i):
        a(f"v_add_u32 v{T0}, {2*i}, v{LH}")
        a(f"v_lshlrev_b32 v{T0}, 1, v{T0}")
        a(f"v_xor_b32 v{T0}, v{T0}, v{LP}")
    for i in range(4):
        chunkpat(i)
        a(f"v_lshlrev_b32 v{T1}, 4, v{T0}")
        a(f"v_lshl_add_u32 v{VW+i}, v{LH}, 13, v{T1}")
    if cfg.fast_start: emit_ptrs(a, cfg)
    if cfg.stamps:
        a(f"v_writelane_b32 v56, s{S_TS}, 0")
    ntkv = " nt" if cfg.nt_kv else ""
    ntw = " nt" if cfg.nt_w else ""
    ntwo = " nt" if cfg.nt_wo else ""
    ntwarm = " nt" if cfg.nt_warm else ""

    clsn = [0]
    def class_wait():
        if not cfg.stagger: return
        clsn[0] += 1; n = clsn[0]
        for c in range(1, cfg.ncls):
            a(f"s_cmp_lt_u32 s53, {c}")
            a(f"s_cbranch_scc1 L_cls{n}")
            a(f"s_waitcnt vmcnt({47 - cfg.stagger * c})")
        a.label(f"L_cls{n}")
    def tile_kv(kind, t):
        srd = S_K if kind == "K" else S_V
        lds = KS[t % 4] if kind == "K" else VS[t % 4]
        vm.room(16)
        if t >= 4 and t <= cfg.stag_tmax: class_wait()
        for m in range(4):
            a(f"s_mov_b32 m0, {lds + m*4096}")
            a(f"s_mov_b32 s{S_SO}, {t*16384 + m*4096}")
            for n in range(4):
                i = 4*m + n
                vo = VK + (i & 7) if kind == "K" else VV + (i & 3)
                vm.issue(f"buffer_load_dwordx4 v{vo}, s[{srd}:{srd+3}], s{S_SO} offen offset:{n*1024}{ntkv} lds", (kind, t))
    def tile_w(s):
        lds = WRING[s % 4]
        vm.room(16)
        prev = 0
        for i in range(16):
            sig0 = 8*((i & 7) >> 1) + 4*(i >> 3) + 2*(i & 1)
            if i == 0 or not cfg.fast_start:
                a(f"s_mov_b32 m0, {lds + i*1024}")
                a(f"s_mov_b32 s{S_SO}, {(s*32 + sig0)*8192}")
            else:
                a("s_add_u32 m0, m0, s98")
                d = sig0 - prev
                if d == 2: a(f"s_add_u32 s{S_SO}, s{S_SO}, s99")
                elif d == 6: a(f"s_add_u32 s{S_SO}, s{S_SO}, s100")
                else: a(f"s_sub_u32 s{S_SO}, s{S_SO}, {-d*8192}")
            prev = sig0
            vm.issue(f"buffer_load_dwordx4 v{VW + (i & 3)}, s[{S_WQ}:{S_WQ+3}], s{S_SO} offen{ntw} lds", ("W", s))
    VX = 40
    def setup_xb():
        a(f"v_lshrrev_b32 v{T0}, 3, v{V_LANE}")
        a(f"v_and_b32 v{T1}, 7, v{V_LANE}")
        a(f"v_lshrrev_b32 v6, 1, v{T0}")
        a(f"v_xor_b32 v6, v6, v{T1}")
        a(f"v_mul_u32_u24 v7, 896, v{T0}")
        a(f"v_lshl_add_u32 v{VX}, v6, 4, v7")
        a(f"v_xor_b32 v6, 4, v6")
        a(f"v_lshl_add_u32 v{VX+1}, v6, 4, v7")
        a(f"v_add_u32 v{VX+1}, {8*896}, v{VX+1}")
    def tile_xb(part):
        vm.room(18)
        ntx = " nt" if cfg.nt_x else ""
        for w in range(3):
            for qt in range(3):
                for hb in range(2):
                    a(f"s_mov_b32 m0, {XBB + w*XBW + ((qt*2 + hb)*3 + part)*1024}")
                    a(f"s_mov_b32 s{S_SO}, {w*XW + qt*14336 + (4 + part)*128}")
                    vm.issue(f"buffer_load_dwordx4 v{VX+hb}, s[{S_X}:{S_X+3}], s{S_SO} offen{ntx} lds", ("XB", part))
    def tile_wo(j):
        lds = WOSLOT[j]
        vm.room(16)
        for i in range(16):
            so, vo = wo_addr(j, i)
            a(f"s_mov_b32 m0, {lds + i*1024}")
            a(f"s_mov_b32 s{S_SO}, {so}")
            vm.issue(f"buffer_load_dwordx4 v{vo}, s[{S_WO}:{S_WO+3}], s{S_SO} offen{ntwo} lds", ("WO", j))
    NREG0 = cfg.wo_reg0
    def wo_quad(j, i):
        k = (j - NREG0) * 16 + i
        return ar(4*k, 4) if k < 64 else v(64 + 4*(k - 64), 4)
    def wo_addr(j, i):
        if cfg.fine and not (cfg.merge0 and j < 4):
            return (32*((j % 2) * 4) + 2*i)*896 + (j // 2)*128, VO3 + (i & 3)
        if j < 12:
            p, T0_ = j // 4, (j % 4) * 2
            return (32*T0_ + 2*i)*896 + p*256, VO + (i & 3)
        T0_ = (j - 12) * 4
        return (32*T0_ + 2*i)*896 + 768, VO3 + (i & 3)
    def load_wo_reg(j, i0, n):
        vm.room(n)
        for i in range(i0, i0 + n):
            so, vo = wo_addr(j, i)
            a(f"s_mov_b32 s{S_SO}, {so}")
            vm.issue(f"buffer_load_dwordx4 {wo_quad(j, i)}, v{vo}, s[{S_WO}:{S_WO+3}], s{S_SO} offen{ntwo}", ("WOR", j))
    def put_wo(j):
        vm.need(("WOR", j))
        a(f"v_add_u32 v33, {WOSLOT[j]}, v32")
        for i in range(16):
            a(f"ds_write_b128 v33, {wo_quad(j, i)} offset:{i*1024}")
            if cfg.wr_pace and i % cfg.wr_pace == cfg.wr_pace - 1 and i < 15: a("s_waitcnt lgkmcnt(0)")
        wo_written.append(j)
    wo_written = []
    wr_queue = []
    def put_wo_some(n):
        done = 0
        while wr_queue and done < n:
            j, i = wr_queue.pop(0)
            if i == 0 or done == 0:
                if i == 0: vm.need(("WOR", j))
                a(f"v_add_u32 v33, {WOSLOT[j]}, v32")
            a(f"ds_write_b128 v33, {wo_quad(j, i)} offset:{i*1024}")
            if i == 15: wo_written.append(j)
            done += 1
            if wr_queue and wr_queue[0][1] == 0 and done < n:
                pass
    def need_wo(j):
        if j >= NREG0:
            if j in wo_written:
                a("s_waitcnt lgkmcnt(0)")
                while wo_written: wo_written.pop()
        else:
            vm.need(("WO", j))
    def tile_wo_any(j):
        if j >= NREG0:
            if cfg.wr_spread: wr_queue.extend((j, i) for i in range(16))
            else: put_wo(j)
        else: tile_wo(j)
    def warm_wo(i0, n):
        vm.room(n)
        for i in range(i0, i0 + n):
            a(f"s_mul_i32 s{S_SO}, s{S_B}, 28672")
            a(f"s_add_u32 s{S_SO}, s{S_SO}, {i*1024}")
            vm.issue(f"buffer_load_dwordx4 v[36:39], v32, s[{S_WO}:{S_WO+3}], s{S_SO} offen{ntwarm}", ("warm", i))
    def code_pf(lo, hi, tagn):
        a(f"s_getpc_b64 s[{S_PC}:{S_PC+1}]")
        lab = f"L_pc_{tagn}"
        a.label(lab)
        a(f"s_add_u32 s{S_PC}, s{S_PC}, {lo}-{lab}")
        a(f"s_addc_u32 s{S_PC+1}, s{S_PC+1}, -1" if False else f"s_addc_u32 s{S_PC+1}, s{S_PC+1}, ({lo}-{lab})>>32")
        a(f"s_mov_b32 s{S_PC+2}, {hi}-{lo}")
        a(f"s_mov_b32 s{S_PC+3}, 0x20000")
        a(f"s_lshr_b32 s{S_SO2}, s2, 3")
        a(f"s_mul_i32 s{S_SO2}, s{S_SO2}, 3072")
        vm.room(3)
        for i in range(3):
            vm.issue(f"buffer_load_dwordx4 v[36:39], v32, s[{S_PC}:{S_PC+3}], s{S_SO2} offen offset:{i*1024}", ("pf", tagn, i))

    fused = cfg.fused and not cfg.dump
    if cfg.fast_start:
        a("s_mov_b32 s98, 1024"); a(f"s_mov_b32 s99, {2*8192}"); a(f"s_mov_b32 s100, {6*8192}")
        tile_w(0)
    if fused:
        emit_cnt_srd(a)
        a("s_mov_b32 s48, s82"); a("s_mov_b32 s49, s83")
        a("s_mov_b32 s50, 256"); a("s_mov_b32 s51, 0x20000")
        a(f"s_lshl_b32 s52, s{S_BR}, 3")
        a(f"s_add_u32 s52, s52, s{S_B}")
        a("s_lshl_b32 s52, s52, 4")
        a(f"s_cmp_lg_u32 s{S_H}, 0")
        a("s_cbranch_scc1 L_noinit")
        a(f"v_lshlrev_b32 v33, 12, v{V_LANE}")
        a("v_mov_b32 v34, 0")
        a("s_mov_b64 exec, 7")
        a("buffer_store_dword v34, v33, s[84:87], 0 offen sc1")
        a("s_mov_b64 exec, -1")
        a.label("L_noinit")
    if cfg.warm2:
        a(f"v_lshlrev_b32 v34, 4, v{LP}")
        a(f"v_lshl_add_u32 v34, v{LH}, 13, v34")
        a(f"s_mul_i32 s76, s{S_B}, {56*8192}")
        a(f"s_add_u32 s76, s76, {28*8192}")
        for i in range(14):
            vm.issue(f"buffer_load_dwordx4 v[36:39], v34, s[{S_WQ}:{S_WQ+3}], s76 offen{ntwarm}", ("warm2", i))
            if i < 13: a(f"s_add_u32 s76, s76, {2*8192}")
    if not cfg.fast_start: tile_w(0)
    xstamp(1)
    if cfg.code_pf and not cfg.fast_start: code_pf(KNAME, "L_code_end", "all")
    tile_w(1); xstamp(2)
    emit_setup_late(a, cfg, True)
    for i in range(8):
        a(f"v_add_u32 v{T0}, {2*i}, v{LH}")
        a(f"v_xor_b32 v{T0}, v{T0}, v{LP}")
        a(f"v_lshlrev_b32 v{T0}, 4, v{T0}")
        a(f"v_lshl_add_u32 v{VK+i}, v{LH}, 9, v{T0}")
    for i in range(4):
        chunkpat(i)
        a(f"v_lshlrev_b32 v{T1}, 4, v{T0}")
        a(f"v_lshl_add_u32 v{VV+i}, v{LH}, 9, v{T1}")
        a(f"v_lshrrev_b32 v6, 4, v{T0}")
        a(f"v_lshl_add_u32 v6, v6, 5, v{LH}")
        a(f"v_mul_u32_u24 v6, 896, v6")
        a(f"v_and_b32 v7, 15, v{T0}")
        a(f"v_lshl_add_u32 v{VO+i}, v7, 4, v6")
        a(f"v_lshrrev_b32 v6, 3, v{T0}")
        a(f"v_lshl_add_u32 v6, v6, 5, v{LH}")
        a(f"v_mul_u32_u24 v6, 896, v6")
        a(f"v_and_b32 v7, 7, v{T0}")
        a(f"v_lshl_add_u32 v{VO3+i}, v7, 4, v6")
    setup_xb()
    if cfg.stagger:
        if cfg.cls_mode == "xe":
            a("s_getreg_b32 s53, hwreg(HW_REG_XCC_ID, 0, 4)")
            a("s_and_b32 s53, s53, 1")
            a("s_xor_b32 s53, s53, 1")
        elif cfg.cls_mode == "b":
            a(f"s_mul_i32 s53, s{S_B}, {cfg.ncls}")
            a("s_lshr_b32 s53, s53, 3")
        else:
            a(f"s_mov_b32 s53, s{S_BR}")
    tile_w(2)
    xstamp(3)
    def iter_extras(t):
            if cfg.warm_wo and cfg.warm_t0 <= t <= cfg.warm_t0 + 6:
                warm_wo((t - cfg.warm_t0) * 4, 4)
            if cfg.code_pf and t == 25: code_pf("L_tail_code", "L_tail_end", "tail")
            if fused and t == 10:
                vm.room(1)
                a("s_mov_b64 exec, 1")
                vm.issue(f"buffer_load_dword v35, off, s[48:51], s52 sc1", ("initflag",))
                a("s_mov_b64 exec, -1")
            if fused and t == 14:
                vm.need(("initflag",))
                a("v_readfirstlane_b32 s90, v35")
                a("s_nop 3")
                a("s_cmp_ge_u32 s90, 1")
                a("s_cbranch_scc1 L_init_ok")
                a("s_mov_b64 exec, 1")
                a("s_mov_b32 s89, 0")
                a.label("L_init_poll")
                a("buffer_load_dword v35, off, s[48:51], s52 sc1")
                a("s_waitcnt vmcnt(0)")
                a("v_readfirstlane_b32 s90, v35")
                a("s_add_u32 s89, s89, 1")
                a("s_cmp_ge_u32 s90, 1")
                a("s_cbranch_scc1 L_init_done")
                a("s_cmp_ge_u32 s89, 0x40000")
                a("s_cbranch_scc1 L_init_done")
                a("s_sleep 8")
                a("s_branch L_init_poll")
                a.label("L_init_done")
                a("s_mov_b64 exec, -1")
                a.label("L_init_ok")
            nreg = 14 - NREG0
            k = t - cfg.wo_reg_t0
            if 0 <= k < 2 * nreg:
                load_wo_reg(NREG0 + k // 2, 8 * (k & 1), 8)
    kv_after_pb = KVSCHED[cfg.kvsched]
    early = None
    if cfg.fast_start:
        a("s_branch L_loader2")
        early = a.L; a.L = []
        a.label("L_loader2")
    pend_stamp = [None]
    def flush_stamp():
        if pend_stamp[0] is not None:
            a("s_waitcnt lgkmcnt(0)")
            a(f"v_writelane_b32 v56, s62, {pend_stamp[0]}")
            a(f"v_writelane_b32 v59, s60, {pend_stamp[0]}")
            pend_stamp[0] = None
    for name, idx in barrier_list(cfg):
        flush_stamp()
        if name == "PB":
            if idx == 0: vm.need(("W", 0)); vm.need(("W", 1))
            elif idx + 1 <= 13: vm.need(("W", idx + 1))
            if idx == cfg.xb_read: vm.need(("XB", 2))
        elif name == "B":
            t = idx
            if t == -1:
                vm.need(("K", 0)); vm.need(("K", 1))
            elif t >= cfg.t_jit:
                if t + 1 <= 31: vm.need(("K", t + 1))
            else:
                if t + 2 <= 31: vm.need(("K", t + 2))
                vm.need(("V", t))
            if t == 31 and t < cfg.t_jit:
                need_wo(0); need_wo(1)
        elif name == "BB" or name == "MB":
            vm.need(("V", idx))
            if idx == 31:
                need_wo(0); need_wo(1)
        elif name == "MA":
            vm.need(("K", idx + 2))
        else:
            j = idx
            need_wo(min(j + 1, 13))
            if j == ntb(cfg) - 1:
                assert not wr_queue
                for jj in range(14): need_wo(jj)
        a("s_barrier")
        if cfg.stamps and cfg.lstamps and name not in ("BB", "MA"):
            stamp_idx[0] += 1
            a("s_memrealtime s[62:63]")
            a("s_memtime s[60:61]")
            pend_stamp[0] = stamp_idx[0]
        if name == "PB" and idx == 0 and fused:
            a(f"s_cmp_lg_u32 s{S_H}, 0")
            a("s_cbranch_scc1 L_noinit2")
            a("v_mov_b32 v34, 1")
            a("s_mov_b64 exec, 1")
            a("buffer_atomic_add v34, off, s[48:51], s52")
            a("s_mov_b64 exec, -1")
            a.label("L_noinit2")
        if name == "PB":
            if idx + 3 <= 13: tile_w(idx + 3)
            for part in XBSCHED[cfg.xbsched].get(idx, []): tile_xb(part)
            for k, t in kv_after_pb.get(idx, []): tile_kv(k, t)
        elif name == "B":
            t = idx
            if t >= cfg.t_jit:
                if t > cfg.t_jit and t + 3 <= 31: tile_kv("K", t + 3)
            elif t >= 0:
                if t + 4 <= 31: tile_kv("K", t + 4)
                if t >= 1 and t + 3 <= 31: tile_kv("V", t + 3)
            iter_extras(t)
            if t == 26: tile_wo_any(0)
            if t == 27: tile_wo_any(1)
            if t == 28: tile_wo_any(2)
            if t == 29: tile_wo_any(3); tile_wo_any(4)
            if t == 30: tile_wo_any(5); tile_wo_any(6)
            if t == 31: tile_wo_any(7); tile_wo_any(8)
        elif name == "BB":
            t = idx
            if t > cfg.t_jit and t + 2 <= 31: tile_kv("V", t + 2)
        elif name == "MB":
            t = idx
            if t > cfg.t_mid and t + 2 <= 31: tile_kv("V", t + 2)
            iter_extras(t)
            if t == 29: tile_wo_any(4)
            if t == 30: tile_wo_any(6)
            if t == 31: tile_wo_any(7); tile_wo_any(8)
        elif name == "MA":
            t = idx
            if t + 4 <= 31: tile_kv("K", t + 4)
            if t + 1 == 26: tile_wo_any(0)
            if t + 1 == 27: tile_wo_any(1)
            if t + 1 == 28: tile_wo_any(2)
            if t + 1 == 29: tile_wo_any(3)
            if t + 1 == 30: tile_wo_any(5)
        else:
            j = idx
            if j == 0: tile_wo_any(9)
            if 1 <= j <= 4: tile_wo_any(9 + j)
            if cfg.wr_spread and j < ntb(cfg) - 1:
                put_wo_some(cfg.wr_spread if j < ntb(cfg) - 2 else 999)
            if j == 5 and cfg.fused and not cfg.dump:
                a(f"v_lshlrev_b32 v33, 2, v{V_LANE}")
                a(f"v_add_u32 v33, {VS[0]}, v33")
                a("v_mov_b32 v34, 0")
                a("ds_write_b32 v33, v34")
                a("s_waitcnt lgkmcnt(0)")
    flush_stamp()
    a("s_waitcnt vmcnt(0)")
    if cfg.fused and not cfg.dump:
        emit_red_setup(a, cfg)
        for p in range(2):
            emit_poll(a, cfg, p)
            xstamp(4 + p)
            for e in range(2):
                a(f"s_add_u32 s90, s{S_H}, {16*e}")
                a(f"s_lshr_b32 s{96+2*e}, s90, 2")
                a("s_and_b32 s90, s90, 3")
                a(f"s_add_u32 s{97+2*e}, s90, {4*p}")
            emit_reduce_frags(a, cfg, 2)
        emit_poll(a, cfg, 2)
        xstamp(6)
        if not cfg.decouple: a("s_barrier")
        emit_final_reduce(a, cfg)
        xstamp(7)
    if cfg.stamps:
        if not (cfg.fused and not cfg.dump): a("s_barrier")
        a("s_memrealtime s[62:63]")
        a("s_waitcnt lgkmcnt(0)")
        a(f"v_writelane_b32 v56, s62, 62")
        a("s_getreg_b32 s62, hwreg(HW_REG_XCC_ID)")
        a(f"v_writelane_b32 v56, s62, 63")
        a("s_mov_b32 s76, s72"); a("s_mov_b32 s77, s73")
        a("s_mov_b32 s78, 0x10000000"); a("s_mov_b32 s79, 0x20000")
        a("s_lshl_b32 s74, s2, 8")
        a("s_add_u32 s74, s74, 0x4000000")
        a(f"v_lshlrev_b32 v57, 2, v{V_LANE}")
        a("buffer_store_dword v56, v57, s[76:79], s74 offen")
        a("s_add_u32 s74, s74, 0x100000")
        a("buffer_store_dword v58, v57, s[76:79], s74 offen")
        a("s_add_u32 s74, s74, 0x100000")
        a("buffer_store_dword v59, v57, s[76:79], s74 offen")
        a("s_waitcnt vmcnt(0)")
        if cfg.dbg_stamps >= 0:
            a(f"s_cmp_lg_u32 s2, {cfg.dbg_stamps}")
            a("s_cbranch_scc1 L_nodbg")
            sel = [(56, 1), (56, 16), (56, 24), (56, 32), (56, 40), (56, 47), (56, 48), (56, 56), (58, 4), (58, 5), (58, 6), (58, 7)]
            slots = [1, 2, 3, 5, 6, 7, 9, 10, 11, 13, 14, 15]
            a("v_readlane_b32 s91, v56, 0")
            for (r, ln), sl in zip(sel, slots):
                a(f"v_readlane_b32 s90, v{r}, {ln}")
                a("s_nop 3")
                a("s_sub_u32 s90, s90, s91")
                a("v_mov_b32 v60, s90")
                a(f"s_mov_b32 s89, {4*sl}")
                a("s_mov_b64 exec, 1")
                a("buffer_store_dword v60, off, s[48:51], s89")
                a("s_mov_b64 exec, -1")
                a("s_nop 1")
            a("s_waitcnt vmcnt(0)")
            a.label("L_nodbg")
    a("s_branch L_end")
    return early, a.L

def emit_cnt_srd(a):
    a(f"s_lshl_b32 s84, s{S_BR}, 3")
    a(f"s_add_u32 s84, s84, s{S_B}")
    a("s_lshl_b32 s84, s84, 14")
    a(f"s_add_u32 s84, s84, {CNT_OFF}")
    a("s_add_u32 s84, s72, s84")
    a("s_addc_u32 s85, s73, 0")
    a("s_mov_b32 s86, 16384"); a("s_mov_b32 s87, 0x20000")

def emit_red_setup(a, cfg):
    lane = V_LANE
    emit_cnt_srd(a)
    a(f"s_lshl_b32 s88, s{S_BR}, 3")
    a(f"s_add_u32 s88, s88, s{S_B}")
    a(f"s_mul_i32 s45, s88, {16*129024}")
    a("s_add_u32 s44, s72, s45")
    a("s_addc_u32 s45, s73, 0")
    a(f"s_mov_b32 s46, {16*129024}")
    a("s_mov_b32 s47, 0x20000")
    a("s_mov_b32 s92, s80"); a("s_mov_b32 s93, s81")
    a(f"s_mov_b32 s94, {8*144*896*2}"); a("s_mov_b32 s95, 0x20000")
    a(f"s_mul_i32 s64, s88, 9216")
    a(f"s_add_u32 s64, s64, {SCL_OFF}")
    a("s_add_u32 s64, s72, s64")
    a("s_addc_u32 s65, s73, 0")
    a("s_mov_b32 s66, 9216"); a("s_mov_b32 s67, 0x20000")

_lab = [0]
def emit_poll(a, cfg, p):
    _lab[0] += 1; n = _lab[0]
    a("s_mov_b64 exec, 1")
    a("s_mov_b32 s89, 0")
    a.label(f"L_poll{n}")
    a(f"s_mov_b32 s88, {4096*p}")
    a(f"buffer_load_dword v2, off, s[84:87], s88{cfg.poll_flags}")
    a("s_waitcnt vmcnt(0)")
    a("v_readfirstlane_b32 s90, v2")
    a("s_add_u32 s89, s89, 1")
    a("s_cmp_ge_u32 s90, 16")
    a(f"s_cbranch_scc1 L_poll_done{n}")
    a("s_cmp_ge_u32 s89, 0x40000")
    a(f"s_cbranch_scc1 L_poll_done{n}")
    a(f"s_sleep {cfg.poll_sleep}")
    a(f"s_branch L_poll{n}")
    a.label(f"L_poll_done{n}")
    a("s_mov_b64 exec, -1")

def emit_reduce_frags(a, cfg, nf):
    lane = V_LANE
    sc = cfg.scale_red
    nper = 20 if sc else 16
    a(f"v_lshlrev_b32 v2, 4, v{lane}")
    if sc:
        a(f"v_and_b32 v5, 15, v{lane}")
        a("v_lshlrev_b32 v5, 6, v5")
    for e in range(nf):
        if sc:
            a(f"s_lshl_b32 s91, s{96+2*e}, 10")
            for j in range(4):
                r = 192 + 16*e + 4*j
                a(f"buffer_load_dwordx4 v[{r}:{r+3}], v5, s[64:67], s91 offen offset:{16*j}{cfg.rd_flags}")
        a(f"s_mul_i32 s90, s{96+2*e}, 14")
        a(f"s_add_u32 s90, s90, s{97+2*e}")
        a("s_lshl_b32 s91, s90, 10")
        for hh in range(16):
            r = 64 + 64*e + 4*hh
            a(f"buffer_load_dwordx4 v[{r}:{r+3}], v2, s[44:47], s91 offen{cfg.rd_flags}")
            if hh < 15: a(f"s_add_u32 s91, s91, 129024")
    a(f"v_and_b32 v3, 15, v{lane}")
    a("v_mul_u32_u24 v3, 1792, v3")
    a(f"v_lshrrev_b32 v4, 4, v{lane}")
    a("v_lshl_add_u32 v3, v4, 3, v3")
    for e in range(nf):
        a(f"s_mul_i32 s100, s{S_B}, 144")
        a(f"s_lshl_b32 s90, s{96+2*e}, 4")
        a("s_add_u32 s100, s100, s90")
        a("s_mul_i32 s100, s100, 1792")
        a(f"s_lshl_b32 s90, s{97+2*e}, 6")
        a("s_add_u32 s100, s100, s90")
        a(f"s_mul_i32 s90, s{S_BR}, 896")
        a(f"s_add_u32 s{96+2*e}, s100, s90")
    for e in range(nf):
        acc = 32 + 8*e
        for hh in range(16):
            a(f"s_waitcnt vmcnt({nper*nf - 1 - nper*e - (nper - 16) - hh})")
            for r in range(4):
                src = 64 + 64*e + 4*hh + r
                if hh == 0 and not sc:
                    a(f"v_lshlrev_b32 v{acc+2*r}, 16, v{src}")
                    a(f"v_and_b32 v{acc+2*r+1}, 0xffff0000, v{src}")
                else:
                    t = 8 + 2*r
                    a(f"v_lshlrev_b32 v{t}, 16, v{src}")
                    a(f"v_and_b32 v{t+1}, 0xffff0000, v{src}")
            for r in range(4):
                t = 8 + 2*r
                A, T_ = f"v[{acc+2*r}:{acc+2*r+1}]", f"v[{t}:{t+1}]"
                if sc:
                    q = 192 + 16*e + hh
                    q0 = q & ~1
                    sel = q & 1
                    S_ = f"v[{q0}:{q0+1}]"
                    if hh == 0:
                        a(f"v_pk_mul_f32 {A}, {T_}, {S_} op_sel:[0,{sel}] op_sel_hi:[1,{sel}]")
                    else:
                        a(f"v_pk_fma_f32 {A}, {T_}, {S_}, {A} op_sel:[0,{sel},0] op_sel_hi:[1,{sel},1]")
                elif hh > 0:
                    a(f"v_pk_add_f32 {A}, {A}, {T_}")
        for r in range(4):
            a(f"v_cvt_pk_bf16_f32 v{48+4*e+r}, v{acc+2*r}, v{acc+2*r+1}")
    for e in range(nf):
        a(f"buffer_store_dwordx2 v[{48+4*e}:{49+4*e}], v3, s[92:95], s{96+2*e} offen{cfg.out_flags}")
        a(f"buffer_store_dwordx2 v[{50+4*e}:{51+4*e}], v3, s[92:95], s{96+2*e} offen offset:32{cfg.out_flags}")

def emit_final_reduce(a, cfg):
    _lab[0] += 1; n = _lab[0]
    a(f"s_lshl_b32 s90, s{S_WID}, 4")
    a(f"s_add_u32 s90, s90, s{S_H}")
    a("s_cmp_ge_u32 s90, 62")
    a(f"s_cbranch_scc1 L_fin_done{n}")
    a("s_lshr_b32 s96, s90, 2")
    a("s_and_b32 s97, s90, 3")
    a("s_add_u32 s97, s97, 8")
    a("s_sub_u32 s91, s90, 36")
    a("s_lshr_b32 s98, s91, 1")
    a("s_and_b32 s99, s91, 1")
    a("s_add_u32 s99, s99, 12")
    a("s_cmp_ge_u32 s90, 36")
    a("s_cselect_b32 s96, s98, s96")
    a("s_cselect_b32 s97, s99, s97")
    a("s_sub_u32 s91, s90, 54")
    a("s_cmp_ge_u32 s90, 54")
    a("s_cselect_b32 s96, 8, s96")
    a("s_cselect_b32 s97, s91, s97")
    emit_reduce_frags(a, cfg, 1)
    a.label(f"L_fin_done{n}")

def mfma(a, D, A, B, C=None):
    a(f"v_mfma_f32_16x16x32_bf16 {D}, {A}, {B}, {C if C is not None else D}")

def xlane_max(a, r, tmp):
    a(f"v_mov_b32 v{tmp}, v{r}")
    a("s_nop 1")
    a(f"v_permlane32_swap_b32 v{r}, v{tmp}")
    a("s_nop 1")
    a(f"v_max_f32 v{r}, v{r}, v{tmp}")
    a(f"v_mov_b32 v{tmp}, v{r}")
    a("s_nop 1")
    a(f"v_permlane16_swap_b32 v{r}, v{tmp}")
    a("s_nop 1")
    a(f"v_max_f32 v{r}, v{r}, v{tmp}")

def emit_compute(a, cfg):
    rare_blocks = []
    emit_compute_main(a, cfg, rare_blocks)
    emit_rare(a, cfg, rare_blocks)

def emit_compute_main(a, cfg, rare_blocks):
    lg = Lgkm(a)
    lane = V_LANE
    T0, T1 = V_T0, V_T1
    NKP, NVP = cfg.nkp, cfg.nvp
    a(f"v_lshrrev_b32 v{T0}, 3, v{lane}")
    a(f"v_and_b32 v{T1}, 7, v{lane}")
    a(f"v_lshrrev_b32 v22, 1, v{T0}")
    a(f"v_xor_b32 v22, v22, v{T1}")
    a(f"v_mul_u32_u24 v23, 896, v{T0}")
    a(f"v_lshl_add_u32 v24, v22, 4, v23")
    a(f"v_xor_b32 v22, 4, v22")
    a(f"v_lshl_add_u32 v25, v22, 4, v23")
    a(f"v_add_u32 v25, {8*896}, v25")
    if cfg.fast_start: emit_ptrs(a, cfg)
    a(f"s_mul_i32 s74, s{S_WID}, {XAW}")
    a(f"s_mul_i32 s75, s{S_WID}, {XW}")
    vm = Vm(a)
    ntx = " nt" if cfg.nt_x else ""
    if cfg.warm2:
        ntwarm = " nt" if cfg.nt_warm else ""
        a(f"v_lshlrev_b32 v26, 4, v{lane}")
        a(f"s_cmp_eq_u32 s{S_WID}, 2")
        a("s_cbranch_scc1 L_w2q")
        a(f"s_and_b32 s76, s{S_H}, 3")
        a("s_mul_i32 s76, s76, 32256")
        a(f"s_lshl_b32 s77, s{S_WID}, 14")
        a("s_add_u32 s76, s76, s77")
        for i in range(16):
            a(f"buffer_load_dwordx4 {ar(A_DUMMY,4)}, v26, s[{S_X}:{S_X+3}], s76 offen{ntwarm}")
            if i < 15: a("s_add_u32 s76, s76, 1024")
        a("s_branch L_w2done")
        a.label("L_w2q")
        a(f"v_lshrrev_b32 v27, 5, v{lane}")
        a(f"v_and_b32 v26, 31, v{lane}")
        a("v_lshlrev_b32 v26, 4, v26")
        a("v_lshl_add_u32 v26, v27, 13, v26")
        a(f"s_mul_i32 s76, s{S_B}, {56*8192}")
        for i in range(14):
            a(f"buffer_load_dwordx4 {ar(A_DUMMY,4)}, v26, s[{S_WQ}:{S_WQ+3}], s76 offen{ntwarm}")
            if i < 13: a(f"s_add_u32 s76, s76, {2*8192}")
        a.label("L_w2done")
    for sp in range(4):
        for qt in range(3):
            for hb in range(2):
                a(f"s_add_u32 m0, s74, {((qt*2 + hb)*4 + sp)*1024}")
                a(f"s_add_u32 s{S_SO}, s75, {qt*14336 + sp*128}")
                vm.issue(f"buffer_load_dwordx4 v{24+hb}, s[{S_X}:{S_X+3}], s{S_SO} offen{ntx} lds", ("x",))
    if cfg.warm_wq and not cfg.warm2:
        ntwarm = " nt" if cfg.nt_warm else ""
        a(f"v_lshrrev_b32 v{T0}, 5, v{lane}")
        a(f"v_and_b32 v{T1}, 31, v{lane}")
        a(f"v_lshlrev_b32 v{T1}, 4, v{T1}")
        a(f"v_lshl_add_u32 v26, v{T0}, 13, v{T1}")
        a(f"s_mul_i32 s75, s{S_B}, 48")
        a(f"s_lshl_b32 s76, s{S_WID}, 4")
        a("s_add_u32 s75, s75, s76")
        a("s_add_u32 s75, s75, 64")
        a("s_lshl_b32 s75, s75, 13")
        for i in range(8):
            vm.issue(f"buffer_load_dwordx4 {ar(A_DUMMY,4)}, v26, s[{S_WQ}:{S_WQ+3}], s75 offen{ntwarm}", ("warm", i))
            if i < 7: a(f"s_add_u32 s75, s75, {2*8192}")
    emit_setup_late(a, cfg, False)
    g_, i15 = 22, 23
    a(f"v_lshrrev_b32 v{g_}, 4, v{lane}")
    a(f"v_and_b32 v{i15}, 15, v{lane}")
    a(f"v_lshrrev_b32 v26, 1, v{i15}")
    a(f"v_lshrrev_b32 v27, 3, v{i15}")
    a(f"v_and_b32 v28, 7, v{i15}")
    a(f"v_lshlrev_b32 v28, 7, v28")
    a(f"s_mul_i32 s74, s{S_WID}, {XAW}")
    a(f"s_mul_i32 s75, s{S_WID}, {XBW}")
    a(f"s_add_u32 s75, s75, {XBB}")
    a(f"v_lshl_add_u32 v29, v27, 12, v28")
    a(f"v_add_u32 v29, s74, v29")
    a(f"v_mul_u32_u24 v27, 3072, v27")
    a(f"v_add_u32 v27, v27, v28")
    a(f"v_add_u32 v27, s75, v27")
    for e in range(2):
        a(f"v_add_u32 v{T0}, {4*e}, v{g_}")
        a(f"v_xor_b32 v{T0}, v{T0}, v26")
        a(f"v_lshl_add_u32 v{V_XB+e}, v{T0}, 4, v29")
        a(f"v_lshl_add_u32 v{V_XB2+e}, v{T0}, 4, v27")
    for j in range(4):
        a(f"v_add_u32 v{T0}, {4*j}, v{g_}")
        a(f"v_xor_b32 v{T0}, v{T0}, v{i15}")
        a(f"v_lshlrev_b32 v{T0}, 4, v{T0}")
        a(f"v_lshl_add_u32 v{V_KB+j}, v{i15}, 9, v{T0}")
    rp, cc, row, rho = 26, 27, 28, 29
    a(f"v_lshrrev_b32 v{rp}, 2, v{i15}")
    a(f"v_and_b32 v{cc}, 3, v{i15}")
    a(f"v_lshl_add_u32 v{row}, v{g_}, 2, v{rp}")
    a(f"v_and_b32 v{rho}, 7, v{row}")
    a(f"v_lshrrev_b32 v{T0}, 1, v{cc}")
    a(f"v_lshlrev_b32 v{T0}, 4, v{T0}")
    a(f"v_and_b32 v{T1}, 1, v{cc}")
    a(f"v_lshl_add_u32 v{T0}, v{T1}, 3, v{T0}")
    a(f"v_lshl_add_u32 v30, v{row}, 9, v{T0}")
    for j in range(8):
        a(f"v_xor_b32 v{T0}, {j}, v{rho}")
        a(f"v_lshl_add_u32 v{T0}, v{T0}, 5, v30")
        a(f"v_add_u32 v{V_VB+j}, {VREG}, v{T0}")
    a(f"v_lshlrev_b32 v31, 1, v{rho}")
    a(f"v_lshlrev_b32 v30, 9, v{row}")
    for j in range(4):
        a(f"v_add_u32 v{T0}, {4*j}, v{cc}")
        a(f"v_xor_b32 v{T0}, v{T0}, v31")
        a(f"v_lshl_add_u32 v{T0}, v{T0}, 4, v30")
        a(f"v_add_u32 v{V_WB+j}, {WBASE}, v{T0}")
    a(f"s_mov_b32 s{S_THR}, {hex(f2u(cfg.thr))}")

    def wread(s, u, half):
        T = u >> 1
        off = (WRING[s % 4] - WBASE) + (T >> 2) * 256 + (u & 1) * 8 + half * 8192
        r = A_W + 4 * u + 2 * half
        lg.issue(f"ds_read_b64_tr_b16 {ar(r,2)}, v{V_WB + (T & 3)} offset:{off}", ("w", s, u, half))
    def xread(s, qt):
        sp = s >> 1
        if sp < 4:
            off, base = qt * 8192 + sp * 1024, V_XB
        else:
            off, base = qt * 6144 + (sp - 4) * 1024, V_XB2
        lg.issue(f"ds_read_b128 {ar(Xreg(s, qt), 4)}, v{base + (s & 1)} offset:{off}", ("x", s, qt))
    NWP = 6
    n_after = 8 if (cfg.warm_wq and not cfg.warm2) else 0
    a(f"s_waitcnt vmcnt({n_after})")
    for qt in range(3): xread(0, qt)
    for s in range(14):
        a("s_barrier")
        pre_done = s >= 1
        if not pre_done:
            if s == 0: lg.need(("x", 0, 2))
            for u in range(NWP - (2 if s == 0 else 0)):
                wread(s, u, 0); wread(s, u, 1)
        nfirst = NWP - (2 if s == 0 else 0)
        mf = []
        for u in range(16):
            for qt in range(3):
                pre = None
                if qt == 0 and u % 2 == 0:
                    pre = (lambda s=s, u=u: lg.need(("w", s, u + 1, 1)))
                D = v(QAcc(u, qt), 4)
                mf.append((pre, (lambda D=D, s=s, u=u, qt=qt: mfma(a, D, ar(A_W + 4*u, 4), ar(Xreg(s, qt), 4), "0" if s == 0 else None))))
        st = []
        for u in range(nfirst, 16):
            for h in range(2):
                st.append(It((lambda s=s, u=u, h=h: wread(s, u, h)), 4, max(0, 3*(u - NWP) + h), max(0, 3*(u - 3))))
        nxt_pre = (s + 1 <= 13)
        if nxt_pre:
            for u in range(NWP):
                for h in range(2):
                    st.append(It((lambda s=s, u=u, h=h: wread(s + 1, u, h)), 4, 3*(16 + u - NWP) + h))
        streams = [st]
        if s == 0:
            xs = [It((lambda ss=ss, qt=qt: xread(ss, qt)), 4, ((ss - 1)*3 + qt) * 2) for ss in range(1, 8) for qt in range(3)]
            streams.append(xs)
        if s in (cfg.xb_read, cfg.xb_read + 1) and cfg.xb_one == 0:
            lo = 8 + 3*(s - cfg.xb_read)
            xs = [It((lambda ss=ss, qt=qt: xread(ss, qt)), 4, ((ss - lo)*3 + qt) * 5) for ss in range(lo, lo + 3) for qt in range(3)]
            streams.append(xs)
        if s == cfg.xb_read and cfg.xb_one:
            xs = [It((lambda ss=ss, qt=qt: xread(ss, qt)), 4, ((ss - 8)*3 + qt) * 2) for ss in range(8, 14) for qt in range(3)]
            streams.append(xs)
        sched(a, mf, streams)
        if s == 0:
            lg.need(("x", 7, 2))
        if s == cfg.xb_read + (0 if cfg.xb_one else 1):
            lg.need(("x", 13, 2))
    lg.drain()
    if cfg.dump == "qacc":
        emit_dump_v(a, cfg, V_QACC, 192); return
    a(f"s_mov_b32 s74, {hex(f2u(QSCALE))}")
    a(f"s_mov_b32 s75, {hex(f2u(QSCALE))}")
    a(f"v_mov_b32 v{T0}, 0x3f803f80")
    for r in range(4):
        a(f"v_accvgpr_write_b32 a{A_ONES+r}, v{T0}")
    a("s_nop 3")
    for i in range(23, -1, -1):
        src = V_QACC + 8 * i
        dst = V_Q + 4 * i
        for r in range(4):
            a(f"v_pk_mul_f32 {v(src + 2*r, 2)}, {v(src + 2*r, 2)}, s[74:75]")
        for r in range(3, -1, -1):
            a(f"v_cvt_pk_bf16_f32 v{dst + r}, v{src + 2*r}, v{src + 2*r + 1}")
    if cfg.dump == "q":
        emit_dump_v(a, cfg, V_Q, 96); return

    def kread(t, f):
        aa, T = f >> 3, f & 7
        off = KS[t % 4] + aa * 8192 + (T >> 2) * 256
        lg.issue(f"ds_read_b128 {v(V_KBUF + 4*(f % 8), 4)}, v{V_KB + (T & 3)} offset:{off}", ("k", t, f))
    def vread(t, u, half):
        off = (VS[t % 4] - VREG) + (u >> 3) * 256 + half * 8192
        r = V_VBUF + 4 * (u % 8) + 2 * half
        lg.issue(f"ds_read_b64_tr_b16 {v(r,2)}, v{V_VB + (u & 7)} offset:{off}", ("v", t, u, half))

    def exp_items(t):
        par = t & 1
        st = []
        for qt in range(3):
            for aa in range(2):
                s = Sreg(par, qt, aa)
                for hh in range(2):
                    e0, e1 = s + 2*hh, s + 2*hh + 1
                    pr = V_P + qt*4 + aa*2 + hh
                    st.append(It((lambda e=e0: a(f"v_exp_f32 v{e}, v{e}")), 8))
                    st.append(It((lambda e=e1: a(f"v_exp_f32 v{e}, v{e}")), 8))
                    st.append(("cvt", It((lambda pr=pr, e0=e0, e1=e1: a(f"v_cvt_pk_bf16_f32 v{pr}, v{e0}, v{e1}")), 4)))
        exps = [x for x in st if not isinstance(x, tuple)]
        cvts = [x[1] for x in st if isinstance(x, tuple)]
        return exps, cvts

    def phaseA(t):
        jit = t >= cfg.t_jit
        doqk = t + 1 <= 31
        doexp = t >= 0
        if doexp: exps, cvts = exp_items(t)
        if not doqk:
            vq = [(u, h) for u in range(NVP) for h in range(2)] if not jit else []
            if t >= cfg.t_mid:
                for grp in range(12):
                    exps[2*grp].fn(); exps[2*grp+1].fn()
                    if grp > 0: cvts[grp-1].fn()
                a("s_barrier")
                for (u, h) in vq: vread(t, u, h)
                cvts[11].fn()
                return
            for grp in range(12):
                exps[2*grp].fn(); exps[2*grp+1].fn()
                if grp > 0: cvts[grp-1].fn()
                if vq: vread(t, *vq.pop(0))
            a("s_nop 0")
            cvts[11].fn()
            while vq: vread(t, *vq.pop(0))
            return
        par1 = (t + 1) & 1
        mf = []
        for m in range(48):
            aa, T, qt = m // 24, (m % 24) // 3, m % 3
            f = aa * 8 + T
            pre = None
            if qt == 0 and f % 2 == 0:
                pre = (lambda f=f: lg.need(("k", t + 1, f + 1)))
            C = None
            if T == 0: C = "0" if t == -1 else v(V_CM + 4*qt, 4)
            D = v(Sreg(par1, qt, aa), 4)
            mf.append((pre, (lambda D=D, f=f, qt=qt, T=T, C=C: mfma(a, D, v(V_KBUF + 4*(f % 8), 4), v(Qreg(qt, T), 4), C))))
        ks = [It((lambda f=f: kread(t + 1, f)), 4, max(0, 3*(f - 8) + 2), 3*f - 8, ds=True) for f in range(NKP, 16)]
        streams = [ks]
        if jit:
            for f in range(NKP): kread(t + 1, f)
            npre = cfg.jit_pre
            for g in range(npre):
                exps[2*g].fn(); exps[2*g+1].fn()
                if g > 0: cvts[g-1].fn()
            exps = exps[2*npre:]
            rest = 12 - npre
            step = 46 // rest
            for i, e in enumerate(exps):
                e.earliest = step*(i // 2) + (i & 1); e.deadline = e.earliest
            cv = cvts[npre-1:]
            cv[0].earliest = 0; cv[0].deadline = 1
            for i, c in enumerate(cv[1:]):
                c.earliest = step*i + 2; c.deadline = min(step*i + 5, 47)
            streams = [exps, cv, ks]
        elif doexp:
            for i, e in enumerate(exps):
                e.earliest = 4*(i // 2) + (i & 1); e.deadline = e.earliest
            for i, c in enumerate(cvts):
                c.earliest = 4*i + 2; c.deadline = min(4*i + 5, 47)
            vs = [It((lambda u=u, h=h: vread(t, u, h)), 4, cfg.mid_a + 1 if t >= cfg.t_mid else 26, ds=True) for u in range(NVP) for h in range(2)]
            streams = [exps, cvts, ks, vs]
            if t >= cfg.t_mid:
                streams = [[It((lambda: a("s_barrier")), 4, cfg.mid_a, cfg.mid_a)]] + streams
        sched(a, mf, streams)

    def phaseB(t, extra=None):
        jit = t >= cfg.t_jit
        first = (t == 0)
        docheck = t + 1 <= 31
        par1 = (t + 1) & 1
        Z = "0" if first else None
        mf = []
        for qt in range(3):
            mf.append((None, (lambda qt=qt: mfma(a, ar(A_L + 4*qt, 4), ar(A_ONES, 4), v(V_P + 4*qt, 4), Z))))
        for m in range(48):
            u, qt = m // 3, m % 3
            pre = None
            if qt == 0 and u % 2 == 0:
                pre = (lambda u=u: lg.need(("v", t, u + 1, 1)))
            mf.append((pre, (lambda u=u, qt=qt: mfma(a, ar(Oreg(u, qt), 4), v(V_VBUF + 4*(u % 8), 4), v(V_P + 4*qt, 4), Z))))
        if jit:
            a("s_barrier")
            for u in range(NVP):
                vread(t, u, 0); vread(t, u, 1)
        vs = []
        for u in range(NVP, 16):
            e = max(0 if u < 8 else 3 + 3*(u - 8) + 2, 3 + 3*(u - NVP - 1))
            for h in range(2):
                vs.append(It((lambda u=u, h=h: vread(t, u, h)), 4, e + h, 3 + 3*u - 9 + h, ds=True))
        streams = [vs]
        if docheck:
            s0 = V_S[par1]; mx = V_TMP
            chk = [f"v_max3_f32 v{mx}, v{s0}, v{s0+1}, v{s0+2}"]
            for k in range(10):
                chk.append(f"v_max3_f32 v{mx}, v{mx}, v{s0+3+2*k}, v{s0+4+2*k}")
            chk.append(f"v_max_f32 v{mx}, v{mx}, v{s0+23}")
            chk.append(f"v_cmp_lt_f32 vcc, s{S_THR}, v{mx}")
            streams.append([It((lambda c=c: a(c)), 4, (6 + 2*i) if not jit else (i // 2 if i < 6 else 2*i)) for i, c in enumerate(chk)])
        if t + 2 <= 31 and not (t + 1 >= cfg.t_jit):
            if t >= cfg.t_mid:
                streams.insert(0, [It((lambda: a("s_barrier")), 4, cfg.mid_b, cfg.mid_b)])
                streams.append([It((lambda f=f: kread(t + 2, f)), 4, cfg.mid_b + 1 + 2*f, ds=True) for f in range(NKP)])
            else:
                streams.append([It((lambda f=f: kread(t + 2, f)), 4, 30 + 2*f, ds=True) for f in range(NKP)])
        if extra: streams += extra
        a("s_nop 1")
        sched(a, mf, streams)

    def check_branch(t, tag):
        a(f"s_cbranch_vccnz L_rare_{tag}")
        a.label(f"L_back_{tag}")
        rare_blocks.append((tag, (t + 1) & 1))

    a("s_barrier")
    for f in range(NKP): kread(0, f)
    phaseA(-1)
    for f in range(NKP): kread(1, f)
    a("s_nop 1")
    for qt in range(3):
        s0 = Sreg(0, qt, 0)
        mx = V_TMP + qt
        a(f"v_max3_f32 v{mx}, v{s0}, v{s0+1}, v{s0+2}")
        a(f"v_max3_f32 v{mx}, v{mx}, v{s0+3}, v{s0+4}")
        a(f"v_max3_f32 v{mx}, v{mx}, v{s0+5}, v{s0+6}")
        a(f"v_max_f32 v{mx}, v{mx}, v{s0+7}")
    for step in range(2):
        for qt in range(3): a(f"v_mov_b32 v{V_TMP+4+qt}, v{V_TMP+qt}")
        a("s_nop 0")
        for qt in range(3):
            a(f"v_permlane{32 if step == 0 else 16}_swap_b32 v{V_TMP+qt}, v{V_TMP+4+qt}")
        a("s_nop 0")
        for qt in range(3): a(f"v_max_f32 v{V_TMP+qt}, v{V_TMP+qt}, v{V_TMP+4+qt}")
    for qt in range(3):
        s0 = Sreg(0, qt, 0); mx = V_TMP + qt
        for r in range(8):
            a(f"v_sub_f32 v{s0+r}, v{s0+r}, v{mx}")
        for r in range(4):
            a(f"v_sub_f32 v{V_CM + 4*qt + r}, 0, v{mx}")
    if cfg.dump == "s0":
        lg.drain()
        emit_dump_v(a, cfg, V_S[0], 24, extra=(V_CM, 12)); return

    def iteration(t, tag):
        if t < cfg.t_mid: a("s_barrier")
        phaseA(t)
        phaseB(t)
        if t + 1 <= 31:
            check_branch(t, tag)

    def loop(t_first, ntrips, name):
        q0 = list(lg.q)
        a(f"s_mov_b32 s{S_CNT}, {ntrips}")
        a.label(name)
        for t in range(t_first, t_first + 4):
            iteration(t, f"{name}_{t}")
        q1 = [(x[0], x[1] - 4) + x[2:] for x in lg.q]
        assert q0 == q1, (q0, q1)
        a(f"s_sub_u32 s{S_CNT}, s{S_CNT}, 1")
        a(f"s_cmp_lg_u32 s{S_CNT}, 0")
        a(f"s_cbranch_scc1 {name}")
        d = 4 * ntrips
        lg.q = [(x[0], x[1] + d) + x[2:] for x in q0]
        for x in lg.q: lg.issued.add(x)
        for f in range(16): lg.issued.add(("k", t_first + d + 1, f))
    iteration(0, "p0")
    tj = cfg.t_jit
    if cfg.t_mid <= 28:
        tm = cfg.t_mid
        assert (tm - 1) % 4 == 0
        if tm > 1:
            save = cfg.t_mid; cfg.t_mid = 99
            loop(1, (tm - 1) // 4, "L_loop")
            cfg.t_mid = save
        loop(tm, (29 - tm) // 4, "L_loopm")
    elif tj > 28:
        loop(1, 7, "L_loop")
    else:
        assert (tj - 1) % 4 == 0 and (29 - tj) % 4 == 0
        if tj > 1:
            save = cfg.t_jit; cfg.t_jit = 99
            loop(1, (tj - 1) // 4, "L_loop")
            cfg.t_jit = save
        lg.drain()
        loop(tj, (29 - tj) // 4, "L_loopj")
    a.label("L_tail_code")
    for t in range(29, 31):
        iteration(t, f"e{t}")

    def oconv_items(T, earliest=0):
        its = []
        for qt in range(3):
            tb = V_CT + 8 * qt
            for h in range(2):
                o = Oreg(2*T + h, qt)
                for r in range(4):
                    its.append(It((lambda d=tb + 4*h + r, s=o + r: a(f"v_accvgpr_read_b32 v{d}, a{s}")), 4, earliest))
            q = Qreg(qt, T)
            for r in range(4):
                its.append(It((lambda d=q + r, s=tb + 2*r: a(f"v_cvt_pk_bf16_f32 v{d}, v{s}, v{s+1}")), 4, earliest))
        return its

    def wo_base(j, jj):
        addr = WOSLOT[j]
        if addr < VREG: return VBK + jj, addr
        if addr < VREG + 65536: return V_VB + jj, addr - VREG
        return VBE + jj, addr - VREG - 65536
    steps = []
    fine = cfg.fine
    NP = 7 if fine else 4
    merge0 = fine and cfg.merge0
    if fine:
        if merge0:
            for T in range(8):
                steps.append((0, T, T//2, T & 1, 8))
        for p in range(2 if merge0 else 0, 7):
            for T in range(8):
                steps.append((p, T, 2*p + T//4, T & 3, 4))
    else:
        for p in range(3):
            for T in range(8):
                steps.append((p, T, 4*p + T//2, T & 1, 8))
        for T in range(8):
            steps.append((3, T, 12 + T//4, T & 3, 4))
    frs = []
    for si, (p, T, j, tau, nu) in enumerate(steps):
        for u in range(nu):
            frs.append((si, p, T, j, tau, nu, u))
    FBN = 12
    def oread(k, half):
        si, p, T, j, tau, nu, u = frs[k]
        tp = (8*tau + u) if nu == 8 else (4*tau + u)
        br, off = wo_base(j, tp & 7)
        off += (tp >> 3) * 256 + half * 8192
        r = A_WO + 4 * (k % FBN) + 2 * half
        lg.issue(f"ds_read_b64_tr_b16 {ar(r,2)}, v{br} offset:{off}", ("o", k, half))
    def accreg(p, u, qt):
        i = (u * 3 + qt) * 4
        if merge0:
            if p == 0: return ("v", V_P0 + i)
            if p == 2: return ("a", i)
            return ("v", V_P0 + 48 * ((p + 1) & 1) + i)
        if fine: return ("v", V_P0 + 48 * (p & 1) + i)
        if p == 0 or p == 2: return ("v", V_P0 + i)
        return ("a", i)
    def accstr(p, u, qt):
        f, r = accreg(p, u, qt)
        return v(r, 4) if f == "v" else ar(r, 4)
    slotc = [0]
    slog = []
    scale_red = cfg.fused and cfg.scale_red
    def conv_items(p, packed=False):
        its = []
        nu = 8 if ((p < 3 and not fine) or (merge0 and p == 0)) else 4
        for up in range(nu // 2):
            for qt in range(3):
                rl = V_RL + qt * 0
                rlp = f"v[{V_RL + 2*qt}:{V_RL + 2*qt + 1}]"
                f, _ = accreg(p, 0, 0)
                tb = V_CT + 12 * (slotc[0] % 2); slotc[0] += 1
                out = tb + 8
                if f == "a":
                    for h in range(2):
                        o = accreg(p, 2*up + h, qt)[1]
                        for r in range(4):
                            its.append(It((lambda d=tb + 4*h + r, s=o + r: a(f"v_accvgpr_read_b32 v{d}, a{s}"))))
                    srcs = [tb + 2*r for r in range(4)]
                else:
                    o0 = accreg(p, 2*up, qt)[1]; o1 = accreg(p, 2*up + 1, qt)[1]
                    srcs = [o0, o0 + 2, o1, o1 + 2]
                for sreg in (srcs if not scale_red else []):
                    if packed:
                        its.append(It((lambda s=sreg, rlp=rlp: a(f"v_pk_mul_f32 {v(s,2)}, {v(s,2)}, {rlp}"))))
                    else:
                        for k in range(2):
                            its.append(It((lambda s=sreg + k, qt=qt: a(f"v_mul_f32 v{s}, v{V_RL + 2*qt}, v{s}"))))
                for r, sreg in enumerate(srcs):
                    its.append(It((lambda d=out + r, s=sreg: a(f"v_cvt_pk_bf16_f32 v{d}, v{s}, v{s+1}"))))
                upair = (2*p if fine else 4*p) + up
                its.append(It((lambda c=(qt*14 + upair)*1024: a(f"s_add_u32 s{S_SO}, s{S_WOFF}, {c}")), 4))
                its.append(It((lambda o=out, p=p: (a(f"buffer_store_dwordx4 {v(o,4)}, v{V_ST}, s[{S_WS}:{S_WS+3}], s{S_SO} offen{cfg.st_flags}"), slog.append(p))), 4))
        return its

    def cstamp(i):
        if cfg.stamps and cfg.cstamps and (cfg.cst_all or i in (0, 7, 8, 9, 10, 11)):
            lg.drain()
            a("s_memrealtime s[62:63]")
            a("s_waitcnt lgkmcnt(0)")
            a(f"v_writelane_b32 v7, s62, {i}")
    svm = Vm(a)
    def signal_a(p, nafter):
        a(f"s_waitcnt vmcnt({nafter})")
        a("s_mov_b64 exec, 1")
        lg.issue(f"ds_add_rtn_u32 v6, v4, v5 offset:{4*p}", ("sig", p))
        a("s_mov_b64 exec, -1")
    def signal_b(p):
        lg.need(("sig", p))
        a("v_readfirstlane_b32 s90, v6")
        a("s_nop 3")
        a("s_cmp_eq_u32 s90, 2")
        a(f"s_cbranch_scc0 L_nosig{p}")
        a("s_mov_b64 exec, 1")
        a(f"s_mov_b32 s88, {4096*p}")
        a(f"buffer_atomic_add v5, off, s[84:87], s88")
        a("s_mov_b64 exec, -1")
        a.label(f"L_nosig{p}")
    if 31 < cfg.t_mid: a("s_barrier")
    phaseA(31)
    setup_its = []
    for j in range(8):
        setup_its.append(It((lambda j=j: a(f"v_subrev_u32 v{VBK+j}, {VREG}, v{V_VB+j}")), 4, 0))
        setup_its.append(It((lambda j=j: a(f"v_add_u32 v{VBE+j}, {VREG}, v{V_VB+j}")), 4, 0))
    NOP_ = cfg.nop
    ex1 = oconv_items(0, earliest=3 + 3*1 + 2 + 8)
    ex2 = oconv_items(1, earliest=3 + 3*3 + 2 + 8)
    pre_o = [It((lambda k=k, h=h: oread(k, h)), 4, 38, ds=True) for k in range(NOP_) for h in range(2)]
    phaseB(31, extra=[setup_its, ex1 + ex2, pre_o])
    if cfg.dump == "o":
        a("s_nop 7")
        emit_dump_acc(a, cfg, 204); return
    a(f"v_lshlrev_b32 v{V_ST}, 4, v{lane}")
    a(f"s_mul_i32 s{S_WOFF}, s{S_WID}, {3*14*1024}")
    for qt in range(3):
        a(f"v_accvgpr_read_b32 v{V_RL+2*qt}, a{A_L + 4*qt}")
    for qt in range(3):
        a(f"v_rcp_f32 v{V_RL+2*qt}, v{V_RL+2*qt}")
    a("s_nop 0")
    for qt in range(3):
        a(f"v_mov_b32 v{V_RL+2*qt+1}, v{V_RL+2*qt}")
    if cfg.fused:
        a(f"v_mov_b32 v4, {VS[0]}")
        a("v_mov_b32 v5, 1")
        emit_red_setup(a, cfg)
    if scale_red:
        a(f"v_and_b32 v6, 15, v{lane}")
        a("v_lshlrev_b32 v6, 6, v6")
        a(f"s_mul_i32 s90, s{S_WID}, 3072")
        a(f"s_lshl_b32 s91, s{S_H}, 2")
        a("s_add_u32 s90, s90, s91")
        a("s_mov_b64 exec, 0xffff")
        for qt in range(3):
            a(f"buffer_store_dword v{V_RL+2*qt}, v6, s[64:67], s90 offen offset:{1024*qt}{cfg.st_flags}")
            slog.append(-1)
        a("s_mov_b64 exec, -1")

    cur_slot = -1
    nxt = NOP_
    pend = []
    store_log = slog
    stores_since = {q: (lambda q=q: sum(1 for i, x in enumerate(store_log) if i > max(k for k, y in enumerate(store_log) if y == q))) for q in range(NP)}
    sg0 = (3, cfg.sig_f0, 0 if merge0 else 1) if fine else (2, cfg.sig_t, 0)
    sg1 = (5, cfg.sig_f1, 3) if fine else (3, cfg.sig_t1, 1)
    for si, (p, T, j, tau, nu) in enumerate(steps):
        if j != cur_slot:
            if j < ntb(cfg): a("s_barrier")
            cur_slot = j
            if cfg.slot_stamps: a(f"s_memtime s[{SLST[j]}:{SLST[j]+1}]")
        if T == 0 and (p == 0 or not fine): cstamp(p)
        if cfg.fused and p == sg0[0] and T == sg0[1]:
            signal_a(0, stores_since[sg0[2]]())
            cstamp(4)
        if cfg.fused and p == sg0[0] and T == sg0[1] + 1:
            signal_b(0)
        if cfg.fused and p == sg1[0] and T == sg1[1]:
            cstamp(5)
            signal_a(1, stores_since[sg1[2]]())
            cstamp(6)
        if cfg.fused and p == sg1[0] and T == sg1[1] + 1:
            signal_b(1)
        k0 = sum(s[4] for s in steps[:si])
        if T == 0 and p > 0:
            assert not pend
            pend = conv_items(0 if (merge0 and p == 2) else p - 1)
            for it in pend[:1]: pass
        mf = []
        for u in range(nu):
            k = k0 + u
            for qt in range(3):
                pre = None
                if qt == 0 and u % 2 == 0:
                    pre = (lambda k=k: lg.need(("o", k + 1, 1)))
                mf.append((pre, (lambda u=u, qt=qt, k=k: mfma(a, accstr(p, u, qt), ar(A_WO + 4*(k % FBN), 4), v(Qreg(qt, T), 4), "0" if T == 0 else None))))
        rs = []
        lim = k0 + nu + NOP_
        while nxt < len(frs) and nxt < lim and frs[nxt][3] <= j + 1:
            kk = nxt
            use = 3 * (kk - k0)
            e = max(0, 3 * (kk - FBN - k0) + 2)
            for h in range(2):
                rs.append(It((lambda kk=kk, h=h: oread(kk, h)), 4, max(e, use - 3*NOP_ - 3) + h, max(0, use - 10 + h), ds=True))
            nxt += 1
        streams = [rs]
        if p == 0 and T + 2 <= 7:
            streams.append(oconv_items(T + 2))
        if pend:
            if T == 0:
                for it in pend: it.earliest = 4
            streams.append(pend)
            last_of_pass = (T == 7)
            sched(a, mf, [rs] + [pend], flush=False)
            while rs: rs.pop(0).fn()
            if last_of_pass:
                while pend: pend.pop(0).fn()
            for it in pend: it.earliest = 0
        else:
            sched(a, mf, streams)
    if cfg.slot_stamps: a(f"s_memtime s[{SLST[14]}:{SLST[14]+1}]")
    cstamp(7)
    a("s_nop 7")
    for it in conv_items(NP - 1, packed=True): it.fn()
    cstamp(8)
    a.label("L_tail_end")
    print("lds throttles:", lg.throttled, file=sys.stderr)
    if cfg.fused:
        signal_a(2, 0); cstamp(9); signal_b(2)
        if cfg.decouple: emit_poll(a, cfg, 2)
        else: a("s_barrier")
        cstamp(10)
        emit_final_reduce(a, cfg)
        if cfg.stamps and cfg.cstamps:
            a("s_waitcnt vmcnt(0)")
            cstamp(11)
            if cfg.slot_stamps:
                a("s_waitcnt lgkmcnt(0)")
                for j in range(15):
                    a(f"v_writelane_b32 v7, s{SLST[j]}, {16 + j}")
            a("s_mov_b32 s76, s72"); a("s_mov_b32 s77, s73")
            a("s_mov_b32 s78, 0x10000000"); a("s_mov_b32 s79, 0x20000")
            a("s_mul_i32 s74, s2, 3")
            a(f"s_add_u32 s74, s74, s{S_WID}")
            a("s_lshl_b32 s74, s74, 8")
            a("s_add_u32 s74, s74, 0x4400000")
            a(f"v_lshlrev_b32 v6, 2, v{V_LANE}")
            a("buffer_store_dword v7, v6, s[76:79], s74 offen")
    elif cfg.stamps:
        a("s_waitcnt vmcnt(0)")
        a("s_barrier")
    a("s_branch L_end")

def emit_rare(a, cfg, rare_blocks):
    for tag, par in rare_blocks:
        a.label(f"L_rare_{tag}")
        a("s_nop 7")
        for qt in range(3):
            s0 = Sreg(par, qt, 0)
            mx = V_TMP + qt
            a(f"v_max3_f32 v{mx}, v{s0}, v{s0+1}, v{s0+2}")
            a(f"v_max3_f32 v{mx}, v{mx}, v{s0+3}, v{s0+4}")
            a(f"v_max3_f32 v{mx}, v{mx}, v{s0+5}, v{s0+6}")
            a(f"v_max_f32 v{mx}, v{mx}, v{s0+7}")
            xlane_max(a, mx, V_TMP + 4)
            a(f"v_max_f32 v{mx}, 0, v{mx}")
            for r in range(8):
                a(f"v_sub_f32 v{s0+r}, v{s0+r}, v{mx}")
            for r in range(4):
                a(f"v_sub_f32 v{V_CM + 4*qt + r}, v{V_CM + 4*qt + r}, v{mx}")
            a(f"v_sub_f32 v{mx}, 0, v{mx}")
            a(f"v_exp_f32 v{mx}, v{mx}")
        a(f"s_getpc_b64 s[{S_TGT}:{S_TGT+1}]")
        a.label(f"L_pc_{tag}")
        a(f"s_add_u32 s{S_TGT}, s{S_TGT}, L_rescale-L_pc_{tag}")
        a(f"s_addc_u32 s{S_TGT+1}, s{S_TGT+1}, 0")
        a(f"s_swappc_b64 s[{S_RET}:{S_RET+1}], s[{S_TGT}:{S_TGT+1}]")
        a(f"s_branch L_back_{tag}")
    if not rare_blocks: return
    a.label("L_rescale")
    a("s_nop 7")
    for qt in range(3):
        regs = [Oreg(u, qt) + r for u in range(16) for r in range(4)] + [A_L + 4*qt + r for r in range(4)]
        for i in range(0, len(regs), 4):
            for k in range(4):
                a(f"v_accvgpr_read_b32 v{V_TMP+4+k}, a{regs[i+k]}")
            for k in range(4):
                a(f"v_mul_f32 v{V_TMP+4+k}, v{V_TMP+qt}, v{V_TMP+4+k}")
            for k in range(4):
                a(f"v_accvgpr_write_b32 a{regs[i+k]}, v{V_TMP+4+k}")
    a("s_nop 1")
    a(f"s_setpc_b64 s[{S_RET}:{S_RET+1}]")

def emit_dump_common(a, cfg, regs, isacc):
    a("s_mov_b32 s76, s72"); a("s_mov_b32 s77, s73")
    a("s_mov_b32 s78, 0x10000000"); a("s_mov_b32 s79, 0x20000")
    a(f"s_mul_i32 s74, s2, 3")
    a(f"s_add_u32 s74, s74, s{S_WID}")
    a("s_lshl_b32 s74, s74, 16")
    a(f"v_lshlrev_b32 v{V_T0}, 2, v{V_LANE}")
    for i, r in enumerate(regs):
        if isacc:
            a(f"v_accvgpr_read_b32 v{V_T1}, a{r}")
            src = V_T1
        else:
            src = r
        a(f"buffer_store_dword v{src}, v{V_T0}, s[76:79], s74 offen")
        a("s_add_u32 s74, s74, 256")
        if isacc: a("s_waitcnt vmcnt(0)")
    a("s_waitcnt vmcnt(0)")
    n = {"qacc": 33 + 14, "q": 33 + 14, "s0": 32 + 14, "o": 14}[cfg.dump]
    for _ in range(n): a("s_barrier")
    if cfg.stamps: a("s_barrier")
    a.label("L_tail_end")
    if cfg.dump != "o": a.label("L_tail_code")
    a("s_branch L_end")
def emit_dump_acc(a, cfg, n):
    a("s_nop 7")
    emit_dump_common(a, cfg, list(range(n)), True)
def emit_dump_v(a, cfg, base, n, extra=None):
    regs = list(range(base, base + n))
    if extra: regs += list(range(extra[0], extra[0] + extra[1]))
    emit_dump_common(a, cfg, regs, False)

def emit_reduce(a, cfg):
    a.raw(f".globl {RNAME}")
    a.raw(".p2align 8")
    a.raw(f".type {RNAME},@function")
    a.label(RNAME)
    a("s_cmp_ge_u32 s2, 504")
    a("s_cbranch_scc1 LR_end")
    a("s_load_dwordx2 s[4:5], s[0:1], 96")
    a("s_load_dwordx2 s[8:9], s[0:1], 80")
    a("v_lshrrev_b32 v1, 6, v0")
    a("v_and_b32 v2, 63, v0")
    a("v_readfirstlane_b32 s3, v1")
    a("s_lshl_b32 s12, s2, 2")
    a("s_add_u32 s12, s12, s3")
    a(f"s_mul_hi_u32 s13, s12, {(2**32 + 125)//126}")
    a("s_mul_i32 s14, s13, 126")
    a("s_sub_u32 s14, s12, s14")
    a(f"s_mul_hi_u32 s15, s14, {(2**32 + 13)//14}")
    a("s_mul_i32 s16, s15, 14")
    a("s_sub_u32 s16, s14, s16")
    a("s_waitcnt lgkmcnt(0)")
    a(f"s_mul_i32 s17, s13, {16*129024}")
    a("s_lshl_b32 s18, s14, 10")
    a("s_add_u32 s17, s17, s18")
    a("s_add_u32 s4, s4, s17")
    a("s_addc_u32 s5, s5, 0")
    a(f"s_mov_b32 s6, {15*129024 + 1024}")
    a("s_mov_b32 s7, 0x20000")
    a("v_lshlrev_b32 v3, 4, v2")
    for h in range(16):
        a(f"s_mov_b32 s19, {h*129024}")
        a(f"buffer_load_dwordx4 v[{8+4*h}:{11+4*h}], v3, s[4:7], s19 offen{cfg.rd_flags}")
    a("s_and_b32 s20, s13, 7")
    a("s_lshr_b32 s21, s13, 3")
    a("s_mul_i32 s20, s20, 144")
    a("s_lshl_b32 s22, s15, 4")
    a("s_add_u32 s20, s20, s22")
    a("s_mul_i32 s20, s20, 1792")
    a("s_mul_i32 s21, s21, 896")
    a("s_lshl_b32 s22, s16, 6")
    a("s_add_u32 s20, s20, s21")
    a("s_add_u32 s20, s20, s22")
    a("v_and_b32 v4, 15, v2")
    a("v_mul_u32_u24 v4, 1792, v4")
    a("v_lshrrev_b32 v5, 4, v2")
    a("v_lshl_add_u32 v4, v5, 3, v4")
    a("s_mov_b32 s10, %d" % (8*144*896*2))
    a("s_mov_b32 s11, 0x20000")
    for h in range(16):
        a(f"s_waitcnt vmcnt({15-h})")
        for r in range(4):
            src = 8 + 4*h + r
            if h == 0:
                a(f"v_lshlrev_b32 v{72+2*r}, 16, v{src}")
                a(f"v_and_b32 v{73+2*r}, 0xffff0000, v{src}")
            else:
                a(f"v_lshlrev_b32 v80, 16, v{src}")
                a(f"v_and_b32 v81, 0xffff0000, v{src}")
                a(f"v_add_f32 v{72+2*r}, v{72+2*r}, v80")
                a(f"v_add_f32 v{73+2*r}, v{73+2*r}, v81")
    for r in range(4):
        a(f"v_cvt_pk_bf16_f32 v{84+r}, v{72+2*r}, v{73+2*r}")
    a("buffer_store_dwordx2 v[84:85], v4, s[8:11], s20 offen")
    a("buffer_store_dwordx2 v[86:87], v4, s[8:11], s20 offen offset:32")
    a.label("LR_end")
    a("s_endpgm")

def kd(a, name, vg, acc, sg=102):
    a.raw(f".amdhsa_kernel {name}")
    a.raw(f"  .amdhsa_next_free_vgpr {vg}")
    a.raw(f"  .amdhsa_next_free_sgpr {sg}")
    a.raw(f"  .amdhsa_accum_offset {acc}")
    a.raw("  .amdhsa_group_segment_fixed_size 0")
    a.raw("  .amdhsa_kernarg_size 104")
    a.raw("  .amdhsa_user_sgpr_count 2")
    a.raw("  .amdhsa_user_sgpr_kernarg_segment_ptr 1")
    a.raw("  .amdhsa_system_sgpr_workgroup_id_x 1")
    a.raw(".end_amdhsa_kernel")

HEADER = """; Fused MHA block (two branches): Q-proj + flash attention + partial out-proj per (branch,batch,head) workgroup,
"""
def generate(cfg):
    a = Asm()
    a.raw(HEADER.rstrip())
    if cfg.fused and not cfg.aslist:
        a.raw(f"; @launch grid=(256,1,1) block=(256,1,1) lds=163840")
    else:
        a.raw(f"; @launch kernel={KNAME} grid=(256,1,1) block=(256,1,1) lds=163840")
    if not cfg.dump and not cfg.fused:
        a.raw(f"; @launch kernel={RNAME} grid=(504,1,1) block=(256,1,1) lds=0")
    a.raw('.amdgcn_target "amdgcn-amd-amdhsa--gfx950"')
    a.raw(".text")
    a.raw(f".globl {KNAME}")
    a.raw(".p2align 8")
    a.raw(f".type {KNAME},@function")
    a.label(KNAME)
    emit_setup(a, cfg)
    rare = []
    if cfg.fast_start:
        head = a.L; a.L = []
        early, late = emit_loader(a, cfg)
        a.L = []
        a.label("L_compute")
        emit_compute_main(a, cfg, rare)
        a.L = head + early + a.L + late
    else:
        emit_compute_main(a, cfg, rare)
        emit_loader(a, cfg)
    a.label("L_code_end")
    emit_rare(a, cfg, rare)
    a.label("L_end")
    a("s_endpgm")
    if not cfg.dump and not cfg.fused:
        emit_reduce(a, cfg)
    a.raw('.section .rodata,"a"')
    a.raw(".p2align 6")
    kd(a, KNAME, 512, 256)
    if not cfg.dump and not cfg.fused:
        a.raw(".p2align 6")
        kd(a, RNAME, 96, 96, 32)
    return a.text()

if __name__ == "__main__":
    cfg = Cfg()
    out = sys.argv[1]
    if "one_ds=0" in sys.argv: ONE_DS[0] = False; sys.argv.remove("one_ds=0")
    for kv in sys.argv[2:]:
        k, val = kv.split("=", 1)
        cur = getattr(cfg, k)
        if isinstance(cur, bool): val = val in ("1", "True", "true")
        elif isinstance(cur, float): val = float(val)
        elif isinstance(cur, int): val = int(val)
        elif val == "None": val = None
        setattr(cfg, k, val)
    open(out, "w").write(generate(cfg))
```

```python
import sys, math, struct, re

KNAME = "concat_heads__mha_block_cached__mha_block_cached__near_ridge_kernel"
RNAME = "reduce_kernel"

class Asm:
    def __init__(self):
        self.L = []
    def __call__(self, s):
        self.L.append("    " + s)
    def label(self, s):
        self.L.append(s + ":")
    def raw(self, s):
        self.L.append(s)
    def text(self):
        return "\n".join(self.L) + "\n"

class Lgkm:
    def __init__(self, a):
        self.a = a; self.q = []; self.issued = set(); self.throttled = 0
    def issue(self, ins, tag):
        if len(self.q) >= 15:
            self.a("s_waitcnt lgkmcnt(14)"); self.q = self.q[len(self.q) - 14:]; self.throttled += 1
        self.a(ins); self.q.append(tag); self.issued.add(tag)
    def need(self, tag):
        assert tag in self.issued, ("not issued", tag)
        if tag in self.q:
            idx = len(self.q) - 1 - self.q[::-1].index(tag)
            n = len(self.q) - 1 - idx
            self.a(f"s_waitcnt lgkmcnt({n})")
            self.q = self.q[idx + 1:]
    def drain(self):
        if self.q:
            self.a("s_waitcnt lgkmcnt(0)")
            self.q = []

class Vm:
    def __init__(self, a):
        self.a = a; self.q = []
    def room(self, n):
        over = len(self.q) + n - 63
        if over > 0:
            keep = len(self.q) - over
            self.a(f"s_waitcnt vmcnt({keep})")
            self.q = self.q[over:]
    def issue(self, ins, tag):
        assert len(self.q) < 63
        self.a(ins); self.q.append(tag)
    def need(self, tag):
        if tag in self.q:
            idx = len(self.q) - 1 - self.q[::-1].index(tag)
            n = len(self.q) - 1 - idx
            self.a(f"s_waitcnt vmcnt({n})")
            self.q = self.q[idx + 1:]

class It:
    def __init__(self, fn, cost=4, earliest=0, deadline=10**9, ds=False):
        self.fn, self.cost, self.earliest, self.deadline, self.ds = fn, cost, earliest, deadline, ds
ONE_DS = [True]

def sched(a, mf, streams, budget=8, flush=True):
    n = len(mf)
    for m, (pre, emit) in enumerate(mf):
        if pre: pre()
        emit()
        b = budget
        if m + 1 < n and mf[m + 1][0] is not None: b -= 4
        nds = 0
        for st in streams:
            while st and st[0].deadline <= m:
                it = st.pop(0); it.fn(); b -= it.cost; nds += it.ds
        for st in streams:
            while st and st[0].earliest <= m and st[0].cost <= b and not (st[0].ds and nds >= 1 and ONE_DS[0]):
                it = st.pop(0); it.fn(); b -= it.cost; nds += it.ds
    if flush:
        prog = True
        while any(streams):
            for st in streams:
                if st:
                    it = st.pop(0); it.fn()

def v(n, cnt=1):
    return f"v{n}" if cnt == 1 else f"v[{n}:{n+cnt-1}]"
def ar(n, cnt=1):
    return f"a{n}" if cnt == 1 else f"a[{n}:{n+cnt-1}]"
def f2u(x): return struct.unpack("<I", struct.pack("<f", x))[0]

V_LANE = 1
V_T0, V_T1 = 2, 3
V_KB = 4
V_VB = 8
V_TMP = 16
V_S = [24, 48]
V_P = 72
V_CM = 84
V_KBUF = 96
V_VBUF = 128
V_Q = 160
A_O = 0
A_L = 192
A_ONES = 204
A_X = 0
A_W = 168
A_DUMMY = 232
V_QACC = 64
V_WB = 16
V_XB = 20
V_XB2 = 24
A_WO = 208
V_P0 = 64
VBK, VBE = 24, 32
V_RL = 16
V_ST = 22
V_CT = 40

def Qreg(qt, T): return V_Q + (qt * 8 + T) * 4
def Xreg(s, qt): return A_X + (s * 3 + qt) * 4
def QAcc(u, qt): return V_QACC + (qt * 8 + (u >> 1)) * 8 + 4 * (u & 1)
def Oreg(u, qt): return A_O + (u * 3 + qt) * 4
def Sreg(par, qt, a): return V_S[par] + (qt * 2 + a) * 4

KS = [i * 16384 for i in range(4)]
VREG = 65536
VS = [VREG + i * 16384 for i in range(4)]
ES = [131072, 147456]
WRING = [ES[0], ES[1], VS[2], VS[3]]
WBASE = VS[2]
XW = 43008
XAW = 24576
XBB = 32768
XBW = 18432
WOSLOT = [ES[0], ES[1], KS[0], KS[1], VS[0], KS[2], VS[1], KS[3], VS[2], VS[3], ES[0], ES[1], KS[0], KS[1]]

S_WID = 3
S_X, S_K, S_V, S_WQ, S_WO, S_WS = 4, 8, 12, 16, 20, 24
S_B, S_H, S_BR, S_THR = 28, 29, 30, 31
S_SO, S_SO2, S_CNT = 32, 33, 34
S_RET, S_TGT = 36, 38
S_WOFF = 40
S_PC = 56
S_TS = 60

SLST = [4, 6, 8, 10, 12, 14, 16, 18, 20, 22, 48, 50, 52, 54, 56]
QSCALE = math.log2(math.e) / 16.0
SCL_OFF = 0x2200000
CNT_OFF = 0x2100000

class Cfg:
    nt_kv = True
    nt_w = False
    nt_x = False
    nt_wo = False
    nt_warm = False
    st_flags = " sc0 sc1"
    rd_flags = " sc0 sc1"
    warm_wq = True
    warm_wo = False
    code_pf = True
    thr = 8.0
    dump = None
    stamps = False
    kvsched = "g"
    fused = True
    poll_flags = " sc1"
    out_flags = ""
    aslist = False
    sig_t = 0
    poll_wg = False
    pipe_sleep = 3
    w16 = False
    xb_self = False
    warm_late = 0
    sig_p0 = 3
    sig_p1 = 5
    merge0 = True
    slot_stamps = False
    lstamps = True
    cst_all = False
    xst_early = False
    fine = True
    sig_f0 = 4
    sig_f1 = 4
    t_jit = 99
    t_mid = 13
    mid_a = 26
    mid_b = 30
    jit_pre = 4
    fast_start = True
    warm2 = False
    xbsched = "b"
    xb_read = 4
    xb_one = 1
    wr_pace = 0
    wr_spread = 10
    map_odd = False
    cstamps = False
    stagger = 24
    ncls = 2
    cls_mode = "xe"
    stag_tmax = 31
    scale_red = True
    decouple = True
    nop = 6
    dbg_stamps = -1
    wo_reg0 = 9
    wo_reg_t0 = 14
    warm_t0 = 18
    poll_sleep = 2
    sig_t1 = 2
    nkp = 8
    nvp = 4

def emit_setup(a, cfg):
    a("s_cmp_ge_u32 s2, 256")
    a("s_cbranch_scc1 L_end")
    if cfg.stamps:
        a(f"s_memrealtime s[{S_TS}:{S_TS+1}]")
    a("s_load_dwordx4 s[44:47], s[0:1], 0")
    a("s_load_dwordx4 s[48:51], s[0:1], 16")
    a("s_load_dwordx2 s[54:55], s[0:1], 40")
    a("s_load_dwordx4 s[68:71], s[0:1], 64")
    a("s_load_dwordx2 s[52:53], s[0:1], 32")
    a("s_load_dwordx4 s[64:67], s[0:1], 48")
    a("s_load_dwordx2 s[72:73], s[0:1], 96")
    a("s_load_dwordx4 s[80:83], s[0:1], 80")
    a(f"v_lshrrev_b32 v{V_T0}, 6, v0")
    a(f"v_and_b32 v{V_LANE}, 63, v0")
    a(f"v_readfirstlane_b32 s{S_WID}, v{V_T0}")
    a("s_lshr_b32 s75, s2, 3")
    if cfg.code_pf and cfg.fast_start:
        a(f"s_getpc_b64 s[{S_PC}:{S_PC+1}]")
        a.label("L_pc_entry")
        a(f"s_sub_u32 s{S_PC}, s{S_PC}, L_pc_entry-{KNAME}")
        a(f"s_subb_u32 s{S_PC+1}, s{S_PC+1}, 0")
        a(f"s_mov_b32 s{S_PC+2}, L_code_end-{KNAME}")
        a(f"s_mov_b32 s{S_PC+3}, 0x20000")
        a(f"v_lshlrev_b32 v4, 4, v{V_LANE}")
        a("s_lshl_b32 s76, s75, 2")
        a(f"s_add_u32 s76, s76, s{S_WID}")
        a("s_lshl_b32 s76, s76, 10")
        a(f"buffer_load_dwordx4 a[236:239], v4, s[{S_PC}:{S_PC+3}], s76 offen")
    a("s_and_b32 s74, s2, 7")
    if cfg.map_odd:
        a(f"s_and_b32 s{S_BR}, s74, 1")
        a("s_lshr_b32 s76, s74, 1")
    else:
        a(f"s_lshr_b32 s{S_BR}, s74, 2")
        a("s_and_b32 s76, s74, 3")
    a("s_lshl_b32 s76, s76, 2")
    a("s_and_b32 s77, s75, 3")
    a(f"s_add_u32 s{S_H}, s76, s77")
    a(f"s_lshr_b32 s{S_B}, s75, 2")
    if not cfg.fast_start: emit_ptrs(a, cfg)
    a(f"s_cmp_eq_u32 s{S_WID}, 3")
    if cfg.fast_start: a("s_cbranch_scc0 L_compute")
    else: a("s_cbranch_scc1 L_loader")

def emit_ptrs(a, cfg):
    a(f"s_mul_i32 s78, s{S_B}, 129024")
    a(f"s_lshl_b32 s79, s{S_H}, 9")
    a(f"s_mov_b32 s{S_X+2}, 129024")
    a(f"s_mov_b32 s{S_X+3}, 0x20000")
    a(f"s_sub_u32 s{S_WQ+2}, {448*8192}, s79")
    a(f"s_mov_b32 s{S_WQ+3}, 0x20000")
    a("s_waitcnt lgkmcnt(0)")
    a(f"s_cmp_eq_u32 s{S_BR}, 0")
    a(f"s_cselect_b32 s{S_X}, s44, s54")
    a(f"s_cselect_b32 s{S_X+1}, s45, s55")
    a(f"s_cselect_b32 s{S_WQ}, s50, s68")
    a(f"s_cselect_b32 s{S_WQ+1}, s51, s69")
    a(f"s_cselect_b32 s{S_K}, s46, s64")
    a(f"s_cselect_b32 s{S_K+1}, s47, s65")
    a(f"s_cselect_b32 s{S_V}, s48, s66")
    a(f"s_cselect_b32 s{S_V+1}, s49, s67")
    a(f"s_cselect_b32 s{S_WO}, s52, s70")
    a(f"s_cselect_b32 s{S_WO+1}, s53, s71")
    a(f"s_add_u32 s{S_X}, s{S_X}, s78")
    a(f"s_addc_u32 s{S_X+1}, s{S_X+1}, 0")
    a(f"s_add_u32 s{S_WQ}, s{S_WQ}, s79")
    a(f"s_addc_u32 s{S_WQ+1}, s{S_WQ+1}, 0")

def emit_setup_late(a, cfg, loader):
    a(f"s_lshl_b32 s74, s{S_B}, 4")
    a(f"s_add_u32 s74, s74, s{S_H}")
    if loader:
        a("s_lshl_b32 s75, s74, 19")
        for S in (S_K, S_V):
            a(f"s_add_u32 s{S}, s{S}, s75")
            a(f"s_addc_u32 s{S+1}, s{S+1}, 0")
            a(f"s_mov_b32 s{S+2}, 524288")
            a(f"s_mov_b32 s{S+3}, 0x20000")
        a(f"s_mul_i32 s75, s{S_H}, {256*896}")
        a(f"s_add_u32 s{S_WO}, s{S_WO}, s75")
        a(f"s_addc_u32 s{S_WO+1}, s{S_WO+1}, 0")
        a(f"s_mov_b32 s{S_WO+2}, {256*896}")
        a(f"s_mov_b32 s{S_WO+3}, 0x20000")
    else:
        a(f"s_lshl_b32 s75, s{S_BR}, 7")
        a("s_add_u32 s74, s74, s75")
        a("s_mul_i32 s74, s74, 129024")
        a(f"s_add_u32 s{S_WS}, s72, s74")
        a(f"s_addc_u32 s{S_WS+1}, s73, 0")
        a(f"s_mov_b32 s{S_WS+2}, 129024")
        a(f"s_mov_b32 s{S_WS+3}, 0x20000")

def ntb(cfg): return 9 if (cfg.fused and not cfg.dump) else 14
def barrier_list(cfg):
    L = [("PB", s) for s in range(14)]
    for t in range(-1, 32):
        if t >= cfg.t_mid:
            L.append(("MB", t))
            if t + 2 <= 31: L.append(("MA", t))
            continue
        L.append(("B", t))
        if t >= cfg.t_jit: L.append(("BB", t))
    L += [("TB", j) for j in range(ntb(cfg))]
    return L

XBSCHED = {"a": {1: [0], 2: [1], 3: [2]}, "b": {1: [0, 1], 2: [2]}, "c": {1: [0, 1, 2]}}
KVSCHED = {
    "f": {3: [("K", 0)], 4: [("K", 1)], 6: [("K", 2)], 7: [("V", 0)], 8: [("K", 3)], 9: [("V", 1)], 11: [("V", 2)], 12: [("V", 3)]},
    "g": {2: [("K", 0)], 3: [("K", 1)], 5: [("K", 2)], 6: [("V", 0)], 8: [("K", 3)], 9: [("V", 1)], 11: [("V", 2)], 12: [("V", 3)]},
    "h": {1: [("K", 0)], 3: [("K", 1)], 5: [("K", 2)], 6: [("V", 0)], 7: [("K", 3)], 9: [("V", 1)], 11: [("V", 2)], 12: [("V", 3)]},
    "a": {1: [("K", 0)], 2: [("V", 0)], 3: [("K", 1)], 4: [("K", 2)], 6: [("V", 1)], 7: [("K", 3)], 11: [("V", 2)], 12: [("V", 3)]},
    "b": {1: [("K", 0), ("V", 0)], 2: [("K", 1)], 3: [("K", 2)], 4: [("V", 1)], 5: [("K", 3)], 11: [("V", 2)], 12: [("V", 3)]},
    "d": {4: [("K", 0)], 5: [("K", 1)], 7: [("K", 2), ("V", 0)], 8: [("K", 3)], 9: [("V", 1)], 11: [("V", 2)], 12: [("V", 3)]},
    "e": {3: [("K", 0)], 5: [("K", 1)], 7: [("V", 0)], 8: [("K", 2)], 9: [("K", 3)], 10: [("V", 1)], 11: [("V", 2)], 12: [("V", 3)]},
    "c": {1: [("K", 0)], 3: [("V", 0)], 4: [("K", 1)], 6: [("K", 2)], 7: [("V", 1)], 9: [("K", 3)], 11: [("V", 2)], 12: [("V", 3)]},
}

def emit_code_prefetch(a, cfg, vm, vaddr, lo, hi, dst):
    a(f"s_getpc_b64 s[{S_PC}:{S_PC+1}]")
    lab = f"L_pc_{lo}"
    a.label(lab)
    a(f"s_add_u32 s{S_PC}, s{S_PC}, {lo}-{lab}")
    a(f"s_addc_u32 s{S_PC+1}, s{S_PC+1}, 0")
    a(f"s_mov_b32 s{S_PC+2}, {hi}-{lo}")
    a(f"s_mov_b32 s{S_PC+3}, 0x20000")
    return

def emit_loader(a, cfg):
    a.label("L_loader")
    vm = Vm(a)
    LH, LP = 2, 3
    VK, VV, VW, VO, VO3 = 8, 16, 20, 24, 28
    T0, T1 = 4, 5
    stamp_idx = [0]
    def xstamp(i):
        if cfg.stamps and (i >= 4 or cfg.xst_early):
            a("s_memrealtime s[62:63]")
            a("s_waitcnt lgkmcnt(0)")
            a(f"v_writelane_b32 v58, s62, {i}")
    xstamp(0)
    a(f"v_lshrrev_b32 v{LH}, 5, v{V_LANE}")
    a(f"v_and_b32 v{LP}, 31, v{V_LANE}")
    a(f"v_lshlrev_b32 v32, 4, v{V_LANE}")
    def chunkpat(i):
        a(f"v_add_u32 v{T0}, {2*i}, v{LH}")
        a(f"v_lshlrev_b32 v{T0}, 1, v{T0}")
        a(f"v_xor_b32 v{T0}, v{T0}, v{LP}")
    for i in range(4):
        chunkpat(i)
        a(f"v_lshlrev_b32 v{T1}, 4, v{T0}")
        a(f"v_lshl_add_u32 v{VW+i}, v{LH}, 13, v{T1}")
    if cfg.fast_start: emit_ptrs(a, cfg)
    if cfg.stamps:
        a(f"v_writelane_b32 v56, s{S_TS}, 0")
    ntkv = " nt" if cfg.nt_kv else ""
    ntw = " nt" if cfg.nt_w else ""
    ntwo = " nt" if cfg.nt_wo else ""
    ntwarm = " nt" if cfg.nt_warm else ""

    clsn = [0]
    def class_wait():
        if not cfg.stagger: return
        clsn[0] += 1; n = clsn[0]
        for c in range(1, cfg.ncls):
            a(f"s_cmp_lt_u32 s53, {c}")
            a(f"s_cbranch_scc1 L_cls{n}")
            a(f"s_waitcnt vmcnt({47 - cfg.stagger * c})")
        a.label(f"L_cls{n}")
    def tile_kv(kind, t):
        srd = S_K if kind == "K" else S_V
        lds = KS[t % 4] if kind == "K" else VS[t % 4]
        vm.room(16)
        if t >= 4 and t <= cfg.stag_tmax: class_wait()
        for m in range(4):
            a(f"s_mov_b32 m0, {lds + m*4096}")
            a(f"s_mov_b32 s{S_SO}, {t*16384 + m*4096}")
            for n in range(4):
                i = 4*m + n
                vo = VK + (i & 7) if kind == "K" else VV + (i & 3)
                vm.issue(f"buffer_load_dwordx4 v{vo}, s[{srd}:{srd+3}], s{S_SO} offen offset:{n*1024}{ntkv} lds", (kind, t))
    VW16 = 64
    def setup_w16():
        for i in range(16):
            sig0 = 8*((i & 7) >> 1) + 4*(i >> 3) + 2*(i & 1)
            a(f"v_add_u32 v{VW16+i}, {sig0*8192 - (i & 3)*1024}, v{VW + (i & 3)}")
    w16_ready = [False]
    def tile_w(s):
        lds = WRING[s % 4]
        vm.room(16)
        if w16_ready[0]:
            a(f"s_mov_b32 s{S_SO}, {s*32*8192}")
            for m in range(4):
                a(f"s_mov_b32 m0, {lds + m*4096}")
                if m == 0: a("s_nop 0")
                for n in range(4):
                    i = 4*m + n
                    if n == 0 and m > 0: a("s_nop 0")
                    vm.issue(f"buffer_load_dwordx4 v{VW16+i}, s[{S_WQ}:{S_WQ+3}], s{S_SO} offen offset:{n*1024}{ntw} lds", ("W", s))
            return
        prev = 0
        for i in range(16):
            sig0 = 8*((i & 7) >> 1) + 4*(i >> 3) + 2*(i & 1)
            if i == 0 or not cfg.fast_start:
                a(f"s_mov_b32 m0, {lds + i*1024}")
                a(f"s_mov_b32 s{S_SO}, {(s*32 + sig0)*8192}")
            else:
                a("s_add_u32 m0, m0, s98")
                d = sig0 - prev
                if d == 2: a(f"s_add_u32 s{S_SO}, s{S_SO}, s99")
                elif d == 6: a(f"s_add_u32 s{S_SO}, s{S_SO}, s100")
                else: a(f"s_sub_u32 s{S_SO}, s{S_SO}, {-d*8192}")
            prev = sig0
            vm.issue(f"buffer_load_dwordx4 v{VW + (i & 3)}, s[{S_WQ}:{S_WQ+3}], s{S_SO} offen{ntw} lds", ("W", s))
    VX = 40
    def setup_xb():
        a(f"v_lshrrev_b32 v{T0}, 3, v{V_LANE}")
        a(f"v_and_b32 v{T1}, 7, v{V_LANE}")
        a(f"v_lshrrev_b32 v6, 1, v{T0}")
        a(f"v_xor_b32 v6, v6, v{T1}")
        a(f"v_mul_u32_u24 v7, 896, v{T0}")
        a(f"v_lshl_add_u32 v{VX}, v6, 4, v7")
        a(f"v_xor_b32 v6, 4, v6")
        a(f"v_lshl_add_u32 v{VX+1}, v6, 4, v7")
        a(f"v_add_u32 v{VX+1}, {8*896}, v{VX+1}")
    def tile_xb(part):
        vm.room(18)
        ntx = " nt" if cfg.nt_x else ""
        for w in range(3):
            for qt in range(3):
                for hb in range(2):
                    a(f"s_mov_b32 m0, {XBB + w*XBW + ((qt*2 + hb)*3 + part)*1024}")
                    a(f"s_mov_b32 s{S_SO}, {w*XW + qt*14336 + (4 + part)*128}")
                    vm.issue(f"buffer_load_dwordx4 v{VX+hb}, s[{S_X}:{S_X+3}], s{S_SO} offen{ntx} lds", ("XB", part))
    def tile_wo(j):
        lds = WOSLOT[j]
        vm.room(16)
        for i in range(16):
            so, vo = wo_addr(j, i)
            a(f"s_mov_b32 m0, {lds + i*1024}")
            a(f"s_mov_b32 s{S_SO}, {so}")
            vm.issue(f"buffer_load_dwordx4 v{vo}, s[{S_WO}:{S_WO+3}], s{S_SO} offen{ntwo} lds", ("WO", j))
    NREG0 = cfg.wo_reg0
    def wo_quad(j, i):
        k = (j - NREG0) * 16 + i
        return ar(4*k, 4) if k < 64 else v(64 + 4*(k - 64), 4)
    def wo_addr(j, i):
        if cfg.fine and not (cfg.merge0 and j < 4):
            return (32*((j % 2) * 4) + 2*i)*896 + (j // 2)*128, VO3 + (i & 3)
        if j < 12:
            p, T0_ = j // 4, (j % 4) * 2
            return (32*T0_ + 2*i)*896 + p*256, VO + (i & 3)
        T0_ = (j - 12) * 4
        return (32*T0_ + 2*i)*896 + 768, VO3 + (i & 3)
    def load_wo_reg(j, i0, n):
        vm.room(n)
        for i in range(i0, i0 + n):
            so, vo = wo_addr(j, i)
            a(f"s_mov_b32 s{S_SO}, {so}")
            vm.issue(f"buffer_load_dwordx4 {wo_quad(j, i)}, v{vo}, s[{S_WO}:{S_WO+3}], s{S_SO} offen{ntwo}", ("WOR", j))
    def put_wo(j):
        vm.need(("WOR", j))
        a(f"v_add_u32 v33, {WOSLOT[j]}, v32")
        for i in range(16):
            a(f"ds_write_b128 v33, {wo_quad(j, i)} offset:{i*1024}")
            if cfg.wr_pace and i % cfg.wr_pace == cfg.wr_pace - 1 and i < 15: a("s_waitcnt lgkmcnt(0)")
        wo_written.append(j)
    wo_written = []
    wr_queue = []
    def put_wo_some(n):
        done = 0
        while wr_queue and done < n:
            j, i = wr_queue.pop(0)
            if i == 0 or done == 0:
                if i == 0: vm.need(("WOR", j))
                a(f"v_add_u32 v33, {WOSLOT[j]}, v32")
            a(f"ds_write_b128 v33, {wo_quad(j, i)} offset:{i*1024}")
            if i == 15: wo_written.append(j)
            done += 1
            if wr_queue and wr_queue[0][1] == 0 and done < n:
                pass
    def need_wo(j):
        if j >= NREG0:
            if j in wo_written:
                a("s_waitcnt lgkmcnt(0)")
                while wo_written: wo_written.pop()
        else:
            vm.need(("WO", j))
    def tile_wo_any(j):
        if j >= NREG0:
            if cfg.wr_spread: wr_queue.extend((j, i) for i in range(16))
            else: put_wo(j)
        else: tile_wo(j)
    def warm_wo_late(i0, n):
        vm.room(n)
        a(f"s_mul_i32 s{S_SO}, s{S_B}, {32*896}")
        a(f"s_add_u32 s{S_SO}, s{S_SO}, 512")
        for i in range(i0, i0 + n):
            a(f"v_lshrrev_b32 v{T0}, 3, v{V_LANE}")
            a(f"v_add_u32 v{T0}, {8*i}, v{T0}")
            a(f"v_mul_u32_u24 v{T1}, 43691, v{T0}")
            a(f"v_lshrrev_b32 v{T1}, 17, v{T1}")
            a(f"v_mul_u32_u24 v6, 3, v{T1}")
            a(f"v_sub_u32 v6, v{T0}, v6")
            a(f"v_lshlrev_b32 v6, 7, v6")
            a(f"v_mul_u32_u24 v{T1}, 896, v{T1}")
            a(f"v_and_b32 v7, 7, v{V_LANE}")
            a(f"v_lshl_add_u32 v7, v7, 4, v6")
            a(f"v_add_u32 v7, v7, v{T1}")
            vm.issue(f"buffer_load_dwordx4 v[36:39], v7, s[{S_WO}:{S_WO+3}], s{S_SO} offen{ntwarm}", ("warml", i))
    def warm_wo(i0, n):
        vm.room(n)
        for i in range(i0, i0 + n):
            a(f"s_mul_i32 s{S_SO}, s{S_B}, 28672")
            a(f"s_add_u32 s{S_SO}, s{S_SO}, {i*1024}")
            vm.issue(f"buffer_load_dwordx4 v[36:39], v32, s[{S_WO}:{S_WO+3}], s{S_SO} offen{ntwarm}", ("warm", i))
    def code_pf(lo, hi, tagn):
        a(f"s_getpc_b64 s[{S_PC}:{S_PC+1}]")
        lab = f"L_pc_{tagn}"
        a.label(lab)
        a(f"s_add_u32 s{S_PC}, s{S_PC}, {lo}-{lab}")
        a(f"s_addc_u32 s{S_PC+1}, s{S_PC+1}, -1" if False else f"s_addc_u32 s{S_PC+1}, s{S_PC+1}, ({lo}-{lab})>>32")
        a(f"s_mov_b32 s{S_PC+2}, {hi}-{lo}")
        a(f"s_mov_b32 s{S_PC+3}, 0x20000")
        a(f"s_lshr_b32 s{S_SO2}, s2, 3")
        a(f"s_mul_i32 s{S_SO2}, s{S_SO2}, 3072")
        vm.room(3)
        for i in range(3):
            vm.issue(f"buffer_load_dwordx4 v[36:39], v32, s[{S_PC}:{S_PC+3}], s{S_SO2} offen offset:{i*1024}", ("pf", tagn, i))

    fused = cfg.fused and not cfg.dump
    if cfg.fast_start:
        a("s_mov_b32 s98, 1024"); a(f"s_mov_b32 s99, {2*8192}"); a(f"s_mov_b32 s100, {6*8192}")
        tile_w(0)
    if fused:
        emit_cnt_srd(a)
        a("s_mov_b32 s48, s82"); a("s_mov_b32 s49, s83")
        a("s_mov_b32 s50, 256"); a("s_mov_b32 s51, 0x20000")
        a(f"s_lshl_b32 s52, s{S_BR}, 3")
        a(f"s_add_u32 s52, s52, s{S_B}")
        a("s_lshl_b32 s52, s52, 4")
        a(f"s_cmp_lg_u32 s{S_H}, 0")
        a("s_cbranch_scc1 L_noinit")
        a(f"v_lshlrev_b32 v33, 12, v{V_LANE}")
        a("v_mov_b32 v34, 0")
        a("s_mov_b64 exec, 7")
        a("buffer_store_dword v34, v33, s[84:87], 0 offen sc1")
        a("s_mov_b64 exec, -1")
        a.label("L_noinit")
    if cfg.warm2:
        a(f"v_lshlrev_b32 v34, 4, v{LP}")
        a(f"v_lshl_add_u32 v34, v{LH}, 13, v34")
        a(f"s_mul_i32 s76, s{S_B}, {56*8192}")
        a(f"s_add_u32 s76, s76, {28*8192}")
        for i in range(14):
            vm.issue(f"buffer_load_dwordx4 v[36:39], v34, s[{S_WQ}:{S_WQ+3}], s76 offen{ntwarm}", ("warm2", i))
            if i < 13: a(f"s_add_u32 s76, s76, {2*8192}")
    if not cfg.fast_start: tile_w(0)
    xstamp(1)
    if cfg.code_pf and not cfg.fast_start: code_pf(KNAME, "L_code_end", "all")
    tile_w(1); xstamp(2)
    emit_setup_late(a, cfg, True)
    for i in range(8):
        a(f"v_add_u32 v{T0}, {2*i}, v{LH}")
        a(f"v_xor_b32 v{T0}, v{T0}, v{LP}")
        a(f"v_lshlrev_b32 v{T0}, 4, v{T0}")
        a(f"v_lshl_add_u32 v{VK+i}, v{LH}, 9, v{T0}")
    for i in range(4):
        chunkpat(i)
        a(f"v_lshlrev_b32 v{T1}, 4, v{T0}")
        a(f"v_lshl_add_u32 v{VV+i}, v{LH}, 9, v{T1}")
        a(f"v_lshrrev_b32 v6, 4, v{T0}")
        a(f"v_lshl_add_u32 v6, v6, 5, v{LH}")
        a(f"v_mul_u32_u24 v6, 896, v6")
        a(f"v_and_b32 v7, 15, v{T0}")
        a(f"v_lshl_add_u32 v{VO+i}, v7, 4, v6")
        a(f"v_lshrrev_b32 v6, 3, v{T0}")
        a(f"v_lshl_add_u32 v6, v6, 5, v{LH}")
        a(f"v_mul_u32_u24 v6, 896, v6")
        a(f"v_and_b32 v7, 7, v{T0}")
        a(f"v_lshl_add_u32 v{VO3+i}, v7, 4, v6")
    setup_xb()
    if cfg.w16:
        setup_w16(); w16_ready[0] = True
    if cfg.stagger:
        if cfg.cls_mode == "xe":
            a("s_getreg_b32 s53, hwreg(HW_REG_XCC_ID, 0, 4)")
            a("s_and_b32 s53, s53, 1")
            a("s_xor_b32 s53, s53, 1")
        elif cfg.cls_mode == "b":
            a(f"s_mul_i32 s53, s{S_B}, {cfg.ncls}")
            a("s_lshr_b32 s53, s53, 3")
        else:
            a(f"s_mov_b32 s53, s{S_BR}")
    tile_w(2)
    xstamp(3)
    def iter_extras(t):
            if cfg.warm_wo and cfg.warm_t0 <= t <= cfg.warm_t0 + 6:
                warm_wo((t - cfg.warm_t0) * 4, 4)
            if cfg.warm_late and cfg.warm_late <= t < cfg.warm_late + 3:
                warm_wo_late((t - cfg.warm_late) * 4, 4)
            if cfg.code_pf and t == 25: code_pf("L_tail_code", "L_tail_end", "tail")
            if fused and t == 10:
                vm.room(1)
                a("s_mov_b64 exec, 1")
                vm.issue(f"buffer_load_dword v35, off, s[48:51], s52 sc1", ("initflag",))
                a("s_mov_b64 exec, -1")
            if fused and t == 14:
                vm.need(("initflag",))
                a("v_readfirstlane_b32 s90, v35")
                a("s_nop 3")
                a("s_cmp_ge_u32 s90, 1")
                a("s_cbranch_scc1 L_init_ok")
                a("s_mov_b64 exec, 1")
                a("s_mov_b32 s89, 0")
                a.label("L_init_poll")
                a("buffer_load_dword v35, off, s[48:51], s52 sc1")
                a("s_waitcnt vmcnt(0)")
                a("v_readfirstlane_b32 s90, v35")
                a("s_add_u32 s89, s89, 1")
                a("s_cmp_ge_u32 s90, 1")
                a("s_cbranch_scc1 L_init_done")
                a("s_cmp_ge_u32 s89, 0x40000")
                a("s_cbranch_scc1 L_init_done")
                a("s_sleep 8")
                a("s_branch L_init_poll")
                a.label("L_init_done")
                a("s_mov_b64 exec, -1")
                a.label("L_init_ok")
            nreg = 14 - NREG0
            k = t - cfg.wo_reg_t0
            if 0 <= k < 2 * nreg:
                load_wo_reg(NREG0 + k // 2, 8 * (k & 1), 8)
    kv_after_pb = KVSCHED[cfg.kvsched]
    early = None
    if cfg.fast_start:
        a("s_branch L_loader2")
        early = a.L; a.L = []
        a.label("L_loader2")
    pend_stamp = [None]
    def flush_stamp():
        if pend_stamp[0] is not None:
            a("s_waitcnt lgkmcnt(0)")
            a(f"v_writelane_b32 v56, s62, {pend_stamp[0]}")
            a(f"v_writelane_b32 v59, s60, {pend_stamp[0]}")
            pend_stamp[0] = None
    for name, idx in barrier_list(cfg):
        flush_stamp()
        if name == "PB":
            if idx == 0: vm.need(("W", 0)); vm.need(("W", 1))
            elif idx + 1 <= 13: vm.need(("W", idx + 1))
            if idx == cfg.xb_read and not cfg.xb_self: vm.need(("XB", 2))
        elif name == "B":
            t = idx
            if t == -1:
                vm.need(("K", 0)); vm.need(("K", 1))
            elif t >= cfg.t_jit:
                if t + 1 <= 31: vm.need(("K", t + 1))
            else:
                if t + 2 <= 31: vm.need(("K", t + 2))
                vm.need(("V", t))
            if t == 31 and t < cfg.t_jit:
                need_wo(0); need_wo(1)
        elif name == "BB" or name == "MB":
            vm.need(("V", idx))
            if idx == 31:
                need_wo(0); need_wo(1)
        elif name == "MA":
            vm.need(("K", idx + 2))
        else:
            j = idx
            need_wo(min(j + 1, 13))
            if j == ntb(cfg) - 1:
                assert not wr_queue
                for jj in range(14): need_wo(jj)
        a("s_barrier")
        if cfg.stamps and cfg.lstamps and name not in ("BB", "MA"):
            stamp_idx[0] += 1
            a("s_memrealtime s[62:63]")
            a("s_memtime s[60:61]")
            pend_stamp[0] = stamp_idx[0]
        if name == "PB" and idx == 0 and fused:
            a(f"s_cmp_lg_u32 s{S_H}, 0")
            a("s_cbranch_scc1 L_noinit2")
            a("v_mov_b32 v34, 1")
            a("s_mov_b64 exec, 1")
            a("buffer_atomic_add v34, off, s[48:51], s52")
            a("s_mov_b64 exec, -1")
            a.label("L_noinit2")
        if name == "PB":
            if idx + 3 <= 13: tile_w(idx + 3)
            if not cfg.xb_self:
                for part in XBSCHED[cfg.xbsched].get(idx, []): tile_xb(part)
            for k, t in kv_after_pb.get(idx, []): tile_kv(k, t)
        elif name == "B":
            t = idx
            if t >= cfg.t_jit:
                if t > cfg.t_jit and t + 3 <= 31: tile_kv("K", t + 3)
            elif t >= 0:
                if t + 4 <= 31: tile_kv("K", t + 4)
                if t >= 1 and t + 3 <= 31: tile_kv("V", t + 3)
            iter_extras(t)
            if t == 26: tile_wo_any(0)
            if t == 27: tile_wo_any(1)
            if t == 28: tile_wo_any(2)
            if t == 29: tile_wo_any(3); tile_wo_any(4)
            if t == 30: tile_wo_any(5); tile_wo_any(6)
            if t == 31: tile_wo_any(7); tile_wo_any(8)
        elif name == "BB":
            t = idx
            if t > cfg.t_jit and t + 2 <= 31: tile_kv("V", t + 2)
        elif name == "MB":
            t = idx
            if t > cfg.t_mid and t + 2 <= 31: tile_kv("V", t + 2)
            iter_extras(t)
            if t == 29: tile_wo_any(4)
            if t == 30: tile_wo_any(6)
            if t == 31: tile_wo_any(7); tile_wo_any(8)
        elif name == "MA":
            t = idx
            if t + 4 <= 31: tile_kv("K", t + 4)
            if t + 1 == 26: tile_wo_any(0)
            if t + 1 == 27: tile_wo_any(1)
            if t + 1 == 28: tile_wo_any(2)
            if t + 1 == 29: tile_wo_any(3)
            if t + 1 == 30: tile_wo_any(5)
        else:
            j = idx
            if j == 0: tile_wo_any(9)
            if 1 <= j <= 4: tile_wo_any(9 + j)
            if cfg.wr_spread and j < ntb(cfg) - 1:
                put_wo_some(cfg.wr_spread if j < ntb(cfg) - 2 else 999)
            if j == 5 and cfg.fused and not cfg.dump:
                a(f"v_lshlrev_b32 v33, 2, v{V_LANE}")
                a(f"v_add_u32 v33, {VS[0]}, v33")
                a("v_mov_b32 v34, 0")
                a("ds_write_b32 v33, v34")
                a("s_waitcnt lgkmcnt(0)")
    flush_stamp()
    a("s_waitcnt vmcnt(0)")
    if cfg.fused and not cfg.dump:
        emit_red_setup(a, cfg)
        for p in range(2):
            for e in range(2):
                a(f"s_add_u32 s90, s{S_H}, {16*e}")
                a(f"s_lshr_b32 s{96+2*e}, s90, 2")
                a("s_and_b32 s90, s90, 3")
                a(f"s_add_u32 s{97+2*e}, s90, {4*p}")
            emit_reduce_pre(a, cfg, 2)
            emit_poll(a, cfg, p)
            xstamp(4 + p)
            emit_reduce_post(a, cfg, 2)
        emit_final_pre(a, cfg)
        emit_poll(a, cfg, 2)
        xstamp(6)
        if not cfg.decouple: a("s_barrier")
        emit_final_post(a, cfg)
        xstamp(7)
    if cfg.stamps:
        if not (cfg.fused and not cfg.dump): a("s_barrier")
        a("s_memrealtime s[62:63]")
        a("s_waitcnt lgkmcnt(0)")
        a(f"v_writelane_b32 v56, s62, 62")
        a("s_getreg_b32 s62, hwreg(HW_REG_XCC_ID)")
        a(f"v_writelane_b32 v56, s62, 63")
        a("s_mov_b32 s76, s72"); a("s_mov_b32 s77, s73")
        a("s_mov_b32 s78, 0x10000000"); a("s_mov_b32 s79, 0x20000")
        a("s_lshl_b32 s74, s2, 8")
        a("s_add_u32 s74, s74, 0x4000000")
        a(f"v_lshlrev_b32 v57, 2, v{V_LANE}")
        a("buffer_store_dword v56, v57, s[76:79], s74 offen")
        a("s_add_u32 s74, s74, 0x100000")
        a("buffer_store_dword v58, v57, s[76:79], s74 offen")
        a("s_add_u32 s74, s74, 0x100000")
        a("buffer_store_dword v59, v57, s[76:79], s74 offen")
        a("s_waitcnt vmcnt(0)")
        if cfg.dbg_stamps >= 0:
            a(f"s_cmp_lg_u32 s2, {cfg.dbg_stamps}")
            a("s_cbranch_scc1 L_nodbg")
            sel = [(56, 1), (56, 16), (56, 24), (56, 32), (56, 40), (56, 47), (56, 48), (56, 56), (58, 4), (58, 5), (58, 6), (58, 7)]
            slots = [1, 2, 3, 5, 6, 7, 9, 10, 11, 13, 14, 15]
            a("v_readlane_b32 s91, v56, 0")
            for (r, ln), sl in zip(sel, slots):
                a(f"v_readlane_b32 s90, v{r}, {ln}")
                a("s_nop 3")
                a("s_sub_u32 s90, s90, s91")
                a("v_mov_b32 v60, s90")
                a(f"s_mov_b32 s89, {4*sl}")
                a("s_mov_b64 exec, 1")
                a("buffer_store_dword v60, off, s[48:51], s89")
                a("s_mov_b64 exec, -1")
                a("s_nop 1")
            a("s_waitcnt vmcnt(0)")
            a.label("L_nodbg")
    a("s_branch L_end")
    return early, a.L

def emit_cnt_srd(a):
    a(f"s_lshl_b32 s84, s{S_BR}, 3")
    a(f"s_add_u32 s84, s84, s{S_B}")
    a("s_lshl_b32 s84, s84, 14")
    a(f"s_add_u32 s84, s84, {CNT_OFF}")
    a("s_add_u32 s84, s72, s84")
    a("s_addc_u32 s85, s73, 0")
    a("s_mov_b32 s86, 16384"); a("s_mov_b32 s87, 0x20000")

def emit_red_setup(a, cfg):
    lane = V_LANE
    emit_cnt_srd(a)
    a(f"s_lshl_b32 s88, s{S_BR}, 3")
    a(f"s_add_u32 s88, s88, s{S_B}")
    a(f"s_mul_i32 s45, s88, {16*129024}")
    a("s_add_u32 s44, s72, s45")
    a("s_addc_u32 s45, s73, 0")
    a(f"s_mov_b32 s46, {16*129024}")
    a("s_mov_b32 s47, 0x20000")
    a("s_mov_b32 s92, s80"); a("s_mov_b32 s93, s81")
    a(f"s_mov_b32 s94, {8*144*896*2}"); a("s_mov_b32 s95, 0x20000")
    a(f"s_mul_i32 s64, s88, 9216")
    a(f"s_add_u32 s64, s64, {SCL_OFF}")
    a("s_add_u32 s64, s72, s64")
    a("s_addc_u32 s65, s73, 0")
    a("s_mov_b32 s66, 9216"); a("s_mov_b32 s67, 0x20000")

_lab = [0]
def emit_poll(a, cfg, p):
    _lab[0] += 1; n = _lab[0]
    a("s_mov_b64 exec, 1")
    a("s_mov_b32 s89, 0")
    a.label(f"L_poll{n}")
    a(f"s_mov_b32 s88, {4096*p}")
    a(f"buffer_load_dword v9, off, s[84:87], s88{cfg.poll_flags}")
    a("s_waitcnt vmcnt(0)")
    a("v_readfirstlane_b32 s90, v9")
    a("s_add_u32 s89, s89, 1")
    a("s_cmp_ge_u32 s90, 16")
    a(f"s_cbranch_scc1 L_poll_done{n}")
    a("s_cmp_ge_u32 s89, 0x40000")
    a(f"s_cbranch_scc1 L_poll_done{n}")
    a(f"s_sleep {cfg.poll_sleep}")
    a(f"s_branch L_poll{n}")
    a.label(f"L_poll_done{n}")
    a("s_mov_b64 exec, -1")

def emit_poll_pipe(a, cfg, p, depth=3):
    _lab[0] += 1; n = _lab[0]
    a("s_mov_b64 exec, 1")
    a("s_mov_b32 s89, 0")
    a(f"s_mov_b32 s88, {4096*p}")
    for d in range(depth):
        a(f"buffer_load_dword v{60+d}, off, s[84:87], s88{cfg.poll_flags}")
        if d < depth - 1: a(f"s_sleep {cfg.pipe_sleep}")
    a.label(f"L_pp{n}")
    for d in range(depth):
        a(f"s_waitcnt vmcnt({depth-1})")
        a(f"v_readfirstlane_b32 s90, v{60+d}")
        a("s_nop 0")
        a("s_cmp_ge_u32 s90, 16")
        a(f"s_cbranch_scc1 L_pp_done{n}")
        a(f"buffer_load_dword v{60+d}, off, s[84:87], s88{cfg.poll_flags}")
        a(f"s_sleep {cfg.pipe_sleep}")
    a("s_add_u32 s89, s89, 1")
    a("s_cmp_lt_u32 s89, 0x10000")
    a(f"s_cbranch_scc1 L_pp{n}")
    a.label(f"L_pp_done{n}")
    a("s_mov_b64 exec, -1")

def emit_poll_wg(a, cfg, p):
    _lab[0] += 1; n = _lab[0]
    a(f"s_cmp_lg_u32 s{S_WID}, 0")
    a(f"s_cbranch_scc1 L_pw_lds{n}")
    emit_poll_pipe(a, cfg, p)
    a("s_mov_b64 exec, 1")
    a("ds_write_b32 v4, v5 offset:12")
    a("s_mov_b64 exec, -1")
    a(f"s_branch L_pw_done{n}")
    a.label(f"L_pw_lds{n}")
    a("s_mov_b32 s89, 0")
    a.label(f"L_pw_spin{n}")
    a("ds_read_b32 v9, v4 offset:12")
    a("s_waitcnt lgkmcnt(0)")
    a("v_readfirstlane_b32 s90, v9")
    a("s_add_u32 s89, s89, 1")
    a("s_cmp_ge_u32 s90, 1")
    a(f"s_cbranch_scc1 L_pw_done{n}")
    a("s_cmp_ge_u32 s89, 0x400000")
    a(f"s_cbranch_scc0 L_pw_spin{n}")
    a.label(f"L_pw_done{n}")

def emit_reduce_pre(a, cfg, nf):
    lane = V_LANE
    a(f"v_lshlrev_b32 v2, 4, v{lane}")
    a(f"v_and_b32 v3, 15, v{lane}")
    a("v_mul_u32_u24 v3, 1792, v3")
    a(f"v_lshrrev_b32 v9, 4, v{lane}")
    a("v_lshl_add_u32 v3, v9, 3, v3")
    for e in range(nf):
        a(f"s_lshl_b32 s{76+e}, s{96+2*e}, 10")
        a(f"s_mul_i32 s90, s{96+2*e}, 14")
        a(f"s_add_u32 s90, s90, s{97+2*e}")
        a("s_lshl_b32 s91, s90, 10")
        a(f"s_mul_i32 s100, s{S_B}, 144")
        a(f"s_lshl_b32 s90, s{96+2*e}, 4")
        a("s_add_u32 s100, s100, s90")
        a("s_mul_i32 s100, s100, 1792")
        a(f"s_lshl_b32 s90, s{97+2*e}, 6")
        a("s_add_u32 s100, s100, s90")
        a(f"s_mul_i32 s90, s{S_BR}, 896")
        a(f"s_add_u32 s{96+2*e}, s100, s90")
        a(f"s_mov_b32 s{97+2*e}, s91")

def emit_reduce_post(a, cfg, nf):
    lane = V_LANE
    sc = cfg.scale_red
    nper = 20 if sc else 16
    if sc:
        a(f"v_and_b32 v5, 15, v{lane}")
        a("v_lshlrev_b32 v5, 6, v5")
    for e in range(nf):
        a(f"s_mov_b32 s91, s{97+2*e}")
        for hh in range(16):
            r = 64 + 64*e + 4*hh
            a(f"buffer_load_dwordx4 v[{r}:{r+3}], v2, s[44:47], s91 offen{cfg.rd_flags}")
            if hh < 15: a(f"s_add_u32 s91, s91, 129024")
            if sc and hh == 0:
                for j in range(4):
                    r2 = 192 + 16*e + 4*j
                    a(f"buffer_load_dwordx4 v[{r2}:{r2+3}], v5, s[64:67], s{76+e} offen offset:{16*j}{cfg.rd_flags}")
    for e in range(nf):
        acc = 32 + 8*e
        for hh in range(16):
            idx = nper*e + (0 if hh == 0 else hh + (nper - 16))
            if hh == 0 and sc: idx = nper*e + 4
            a(f"s_waitcnt vmcnt({nper*nf - 1 - idx})")
            for r in range(4):
                src = 64 + 64*e + 4*hh + r
                if hh == 0 and not sc:
                    a(f"v_lshlrev_b32 v{acc+2*r}, 16, v{src}")
                    a(f"v_and_b32 v{acc+2*r+1}, 0xffff0000, v{src}")
                else:
                    t = 8 + 2*r
                    a(f"v_lshlrev_b32 v{t}, 16, v{src}")
                    a(f"v_and_b32 v{t+1}, 0xffff0000, v{src}")
            for r in range(4):
                t = 8 + 2*r
                A, T_ = f"v[{acc+2*r}:{acc+2*r+1}]", f"v[{t}:{t+1}]"
                if sc:
                    q = 192 + 16*e + hh
                    q0 = q & ~1
                    sel = q & 1
                    S_ = f"v[{q0}:{q0+1}]"
                    if hh == 0:
                        a(f"v_pk_mul_f32 {A}, {T_}, {S_} op_sel:[0,{sel}] op_sel_hi:[1,{sel}]")
                    else:
                        a(f"v_pk_fma_f32 {A}, {T_}, {S_}, {A} op_sel:[0,{sel},0] op_sel_hi:[1,{sel},1]")
                elif hh > 0:
                    a(f"v_pk_add_f32 {A}, {A}, {T_}")
        for r in range(4):
            a(f"v_cvt_pk_bf16_f32 v{48+4*e+r}, v{acc+2*r}, v{acc+2*r+1}")
    for e in range(nf):
        a(f"buffer_store_dwordx2 v[{48+4*e}:{49+4*e}], v3, s[92:95], s{96+2*e} offen{cfg.out_flags}")
        a(f"buffer_store_dwordx2 v[{50+4*e}:{51+4*e}], v3, s[92:95], s{96+2*e} offen offset:32{cfg.out_flags}")

def emit_reduce_frags(a, cfg, nf):
    emit_reduce_pre(a, cfg, nf)
    emit_reduce_post(a, cfg, nf)

def emit_final_pre(a, cfg):
    a(f"s_lshl_b32 s90, s{S_WID}, 4")
    a(f"s_add_u32 s78, s90, s{S_H}")
    a("s_lshr_b32 s96, s78, 2")
    a("s_and_b32 s97, s78, 3")
    a("s_add_u32 s97, s97, 8")
    a("s_sub_u32 s91, s78, 36")
    a("s_lshr_b32 s98, s91, 1")
    a("s_and_b32 s99, s91, 1")
    a("s_add_u32 s99, s99, 12")
    a("s_cmp_ge_u32 s78, 36")
    a("s_cselect_b32 s96, s98, s96")
    a("s_cselect_b32 s97, s99, s97")
    a("s_sub_u32 s91, s78, 54")
    a("s_cmp_ge_u32 s78, 54")
    a("s_cselect_b32 s96, 8, s96")
    a("s_cselect_b32 s97, s91, s97")
    emit_reduce_pre(a, cfg, 1)

def emit_final_post(a, cfg):
    _lab[0] += 1; n = _lab[0]
    a("s_cmp_ge_u32 s78, 62")
    a(f"s_cbranch_scc1 L_fin_done{n}")
    emit_reduce_post(a, cfg, 1)
    a.label(f"L_fin_done{n}")

def emit_final_reduce(a, cfg):
    emit_final_pre(a, cfg)
    emit_final_post(a, cfg)

def mfma(a, D, A, B, C=None):
    a(f"v_mfma_f32_16x16x32_bf16 {D}, {A}, {B}, {C if C is not None else D}")

def xlane_max(a, r, tmp):
    a(f"v_mov_b32 v{tmp}, v{r}")
    a("s_nop 1")
    a(f"v_permlane32_swap_b32 v{r}, v{tmp}")
    a("s_nop 1")
    a(f"v_max_f32 v{r}, v{r}, v{tmp}")
    a(f"v_mov_b32 v{tmp}, v{r}")
    a("s_nop 1")
    a(f"v_permlane16_swap_b32 v{r}, v{tmp}")
    a("s_nop 1")
    a(f"v_max_f32 v{r}, v{r}, v{tmp}")

def emit_compute(a, cfg):
    rare_blocks = []
    emit_compute_main(a, cfg, rare_blocks)
    emit_rare(a, cfg, rare_blocks)

def emit_compute_main(a, cfg, rare_blocks):
    lg = Lgkm(a)
    lane = V_LANE
    T0, T1 = V_T0, V_T1
    NKP, NVP = cfg.nkp, cfg.nvp
    a(f"v_lshrrev_b32 v{T0}, 3, v{lane}")
    a(f"v_and_b32 v{T1}, 7, v{lane}")
    a(f"v_lshrrev_b32 v22, 1, v{T0}")
    a(f"v_xor_b32 v22, v22, v{T1}")
    a(f"v_mul_u32_u24 v23, 896, v{T0}")
    a(f"v_lshl_add_u32 v24, v22, 4, v23")
    a(f"v_xor_b32 v22, 4, v22")
    a(f"v_lshl_add_u32 v25, v22, 4, v23")
    a(f"v_add_u32 v25, {8*896}, v25")
    if cfg.fast_start: emit_ptrs(a, cfg)
    a(f"s_mul_i32 s74, s{S_WID}, {XAW}")
    a(f"s_mul_i32 s75, s{S_WID}, {XW}")
    vm = Vm(a)
    ntx = " nt" if cfg.nt_x else ""
    if cfg.warm2:
        ntwarm = " nt" if cfg.nt_warm else ""
        a(f"v_lshlrev_b32 v26, 4, v{lane}")
        a(f"s_cmp_eq_u32 s{S_WID}, 2")
        a("s_cbranch_scc1 L_w2q")
        a(f"s_and_b32 s76, s{S_H}, 3")
        a("s_mul_i32 s76, s76, 32256")
        a(f"s_lshl_b32 s77, s{S_WID}, 14")
        a("s_add_u32 s76, s76, s77")
        for i in range(16):
            a(f"buffer_load_dwordx4 {ar(A_DUMMY,4)}, v26, s[{S_X}:{S_X+3}], s76 offen{ntwarm}")
            if i < 15: a("s_add_u32 s76, s76, 1024")
        a("s_branch L_w2done")
        a.label("L_w2q")
        a(f"v_lshrrev_b32 v27, 5, v{lane}")
        a(f"v_and_b32 v26, 31, v{lane}")
        a("v_lshlrev_b32 v26, 4, v26")
        a("v_lshl_add_u32 v26, v27, 13, v26")
        a(f"s_mul_i32 s76, s{S_B}, {56*8192}")
        for i in range(14):
            a(f"buffer_load_dwordx4 {ar(A_DUMMY,4)}, v26, s[{S_WQ}:{S_WQ+3}], s76 offen{ntwarm}")
            if i < 13: a(f"s_add_u32 s76, s76, {2*8192}")
        a.label("L_w2done")
    for sp in range(4):
        for qt in range(3):
            for hb in range(2):
                a(f"s_add_u32 m0, s74, {((qt*2 + hb)*4 + sp)*1024}")
                a(f"s_add_u32 s{S_SO}, s75, {qt*14336 + sp*128}")
                vm.issue(f"buffer_load_dwordx4 v{24+hb}, s[{S_X}:{S_X+3}], s{S_SO} offen{ntx} lds", ("x",))
    if cfg.xb_self:
        a("v_mov_b32 v32, v24"); a("v_mov_b32 v33, v25")
        a(f"s_mul_i32 s42, s{S_WID}, {XBW}")
        a(f"s_add_u32 s42, s42, {XBB}")
        a(f"s_mul_i32 s43, s{S_WID}, {XW}")
    if cfg.warm_wq and not cfg.warm2:
        ntwarm = " nt" if cfg.nt_warm else ""
        a(f"v_lshrrev_b32 v{T0}, 5, v{lane}")
        a(f"v_and_b32 v{T1}, 31, v{lane}")
        a(f"v_lshlrev_b32 v{T1}, 4, v{T1}")
        a(f"v_lshl_add_u32 v26, v{T0}, 13, v{T1}")
        a(f"s_mul_i32 s75, s{S_B}, 48")
        a(f"s_lshl_b32 s76, s{S_WID}, 4")
        a("s_add_u32 s75, s75, s76")
        a("s_add_u32 s75, s75, 64")
        a("s_lshl_b32 s75, s75, 13")
        for i in range(8):
            vm.issue(f"buffer_load_dwordx4 {ar(A_DUMMY,4)}, v26, s[{S_WQ}:{S_WQ+3}], s75 offen{ntwarm}", ("warm", i))
            if i < 7: a(f"s_add_u32 s75, s75, {2*8192}")
    emit_setup_late(a, cfg, False)
    g_, i15 = 22, 23
    a(f"v_lshrrev_b32 v{g_}, 4, v{lane}")
    a(f"v_and_b32 v{i15}, 15, v{lane}")
    a(f"v_lshrrev_b32 v26, 1, v{i15}")
    a(f"v_lshrrev_b32 v27, 3, v{i15}")
    a(f"v_and_b32 v28, 7, v{i15}")
    a(f"v_lshlrev_b32 v28, 7, v28")
    a(f"s_mul_i32 s74, s{S_WID}, {XAW}")
    a(f"s_mul_i32 s75, s{S_WID}, {XBW}")
    a(f"s_add_u32 s75, s75, {XBB}")
    a(f"v_lshl_add_u32 v29, v27, 12, v28")
    a(f"v_add_u32 v29, s74, v29")
    a(f"v_mul_u32_u24 v27, 3072, v27")
    a(f"v_add_u32 v27, v27, v28")
    a(f"v_add_u32 v27, s75, v27")
    for e in range(2):
        a(f"v_add_u32 v{T0}, {4*e}, v{g_}")
        a(f"v_xor_b32 v{T0}, v{T0}, v26")
        a(f"v_lshl_add_u32 v{V_XB+e}, v{T0}, 4, v29")
        a(f"v_lshl_add_u32 v{V_XB2+e}, v{T0}, 4, v27")
    for j in range(4):
        a(f"v_add_u32 v{T0}, {4*j}, v{g_}")
        a(f"v_xor_b32 v{T0}, v{T0}, v{i15}")
        a(f"v_lshlrev_b32 v{T0}, 4, v{T0}")
        a(f"v_lshl_add_u32 v{V_KB+j}, v{i15}, 9, v{T0}")
    rp, cc, row, rho = 26, 27, 28, 29
    a(f"v_lshrrev_b32 v{rp}, 2, v{i15}")
    a(f"v_and_b32 v{cc}, 3, v{i15}")
    a(f"v_lshl_add_u32 v{row}, v{g_}, 2, v{rp}")
    a(f"v_and_b32 v{rho}, 7, v{row}")
    a(f"v_lshrrev_b32 v{T0}, 1, v{cc}")
    a(f"v_lshlrev_b32 v{T0}, 4, v{T0}")
    a(f"v_and_b32 v{T1}, 1, v{cc}")
    a(f"v_lshl_add_u32 v{T0}, v{T1}, 3, v{T0}")
    a(f"v_lshl_add_u32 v30, v{row}, 9, v{T0}")
    for j in range(8):
        a(f"v_xor_b32 v{T0}, {j}, v{rho}")
        a(f"v_lshl_add_u32 v{T0}, v{T0}, 5, v30")
        a(f"v_add_u32 v{V_VB+j}, {VREG}, v{T0}")
    a(f"v_lshlrev_b32 v31, 1, v{rho}")
    a(f"v_lshlrev_b32 v30, 9, v{row}")
    for j in range(4):
        a(f"v_add_u32 v{T0}, {4*j}, v{cc}")
        a(f"v_xor_b32 v{T0}, v{T0}, v31")
        a(f"v_lshl_add_u32 v{T0}, v{T0}, 4, v30")
        a(f"v_add_u32 v{V_WB+j}, {WBASE}, v{T0}")
    a(f"s_mov_b32 s{S_THR}, {hex(f2u(cfg.thr))}")

    def wread(s, u, half):
        T = u >> 1
        off = (WRING[s % 4] - WBASE) + (T >> 2) * 256 + (u & 1) * 8 + half * 8192
        r = A_W + 4 * u + 2 * half
        lg.issue(f"ds_read_b64_tr_b16 {ar(r,2)}, v{V_WB + (T & 3)} offset:{off}", ("w", s, u, half))
    def xread(s, qt):
        sp = s >> 1
        if sp < 4:
            off, base = qt * 8192 + sp * 1024, V_XB
        else:
            off, base = qt * 6144 + (sp - 4) * 1024, V_XB2
        lg.issue(f"ds_read_b128 {ar(Xreg(s, qt), 4)}, v{base + (s & 1)} offset:{off}", ("x", s, qt))
    NWP = 6
    n_after = 8 if (cfg.warm_wq and not cfg.warm2) else 0
    a(f"s_waitcnt vmcnt({n_after})")
    for qt in range(3): xread(0, qt)
    for s in range(14):
        a("s_barrier")
        pre_done = s >= 1
        if not pre_done:
            if s == 0: lg.need(("x", 0, 2))
            for u in range(NWP - (2 if s == 0 else 0)):
                wread(s, u, 0); wread(s, u, 1)
        nfirst = NWP - (2 if s == 0 else 0)
        mf = []
        for u in range(16):
            for qt in range(3):
                pre = None
                if qt == 0 and u % 2 == 0:
                    pre = (lambda s=s, u=u: lg.need(("w", s, u + 1, 1)))
                D = v(QAcc(u, qt), 4)
                mf.append((pre, (lambda D=D, s=s, u=u, qt=qt: mfma(a, D, ar(A_W + 4*u, 4), ar(Xreg(s, qt), 4), "0" if s == 0 else None))))
        st = []
        for u in range(nfirst, 16):
            for h in range(2):
                st.append(It((lambda s=s, u=u, h=h: wread(s, u, h)), 4, max(0, 3*(u - NWP) + h), max(0, 3*(u - 3))))
        nxt_pre = (s + 1 <= 13)
        if nxt_pre:
            for u in range(NWP):
                for h in range(2):
                    st.append(It((lambda s=s, u=u, h=h: wread(s + 1, u, h)), 4, 3*(16 + u - NWP) + h))
        streams = [st]
        if s == 0:
            xs = [It((lambda ss=ss, qt=qt: xread(ss, qt)), 4, ((ss - 1)*3 + qt) * 2) for ss in range(1, 8) for qt in range(3)]
            streams.append(xs)
        if cfg.xb_self and s in (1, 2):
            allx = [(part, qt, hb) for part in range(3) for qt in range(3) for hb in range(2)]
            xi = []
            for n_, (part, qt, hb) in enumerate(allx[9*(s-1): 9*s]):
                def f(part=part, qt=qt, hb=hb):
                    a(f"s_add_u32 m0, s42, {((qt*2 + hb)*3 + part)*1024}")
                    a(f"s_add_u32 s{S_SO}, s43, {qt*14336 + (4 + part)*128}")
                    vm.issue(f"buffer_load_dwordx4 v{32+hb}, s[{S_X}:{S_X+3}], s{S_SO} offen{ntx} lds", ("xb",))
                xi.append(It(f, 8, 2 + 5*n_, 4 + 5*n_))
            streams.append(xi)
        if cfg.xb_self and s == cfg.xb_read:
            a("s_waitcnt vmcnt(0)")
        if s in (cfg.xb_read, cfg.xb_read + 1) and cfg.xb_one == 0:
            lo = 8 + 3*(s - cfg.xb_read)
            xs = [It((lambda ss=ss, qt=qt: xread(ss, qt)), 4, ((ss - lo)*3 + qt) * 5) for ss in range(lo, lo + 3) for qt in range(3)]
            streams.append(xs)
        if s == cfg.xb_read and cfg.xb_one:
            xs = [It((lambda ss=ss, qt=qt: xread(ss, qt)), 4, ((ss - 8)*3 + qt) * 2) for ss in range(8, 14) for qt in range(3)]
            streams.append(xs)
        sched(a, mf, streams)
        if s == 0:
            lg.need(("x", 7, 2))
        if s == cfg.xb_read + (0 if cfg.xb_one else 1):
            lg.need(("x", 13, 2))
    lg.drain()
    if cfg.dump == "qacc":
        emit_dump_v(a, cfg, V_QACC, 192); return
    a(f"s_mov_b32 s74, {hex(f2u(QSCALE))}")
    a(f"s_mov_b32 s75, {hex(f2u(QSCALE))}")
    a(f"v_mov_b32 v{T0}, 0x3f803f80")
    for r in range(4):
        a(f"v_accvgpr_write_b32 a{A_ONES+r}, v{T0}")
    a("s_nop 3")
    for i in range(23, -1, -1):
        src = V_QACC + 8 * i
        dst = V_Q + 4 * i
        for r in range(4):
            a(f"v_pk_mul_f32 {v(src + 2*r, 2)}, {v(src + 2*r, 2)}, s[74:75]")
        for r in range(3, -1, -1):
            a(f"v_cvt_pk_bf16_f32 v{dst + r}, v{src + 2*r}, v{src + 2*r + 1}")
    if cfg.dump == "q":
        emit_dump_v(a, cfg, V_Q, 96); return

    def kread(t, f):
        aa, T = f >> 3, f & 7
        off = KS[t % 4] + aa * 8192 + (T >> 2) * 256
        lg.issue(f"ds_read_b128 {v(V_KBUF + 4*(f % 8), 4)}, v{V_KB + (T & 3)} offset:{off}", ("k", t, f))
    def vread(t, u, half):
        off = (VS[t % 4] - VREG) + (u >> 3) * 256 + half * 8192
        r = V_VBUF + 4 * (u % 8) + 2 * half
        lg.issue(f"ds_read_b64_tr_b16 {v(r,2)}, v{V_VB + (u & 7)} offset:{off}", ("v", t, u, half))

    def exp_items(t):
        par = t & 1
        st = []
        for qt in range(3):
            for aa in range(2):
                s = Sreg(par, qt, aa)
                for hh in range(2):
                    e0, e1 = s + 2*hh, s + 2*hh + 1
                    pr = V_P + qt*4 + aa*2 + hh
                    st.append(It((lambda e=e0: a(f"v_exp_f32 v{e}, v{e}")), 8))
                    st.append(It((lambda e=e1: a(f"v_exp_f32 v{e}, v{e}")), 8))
                    st.append(("cvt", It((lambda pr=pr, e0=e0, e1=e1: a(f"v_cvt_pk_bf16_f32 v{pr}, v{e0}, v{e1}")), 4)))
        exps = [x for x in st if not isinstance(x, tuple)]
        cvts = [x[1] for x in st if isinstance(x, tuple)]
        return exps, cvts

    def phaseA(t):
        jit = t >= cfg.t_jit
        doqk = t + 1 <= 31
        doexp = t >= 0
        if doexp: exps, cvts = exp_items(t)
        if not doqk:
            vq = [(u, h) for u in range(NVP) for h in range(2)] if not jit else []
            if t >= cfg.t_mid:
                for grp in range(12):
                    exps[2*grp].fn(); exps[2*grp+1].fn()
                    if grp > 0: cvts[grp-1].fn()
                a("s_barrier")
                for (u, h) in vq: vread(t, u, h)
                cvts[11].fn()
                return
            for grp in range(12):
                exps[2*grp].fn(); exps[2*grp+1].fn()
                if grp > 0: cvts[grp-1].fn()
                if vq: vread(t, *vq.pop(0))
            a("s_nop 0")
            cvts[11].fn()
            while vq: vread(t, *vq.pop(0))
            return
        par1 = (t + 1) & 1
        mf = []
        for m in range(48):
            aa, T, qt = m // 24, (m % 24) // 3, m % 3
            f = aa * 8 + T
            pre = None
            if qt == 0 and f % 2 == 0:
                pre = (lambda f=f: lg.need(("k", t + 1, f + 1)))
            C = None
            if T == 0: C = "0" if t == -1 else v(V_CM + 4*qt, 4)
            D = v(Sreg(par1, qt, aa), 4)
            mf.append((pre, (lambda D=D, f=f, qt=qt, T=T, C=C: mfma(a, D, v(V_KBUF + 4*(f % 8), 4), v(Qreg(qt, T), 4), C))))
        ks = [It((lambda f=f: kread(t + 1, f)), 4, max(0, 3*(f - 8) + 2), 3*f - 8, ds=True) for f in range(NKP, 16)]
        streams = [ks]
        if jit:
            for f in range(NKP): kread(t + 1, f)
            npre = cfg.jit_pre
            for g in range(npre):
                exps[2*g].fn(); exps[2*g+1].fn()
                if g > 0: cvts[g-1].fn()
            exps = exps[2*npre:]
            rest = 12 - npre
            step = 46 // rest
            for i, e in enumerate(exps):
                e.earliest = step*(i // 2) + (i & 1); e.deadline = e.earliest
            cv = cvts[npre-1:]
            cv[0].earliest = 0; cv[0].deadline = 1
            for i, c in enumerate(cv[1:]):
                c.earliest = step*i + 2; c.deadline = min(step*i + 5, 47)
            streams = [exps, cv, ks]
        elif doexp:
            for i, e in enumerate(exps):
                e.earliest = 4*(i // 2) + (i & 1); e.deadline = e.earliest
            for i, c in enumerate(cvts):
                c.earliest = 4*i + 2; c.deadline = min(4*i + 5, 47)
            vs = [It((lambda u=u, h=h: vread(t, u, h)), 4, cfg.mid_a + 1 if t >= cfg.t_mid else 26, ds=True) for u in range(NVP) for h in range(2)]
            streams = [exps, cvts, ks, vs]
            if t >= cfg.t_mid:
                streams = [[It((lambda: a("s_barrier")), 4, cfg.mid_a, cfg.mid_a)]] + streams
        sched(a, mf, streams)

    def phaseB(t, extra=None):
        jit = t >= cfg.t_jit
        first = (t == 0)
        docheck = t + 1 <= 31
        par1 = (t + 1) & 1
        Z = "0" if first else None
        mf = []
        for qt in range(3):
            mf.append((None, (lambda qt=qt: mfma(a, ar(A_L + 4*qt, 4), ar(A_ONES, 4), v(V_P + 4*qt, 4), Z))))
        for m in range(48):
            u, qt = m // 3, m % 3
            pre = None
            if qt == 0 and u % 2 == 0:
                pre = (lambda u=u: lg.need(("v", t, u + 1, 1)))
            mf.append((pre, (lambda u=u, qt=qt: mfma(a, ar(Oreg(u, qt), 4), v(V_VBUF + 4*(u % 8), 4), v(V_P + 4*qt, 4), Z))))
        if jit:
            a("s_barrier")
            for u in range(NVP):
                vread(t, u, 0); vread(t, u, 1)
        vs = []
        for u in range(NVP, 16):
            e = max(0 if u < 8 else 3 + 3*(u - 8) + 2, 3 + 3*(u - NVP - 1))
            for h in range(2):
                vs.append(It((lambda u=u, h=h: vread(t, u, h)), 4, e + h, 3 + 3*u - 9 + h, ds=True))
        streams = [vs]
        if docheck:
            s0 = V_S[par1]; mx = V_TMP
            chk = [f"v_max3_f32 v{mx}, v{s0}, v{s0+1}, v{s0+2}"]
            for k in range(10):
                chk.append(f"v_max3_f32 v{mx}, v{mx}, v{s0+3+2*k}, v{s0+4+2*k}")
            chk.append(f"v_max_f32 v{mx}, v{mx}, v{s0+23}")
            chk.append(f"v_cmp_lt_f32 vcc, s{S_THR}, v{mx}")
            streams.append([It((lambda c=c: a(c)), 4, (6 + 2*i) if not jit else (i // 2 if i < 6 else 2*i)) for i, c in enumerate(chk)])
        if t + 2 <= 31 and not (t + 1 >= cfg.t_jit):
            if t >= cfg.t_mid:
                streams.insert(0, [It((lambda: a("s_barrier")), 4, cfg.mid_b, cfg.mid_b)])
                streams.append([It((lambda f=f: kread(t + 2, f)), 4, cfg.mid_b + 1 + 2*f, ds=True) for f in range(NKP)])
            else:
                streams.append([It((lambda f=f: kread(t + 2, f)), 4, 30 + 2*f, ds=True) for f in range(NKP)])
        if extra: streams += extra
        a("s_nop 1")
        sched(a, mf, streams)

    def check_branch(t, tag):
        a(f"s_cbranch_vccnz L_rare_{tag}")
        a.label(f"L_back_{tag}")
        rare_blocks.append((tag, (t + 1) & 1))

    a("s_barrier")
    for f in range(NKP): kread(0, f)
    phaseA(-1)
    for f in range(NKP): kread(1, f)
    a("s_nop 1")
    for qt in range(3):
        s0 = Sreg(0, qt, 0)
        mx = V_TMP + qt
        a(f"v_max3_f32 v{mx}, v{s0}, v{s0+1}, v{s0+2}")
        a(f"v_max3_f32 v{mx}, v{mx}, v{s0+3}, v{s0+4}")
        a(f"v_max3_f32 v{mx}, v{mx}, v{s0+5}, v{s0+6}")
        a(f"v_max_f32 v{mx}, v{mx}, v{s0+7}")
    for step in range(2):
        for qt in range(3): a(f"v_mov_b32 v{V_TMP+4+qt}, v{V_TMP+qt}")
        a("s_nop 0")
        for qt in range(3):
            a(f"v_permlane{32 if step == 0 else 16}_swap_b32 v{V_TMP+qt}, v{V_TMP+4+qt}")
        a("s_nop 0")
        for qt in range(3): a(f"v_max_f32 v{V_TMP+qt}, v{V_TMP+qt}, v{V_TMP+4+qt}")
    for qt in range(3):
        s0 = Sreg(0, qt, 0); mx = V_TMP + qt
        for r in range(8):
            a(f"v_sub_f32 v{s0+r}, v{s0+r}, v{mx}")
        for r in range(4):
            a(f"v_sub_f32 v{V_CM + 4*qt + r}, 0, v{mx}")
    if cfg.dump == "s0":
        lg.drain()
        emit_dump_v(a, cfg, V_S[0], 24, extra=(V_CM, 12)); return

    def iteration(t, tag):
        if t < cfg.t_mid: a("s_barrier")
        phaseA(t)
        phaseB(t)
        if t + 1 <= 31:
            check_branch(t, tag)

    def loop(t_first, ntrips, name):
        q0 = list(lg.q)
        a(f"s_mov_b32 s{S_CNT}, {ntrips}")
        a.label(name)
        for t in range(t_first, t_first + 4):
            iteration(t, f"{name}_{t}")
        q1 = [(x[0], x[1] - 4) + x[2:] for x in lg.q]
        assert q0 == q1, (q0, q1)
        a(f"s_sub_u32 s{S_CNT}, s{S_CNT}, 1")
        a(f"s_cmp_lg_u32 s{S_CNT}, 0")
        a(f"s_cbranch_scc1 {name}")
        d = 4 * ntrips
        lg.q = [(x[0], x[1] + d) + x[2:] for x in q0]
        for x in lg.q: lg.issued.add(x)
        for f in range(16): lg.issued.add(("k", t_first + d + 1, f))
    iteration(0, "p0")
    tj = cfg.t_jit
    if cfg.t_mid <= 28:
        tm = cfg.t_mid
        assert (tm - 1) % 4 == 0
        if tm > 1:
            save = cfg.t_mid; cfg.t_mid = 99
            loop(1, (tm - 1) // 4, "L_loop")
            cfg.t_mid = save
        loop(tm, (29 - tm) // 4, "L_loopm")
    elif tj > 28:
        loop(1, 7, "L_loop")
    else:
        assert (tj - 1) % 4 == 0 and (29 - tj) % 4 == 0
        if tj > 1:
            save = cfg.t_jit; cfg.t_jit = 99
            loop(1, (tj - 1) // 4, "L_loop")
            cfg.t_jit = save
        lg.drain()
        loop(tj, (29 - tj) // 4, "L_loopj")
    a.label("L_tail_code")
    for t in range(29, 31):
        iteration(t, f"e{t}")

    def oconv_items(T, earliest=0):
        its = []
        for qt in range(3):
            tb = V_CT + 8 * qt
            for h in range(2):
                o = Oreg(2*T + h, qt)
                for r in range(4):
                    its.append(It((lambda d=tb + 4*h + r, s=o + r: a(f"v_accvgpr_read_b32 v{d}, a{s}")), 4, earliest))
            q = Qreg(qt, T)
            for r in range(4):
                its.append(It((lambda d=q + r, s=tb + 2*r: a(f"v_cvt_pk_bf16_f32 v{d}, v{s}, v{s+1}")), 4, earliest))
        return its

    def wo_base(j, jj):
        addr = WOSLOT[j]
        if addr < VREG: return VBK + jj, addr
        if addr < VREG + 65536: return V_VB + jj, addr - VREG
        return VBE + jj, addr - VREG - 65536
    steps = []
    fine = cfg.fine
    NP = 7 if fine else 4
    merge0 = fine and cfg.merge0
    if fine:
        if merge0:
            for T in range(8):
                steps.append((0, T, T//2, T & 1, 8))
        for p in range(2 if merge0 else 0, 7):
            for T in range(8):
                steps.append((p, T, 2*p + T//4, T & 3, 4))
    else:
        for p in range(3):
            for T in range(8):
                steps.append((p, T, 4*p + T//2, T & 1, 8))
        for T in range(8):
            steps.append((3, T, 12 + T//4, T & 3, 4))
    frs = []
    for si, (p, T, j, tau, nu) in enumerate(steps):
        for u in range(nu):
            frs.append((si, p, T, j, tau, nu, u))
    FBN = 12
    def oread(k, half):
        si, p, T, j, tau, nu, u = frs[k]
        tp = (8*tau + u) if nu == 8 else (4*tau + u)
        br, off = wo_base(j, tp & 7)
        off += (tp >> 3) * 256 + half * 8192
        r = A_WO + 4 * (k % FBN) + 2 * half
        lg.issue(f"ds_read_b64_tr_b16 {ar(r,2)}, v{br} offset:{off}", ("o", k, half))
    def accreg(p, u, qt):
        i = (u * 3 + qt) * 4
        if merge0:
            if p == 0: return ("v", V_P0 + i)
            if p == 2: return ("a", i)
            return ("v", V_P0 + 48 * ((p + 1) & 1) + i)
        if fine: return ("v", V_P0 + 48 * (p & 1) + i)
        if p == 0 or p == 2: return ("v", V_P0 + i)
        return ("a", i)
    def accstr(p, u, qt):
        f, r = accreg(p, u, qt)
        return v(r, 4) if f == "v" else ar(r, 4)
    slotc = [0]
    slog = []
    scale_red = cfg.fused and cfg.scale_red
    def conv_items(p, packed=False):
        its = []
        nu = 8 if ((p < 3 and not fine) or (merge0 and p == 0)) else 4
        for up in range(nu // 2):
            for qt in range(3):
                rl = V_RL + qt * 0
                rlp = f"v[{V_RL + 2*qt}:{V_RL + 2*qt + 1}]"
                f, _ = accreg(p, 0, 0)
                tb = V_CT + 12 * (slotc[0] % 2); slotc[0] += 1
                out = tb + 8
                if f == "a":
                    for h in range(2):
                        o = accreg(p, 2*up + h, qt)[1]
                        for r in range(4):
                            its.append(It((lambda d=tb + 4*h + r, s=o + r: a(f"v_accvgpr_read_b32 v{d}, a{s}"))))
                    srcs = [tb + 2*r for r in range(4)]
                else:
                    o0 = accreg(p, 2*up, qt)[1]; o1 = accreg(p, 2*up + 1, qt)[1]
                    srcs = [o0, o0 + 2, o1, o1 + 2]
                for sreg in (srcs if not scale_red else []):
                    if packed:
                        its.append(It((lambda s=sreg, rlp=rlp: a(f"v_pk_mul_f32 {v(s,2)}, {v(s,2)}, {rlp}"))))
                    else:
                        for k in range(2):
                            its.append(It((lambda s=sreg + k, qt=qt: a(f"v_mul_f32 v{s}, v{V_RL + 2*qt}, v{s}"))))
                for r, sreg in enumerate(srcs):
                    its.append(It((lambda d=out + r, s=sreg: a(f"v_cvt_pk_bf16_f32 v{d}, v{s}, v{s+1}"))))
                upair = (2*p if fine else 4*p) + up
                its.append(It((lambda c=(qt*14 + upair)*1024: a(f"s_add_u32 s{S_SO}, s{S_WOFF}, {c}")), 4))
                its.append(It((lambda o=out, p=p: (a(f"buffer_store_dwordx4 {v(o,4)}, v{V_ST}, s[{S_WS}:{S_WS+3}], s{S_SO} offen{cfg.st_flags}"), slog.append(p))), 4))
        return its

    def cstamp(i):
        if cfg.stamps and cfg.cstamps and (cfg.cst_all or i in (0, 7, 8, 9, 10, 11)):
            lg.drain()
            a("s_memrealtime s[62:63]")
            a("s_waitcnt lgkmcnt(0)")
            a(f"v_writelane_b32 v7, s62, {i}")
    svm = Vm(a)
    def signal_a(p, nafter):
        a(f"s_waitcnt vmcnt({nafter})")
        a("s_mov_b64 exec, 1")
        lg.issue(f"ds_add_rtn_u32 v6, v4, v5 offset:{4*p}", ("sig", p))
        a("s_mov_b64 exec, -1")
    def signal_b(p):
        lg.need(("sig", p))
        a("v_readfirstlane_b32 s90, v6")
        a("s_nop 3")
        a("s_cmp_eq_u32 s90, 2")
        a(f"s_cbranch_scc0 L_nosig{p}")
        a("s_mov_b64 exec, 1")
        a(f"s_mov_b32 s88, {4096*p}")
        a(f"buffer_atomic_add v5, off, s[84:87], s88")
        a("s_mov_b64 exec, -1")
        a.label(f"L_nosig{p}")
    if 31 < cfg.t_mid: a("s_barrier")
    phaseA(31)
    setup_its = []
    for j in range(8):
        setup_its.append(It((lambda j=j: a(f"v_subrev_u32 v{VBK+j}, {VREG}, v{V_VB+j}")), 4, 0))
        setup_its.append(It((lambda j=j: a(f"v_add_u32 v{VBE+j}, {VREG}, v{V_VB+j}")), 4, 0))
    NOP_ = cfg.nop
    ex1 = oconv_items(0, earliest=3 + 3*1 + 2 + 8)
    ex2 = oconv_items(1, earliest=3 + 3*3 + 2 + 8)
    pre_o = [It((lambda k=k, h=h: oread(k, h)), 4, 38, ds=True) for k in range(NOP_) for h in range(2)]
    phaseB(31, extra=[setup_its, ex1 + ex2, pre_o])
    if cfg.dump == "o":
        a("s_nop 7")
        emit_dump_acc(a, cfg, 204); return
    a(f"v_lshlrev_b32 v{V_ST}, 4, v{lane}")
    a(f"s_mul_i32 s{S_WOFF}, s{S_WID}, {3*14*1024}")
    for qt in range(3):
        a(f"v_accvgpr_read_b32 v{V_RL+2*qt}, a{A_L + 4*qt}")
    for qt in range(3):
        a(f"v_rcp_f32 v{V_RL+2*qt}, v{V_RL+2*qt}")
    a("s_nop 0")
    for qt in range(3):
        a(f"v_mov_b32 v{V_RL+2*qt+1}, v{V_RL+2*qt}")
    if cfg.fused:
        a(f"v_mov_b32 v4, {VS[0]}")
        a("v_mov_b32 v5, 1")
        emit_red_setup(a, cfg)
    if scale_red:
        a(f"v_and_b32 v6, 15, v{lane}")
        a("v_lshlrev_b32 v6, 6, v6")
        a(f"s_mul_i32 s90, s{S_WID}, 3072")
        a(f"s_lshl_b32 s91, s{S_H}, 2")
        a("s_add_u32 s90, s90, s91")
        a("s_mov_b64 exec, 0xffff")
        for qt in range(3):
            a(f"buffer_store_dword v{V_RL+2*qt}, v6, s[64:67], s90 offen offset:{1024*qt}{cfg.st_flags}")
            slog.append(-1)
        a("s_mov_b64 exec, -1")

    cur_slot = -1
    nxt = NOP_
    pend = []
    store_log = slog
    stores_since = {q: (lambda q=q: sum(1 for i, x in enumerate(store_log) if i > max(k for k, y in enumerate(store_log) if y == q))) for q in range(NP)}
    sg0 = (cfg.sig_p0, cfg.sig_f0, 0 if merge0 else 1) if fine else (2, cfg.sig_t, 0)
    sg1 = (cfg.sig_p1, cfg.sig_f1, 3) if fine else (3, cfg.sig_t1, 1)
    for si, (p, T, j, tau, nu) in enumerate(steps):
        if j != cur_slot:
            if j < ntb(cfg): a("s_barrier")
            cur_slot = j
            if cfg.slot_stamps: a(f"s_memtime s[{SLST[j]}:{SLST[j]+1}]")
        if T == 0 and (p == 0 or not fine): cstamp(p)
        if cfg.fused and p == sg0[0] and T == sg0[1]:
            signal_a(0, stores_since[sg0[2]]())
            cstamp(4)
        if cfg.fused and p == sg0[0] and T == sg0[1] + 1:
            signal_b(0)
        if cfg.fused and p == sg1[0] and T == sg1[1]:
            cstamp(5)
            signal_a(1, stores_since[sg1[2]]())
            cstamp(6)
        if cfg.fused and p == sg1[0] and T == sg1[1] + 1:
            signal_b(1)
        k0 = sum(s[4] for s in steps[:si])
        if T == 0 and p > 0:
            assert not pend
            pend = conv_items(0 if (merge0 and p == 2) else p - 1)
            for it in pend[:1]: pass
        mf = []
        for u in range(nu):
            k = k0 + u
            for qt in range(3):
                pre = None
                if qt == 0 and u % 2 == 0:
                    pre = (lambda k=k: lg.need(("o", k + 1, 1)))
                mf.append((pre, (lambda u=u, qt=qt, k=k: mfma(a, accstr(p, u, qt), ar(A_WO + 4*(k % FBN), 4), v(Qreg(qt, T), 4), "0" if T == 0 else None))))
        rs = []
        lim = k0 + nu + NOP_
        while nxt < len(frs) and nxt < lim and frs[nxt][3] <= j + 1:
            kk = nxt
            use = 3 * (kk - k0)
            e = max(0, 3 * (kk - FBN - k0) + 2)
            for h in range(2):
                rs.append(It((lambda kk=kk, h=h: oread(kk, h)), 4, max(e, use - 3*NOP_ - 3) + h, max(0, use - 10 + h), ds=True))
            nxt += 1
        streams = [rs]
        if p == 0 and T + 2 <= 7:
            streams.append(oconv_items(T + 2))
        if pend:
            if T == 0:
                for it in pend: it.earliest = 4
            streams.append(pend)
            last_of_pass = (T == 7)
            sched(a, mf, [rs] + [pend], flush=False)
            while rs: rs.pop(0).fn()
            if last_of_pass:
                while pend: pend.pop(0).fn()
            for it in pend: it.earliest = 0
        else:
            sched(a, mf, streams)
    if cfg.slot_stamps: a(f"s_memtime s[{SLST[14]}:{SLST[14]+1}]")
    cstamp(7)
    a("s_nop 7")
    for it in conv_items(NP - 1, packed=True): it.fn()
    cstamp(8)
    a.label("L_tail_end")
    print("lds throttles:", lg.throttled, file=sys.stderr)
    if cfg.fused:
        emit_final_pre(a, cfg)
        signal_a(2, 0); cstamp(9); signal_b(2)
        if cfg.decouple and cfg.poll_wg: emit_poll_wg(a, cfg, 2)
        elif cfg.decouple: emit_poll(a, cfg, 2)
        else: a("s_barrier")
        cstamp(10)
        emit_final_post(a, cfg)
        if cfg.stamps and cfg.cstamps:
            a("s_waitcnt vmcnt(0)")
            cstamp(11)
            if cfg.slot_stamps:
                a("s_waitcnt lgkmcnt(0)")
                for j in range(15):
                    a(f"v_writelane_b32 v7, s{SLST[j]}, {16 + j}")
            a("s_mov_b32 s76, s72"); a("s_mov_b32 s77, s73")
            a("s_mov_b32 s78, 0x10000000"); a("s_mov_b32 s79, 0x20000")
            a("s_mul_i32 s74, s2, 3")
            a(f"s_add_u32 s74, s74, s{S_WID}")
            a("s_lshl_b32 s74, s74, 8")
            a("s_add_u32 s74, s74, 0x4400000")
            a(f"v_lshlrev_b32 v6, 2, v{V_LANE}")
            a("buffer_store_dword v7, v6, s[76:79], s74 offen")
    elif cfg.stamps:
        a("s_waitcnt vmcnt(0)")
        a("s_barrier")
    a("s_branch L_end")

def emit_rare(a, cfg, rare_blocks):
    for tag, par in rare_blocks:
        a.label(f"L_rare_{tag}")
        a("s_nop 7")
        for qt in range(3):
            s0 = Sreg(par, qt, 0)
            mx = V_TMP + qt
            a(f"v_max3_f32 v{mx}, v{s0}, v{s0+1}, v{s0+2}")
            a(f"v_max3_f32 v{mx}, v{mx}, v{s0+3}, v{s0+4}")
            a(f"v_max3_f32 v{mx}, v{mx}, v{s0+5}, v{s0+6}")
            a(f"v_max_f32 v{mx}, v{mx}, v{s0+7}")
            xlane_max(a, mx, V_TMP + 4)
            a(f"v_max_f32 v{mx}, 0, v{mx}")
            for r in range(8):
                a(f"v_sub_f32 v{s0+r}, v{s0+r}, v{mx}")
            for r in range(4):
                a(f"v_sub_f32 v{V_CM + 4*qt + r}, v{V_CM + 4*qt + r}, v{mx}")
            a(f"v_sub_f32 v{mx}, 0, v{mx}")
            a(f"v_exp_f32 v{mx}, v{mx}")
        a(f"s_getpc_b64 s[{S_TGT}:{S_TGT+1}]")
        a.label(f"L_pc_{tag}")
        a(f"s_add_u32 s{S_TGT}, s{S_TGT}, L_rescale-L_pc_{tag}")
        a(f"s_addc_u32 s{S_TGT+1}, s{S_TGT+1}, 0")
        a(f"s_swappc_b64 s[{S_RET}:{S_RET+1}], s[{S_TGT}:{S_TGT+1}]")
        a(f"s_branch L_back_{tag}")
    if not rare_blocks: return
    a.label("L_rescale")
    a("s_nop 7")
    for qt in range(3):
        regs = [Oreg(u, qt) + r for u in range(16) for r in range(4)] + [A_L + 4*qt + r for r in range(4)]
        for i in range(0, len(regs), 4):
            for k in range(4):
                a(f"v_accvgpr_read_b32 v{V_TMP+4+k}, a{regs[i+k]}")
            for k in range(4):
                a(f"v_mul_f32 v{V_TMP+4+k}, v{V_TMP+qt}, v{V_TMP+4+k}")
            for k in range(4):
                a(f"v_accvgpr_write_b32 a{regs[i+k]}, v{V_TMP+4+k}")
    a("s_nop 1")
    a(f"s_setpc_b64 s[{S_RET}:{S_RET+1}]")

def emit_dump_common(a, cfg, regs, isacc):
    a("s_mov_b32 s76, s72"); a("s_mov_b32 s77, s73")
    a("s_mov_b32 s78, 0x10000000"); a("s_mov_b32 s79, 0x20000")
    a(f"s_mul_i32 s74, s2, 3")
    a(f"s_add_u32 s74, s74, s{S_WID}")
    a("s_lshl_b32 s74, s74, 16")
    a(f"v_lshlrev_b32 v{V_T0}, 2, v{V_LANE}")
    for i, r in enumerate(regs):
        if isacc:
            a(f"v_accvgpr_read_b32 v{V_T1}, a{r}")
            src = V_T1
        else:
            src = r
        a(f"buffer_store_dword v{src}, v{V_T0}, s[76:79], s74 offen")
        a("s_add_u32 s74, s74, 256")
        if isacc: a("s_waitcnt vmcnt(0)")
    a("s_waitcnt vmcnt(0)")
    n = {"qacc": 33 + 14, "q": 33 + 14, "s0": 32 + 14, "o": 14}[cfg.dump]
    for _ in range(n): a("s_barrier")
    if cfg.stamps: a("s_barrier")
    a.label("L_tail_end")
    if cfg.dump != "o": a.label("L_tail_code")
    a("s_branch L_end")
def emit_dump_acc(a, cfg, n):
    a("s_nop 7")
    emit_dump_common(a, cfg, list(range(n)), True)
def emit_dump_v(a, cfg, base, n, extra=None):
    regs = list(range(base, base + n))
    if extra: regs += list(range(extra[0], extra[0] + extra[1]))
    emit_dump_common(a, cfg, regs, False)

def emit_reduce(a, cfg):
    a.raw(f".globl {RNAME}")
    a.raw(".p2align 8")
    a.raw(f".type {RNAME},@function")
    a.label(RNAME)
    a("s_cmp_ge_u32 s2, 504")
    a("s_cbranch_scc1 LR_end")
    a("s_load_dwordx2 s[4:5], s[0:1], 96")
    a("s_load_dwordx2 s[8:9], s[0:1], 80")
    a("v_lshrrev_b32 v1, 6, v0")
    a("v_and_b32 v2, 63, v0")
    a("v_readfirstlane_b32 s3, v1")
    a("s_lshl_b32 s12, s2, 2")
    a("s_add_u32 s12, s12, s3")
    a(f"s_mul_hi_u32 s13, s12, {(2**32 + 125)//126}")
    a("s_mul_i32 s14, s13, 126")
    a("s_sub_u32 s14, s12, s14")
    a(f"s_mul_hi_u32 s15, s14, {(2**32 + 13)//14}")
    a("s_mul_i32 s16, s15, 14")
    a("s_sub_u32 s16, s14, s16")
    a("s_waitcnt lgkmcnt(0)")
    a(f"s_mul_i32 s17, s13, {16*129024}")
    a("s_lshl_b32 s18, s14, 10")
    a("s_add_u32 s17, s17, s18")
    a("s_add_u32 s4, s4, s17")
    a("s_addc_u32 s5, s5, 0")
    a(f"s_mov_b32 s6, {15*129024 + 1024}")
    a("s_mov_b32 s7, 0x20000")
    a("v_lshlrev_b32 v3, 4, v2")
    for h in range(16):
        a(f"s_mov_b32 s19, {h*129024}")
        a(f"buffer_load_dwordx4 v[{8+4*h}:{11+4*h}], v3, s[4:7], s19 offen{cfg.rd_flags}")
    a("s_and_b32 s20, s13, 7")
    a("s_lshr_b32 s21, s13, 3")
    a("s_mul_i32 s20, s20, 144")
    a("s_lshl_b32 s22, s15, 4")
    a("s_add_u32 s20, s20, s22")
    a("s_mul_i32 s20, s20, 1792")
    a("s_mul_i32 s21, s21, 896")
    a("s_lshl_b32 s22, s16, 6")
    a("s_add_u32 s20, s20, s21")
    a("s_add_u32 s20, s20, s22")
    a("v_and_b32 v4, 15, v2")
    a("v_mul_u32_u24 v4, 1792, v4")
    a("v_lshrrev_b32 v5, 4, v2")
    a("v_lshl_add_u32 v4, v5, 3, v4")
    a("s_mov_b32 s10, %d" % (8*144*896*2))
    a("s_mov_b32 s11, 0x20000")
    for h in range(16):
        a(f"s_waitcnt vmcnt({15-h})")
        for r in range(4):
            src = 8 + 4*h + r
            if h == 0:
                a(f"v_lshlrev_b32 v{72+2*r}, 16, v{src}")
                a(f"v_and_b32 v{73+2*r}, 0xffff0000, v{src}")
            else:
                a(f"v_lshlrev_b32 v80, 16, v{src}")
                a(f"v_and_b32 v81, 0xffff0000, v{src}")
                a(f"v_add_f32 v{72+2*r}, v{72+2*r}, v80")
                a(f"v_add_f32 v{73+2*r}, v{73+2*r}, v81")
    for r in range(4):
        a(f"v_cvt_pk_bf16_f32 v{84+r}, v{72+2*r}, v{73+2*r}")
    a("buffer_store_dwordx2 v[84:85], v4, s[8:11], s20 offen")
    a("buffer_store_dwordx2 v[86:87], v4, s[8:11], s20 offen offset:32")
    a.label("LR_end")
    a("s_endpgm")

def kd(a, name, vg, acc, sg=102):
    a.raw(f".amdhsa_kernel {name}")
    a.raw(f"  .amdhsa_next_free_vgpr {vg}")
    a.raw(f"  .amdhsa_next_free_sgpr {sg}")
    a.raw(f"  .amdhsa_accum_offset {acc}")
    a.raw("  .amdhsa_group_segment_fixed_size 0")
    a.raw("  .amdhsa_kernarg_size 104")
    a.raw("  .amdhsa_user_sgpr_count 2")
    a.raw("  .amdhsa_user_sgpr_kernarg_segment_ptr 1")
    a.raw("  .amdhsa_system_sgpr_workgroup_id_x 1")
    a.raw(".end_amdhsa_kernel")

HEADER = """; Fused MHA block (two branches): Q-proj + flash attention + partial out-proj per (branch,batch,head) workgroup,
"""
def generate(cfg):
    a = Asm()
    a.raw(HEADER.rstrip())
    if cfg.fused and not cfg.aslist:
        a.raw(f"; @launch grid=(256,1,1) block=(256,1,1) lds=163840")
    else:
        a.raw(f"; @launch kernel={KNAME} grid=(256,1,1) block=(256,1,1) lds=163840")
    if not cfg.dump and not cfg.fused:
        a.raw(f"; @launch kernel={RNAME} grid=(504,1,1) block=(256,1,1) lds=0")
    a.raw('.amdgcn_target "amdgcn-amd-amdhsa--gfx950"')
    a.raw(".text")
    a.raw(f".globl {KNAME}")
    a.raw(".p2align 8")
    a.raw(f".type {KNAME},@function")
    a.label(KNAME)
    emit_setup(a, cfg)
    rare = []
    if cfg.fast_start:
        head = a.L; a.L = []
        early, late = emit_loader(a, cfg)
        a.L = []
        a.label("L_compute")
        emit_compute_main(a, cfg, rare)
        a.L = head + early + a.L + late
    else:
        emit_compute_main(a, cfg, rare)
        emit_loader(a, cfg)
    a.label("L_code_end")
    emit_rare(a, cfg, rare)
    a.label("L_end")
    a("s_endpgm")
    if not cfg.dump and not cfg.fused:
        emit_reduce(a, cfg)
    a.raw('.section .rodata,"a"')
    a.raw(".p2align 6")
    kd(a, KNAME, 512, 256)
    if not cfg.dump and not cfg.fused:
        a.raw(".p2align 6")
        kd(a, RNAME, 96, 96, 32)
    return a.text()

if __name__ == "__main__":
    cfg = Cfg()
    out = sys.argv[1]
    if "one_ds=0" in sys.argv: ONE_DS[0] = False; sys.argv.remove("one_ds=0")
    for kv in sys.argv[2:]:
        k, val = kv.split("=", 1)
        cur = getattr(cfg, k)
        if isinstance(cur, bool): val = val in ("1", "True", "true")
        elif isinstance(cur, float): val = float(val)
        elif isinstance(cur, int): val = int(val)
        elif val == "None": val = None
        setattr(cfg, k, val)
    open(out, "w").write(generate(cfg))
```

```python
import sys, math, struct, re

KNAME = "concat_heads__mha_block_cached__mha_block_cached__near_ridge_kernel"
RNAME = "reduce_kernel"

class Asm:
    def __init__(self):
        self.L = []
    def __call__(self, s):
        self.L.append("    " + s)
    def label(self, s):
        self.L.append(s + ":")
    def raw(self, s):
        self.L.append(s)
    def text(self):
        return "\n".join(self.L) + "\n"

class Lgkm:
    def __init__(self, a):
        self.a = a; self.q = []; self.issued = set(); self.throttled = 0
    def issue(self, ins, tag):
        if len(self.q) >= 15:
            self.a("s_waitcnt lgkmcnt(14)"); self.q = self.q[len(self.q) - 14:]; self.throttled += 1
        self.a(ins); self.q.append(tag); self.issued.add(tag)
    def need(self, tag):
        assert tag in self.issued, ("not issued", tag)
        if tag in self.q:
            idx = len(self.q) - 1 - self.q[::-1].index(tag)
            n = len(self.q) - 1 - idx
            self.a(f"s_waitcnt lgkmcnt({n})")
            self.q = self.q[idx + 1:]
    def drain(self):
        if self.q:
            self.a("s_waitcnt lgkmcnt(0)")
            self.q = []

class Vm:
    def __init__(self, a):
        self.a = a; self.q = []
    def room(self, n):
        over = len(self.q) + n - 63
        if over > 0:
            keep = len(self.q) - over
            self.a(f"s_waitcnt vmcnt({keep})")
            self.q = self.q[over:]
    def issue(self, ins, tag):
        assert len(self.q) < 63
        self.a(ins); self.q.append(tag)
    def need(self, tag):
        if tag in self.q:
            idx = len(self.q) - 1 - self.q[::-1].index(tag)
            n = len(self.q) - 1 - idx
            self.a(f"s_waitcnt vmcnt({n})")
            self.q = self.q[idx + 1:]

class It:
    def __init__(self, fn, cost=4, earliest=0, deadline=10**9, ds=False):
        self.fn, self.cost, self.earliest, self.deadline, self.ds = fn, cost, earliest, deadline, ds
ONE_DS = [True]

def sched(a, mf, streams, budget=8, flush=True):
    n = len(mf)
    for m, (pre, emit) in enumerate(mf):
        if pre: pre()
        emit()
        b = budget
        if m + 1 < n and mf[m + 1][0] is not None: b -= 4
        nds = 0
        for st in streams:
            while st and st[0].deadline <= m:
                it = st.pop(0); it.fn(); b -= it.cost; nds += it.ds
        for st in streams:
            while st and st[0].earliest <= m and st[0].cost <= b and not (st[0].ds and nds >= 1 and ONE_DS[0]):
                it = st.pop(0); it.fn(); b -= it.cost; nds += it.ds
    if flush:
        prog = True
        while any(streams):
            for st in streams:
                if st:
                    it = st.pop(0); it.fn()

def v(n, cnt=1):
    return f"v{n}" if cnt == 1 else f"v[{n}:{n+cnt-1}]"
def ar(n, cnt=1):
    return f"a{n}" if cnt == 1 else f"a[{n}:{n+cnt-1}]"
def f2u(x): return struct.unpack("<I", struct.pack("<f", x))[0]

V_LANE = 1
V_T0, V_T1 = 2, 3
V_KB = 4
V_VB = 8
V_TMP = 16
V_S = [24, 48]
V_P = 72
V_CM = 84
V_KBUF = 96
V_VBUF = 128
V_Q = 160
A_O = 0
A_L = 192
A_ONES = 204
A_X = 0
A_W = 168
A_DUMMY = 232
V_QACC = 64
V_WB = 16
V_XB = 20
V_XB2 = 24
A_WO = 208
V_P0 = 64
VBK, VBE = 24, 32
V_RL = 16
V_ST = 22
V_CT = 40

def Qreg(qt, T): return V_Q + (qt * 8 + T) * 4
def Xreg(s, qt): return A_X + (s * 3 + qt) * 4
def QAcc(u, qt): return V_QACC + (qt * 8 + (u >> 1)) * 8 + 4 * (u & 1)
def Oreg(u, qt): return A_O + (u * 3 + qt) * 4
def Sreg(par, qt, a): return V_S[par] + (qt * 2 + a) * 4

KS = [i * 16384 for i in range(4)]
VREG = 65536
VS = [VREG + i * 16384 for i in range(4)]
ES = [131072, 147456]
WRING = [ES[0], ES[1], VS[2], VS[3]]
WBASE = VS[2]
XW = 43008
XAW = 24576
XBB = 32768
XBW = 18432
WOSLOT = [ES[0], ES[1], KS[0], KS[1], VS[0], KS[2], VS[1], KS[3], VS[2], VS[3], ES[0], ES[1], KS[0], KS[1]]

S_WID = 3
S_X, S_K, S_V, S_WQ, S_WO, S_WS = 4, 8, 12, 16, 20, 24
S_B, S_H, S_BR, S_THR = 28, 29, 30, 31
S_SO, S_SO2, S_CNT = 32, 33, 34
S_RET, S_TGT = 36, 38
S_WOFF = 40
S_PC = 56
S_TS = 60

SLST = [4, 6, 8, 10, 12, 14, 16, 18, 20, 22, 48, 50, 52, 54, 56]
QSCALE = math.log2(math.e) / 16.0
SCL_OFF = 0x2200000
CNT_OFF = 0x2100000

class Cfg:
    nt_kv = True
    nt_w = False
    nt_x = False
    nt_wo = False
    nt_warm = False
    st_flags = " sc0 sc1"
    rd_flags = " sc0 sc1"
    warm_wq = True
    warm_wo = False
    code_pf = True
    thr = 8.0
    dump = None
    stamps = False
    kvsched = "g"
    fused = True
    poll_flags = " sc1"
    out_flags = ""
    aslist = False
    sig_t = 0
    kvreg = 3
    kv_rate = 0
    poll_wg = False
    pipe_sleep = 3
    w16 = False
    xb_self = False
    warm_late = 0
    sig_p0 = 3
    sig_p1 = 5
    merge0 = True
    slot_stamps = False
    lstamps = True
    cst_all = False
    xst_early = False
    fine = True
    sig_f0 = 4
    sig_f1 = 4
    t_jit = 99
    t_mid = 13
    mid_a = 26
    mid_b = 30
    jit_pre = 4
    fast_start = True
    warm2 = False
    xbsched = "b"
    xb_read = 4
    xb_one = 1
    wr_pace = 0
    wr_spread = 10
    map_odd = False
    cstamps = False
    stagger = 24
    ncls = 2
    cls_mode = "xe"
    stag_tmax = 31
    scale_red = True
    decouple = True
    nop = 6
    dbg_stamps = -1
    wo_reg0 = 9
    wo_reg_t0 = 14
    warm_t0 = 18
    poll_sleep = 2
    sig_t1 = 2
    nkp = 8
    nvp = 4

def emit_setup(a, cfg):
    a("s_cmp_ge_u32 s2, 256")
    a("s_cbranch_scc1 L_end")
    if cfg.stamps:
        a(f"s_memrealtime s[{S_TS}:{S_TS+1}]")
    a("s_load_dwordx4 s[44:47], s[0:1], 0")
    a("s_load_dwordx4 s[48:51], s[0:1], 16")
    a("s_load_dwordx2 s[54:55], s[0:1], 40")
    a("s_load_dwordx4 s[68:71], s[0:1], 64")
    a("s_load_dwordx2 s[52:53], s[0:1], 32")
    a("s_load_dwordx4 s[64:67], s[0:1], 48")
    a("s_load_dwordx2 s[72:73], s[0:1], 96")
    a("s_load_dwordx4 s[80:83], s[0:1], 80")
    a(f"v_lshrrev_b32 v{V_T0}, 6, v0")
    a(f"v_and_b32 v{V_LANE}, 63, v0")
    a(f"v_readfirstlane_b32 s{S_WID}, v{V_T0}")
    a("s_lshr_b32 s75, s2, 3")
    if cfg.code_pf and cfg.fast_start:
        a(f"s_getpc_b64 s[{S_PC}:{S_PC+1}]")
        a.label("L_pc_entry")
        a(f"s_sub_u32 s{S_PC}, s{S_PC}, L_pc_entry-{KNAME}")
        a(f"s_subb_u32 s{S_PC+1}, s{S_PC+1}, 0")
        a(f"s_mov_b32 s{S_PC+2}, L_code_end-{KNAME}")
        a(f"s_mov_b32 s{S_PC+3}, 0x20000")
        a(f"v_lshlrev_b32 v4, 4, v{V_LANE}")
        a("s_lshl_b32 s76, s75, 2")
        a(f"s_add_u32 s76, s76, s{S_WID}")
        a("s_lshl_b32 s76, s76, 10")
        a(f"buffer_load_dwordx4 a[236:239], v4, s[{S_PC}:{S_PC+3}], s76 offen")
    a("s_and_b32 s74, s2, 7")
    if cfg.map_odd:
        a(f"s_and_b32 s{S_BR}, s74, 1")
        a("s_lshr_b32 s76, s74, 1")
    else:
        a(f"s_lshr_b32 s{S_BR}, s74, 2")
        a("s_and_b32 s76, s74, 3")
    a("s_lshl_b32 s76, s76, 2")
    a("s_and_b32 s77, s75, 3")
    a(f"s_add_u32 s{S_H}, s76, s77")
    a(f"s_lshr_b32 s{S_B}, s75, 2")
    if not cfg.fast_start: emit_ptrs(a, cfg)
    a(f"s_cmp_eq_u32 s{S_WID}, 3")
    if cfg.fast_start: a("s_cbranch_scc0 L_compute")
    else: a("s_cbranch_scc1 L_loader")

def emit_ptrs(a, cfg):
    a(f"s_mul_i32 s78, s{S_B}, 129024")
    a(f"s_lshl_b32 s79, s{S_H}, 9")
    a(f"s_mov_b32 s{S_X+2}, 129024")
    a(f"s_mov_b32 s{S_X+3}, 0x20000")
    a(f"s_sub_u32 s{S_WQ+2}, {448*8192}, s79")
    a(f"s_mov_b32 s{S_WQ+3}, 0x20000")
    a("s_waitcnt lgkmcnt(0)")
    a(f"s_cmp_eq_u32 s{S_BR}, 0")
    a(f"s_cselect_b32 s{S_X}, s44, s54")
    a(f"s_cselect_b32 s{S_X+1}, s45, s55")
    a(f"s_cselect_b32 s{S_WQ}, s50, s68")
    a(f"s_cselect_b32 s{S_WQ+1}, s51, s69")
    a(f"s_cselect_b32 s{S_K}, s46, s64")
    a(f"s_cselect_b32 s{S_K+1}, s47, s65")
    a(f"s_cselect_b32 s{S_V}, s48, s66")
    a(f"s_cselect_b32 s{S_V+1}, s49, s67")
    a(f"s_cselect_b32 s{S_WO}, s52, s70")
    a(f"s_cselect_b32 s{S_WO+1}, s53, s71")
    a(f"s_add_u32 s{S_X}, s{S_X}, s78")
    a(f"s_addc_u32 s{S_X+1}, s{S_X+1}, 0")
    a(f"s_add_u32 s{S_WQ}, s{S_WQ}, s79")
    a(f"s_addc_u32 s{S_WQ+1}, s{S_WQ+1}, 0")

def emit_setup_late(a, cfg, loader):
    a(f"s_lshl_b32 s74, s{S_B}, 4")
    a(f"s_add_u32 s74, s74, s{S_H}")
    if loader:
        a("s_lshl_b32 s75, s74, 19")
        for S in (S_K, S_V):
            a(f"s_add_u32 s{S}, s{S}, s75")
            a(f"s_addc_u32 s{S+1}, s{S+1}, 0")
            a(f"s_mov_b32 s{S+2}, 524288")
            a(f"s_mov_b32 s{S+3}, 0x20000")
        a(f"s_mul_i32 s75, s{S_H}, {256*896}")
        a(f"s_add_u32 s{S_WO}, s{S_WO}, s75")
        a(f"s_addc_u32 s{S_WO+1}, s{S_WO+1}, 0")
        a(f"s_mov_b32 s{S_WO+2}, {256*896}")
        a(f"s_mov_b32 s{S_WO+3}, 0x20000")
    else:
        a(f"s_lshl_b32 s75, s{S_BR}, 7")
        a("s_add_u32 s74, s74, s75")
        a("s_mul_i32 s74, s74, 129024")
        a(f"s_add_u32 s{S_WS}, s72, s74")
        a(f"s_addc_u32 s{S_WS+1}, s73, 0")
        a(f"s_mov_b32 s{S_WS+2}, 129024")
        a(f"s_mov_b32 s{S_WS+3}, 0x20000")

def ntb(cfg): return 9 if (cfg.fused and not cfg.dump) else 14
def barrier_list(cfg):
    L = [("PB", s) for s in range(14)]
    for t in range(-1, 32):
        if t >= cfg.t_mid:
            L.append(("MB", t))
            if t + 2 <= 31: L.append(("MA", t))
            continue
        L.append(("B", t))
        if t >= cfg.t_jit: L.append(("BB", t))
    L += [("TB", j) for j in range(ntb(cfg))]
    return L

XBSCHED = {"a": {1: [0], 2: [1], 3: [2]}, "b": {1: [0, 1], 2: [2]}, "c": {1: [0, 1, 2]}}
KVSCHED = {
    "f": {3: [("K", 0)], 4: [("K", 1)], 6: [("K", 2)], 7: [("V", 0)], 8: [("K", 3)], 9: [("V", 1)], 11: [("V", 2)], 12: [("V", 3)]},
    "g": {2: [("K", 0)], 3: [("K", 1)], 5: [("K", 2)], 6: [("V", 0)], 8: [("K", 3)], 9: [("V", 1)], 11: [("V", 2)], 12: [("V", 3)]},
    "h": {1: [("K", 0)], 3: [("K", 1)], 5: [("K", 2)], 6: [("V", 0)], 7: [("K", 3)], 9: [("V", 1)], 11: [("V", 2)], 12: [("V", 3)]},
    "a": {1: [("K", 0)], 2: [("V", 0)], 3: [("K", 1)], 4: [("K", 2)], 6: [("V", 1)], 7: [("K", 3)], 11: [("V", 2)], 12: [("V", 3)]},
    "b": {1: [("K", 0), ("V", 0)], 2: [("K", 1)], 3: [("K", 2)], 4: [("V", 1)], 5: [("K", 3)], 11: [("V", 2)], 12: [("V", 3)]},
    "d": {4: [("K", 0)], 5: [("K", 1)], 7: [("K", 2), ("V", 0)], 8: [("K", 3)], 9: [("V", 1)], 11: [("V", 2)], 12: [("V", 3)]},
    "e": {3: [("K", 0)], 5: [("K", 1)], 7: [("V", 0)], 8: [("K", 2)], 9: [("K", 3)], 10: [("V", 1)], 11: [("V", 2)], 12: [("V", 3)]},
    "c": {1: [("K", 0)], 3: [("V", 0)], 4: [("K", 1)], 6: [("K", 2)], 7: [("V", 1)], 9: [("K", 3)], 11: [("V", 2)], 12: [("V", 3)]},
}

def emit_code_prefetch(a, cfg, vm, vaddr, lo, hi, dst):
    a(f"s_getpc_b64 s[{S_PC}:{S_PC+1}]")
    lab = f"L_pc_{lo}"
    a.label(lab)
    a(f"s_add_u32 s{S_PC}, s{S_PC}, {lo}-{lab}")
    a(f"s_addc_u32 s{S_PC+1}, s{S_PC+1}, 0")
    a(f"s_mov_b32 s{S_PC+2}, {hi}-{lo}")
    a(f"s_mov_b32 s{S_PC+3}, 0x20000")
    return

def emit_loader(a, cfg):
    a.label("L_loader")
    vm = Vm(a)
    LH, LP = 2, 3
    VK, VV, VW, VO, VO3 = 8, 16, 20, 24, 28
    T0, T1 = 4, 5
    stamp_idx = [0]
    def xstamp(i):
        if cfg.stamps and (i >= 4 or cfg.xst_early):
            a("s_memrealtime s[62:63]")
            a("s_waitcnt lgkmcnt(0)")
            a(f"v_writelane_b32 v58, s62, {i}")
    xstamp(0)
    a(f"v_lshrrev_b32 v{LH}, 5, v{V_LANE}")
    a(f"v_and_b32 v{LP}, 31, v{V_LANE}")
    a(f"v_lshlrev_b32 v32, 4, v{V_LANE}")
    def chunkpat(i):
        a(f"v_add_u32 v{T0}, {2*i}, v{LH}")
        a(f"v_lshlrev_b32 v{T0}, 1, v{T0}")
        a(f"v_xor_b32 v{T0}, v{T0}, v{LP}")
    for i in range(4):
        chunkpat(i)
        a(f"v_lshlrev_b32 v{T1}, 4, v{T0}")
        a(f"v_lshl_add_u32 v{VW+i}, v{LH}, 13, v{T1}")
    if cfg.fast_start: emit_ptrs(a, cfg)
    if cfg.stamps:
        a(f"v_writelane_b32 v56, s{S_TS}, 0")
    ntkv = " nt" if cfg.nt_kv else ""
    ntw = " nt" if cfg.nt_w else ""
    ntwo = " nt" if cfg.nt_wo else ""
    ntwarm = " nt" if cfg.nt_warm else ""

    clsn = [0]
    def class_wait():
        if not cfg.stagger: return
        clsn[0] += 1; n = clsn[0]
        for c in range(1, cfg.ncls):
            a(f"s_cmp_lt_u32 s53, {c}")
            a(f"s_cbranch_scc1 L_cls{n}")
            a(f"s_waitcnt vmcnt({47 - cfg.stagger * c})")
        a.label(f"L_cls{n}")
    def tile_kv(kind, t):
        srd = S_K if kind == "K" else S_V
        lds = KS[t % 4] if kind == "K" else VS[t % 4]
        vm.room(16)
        if t >= 4 and t <= cfg.stag_tmax: class_wait()
        for m in range(4):
            a(f"s_mov_b32 m0, {lds + m*4096}")
            a(f"s_mov_b32 s{S_SO}, {t*16384 + m*4096}")
            for n in range(4):
                i = 4*m + n
                vo = VK + (i & 7) if kind == "K" else VV + (i & 3)
                vm.issue(f"buffer_load_dwordx4 v{vo}, s[{srd}:{srd+3}], s{S_SO} offen offset:{n*1024}{ntkv} lds", (kind, t))
    kv_reg = {}
    kv_put = set()
    lds_dirty = [False]
    def kv_quad(R, i): return ar(64*R + 4*i, 4) if R < 4 else v(64 + 64*(R - 4) + 4*i, 4)
    def ld_kv_reg(kind, t, R):
        srd = S_K if kind == "K" else S_V
        vm.room(16)
        for m in range(4):
            a(f"s_mov_b32 s{S_SO}, {t*16384 + m*4096}")
            for n in range(4):
                i = 4*m + n
                vo = VK + (i & 7) if kind == "K" else VV + (i & 3)
                vm.issue(f"buffer_load_dwordx4 {kv_quad(R, i)}, v{vo}, s[{srd}:{srd+3}], s{S_SO} offen offset:{n*1024}{ntkv}", ("R", kind, t))
        kv_reg[(kind, t)] = R
    def put_kv(kind, t):
        R = kv_reg[(kind, t)]
        lds = KS[t % 4] if kind == "K" else VS[t % 4]
        vm.need(("R", kind, t))
        a(f"v_add_u32 v33, {lds}, v32")
        for i in range(16):
            a(f"ds_write_b128 v33, {kv_quad(R, i)} offset:{i*1024}")
        kv_put.add((kind, t)); lds_dirty[0] = True
    def need_kv(kind, t):
        if (kind, t) in kv_reg:
            assert (kind, t) in kv_put, ("tile not put", kind, t)
            if lds_dirty[0]:
                a("s_waitcnt lgkmcnt(0)"); lds_dirty[0] = False
        else:
            vm.need((kind, t))
    def kv_plan(R):
        seq = [("K", 4, 0)]
        for t in range(1, 28):
            seq.append(("K", t + 4, t)); seq.append(("V", t + 3, t))
        plan = {}
        free = list(range(R)); hold = {}
        nxt = 0
        for pre in (("PB12", "PB13", "Bm1")[:R] if R <= 3 else ("PB10", "PB11", "PB12", "PB13", "Bm1")[5-R:]):
            r = free.pop(0); plan.setdefault(pre, []).append(("ld", seq[nxt][0], seq[nxt][1], r)); hold[nxt] = (r, -2); nxt += 1
        t = 0
        while hold or t < 2:
            acts = []
            for idx in sorted(hold):
                kind, tt, E = seq[idx]; r, ti = hold[idx]
                last = E + 1
                if E <= t and (t - ti >= 2 or t >= last):
                    acts.append(("put", kind, tt, r)); free.append(r); del hold[idx]
            quota = (2 if t % 2 == 1 else 1) if cfg.kv_rate == 0 else (2 if t % 3 != 2 else 1)
            issued_needed = 1 + 2*t
            n = 0
            while nxt < len(seq) and (n < quota or seq[nxt][2] < t):
                kind, tt, E = seq[nxt]
                if E <= t:
                    acts.append(("dma", kind, tt)); nxt += 1; n += 1
                elif free:
                    r = free.pop(0); acts.append(("ld", kind, tt, r)); hold[nxt] = (r, t); nxt += 1; n += 1
                else:
                    break
            plan[t] = acts
            t += 1
            if not hold and seq[nxt][2] <= t: break
        return plan, t, nxt, seq
    VW16 = 64
    def setup_w16():
        for i in range(16):
            sig0 = 8*((i & 7) >> 1) + 4*(i >> 3) + 2*(i & 1)
            a(f"v_add_u32 v{VW16+i}, {sig0*8192 - (i & 3)*1024}, v{VW + (i & 3)}")
    w16_ready = [False]
    def tile_w(s):
        lds = WRING[s % 4]
        vm.room(16)
        if w16_ready[0]:
            a(f"s_mov_b32 s{S_SO}, {s*32*8192}")
            for m in range(4):
                a(f"s_mov_b32 m0, {lds + m*4096}")
                if m == 0: a("s_nop 0")
                for n in range(4):
                    i = 4*m + n
                    if n == 0 and m > 0: a("s_nop 0")
                    vm.issue(f"buffer_load_dwordx4 v{VW16+i}, s[{S_WQ}:{S_WQ+3}], s{S_SO} offen offset:{n*1024}{ntw} lds", ("W", s))
            return
        prev = 0
        for i in range(16):
            sig0 = 8*((i & 7) >> 1) + 4*(i >> 3) + 2*(i & 1)
            if i == 0 or not cfg.fast_start:
                a(f"s_mov_b32 m0, {lds + i*1024}")
                a(f"s_mov_b32 s{S_SO}, {(s*32 + sig0)*8192}")
            else:
                a("s_add_u32 m0, m0, s98")
                d = sig0 - prev
                if d == 2: a(f"s_add_u32 s{S_SO}, s{S_SO}, s99")
                elif d == 6: a(f"s_add_u32 s{S_SO}, s{S_SO}, s100")
                else: a(f"s_sub_u32 s{S_SO}, s{S_SO}, {-d*8192}")
            prev = sig0
            vm.issue(f"buffer_load_dwordx4 v{VW + (i & 3)}, s[{S_WQ}:{S_WQ+3}], s{S_SO} offen{ntw} lds", ("W", s))
    VX = 40
    def setup_xb():
        a(f"v_lshrrev_b32 v{T0}, 3, v{V_LANE}")
        a(f"v_and_b32 v{T1}, 7, v{V_LANE}")
        a(f"v_lshrrev_b32 v6, 1, v{T0}")
        a(f"v_xor_b32 v6, v6, v{T1}")
        a(f"v_mul_u32_u24 v7, 896, v{T0}")
        a(f"v_lshl_add_u32 v{VX}, v6, 4, v7")
        a(f"v_xor_b32 v6, 4, v6")
        a(f"v_lshl_add_u32 v{VX+1}, v6, 4, v7")
        a(f"v_add_u32 v{VX+1}, {8*896}, v{VX+1}")
    def tile_xb(part):
        vm.room(18)
        ntx = " nt" if cfg.nt_x else ""
        for w in range(3):
            for qt in range(3):
                for hb in range(2):
                    a(f"s_mov_b32 m0, {XBB + w*XBW + ((qt*2 + hb)*3 + part)*1024}")
                    a(f"s_mov_b32 s{S_SO}, {w*XW + qt*14336 + (4 + part)*128}")
                    vm.issue(f"buffer_load_dwordx4 v{VX+hb}, s[{S_X}:{S_X+3}], s{S_SO} offen{ntx} lds", ("XB", part))
    def tile_wo(j):
        lds = WOSLOT[j]
        vm.room(16)
        for i in range(16):
            so, vo = wo_addr(j, i)
            a(f"s_mov_b32 m0, {lds + i*1024}")
            a(f"s_mov_b32 s{S_SO}, {so}")
            vm.issue(f"buffer_load_dwordx4 v{vo}, s[{S_WO}:{S_WO+3}], s{S_SO} offen{ntwo} lds", ("WO", j))
    NREG0 = cfg.wo_reg0
    def wo_quad(j, i):
        k = (j - NREG0) * 16 + i
        return ar(4*k, 4) if k < 64 else v(64 + 4*(k - 64), 4)
    def wo_addr(j, i):
        if cfg.fine and not (cfg.merge0 and j < 4):
            return (32*((j % 2) * 4) + 2*i)*896 + (j // 2)*128, VO3 + (i & 3)
        if j < 12:
            p, T0_ = j // 4, (j % 4) * 2
            return (32*T0_ + 2*i)*896 + p*256, VO + (i & 3)
        T0_ = (j - 12) * 4
        return (32*T0_ + 2*i)*896 + 768, VO3 + (i & 3)
    def load_wo_reg(j, i0, n):
        vm.room(n)
        for i in range(i0, i0 + n):
            so, vo = wo_addr(j, i)
            a(f"s_mov_b32 s{S_SO}, {so}")
            vm.issue(f"buffer_load_dwordx4 {wo_quad(j, i)}, v{vo}, s[{S_WO}:{S_WO+3}], s{S_SO} offen{ntwo}", ("WOR", j))
    def put_wo(j):
        vm.need(("WOR", j))
        a(f"v_add_u32 v33, {WOSLOT[j]}, v32")
        for i in range(16):
            a(f"ds_write_b128 v33, {wo_quad(j, i)} offset:{i*1024}")
            if cfg.wr_pace and i % cfg.wr_pace == cfg.wr_pace - 1 and i < 15: a("s_waitcnt lgkmcnt(0)")
        wo_written.append(j)
    wo_written = []
    wr_queue = []
    def put_wo_some(n):
        done = 0
        while wr_queue and done < n:
            j, i = wr_queue.pop(0)
            if i == 0 or done == 0:
                if i == 0: vm.need(("WOR", j))
                a(f"v_add_u32 v33, {WOSLOT[j]}, v32")
            a(f"ds_write_b128 v33, {wo_quad(j, i)} offset:{i*1024}")
            if i == 15: wo_written.append(j)
            done += 1
            if wr_queue and wr_queue[0][1] == 0 and done < n:
                pass
    def need_wo(j):
        if j >= NREG0:
            if j in wo_written:
                a("s_waitcnt lgkmcnt(0)")
                while wo_written: wo_written.pop()
        else:
            vm.need(("WO", j))
    def tile_wo_any(j):
        if j >= NREG0:
            if cfg.wr_spread: wr_queue.extend((j, i) for i in range(16))
            else: put_wo(j)
        else: tile_wo(j)
    def warm_wo_late(i0, n):
        vm.room(n)
        a(f"s_mul_i32 s{S_SO}, s{S_B}, {32*896}")
        a(f"s_add_u32 s{S_SO}, s{S_SO}, 512")
        for i in range(i0, i0 + n):
            a(f"v_lshrrev_b32 v{T0}, 3, v{V_LANE}")
            a(f"v_add_u32 v{T0}, {8*i}, v{T0}")
            a(f"v_mul_u32_u24 v{T1}, 43691, v{T0}")
            a(f"v_lshrrev_b32 v{T1}, 17, v{T1}")
            a(f"v_mul_u32_u24 v6, 3, v{T1}")
            a(f"v_sub_u32 v6, v{T0}, v6")
            a(f"v_lshlrev_b32 v6, 7, v6")
            a(f"v_mul_u32_u24 v{T1}, 896, v{T1}")
            a(f"v_and_b32 v7, 7, v{V_LANE}")
            a(f"v_lshl_add_u32 v7, v7, 4, v6")
            a(f"v_add_u32 v7, v7, v{T1}")
            vm.issue(f"buffer_load_dwordx4 v[36:39], v7, s[{S_WO}:{S_WO+3}], s{S_SO} offen{ntwarm}", ("warml", i))
    def warm_wo(i0, n):
        vm.room(n)
        for i in range(i0, i0 + n):
            a(f"s_mul_i32 s{S_SO}, s{S_B}, 28672")
            a(f"s_add_u32 s{S_SO}, s{S_SO}, {i*1024}")
            vm.issue(f"buffer_load_dwordx4 v[36:39], v32, s[{S_WO}:{S_WO+3}], s{S_SO} offen{ntwarm}", ("warm", i))
    def code_pf(lo, hi, tagn):
        a(f"s_getpc_b64 s[{S_PC}:{S_PC+1}]")
        lab = f"L_pc_{tagn}"
        a.label(lab)
        a(f"s_add_u32 s{S_PC}, s{S_PC}, {lo}-{lab}")
        a(f"s_addc_u32 s{S_PC+1}, s{S_PC+1}, -1" if False else f"s_addc_u32 s{S_PC+1}, s{S_PC+1}, ({lo}-{lab})>>32")
        a(f"s_mov_b32 s{S_PC+2}, {hi}-{lo}")
        a(f"s_mov_b32 s{S_PC+3}, 0x20000")
        a(f"s_lshr_b32 s{S_SO2}, s2, 3")
        a(f"s_mul_i32 s{S_SO2}, s{S_SO2}, 3072")
        vm.room(3)
        for i in range(3):
            vm.issue(f"buffer_load_dwordx4 v[36:39], v32, s[{S_PC}:{S_PC+3}], s{S_SO2} offen offset:{i*1024}", ("pf", tagn, i))

    fused = cfg.fused and not cfg.dump
    if cfg.fast_start:
        a("s_mov_b32 s98, 1024"); a(f"s_mov_b32 s99, {2*8192}"); a(f"s_mov_b32 s100, {6*8192}")
        tile_w(0)
    if fused:
        emit_cnt_srd(a)
        a("s_mov_b32 s48, s82"); a("s_mov_b32 s49, s83")
        a("s_mov_b32 s50, 256"); a("s_mov_b32 s51, 0x20000")
        a(f"s_lshl_b32 s52, s{S_BR}, 3")
        a(f"s_add_u32 s52, s52, s{S_B}")
        a("s_lshl_b32 s52, s52, 4")
        a(f"s_cmp_lg_u32 s{S_H}, 0")
        a("s_cbranch_scc1 L_noinit")
        a(f"v_lshlrev_b32 v33, 12, v{V_LANE}")
        a("v_mov_b32 v34, 0")
        a("s_mov_b64 exec, 7")
        a("buffer_store_dword v34, v33, s[84:87], 0 offen sc1")
        a("s_mov_b64 exec, -1")
        a.label("L_noinit")
    if cfg.warm2:
        a(f"v_lshlrev_b32 v34, 4, v{LP}")
        a(f"v_lshl_add_u32 v34, v{LH}, 13, v34")
        a(f"s_mul_i32 s76, s{S_B}, {56*8192}")
        a(f"s_add_u32 s76, s76, {28*8192}")
        for i in range(14):
            vm.issue(f"buffer_load_dwordx4 v[36:39], v34, s[{S_WQ}:{S_WQ+3}], s76 offen{ntwarm}", ("warm2", i))
            if i < 13: a(f"s_add_u32 s76, s76, {2*8192}")
    if not cfg.fast_start: tile_w(0)
    xstamp(1)
    if cfg.code_pf and not cfg.fast_start: code_pf(KNAME, "L_code_end", "all")
    tile_w(1); xstamp(2)
    emit_setup_late(a, cfg, True)
    for i in range(8):
        a(f"v_add_u32 v{T0}, {2*i}, v{LH}")
        a(f"v_xor_b32 v{T0}, v{T0}, v{LP}")
        a(f"v_lshlrev_b32 v{T0}, 4, v{T0}")
        a(f"v_lshl_add_u32 v{VK+i}, v{LH}, 9, v{T0}")
    for i in range(4):
        chunkpat(i)
        a(f"v_lshlrev_b32 v{T1}, 4, v{T0}")
        a(f"v_lshl_add_u32 v{VV+i}, v{LH}, 9, v{T1}")
        a(f"v_lshrrev_b32 v6, 4, v{T0}")
        a(f"v_lshl_add_u32 v6, v6, 5, v{LH}")
        a(f"v_mul_u32_u24 v6, 896, v6")
        a(f"v_and_b32 v7, 15, v{T0}")
        a(f"v_lshl_add_u32 v{VO+i}, v7, 4, v6")
        a(f"v_lshrrev_b32 v6, 3, v{T0}")
        a(f"v_lshl_add_u32 v6, v6, 5, v{LH}")
        a(f"v_mul_u32_u24 v6, 896, v6")
        a(f"v_and_b32 v7, 7, v{T0}")
        a(f"v_lshl_add_u32 v{VO3+i}, v7, 4, v6")
    setup_xb()
    if cfg.w16:
        setup_w16(); w16_ready[0] = True
    if cfg.stagger:
        if cfg.cls_mode == "xe":
            a("s_getreg_b32 s53, hwreg(HW_REG_XCC_ID, 0, 4)")
            a("s_and_b32 s53, s53, 1")
            a("s_xor_b32 s53, s53, 1")
        elif cfg.cls_mode == "b":
            a(f"s_mul_i32 s53, s{S_B}, {cfg.ncls}")
            a("s_lshr_b32 s53, s53, 3")
        else:
            a(f"s_mov_b32 s53, s{S_BR}")
    tile_w(2)
    xstamp(3)
    def iter_extras(t):
            if cfg.warm_wo and cfg.warm_t0 <= t <= cfg.warm_t0 + 6:
                warm_wo((t - cfg.warm_t0) * 4, 4)
            if cfg.warm_late and cfg.warm_late <= t < cfg.warm_late + 3:
                warm_wo_late((t - cfg.warm_late) * 4, 4)
            if cfg.code_pf and t == 25: code_pf("L_tail_code", "L_tail_end", "tail")
            if fused and t == 10:
                vm.room(1)
                a("s_mov_b64 exec, 1")
                vm.issue(f"buffer_load_dword v35, off, s[48:51], s52 sc1", ("initflag",))
                a("s_mov_b64 exec, -1")
            if fused and t == 14:
                vm.need(("initflag",))
                a("v_readfirstlane_b32 s90, v35")
                a("s_nop 3")
                a("s_cmp_ge_u32 s90, 1")
                a("s_cbranch_scc1 L_init_ok")
                a("s_mov_b64 exec, 1")
                a("s_mov_b32 s89, 0")
                a.label("L_init_poll")
                a("buffer_load_dword v35, off, s[48:51], s52 sc1")
                a("s_waitcnt vmcnt(0)")
                a("v_readfirstlane_b32 s90, v35")
                a("s_add_u32 s89, s89, 1")
                a("s_cmp_ge_u32 s90, 1")
                a("s_cbranch_scc1 L_init_done")
                a("s_cmp_ge_u32 s89, 0x40000")
                a("s_cbranch_scc1 L_init_done")
                a("s_sleep 8")
                a("s_branch L_init_poll")
                a.label("L_init_done")
                a("s_mov_b64 exec, -1")
                a.label("L_init_ok")
            nreg = 14 - NREG0
            k = t - cfg.wo_reg_t0
            if 0 <= k < 2 * nreg:
                load_wo_reg(NREG0 + k // 2, 8 * (k & 1), 8)
    kv_after_pb = KVSCHED[cfg.kvsched]
    early = None
    if cfg.fast_start:
        a("s_branch L_loader2")
        early = a.L; a.L = []
        a.label("L_loader2")
    kplan, k_tend, k_next, k_seq = (kv_plan(cfg.kvreg) if cfg.kvreg else ({}, 0, 0, []))
    if cfg.kvreg: print("kv plan:", kplan, "ends at", k_tend, file=sys.stderr)
    def run_plan(key):
        for act in kplan.get(key, []):
            if act[0] == "ld": ld_kv_reg(act[1], act[2], act[3])
            elif act[0] == "put": put_kv(act[1], act[2])
            else: tile_kv(act[1], act[2])
    pend_stamp = [None]
    def flush_stamp():
        if pend_stamp[0] is not None:
            a("s_waitcnt lgkmcnt(0)")
            a(f"v_writelane_b32 v56, s62, {pend_stamp[0]}")
            a(f"v_writelane_b32 v59, s60, {pend_stamp[0]}")
            pend_stamp[0] = None
    for name, idx in barrier_list(cfg):
        flush_stamp()
        if name == "PB":
            if idx == 0: vm.need(("W", 0)); vm.need(("W", 1))
            elif idx + 1 <= 13: vm.need(("W", idx + 1))
            if idx == cfg.xb_read and not cfg.xb_self: vm.need(("XB", 2))
        elif name == "B":
            t = idx
            if t == -1:
                vm.need(("K", 0)); vm.need(("K", 1))
            elif t >= cfg.t_jit:
                if t + 1 <= 31: vm.need(("K", t + 1))
            else:
                if t + 2 <= 31: need_kv("K", t + 2)
                need_kv("V", t)
            if t == 31 and t < cfg.t_jit:
                need_wo(0); need_wo(1)
        elif name == "BB" or name == "MB":
            vm.need(("V", idx))
            if idx == 31:
                need_wo(0); need_wo(1)
        elif name == "MA":
            vm.need(("K", idx + 2))
        else:
            j = idx
            need_wo(min(j + 1, 13))
            if j == ntb(cfg) - 1:
                assert not wr_queue
                for jj in range(14): need_wo(jj)
        a("s_barrier")
        if cfg.stamps and cfg.lstamps and name not in ("BB", "MA"):
            stamp_idx[0] += 1
            a("s_memrealtime s[62:63]")
            a("s_memtime s[60:61]")
            pend_stamp[0] = stamp_idx[0]
        if name == "PB" and idx == 0 and fused:
            a(f"s_cmp_lg_u32 s{S_H}, 0")
            a("s_cbranch_scc1 L_noinit2")
            a("v_mov_b32 v34, 1")
            a("s_mov_b64 exec, 1")
            a("buffer_atomic_add v34, off, s[48:51], s52")
            a("s_mov_b64 exec, -1")
            a.label("L_noinit2")
        if name == "PB":
            if idx + 3 <= 13: tile_w(idx + 3)
            if not cfg.xb_self:
                for part in XBSCHED[cfg.xbsched].get(idx, []): tile_xb(part)
            for k, t in kv_after_pb.get(idx, []): tile_kv(k, t)
            if cfg.kvreg and idx >= 10: run_plan(f"PB{idx}")
        elif name == "B":
            t = idx
            if t >= cfg.t_jit:
                if t > cfg.t_jit and t + 3 <= 31: tile_kv("K", t + 3)
            elif cfg.kvreg and t == -1:
                run_plan("Bm1")
            elif cfg.kvreg and 0 <= t < k_tend:
                run_plan(t)
            elif t >= 0:
                if t + 4 <= 31: tile_kv("K", t + 4)
                if t >= 1 and t + 3 <= 31: tile_kv("V", t + 3)
            iter_extras(t)
            if t == 26: tile_wo_any(0)
            if t == 27: tile_wo_any(1)
            if t == 28: tile_wo_any(2)
            if t == 29: tile_wo_any(3); tile_wo_any(4)
            if t == 30: tile_wo_any(5); tile_wo_any(6)
            if t == 31: tile_wo_any(7); tile_wo_any(8)
        elif name == "BB":
            t = idx
            if t > cfg.t_jit and t + 2 <= 31: tile_kv("V", t + 2)
        elif name == "MB":
            t = idx
            if t > cfg.t_mid and t + 2 <= 31: tile_kv("V", t + 2)
            iter_extras(t)
            if t == 29: tile_wo_any(4)
            if t == 30: tile_wo_any(6)
            if t == 31: tile_wo_any(7); tile_wo_any(8)
        elif name == "MA":
            t = idx
            if t + 4 <= 31: tile_kv("K", t + 4)
            if t + 1 == 26: tile_wo_any(0)
            if t + 1 == 27: tile_wo_any(1)
            if t + 1 == 28: tile_wo_any(2)
            if t + 1 == 29: tile_wo_any(3)
            if t + 1 == 30: tile_wo_any(5)
        else:
            j = idx
            if j == 0: tile_wo_any(9)
            if 1 <= j <= 4: tile_wo_any(9 + j)
            if cfg.wr_spread and j < ntb(cfg) - 1:
                put_wo_some(cfg.wr_spread if j < ntb(cfg) - 2 else 999)
            if j == 5 and cfg.fused and not cfg.dump:
                a(f"v_lshlrev_b32 v33, 2, v{V_LANE}")
                a(f"v_add_u32 v33, {VS[0]}, v33")
                a("v_mov_b32 v34, 0")
                a("ds_write_b32 v33, v34")
                a("s_waitcnt lgkmcnt(0)")
    flush_stamp()
    a("s_waitcnt vmcnt(0)")
    if cfg.fused and not cfg.dump:
        emit_red_setup(a, cfg)
        for p in range(2):
            for e in range(2):
                a(f"s_add_u32 s90, s{S_H}, {16*e}")
                a(f"s_lshr_b32 s{96+2*e}, s90, 2")
                a("s_and_b32 s90, s90, 3")
                a(f"s_add_u32 s{97+2*e}, s90, {4*p}")
            emit_reduce_pre(a, cfg, 2)
            emit_poll(a, cfg, p)
            xstamp(4 + p)
            emit_reduce_post(a, cfg, 2)
        emit_final_pre(a, cfg)
        emit_poll(a, cfg, 2)
        xstamp(6)
        if not cfg.decouple: a("s_barrier")
        emit_final_post(a, cfg)
        xstamp(7)
    if cfg.stamps:
        if not (cfg.fused and not cfg.dump): a("s_barrier")
        a("s_memrealtime s[62:63]")
        a("s_waitcnt lgkmcnt(0)")
        a(f"v_writelane_b32 v56, s62, 62")
        a("s_getreg_b32 s62, hwreg(HW_REG_XCC_ID)")
        a(f"v_writelane_b32 v56, s62, 63")
        a("s_mov_b32 s76, s72"); a("s_mov_b32 s77, s73")
        a("s_mov_b32 s78, 0x10000000"); a("s_mov_b32 s79, 0x20000")
        a("s_lshl_b32 s74, s2, 8")
        a("s_add_u32 s74, s74, 0x4000000")
        a(f"v_lshlrev_b32 v57, 2, v{V_LANE}")
        a("buffer_store_dword v56, v57, s[76:79], s74 offen")
        a("s_add_u32 s74, s74, 0x100000")
        a("buffer_store_dword v58, v57, s[76:79], s74 offen")
        a("s_add_u32 s74, s74, 0x100000")
        a("buffer_store_dword v59, v57, s[76:79], s74 offen")
        a("s_waitcnt vmcnt(0)")
        if cfg.dbg_stamps >= 0:
            a(f"s_cmp_lg_u32 s2, {cfg.dbg_stamps}")
            a("s_cbranch_scc1 L_nodbg")
            sel = [(56, 1), (56, 16), (56, 24), (56, 32), (56, 40), (56, 47), (56, 48), (56, 56), (58, 4), (58, 5), (58, 6), (58, 7)]
            slots = [1, 2, 3, 5, 6, 7, 9, 10, 11, 13, 14, 15]
            a("v_readlane_b32 s91, v56, 0")
            for (r, ln), sl in zip(sel, slots):
                a(f"v_readlane_b32 s90, v{r}, {ln}")
                a("s_nop 3")
                a("s_sub_u32 s90, s90, s91")
                a("v_mov_b32 v60, s90")
                a(f"s_mov_b32 s89, {4*sl}")
                a("s_mov_b64 exec, 1")
                a("buffer_store_dword v60, off, s[48:51], s89")
                a("s_mov_b64 exec, -1")
                a("s_nop 1")
            a("s_waitcnt vmcnt(0)")
            a.label("L_nodbg")
    a("s_branch L_end")
    return early, a.L

def emit_cnt_srd(a):
    a(f"s_lshl_b32 s84, s{S_BR}, 3")
    a(f"s_add_u32 s84, s84, s{S_B}")
    a("s_lshl_b32 s84, s84, 14")
    a(f"s_add_u32 s84, s84, {CNT_OFF}")
    a("s_add_u32 s84, s72, s84")
    a("s_addc_u32 s85, s73, 0")
    a("s_mov_b32 s86, 16384"); a("s_mov_b32 s87, 0x20000")

def emit_red_setup(a, cfg):
    lane = V_LANE
    emit_cnt_srd(a)
    a(f"s_lshl_b32 s88, s{S_BR}, 3")
    a(f"s_add_u32 s88, s88, s{S_B}")
    a(f"s_mul_i32 s45, s88, {16*129024}")
    a("s_add_u32 s44, s72, s45")
    a("s_addc_u32 s45, s73, 0")
    a(f"s_mov_b32 s46, {16*129024}")
    a("s_mov_b32 s47, 0x20000")
    a("s_mov_b32 s92, s80"); a("s_mov_b32 s93, s81")
    a(f"s_mov_b32 s94, {8*144*896*2}"); a("s_mov_b32 s95, 0x20000")
    a(f"s_mul_i32 s64, s88, 9216")
    a(f"s_add_u32 s64, s64, {SCL_OFF}")
    a("s_add_u32 s64, s72, s64")
    a("s_addc_u32 s65, s73, 0")
    a("s_mov_b32 s66, 9216"); a("s_mov_b32 s67, 0x20000")

_lab = [0]
def emit_poll(a, cfg, p):
    _lab[0] += 1; n = _lab[0]
    a("s_mov_b64 exec, 1")
    a("s_mov_b32 s89, 0")
    a.label(f"L_poll{n}")
    a(f"s_mov_b32 s88, {4096*p}")
    a(f"buffer_load_dword v9, off, s[84:87], s88{cfg.poll_flags}")
    a("s_waitcnt vmcnt(0)")
    a("v_readfirstlane_b32 s90, v9")
    a("s_add_u32 s89, s89, 1")
    a("s_cmp_ge_u32 s90, 16")
    a(f"s_cbranch_scc1 L_poll_done{n}")
    a("s_cmp_ge_u32 s89, 0x40000")
    a(f"s_cbranch_scc1 L_poll_done{n}")
    a(f"s_sleep {cfg.poll_sleep}")
    a(f"s_branch L_poll{n}")
    a.label(f"L_poll_done{n}")
    a("s_mov_b64 exec, -1")

def emit_poll_pipe(a, cfg, p, depth=3):
    _lab[0] += 1; n = _lab[0]
    a("s_mov_b64 exec, 1")
    a("s_mov_b32 s89, 0")
    a(f"s_mov_b32 s88, {4096*p}")
    for d in range(depth):
        a(f"buffer_load_dword v{60+d}, off, s[84:87], s88{cfg.poll_flags}")
        if d < depth - 1: a(f"s_sleep {cfg.pipe_sleep}")
    a.label(f"L_pp{n}")
    for d in range(depth):
        a(f"s_waitcnt vmcnt({depth-1})")
        a(f"v_readfirstlane_b32 s90, v{60+d}")
        a("s_nop 0")
        a("s_cmp_ge_u32 s90, 16")
        a(f"s_cbranch_scc1 L_pp_done{n}")
        a(f"buffer_load_dword v{60+d}, off, s[84:87], s88{cfg.poll_flags}")
        a(f"s_sleep {cfg.pipe_sleep}")
    a("s_add_u32 s89, s89, 1")
    a("s_cmp_lt_u32 s89, 0x10000")
    a(f"s_cbranch_scc1 L_pp{n}")
    a.label(f"L_pp_done{n}")
    a("s_mov_b64 exec, -1")

def emit_poll_wg(a, cfg, p):
    _lab[0] += 1; n = _lab[0]
    a(f"s_cmp_lg_u32 s{S_WID}, 0")
    a(f"s_cbranch_scc1 L_pw_lds{n}")
    emit_poll_pipe(a, cfg, p)
    a("s_mov_b64 exec, 1")
    a("ds_write_b32 v4, v5 offset:12")
    a("s_mov_b64 exec, -1")
    a(f"s_branch L_pw_done{n}")
    a.label(f"L_pw_lds{n}")
    a("s_mov_b32 s89, 0")
    a.label(f"L_pw_spin{n}")
    a("ds_read_b32 v9, v4 offset:12")
    a("s_waitcnt lgkmcnt(0)")
    a("v_readfirstlane_b32 s90, v9")
    a("s_add_u32 s89, s89, 1")
    a("s_cmp_ge_u32 s90, 1")
    a(f"s_cbranch_scc1 L_pw_done{n}")
    a("s_cmp_ge_u32 s89, 0x400000")
    a(f"s_cbranch_scc0 L_pw_spin{n}")
    a.label(f"L_pw_done{n}")

def emit_reduce_pre(a, cfg, nf):
    lane = V_LANE
    a(f"v_lshlrev_b32 v2, 4, v{lane}")
    a(f"v_and_b32 v3, 15, v{lane}")
    a("v_mul_u32_u24 v3, 1792, v3")
    a(f"v_lshrrev_b32 v9, 4, v{lane}")
    a("v_lshl_add_u32 v3, v9, 3, v3")
    for e in range(nf):
        a(f"s_lshl_b32 s{76+e}, s{96+2*e}, 10")
        a(f"s_mul_i32 s90, s{96+2*e}, 14")
        a(f"s_add_u32 s90, s90, s{97+2*e}")
        a("s_lshl_b32 s91, s90, 10")
        a(f"s_mul_i32 s100, s{S_B}, 144")
        a(f"s_lshl_b32 s90, s{96+2*e}, 4")
        a("s_add_u32 s100, s100, s90")
        a("s_mul_i32 s100, s100, 1792")
        a(f"s_lshl_b32 s90, s{97+2*e}, 6")
        a("s_add_u32 s100, s100, s90")
        a(f"s_mul_i32 s90, s{S_BR}, 896")
        a(f"s_add_u32 s{96+2*e}, s100, s90")
        a(f"s_mov_b32 s{97+2*e}, s91")

def emit_reduce_post(a, cfg, nf):
    lane = V_LANE
    sc = cfg.scale_red
    nper = 20 if sc else 16
    if sc:
        a(f"v_and_b32 v5, 15, v{lane}")
        a("v_lshlrev_b32 v5, 6, v5")
    for e in range(nf):
        a(f"s_mov_b32 s91, s{97+2*e}")
        for hh in range(16):
            r = 64 + 64*e + 4*hh
            a(f"buffer_load_dwordx4 v[{r}:{r+3}], v2, s[44:47], s91 offen{cfg.rd_flags}")
            if hh < 15: a(f"s_add_u32 s91, s91, 129024")
            if sc and hh == 0:
                for j in range(4):
                    r2 = 192 + 16*e + 4*j
                    a(f"buffer_load_dwordx4 v[{r2}:{r2+3}], v5, s[64:67], s{76+e} offen offset:{16*j}{cfg.rd_flags}")
    for e in range(nf):
        acc = 32 + 8*e
        for hh in range(16):
            idx = nper*e + (0 if hh == 0 else hh + (nper - 16))
            if hh == 0 and sc: idx = nper*e + 4
            a(f"s_waitcnt vmcnt({nper*nf - 1 - idx})")
            for r in range(4):
                src = 64 + 64*e + 4*hh + r
                if hh == 0 and not sc:
                    a(f"v_lshlrev_b32 v{acc+2*r}, 16, v{src}")
                    a(f"v_and_b32 v{acc+2*r+1}, 0xffff0000, v{src}")
                else:
                    t = 8 + 2*r
                    a(f"v_lshlrev_b32 v{t}, 16, v{src}")
                    a(f"v_and_b32 v{t+1}, 0xffff0000, v{src}")
            for r in range(4):
                t = 8 + 2*r
                A, T_ = f"v[{acc+2*r}:{acc+2*r+1}]", f"v[{t}:{t+1}]"
                if sc:
                    q = 192 + 16*e + hh
                    q0 = q & ~1
                    sel = q & 1
                    S_ = f"v[{q0}:{q0+1}]"
                    if hh == 0:
                        a(f"v_pk_mul_f32 {A}, {T_}, {S_} op_sel:[0,{sel}] op_sel_hi:[1,{sel}]")
                    else:
                        a(f"v_pk_fma_f32 {A}, {T_}, {S_}, {A} op_sel:[0,{sel},0] op_sel_hi:[1,{sel},1]")
                elif hh > 0:
                    a(f"v_pk_add_f32 {A}, {A}, {T_}")
        for r in range(4):
            a(f"v_cvt_pk_bf16_f32 v{48+4*e+r}, v{acc+2*r}, v{acc+2*r+1}")
    for e in range(nf):
        a(f"buffer_store_dwordx2 v[{48+4*e}:{49+4*e}], v3, s[92:95], s{96+2*e} offen{cfg.out_flags}")
        a(f"buffer_store_dwordx2 v[{50+4*e}:{51+4*e}], v3, s[92:95], s{96+2*e} offen offset:32{cfg.out_flags}")

def emit_reduce_frags(a, cfg, nf):
    emit_reduce_pre(a, cfg, nf)
    emit_reduce_post(a, cfg, nf)

def emit_final_pre(a, cfg):
    a(f"s_lshl_b32 s90, s{S_WID}, 4")
    a(f"s_add_u32 s78, s90, s{S_H}")
    a("s_lshr_b32 s96, s78, 2")
    a("s_and_b32 s97, s78, 3")
    a("s_add_u32 s97, s97, 8")
    a("s_sub_u32 s91, s78, 36")
    a("s_lshr_b32 s98, s91, 1")
    a("s_and_b32 s99, s91, 1")
    a("s_add_u32 s99, s99, 12")
    a("s_cmp_ge_u32 s78, 36")
    a("s_cselect_b32 s96, s98, s96")
    a("s_cselect_b32 s97, s99, s97")
    a("s_sub_u32 s91, s78, 54")
    a("s_cmp_ge_u32 s78, 54")
    a("s_cselect_b32 s96, 8, s96")
    a("s_cselect_b32 s97, s91, s97")
    emit_reduce_pre(a, cfg, 1)

def emit_final_post(a, cfg):
    _lab[0] += 1; n = _lab[0]
    a("s_cmp_ge_u32 s78, 62")
    a(f"s_cbranch_scc1 L_fin_done{n}")
    emit_reduce_post(a, cfg, 1)
    a.label(f"L_fin_done{n}")

def emit_final_reduce(a, cfg):
    emit_final_pre(a, cfg)
    emit_final_post(a, cfg)

def mfma(a, D, A, B, C=None):
    a(f"v_mfma_f32_16x16x32_bf16 {D}, {A}, {B}, {C if C is not None else D}")

def xlane_max(a, r, tmp):
    a(f"v_mov_b32 v{tmp}, v{r}")
    a("s_nop 1")
    a(f"v_permlane32_swap_b32 v{r}, v{tmp}")
    a("s_nop 1")
    a(f"v_max_f32 v{r}, v{r}, v{tmp}")
    a(f"v_mov_b32 v{tmp}, v{r}")
    a("s_nop 1")
    a(f"v_permlane16_swap_b32 v{r}, v{tmp}")
    a("s_nop 1")
    a(f"v_max_f32 v{r}, v{r}, v{tmp}")

def emit_compute(a, cfg):
    rare_blocks = []
    emit_compute_main(a, cfg, rare_blocks)
    emit_rare(a, cfg, rare_blocks)

def emit_compute_main(a, cfg, rare_blocks):
    lg = Lgkm(a)
    lane = V_LANE
    T0, T1 = V_T0, V_T1
    NKP, NVP = cfg.nkp, cfg.nvp
    a(f"v_lshrrev_b32 v{T0}, 3, v{lane}")
    a(f"v_and_b32 v{T1}, 7, v{lane}")
    a(f"v_lshrrev_b32 v22, 1, v{T0}")
    a(f"v_xor_b32 v22, v22, v{T1}")
    a(f"v_mul_u32_u24 v23, 896, v{T0}")
    a(f"v_lshl_add_u32 v24, v22, 4, v23")
    a(f"v_xor_b32 v22, 4, v22")
    a(f"v_lshl_add_u32 v25, v22, 4, v23")
    a(f"v_add_u32 v25, {8*896}, v25")
    if cfg.fast_start: emit_ptrs(a, cfg)
    a(f"s_mul_i32 s74, s{S_WID}, {XAW}")
    a(f"s_mul_i32 s75, s{S_WID}, {XW}")
    vm = Vm(a)
    ntx = " nt" if cfg.nt_x else ""
    if cfg.warm2:
        ntwarm = " nt" if cfg.nt_warm else ""
        a(f"v_lshlrev_b32 v26, 4, v{lane}")
        a(f"s_cmp_eq_u32 s{S_WID}, 2")
        a("s_cbranch_scc1 L_w2q")
        a(f"s_and_b32 s76, s{S_H}, 3")
        a("s_mul_i32 s76, s76, 32256")
        a(f"s_lshl_b32 s77, s{S_WID}, 14")
        a("s_add_u32 s76, s76, s77")
        for i in range(16):
            a(f"buffer_load_dwordx4 {ar(A_DUMMY,4)}, v26, s[{S_X}:{S_X+3}], s76 offen{ntwarm}")
            if i < 15: a("s_add_u32 s76, s76, 1024")
        a("s_branch L_w2done")
        a.label("L_w2q")
        a(f"v_lshrrev_b32 v27, 5, v{lane}")
        a(f"v_and_b32 v26, 31, v{lane}")
        a("v_lshlrev_b32 v26, 4, v26")
        a("v_lshl_add_u32 v26, v27, 13, v26")
        a(f"s_mul_i32 s76, s{S_B}, {56*8192}")
        for i in range(14):
            a(f"buffer_load_dwordx4 {ar(A_DUMMY,4)}, v26, s[{S_WQ}:{S_WQ+3}], s76 offen{ntwarm}")
            if i < 13: a(f"s_add_u32 s76, s76, {2*8192}")
        a.label("L_w2done")
    for sp in range(4):
        for qt in range(3):
            for hb in range(2):
                a(f"s_add_u32 m0, s74, {((qt*2 + hb)*4 + sp)*1024}")
                a(f"s_add_u32 s{S_SO}, s75, {qt*14336 + sp*128}")
                vm.issue(f"buffer_load_dwordx4 v{24+hb}, s[{S_X}:{S_X+3}], s{S_SO} offen{ntx} lds", ("x",))
    if cfg.xb_self:
        a("v_mov_b32 v32, v24"); a("v_mov_b32 v33, v25")
        a(f"s_mul_i32 s42, s{S_WID}, {XBW}")
        a(f"s_add_u32 s42, s42, {XBB}")
        a(f"s_mul_i32 s43, s{S_WID}, {XW}")
    if cfg.warm_wq and not cfg.warm2:
        ntwarm = " nt" if cfg.nt_warm else ""
        a(f"v_lshrrev_b32 v{T0}, 5, v{lane}")
        a(f"v_and_b32 v{T1}, 31, v{lane}")
        a(f"v_lshlrev_b32 v{T1}, 4, v{T1}")
        a(f"v_lshl_add_u32 v26, v{T0}, 13, v{T1}")
        a(f"s_mul_i32 s75, s{S_B}, 48")
        a(f"s_lshl_b32 s76, s{S_WID}, 4")
        a("s_add_u32 s75, s75, s76")
        a("s_add_u32 s75, s75, 64")
        a("s_lshl_b32 s75, s75, 13")
        for i in range(8):
            vm.issue(f"buffer_load_dwordx4 {ar(A_DUMMY,4)}, v26, s[{S_WQ}:{S_WQ+3}], s75 offen{ntwarm}", ("warm", i))
            if i < 7: a(f"s_add_u32 s75, s75, {2*8192}")
    emit_setup_late(a, cfg, False)
    g_, i15 = 22, 23
    a(f"v_lshrrev_b32 v{g_}, 4, v{lane}")
    a(f"v_and_b32 v{i15}, 15, v{lane}")
    a(f"v_lshrrev_b32 v26, 1, v{i15}")
    a(f"v_lshrrev_b32 v27, 3, v{i15}")
    a(f"v_and_b32 v28, 7, v{i15}")
    a(f"v_lshlrev_b32 v28, 7, v28")
    a(f"s_mul_i32 s74, s{S_WID}, {XAW}")
    a(f"s_mul_i32 s75, s{S_WID}, {XBW}")
    a(f"s_add_u32 s75, s75, {XBB}")
    a(f"v_lshl_add_u32 v29, v27, 12, v28")
    a(f"v_add_u32 v29, s74, v29")
    a(f"v_mul_u32_u24 v27, 3072, v27")
    a(f"v_add_u32 v27, v27, v28")
    a(f"v_add_u32 v27, s75, v27")
    for e in range(2):
        a(f"v_add_u32 v{T0}, {4*e}, v{g_}")
        a(f"v_xor_b32 v{T0}, v{T0}, v26")
        a(f"v_lshl_add_u32 v{V_XB+e}, v{T0}, 4, v29")
        a(f"v_lshl_add_u32 v{V_XB2+e}, v{T0}, 4, v27")
    for j in range(4):
        a(f"v_add_u32 v{T0}, {4*j}, v{g_}")
        a(f"v_xor_b32 v{T0}, v{T0}, v{i15}")
        a(f"v_lshlrev_b32 v{T0}, 4, v{T0}")
        a(f"v_lshl_add_u32 v{V_KB+j}, v{i15}, 9, v{T0}")
    rp, cc, row, rho = 26, 27, 28, 29
    a(f"v_lshrrev_b32 v{rp}, 2, v{i15}")
    a(f"v_and_b32 v{cc}, 3, v{i15}")
    a(f"v_lshl_add_u32 v{row}, v{g_}, 2, v{rp}")
    a(f"v_and_b32 v{rho}, 7, v{row}")
    a(f"v_lshrrev_b32 v{T0}, 1, v{cc}")
    a(f"v_lshlrev_b32 v{T0}, 4, v{T0}")
    a(f"v_and_b32 v{T1}, 1, v{cc}")
    a(f"v_lshl_add_u32 v{T0}, v{T1}, 3, v{T0}")
    a(f"v_lshl_add_u32 v30, v{row}, 9, v{T0}")
    for j in range(8):
        a(f"v_xor_b32 v{T0}, {j}, v{rho}")
        a(f"v_lshl_add_u32 v{T0}, v{T0}, 5, v30")
        a(f"v_add_u32 v{V_VB+j}, {VREG}, v{T0}")
    a(f"v_lshlrev_b32 v31, 1, v{rho}")
    a(f"v_lshlrev_b32 v30, 9, v{row}")
    for j in range(4):
        a(f"v_add_u32 v{T0}, {4*j}, v{cc}")
        a(f"v_xor_b32 v{T0}, v{T0}, v31")
        a(f"v_lshl_add_u32 v{T0}, v{T0}, 4, v30")
        a(f"v_add_u32 v{V_WB+j}, {WBASE}, v{T0}")
    a(f"s_mov_b32 s{S_THR}, {hex(f2u(cfg.thr))}")

    def wread(s, u, half):
        T = u >> 1
        off = (WRING[s % 4] - WBASE) + (T >> 2) * 256 + (u & 1) * 8 + half * 8192
        r = A_W + 4 * u + 2 * half
        lg.issue(f"ds_read_b64_tr_b16 {ar(r,2)}, v{V_WB + (T & 3)} offset:{off}", ("w", s, u, half))
    def xread(s, qt):
        sp = s >> 1
        if sp < 4:
            off, base = qt * 8192 + sp * 1024, V_XB
        else:
            off, base = qt * 6144 + (sp - 4) * 1024, V_XB2
        lg.issue(f"ds_read_b128 {ar(Xreg(s, qt), 4)}, v{base + (s & 1)} offset:{off}", ("x", s, qt))
    NWP = 6
    n_after = 8 if (cfg.warm_wq and not cfg.warm2) else 0
    a(f"s_waitcnt vmcnt({n_after})")
    for qt in range(3): xread(0, qt)
    for s in range(14):
        a("s_barrier")
        pre_done = s >= 1
        if not pre_done:
            if s == 0: lg.need(("x", 0, 2))
            for u in range(NWP - (2 if s == 0 else 0)):
                wread(s, u, 0); wread(s, u, 1)
        nfirst = NWP - (2 if s == 0 else 0)
        mf = []
        for u in range(16):
            for qt in range(3):
                pre = None
                if qt == 0 and u % 2 == 0:
                    pre = (lambda s=s, u=u: lg.need(("w", s, u + 1, 1)))
                D = v(QAcc(u, qt), 4)
                mf.append((pre, (lambda D=D, s=s, u=u, qt=qt: mfma(a, D, ar(A_W + 4*u, 4), ar(Xreg(s, qt), 4), "0" if s == 0 else None))))
        st = []
        for u in range(nfirst, 16):
            for h in range(2):
                st.append(It((lambda s=s, u=u, h=h: wread(s, u, h)), 4, max(0, 3*(u - NWP) + h), max(0, 3*(u - 3))))
        nxt_pre = (s + 1 <= 13)
        if nxt_pre:
            for u in range(NWP):
                for h in range(2):
                    st.append(It((lambda s=s, u=u, h=h: wread(s + 1, u, h)), 4, 3*(16 + u - NWP) + h))
        streams = [st]
        if s == 0:
            xs = [It((lambda ss=ss, qt=qt: xread(ss, qt)), 4, ((ss - 1)*3 + qt) * 2) for ss in range(1, 8) for qt in range(3)]
            streams.append(xs)
        if cfg.xb_self and s in (1, 2):
            allx = [(part, qt, hb) for part in range(3) for qt in range(3) for hb in range(2)]
            xi = []
            for n_, (part, qt, hb) in enumerate(allx[9*(s-1): 9*s]):
                def f(part=part, qt=qt, hb=hb):
                    a(f"s_add_u32 m0, s42, {((qt*2 + hb)*3 + part)*1024}")
                    a(f"s_add_u32 s{S_SO}, s43, {qt*14336 + (4 + part)*128}")
                    vm.issue(f"buffer_load_dwordx4 v{32+hb}, s[{S_X}:{S_X+3}], s{S_SO} offen{ntx} lds", ("xb",))
                xi.append(It(f, 8, 2 + 5*n_, 4 + 5*n_))
            streams.append(xi)
        if cfg.xb_self and s == cfg.xb_read:
            a("s_waitcnt vmcnt(0)")
        if s in (cfg.xb_read, cfg.xb_read + 1) and cfg.xb_one == 0:
            lo = 8 + 3*(s - cfg.xb_read)
            xs = [It((lambda ss=ss, qt=qt: xread(ss, qt)), 4, ((ss - lo)*3 + qt) * 5) for ss in range(lo, lo + 3) for qt in range(3)]
            streams.append(xs)
        if s == cfg.xb_read and cfg.xb_one:
            xs = [It((lambda ss=ss, qt=qt: xread(ss, qt)), 4, ((ss - 8)*3 + qt) * 2) for ss in range(8, 14) for qt in range(3)]
            streams.append(xs)
        sched(a, mf, streams)
        if s == 0:
            lg.need(("x", 7, 2))
        if s == cfg.xb_read + (0 if cfg.xb_one else 1):
            lg.need(("x", 13, 2))
    lg.drain()
    if cfg.dump == "qacc":
        emit_dump_v(a, cfg, V_QACC, 192); return
    a(f"s_mov_b32 s74, {hex(f2u(QSCALE))}")
    a(f"s_mov_b32 s75, {hex(f2u(QSCALE))}")
    a(f"v_mov_b32 v{T0}, 0x3f803f80")
    for r in range(4):
        a(f"v_accvgpr_write_b32 a{A_ONES+r}, v{T0}")
    a("s_nop 3")
    for i in range(23, -1, -1):
        src = V_QACC + 8 * i
        dst = V_Q + 4 * i
        for r in range(4):
            a(f"v_pk_mul_f32 {v(src + 2*r, 2)}, {v(src + 2*r, 2)}, s[74:75]")
        for r in range(3, -1, -1):
            a(f"v_cvt_pk_bf16_f32 v{dst + r}, v{src + 2*r}, v{src + 2*r + 1}")
    if cfg.dump == "q":
        emit_dump_v(a, cfg, V_Q, 96); return

    def kread(t, f):
        aa, T = f >> 3, f & 7
        off = KS[t % 4] + aa * 8192 + (T >> 2) * 256
        lg.issue(f"ds_read_b128 {v(V_KBUF + 4*(f % 8), 4)}, v{V_KB + (T & 3)} offset:{off}", ("k", t, f))
    def vread(t, u, half):
        off = (VS[t % 4] - VREG) + (u >> 3) * 256 + half * 8192
        r = V_VBUF + 4 * (u % 8) + 2 * half
        lg.issue(f"ds_read_b64_tr_b16 {v(r,2)}, v{V_VB + (u & 7)} offset:{off}", ("v", t, u, half))

    def exp_items(t):
        par = t & 1
        st = []
        for qt in range(3):
            for aa in range(2):
                s = Sreg(par, qt, aa)
                for hh in range(2):
                    e0, e1 = s + 2*hh, s + 2*hh + 1
                    pr = V_P + qt*4 + aa*2 + hh
                    st.append(It((lambda e=e0: a(f"v_exp_f32 v{e}, v{e}")), 8))
                    st.append(It((lambda e=e1: a(f"v_exp_f32 v{e}, v{e}")), 8))
                    st.append(("cvt", It((lambda pr=pr, e0=e0, e1=e1: a(f"v_cvt_pk_bf16_f32 v{pr}, v{e0}, v{e1}")), 4)))
        exps = [x for x in st if not isinstance(x, tuple)]
        cvts = [x[1] for x in st if isinstance(x, tuple)]
        return exps, cvts

    def phaseA(t):
        jit = t >= cfg.t_jit
        doqk = t + 1 <= 31
        doexp = t >= 0
        if doexp: exps, cvts = exp_items(t)
        if not doqk:
            vq = [(u, h) for u in range(NVP) for h in range(2)] if not jit else []
            if t >= cfg.t_mid:
                for grp in range(12):
                    exps[2*grp].fn(); exps[2*grp+1].fn()
                    if grp > 0: cvts[grp-1].fn()
                a("s_barrier")
                for (u, h) in vq: vread(t, u, h)
                cvts[11].fn()
                return
            for grp in range(12):
                exps[2*grp].fn(); exps[2*grp+1].fn()
                if grp > 0: cvts[grp-1].fn()
                if vq: vread(t, *vq.pop(0))
            a("s_nop 0")
            cvts[11].fn()
            while vq: vread(t, *vq.pop(0))
            return
        par1 = (t + 1) & 1
        mf = []
        for m in range(48):
            aa, T, qt = m // 24, (m % 24) // 3, m % 3
            f = aa * 8 + T
            pre = None
            if qt == 0 and f % 2 == 0:
                pre = (lambda f=f: lg.need(("k", t + 1, f + 1)))
            C = None
            if T == 0: C = "0" if t == -1 else v(V_CM + 4*qt, 4)
            D = v(Sreg(par1, qt, aa), 4)
            mf.append((pre, (lambda D=D, f=f, qt=qt, T=T, C=C: mfma(a, D, v(V_KBUF + 4*(f % 8), 4), v(Qreg(qt, T), 4), C))))
        ks = [It((lambda f=f: kread(t + 1, f)), 4, max(0, 3*(f - 8) + 2), 3*f - 8, ds=True) for f in range(NKP, 16)]
        streams = [ks]
        if jit:
            for f in range(NKP): kread(t + 1, f)
            npre = cfg.jit_pre
            for g in range(npre):
                exps[2*g].fn(); exps[2*g+1].fn()
                if g > 0: cvts[g-1].fn()
            exps = exps[2*npre:]
            rest = 12 - npre
            step = 46 // rest
            for i, e in enumerate(exps):
                e.earliest = step*(i // 2) + (i & 1); e.deadline = e.earliest
            cv = cvts[npre-1:]
            cv[0].earliest = 0; cv[0].deadline = 1
            for i, c in enumerate(cv[1:]):
                c.earliest = step*i + 2; c.deadline = min(step*i + 5, 47)
            streams = [exps, cv, ks]
        elif doexp:
            for i, e in enumerate(exps):
                e.earliest = 4*(i // 2) + (i & 1); e.deadline = e.earliest
            for i, c in enumerate(cvts):
                c.earliest = 4*i + 2; c.deadline = min(4*i + 5, 47)
            vs = [It((lambda u=u, h=h: vread(t, u, h)), 4, cfg.mid_a + 1 if t >= cfg.t_mid else 26, ds=True) for u in range(NVP) for h in range(2)]
            streams = [exps, cvts, ks, vs]
            if t >= cfg.t_mid:
                streams = [[It((lambda: a("s_barrier")), 4, cfg.mid_a, cfg.mid_a)]] + streams
        sched(a, mf, streams)

    def phaseB(t, extra=None):
        jit = t >= cfg.t_jit
        first = (t == 0)
        docheck = t + 1 <= 31
        par1 = (t + 1) & 1
        Z = "0" if first else None
        mf = []
        for qt in range(3):
            mf.append((None, (lambda qt=qt: mfma(a, ar(A_L + 4*qt, 4), ar(A_ONES, 4), v(V_P + 4*qt, 4), Z))))
        for m in range(48):
            u, qt = m // 3, m % 3
            pre = None
            if qt == 0 and u % 2 == 0:
                pre = (lambda u=u: lg.need(("v", t, u + 1, 1)))
            mf.append((pre, (lambda u=u, qt=qt: mfma(a, ar(Oreg(u, qt), 4), v(V_VBUF + 4*(u % 8), 4), v(V_P + 4*qt, 4), Z))))
        if jit:
            a("s_barrier")
            for u in range(NVP):
                vread(t, u, 0); vread(t, u, 1)
        vs = []
        for u in range(NVP, 16):
            e = max(0 if u < 8 else 3 + 3*(u - 8) + 2, 3 + 3*(u - NVP - 1))
            for h in range(2):
                vs.append(It((lambda u=u, h=h: vread(t, u, h)), 4, e + h, 3 + 3*u - 9 + h, ds=True))
        streams = [vs]
        if docheck:
            s0 = V_S[par1]; mx = V_TMP
            chk = [f"v_max3_f32 v{mx}, v{s0}, v{s0+1}, v{s0+2}"]
            for k in range(10):
                chk.append(f"v_max3_f32 v{mx}, v{mx}, v{s0+3+2*k}, v{s0+4+2*k}")
            chk.append(f"v_max_f32 v{mx}, v{mx}, v{s0+23}")
            chk.append(f"v_cmp_lt_f32 vcc, s{S_THR}, v{mx}")
            streams.append([It((lambda c=c: a(c)), 4, (6 + 2*i) if not jit else (i // 2 if i < 6 else 2*i)) for i, c in enumerate(chk)])
        if t + 2 <= 31 and not (t + 1 >= cfg.t_jit):
            if t >= cfg.t_mid:
                streams.insert(0, [It((lambda: a("s_barrier")), 4, cfg.mid_b, cfg.mid_b)])
                streams.append([It((lambda f=f: kread(t + 2, f)), 4, cfg.mid_b + 1 + 2*f, ds=True) for f in range(NKP)])
            else:
                streams.append([It((lambda f=f: kread(t + 2, f)), 4, 30 + 2*f, ds=True) for f in range(NKP)])
        if extra: streams += extra
        a("s_nop 1")
        sched(a, mf, streams)

    def check_branch(t, tag):
        a(f"s_cbranch_vccnz L_rare_{tag}")
        a.label(f"L_back_{tag}")
        rare_blocks.append((tag, (t + 1) & 1))

    a("s_barrier")
    for f in range(NKP): kread(0, f)
    phaseA(-1)
    for f in range(NKP): kread(1, f)
    a("s_nop 1")
    for qt in range(3):
        s0 = Sreg(0, qt, 0)
        mx = V_TMP + qt
        a(f"v_max3_f32 v{mx}, v{s0}, v{s0+1}, v{s0+2}")
        a(f"v_max3_f32 v{mx}, v{mx}, v{s0+3}, v{s0+4}")
        a(f"v_max3_f32 v{mx}, v{mx}, v{s0+5}, v{s0+6}")
        a(f"v_max_f32 v{mx}, v{mx}, v{s0+7}")
    for step in range(2):
        for qt in range(3): a(f"v_mov_b32 v{V_TMP+4+qt}, v{V_TMP+qt}")
        a("s_nop 0")
        for qt in range(3):
            a(f"v_permlane{32 if step == 0 else 16}_swap_b32 v{V_TMP+qt}, v{V_TMP+4+qt}")
        a("s_nop 0")
        for qt in range(3): a(f"v_max_f32 v{V_TMP+qt}, v{V_TMP+qt}, v{V_TMP+4+qt}")
    for qt in range(3):
        s0 = Sreg(0, qt, 0); mx = V_TMP + qt
        for r in range(8):
            a(f"v_sub_f32 v{s0+r}, v{s0+r}, v{mx}")
        for r in range(4):
            a(f"v_sub_f32 v{V_CM + 4*qt + r}, 0, v{mx}")
    if cfg.dump == "s0":
        lg.drain()
        emit_dump_v(a, cfg, V_S[0], 24, extra=(V_CM, 12)); return

    def iteration(t, tag):
        if t < cfg.t_mid: a("s_barrier")
        phaseA(t)
        phaseB(t)
        if t + 1 <= 31:
            check_branch(t, tag)

    def loop(t_first, ntrips, name):
        q0 = list(lg.q)
        a(f"s_mov_b32 s{S_CNT}, {ntrips}")
        a.label(name)
        for t in range(t_first, t_first + 4):
            iteration(t, f"{name}_{t}")
        q1 = [(x[0], x[1] - 4) + x[2:] for x in lg.q]
        assert q0 == q1, (q0, q1)
        a(f"s_sub_u32 s{S_CNT}, s{S_CNT}, 1")
        a(f"s_cmp_lg_u32 s{S_CNT}, 0")
        a(f"s_cbranch_scc1 {name}")
        d = 4 * ntrips
        lg.q = [(x[0], x[1] + d) + x[2:] for x in q0]
        for x in lg.q: lg.issued.add(x)
        for f in range(16): lg.issued.add(("k", t_first + d + 1, f))
    iteration(0, "p0")
    tj = cfg.t_jit
    if cfg.t_mid <= 28:
        tm = cfg.t_mid
        assert (tm - 1) % 4 == 0
        if tm > 1:
            save = cfg.t_mid; cfg.t_mid = 99
            loop(1, (tm - 1) // 4, "L_loop")
            cfg.t_mid = save
        loop(tm, (29 - tm) // 4, "L_loopm")
    elif tj > 28:
        loop(1, 7, "L_loop")
    else:
        assert (tj - 1) % 4 == 0 and (29 - tj) % 4 == 0
        if tj > 1:
            save = cfg.t_jit; cfg.t_jit = 99
            loop(1, (tj - 1) // 4, "L_loop")
            cfg.t_jit = save
        lg.drain()
        loop(tj, (29 - tj) // 4, "L_loopj")
    a.label("L_tail_code")
    for t in range(29, 31):
        iteration(t, f"e{t}")

    def oconv_items(T, earliest=0):
        its = []
        for qt in range(3):
            tb = V_CT + 8 * qt
            for h in range(2):
                o = Oreg(2*T + h, qt)
                for r in range(4):
                    its.append(It((lambda d=tb + 4*h + r, s=o + r: a(f"v_accvgpr_read_b32 v{d}, a{s}")), 4, earliest))
            q = Qreg(qt, T)
            for r in range(4):
                its.append(It((lambda d=q + r, s=tb + 2*r: a(f"v_cvt_pk_bf16_f32 v{d}, v{s}, v{s+1}")), 4, earliest))
        return its

    def wo_base(j, jj):
        addr = WOSLOT[j]
        if addr < VREG: return VBK + jj, addr
        if addr < VREG + 65536: return V_VB + jj, addr - VREG
        return VBE + jj, addr - VREG - 65536
    steps = []
    fine = cfg.fine
    NP = 7 if fine else 4
    merge0 = fine and cfg.merge0
    if fine:
        if merge0:
            for T in range(8):
                steps.append((0, T, T//2, T & 1, 8))
        for p in range(2 if merge0 else 0, 7):
            for T in range(8):
                steps.append((p, T, 2*p + T//4, T & 3, 4))
    else:
        for p in range(3):
            for T in range(8):
                steps.append((p, T, 4*p + T//2, T & 1, 8))
        for T in range(8):
            steps.append((3, T, 12 + T//4, T & 3, 4))
    frs = []
    for si, (p, T, j, tau, nu) in enumerate(steps):
        for u in range(nu):
            frs.append((si, p, T, j, tau, nu, u))
    FBN = 12
    def oread(k, half):
        si, p, T, j, tau, nu, u = frs[k]
        tp = (8*tau + u) if nu == 8 else (4*tau + u)
        br, off = wo_base(j, tp & 7)
        off += (tp >> 3) * 256 + half * 8192
        r = A_WO + 4 * (k % FBN) + 2 * half
        lg.issue(f"ds_read_b64_tr_b16 {ar(r,2)}, v{br} offset:{off}", ("o", k, half))
    def accreg(p, u, qt):
        i = (u * 3 + qt) * 4
        if merge0:
            if p == 0: return ("v", V_P0 + i)
            if p == 2: return ("a", i)
            return ("v", V_P0 + 48 * ((p + 1) & 1) + i)
        if fine: return ("v", V_P0 + 48 * (p & 1) + i)
        if p == 0 or p == 2: return ("v", V_P0 + i)
        return ("a", i)
    def accstr(p, u, qt):
        f, r = accreg(p, u, qt)
        return v(r, 4) if f == "v" else ar(r, 4)
    slotc = [0]
    slog = []
    scale_red = cfg.fused and cfg.scale_red
    def conv_items(p, packed=False):
        its = []
        nu = 8 if ((p < 3 and not fine) or (merge0 and p == 0)) else 4
        for up in range(nu // 2):
            for qt in range(3):
                rl = V_RL + qt * 0
                rlp = f"v[{V_RL + 2*qt}:{V_RL + 2*qt + 1}]"
                f, _ = accreg(p, 0, 0)
                tb = V_CT + 12 * (slotc[0] % 2); slotc[0] += 1
                out = tb + 8
                if f == "a":
                    for h in range(2):
                        o = accreg(p, 2*up + h, qt)[1]
                        for r in range(4):
                            its.append(It((lambda d=tb + 4*h + r, s=o + r: a(f"v_accvgpr_read_b32 v{d}, a{s}"))))
                    srcs = [tb + 2*r for r in range(4)]
                else:
                    o0 = accreg(p, 2*up, qt)[1]; o1 = accreg(p, 2*up + 1, qt)[1]
                    srcs = [o0, o0 + 2, o1, o1 + 2]
                for sreg in (srcs if not scale_red else []):
                    if packed:
                        its.append(It((lambda s=sreg, rlp=rlp: a(f"v_pk_mul_f32 {v(s,2)}, {v(s,2)}, {rlp}"))))
                    else:
                        for k in range(2):
                            its.append(It((lambda s=sreg + k, qt=qt: a(f"v_mul_f32 v{s}, v{V_RL + 2*qt}, v{s}"))))
                for r, sreg in enumerate(srcs):
                    its.append(It((lambda d=out + r, s=sreg: a(f"v_cvt_pk_bf16_f32 v{d}, v{s}, v{s+1}"))))
                upair = (2*p if fine else 4*p) + up
                its.append(It((lambda c=(qt*14 + upair)*1024: a(f"s_add_u32 s{S_SO}, s{S_WOFF}, {c}")), 4))
                its.append(It((lambda o=out, p=p: (a(f"buffer_store_dwordx4 {v(o,4)}, v{V_ST}, s[{S_WS}:{S_WS+3}], s{S_SO} offen{cfg.st_flags}"), slog.append(p))), 4))
        return its

    def cstamp(i):
        if cfg.stamps and cfg.cstamps and (cfg.cst_all or i in (0, 7, 8, 9, 10, 11)):
            lg.drain()
            a("s_memrealtime s[62:63]")
            a("s_waitcnt lgkmcnt(0)")
            a(f"v_writelane_b32 v7, s62, {i}")
    svm = Vm(a)
    def signal_a(p, nafter):
        a(f"s_waitcnt vmcnt({nafter})")
        a("s_mov_b64 exec, 1")
        lg.issue(f"ds_add_rtn_u32 v6, v4, v5 offset:{4*p}", ("sig", p))
        a("s_mov_b64 exec, -1")
    def signal_b(p):
        lg.need(("sig", p))
        a("v_readfirstlane_b32 s90, v6")
        a("s_nop 3")
        a("s_cmp_eq_u32 s90, 2")
        a(f"s_cbranch_scc0 L_nosig{p}")
        a("s_mov_b64 exec, 1")
        a(f"s_mov_b32 s88, {4096*p}")
        a(f"buffer_atomic_add v5, off, s[84:87], s88")
        a("s_mov_b64 exec, -1")
        a.label(f"L_nosig{p}")
    if 31 < cfg.t_mid: a("s_barrier")
    phaseA(31)
    setup_its = []
    for j in range(8):
        setup_its.append(It((lambda j=j: a(f"v_subrev_u32 v{VBK+j}, {VREG}, v{V_VB+j}")), 4, 0))
        setup_its.append(It((lambda j=j: a(f"v_add_u32 v{VBE+j}, {VREG}, v{V_VB+j}")), 4, 0))
    NOP_ = cfg.nop
    ex1 = oconv_items(0, earliest=3 + 3*1 + 2 + 8)
    ex2 = oconv_items(1, earliest=3 + 3*3 + 2 + 8)
    pre_o = [It((lambda k=k, h=h: oread(k, h)), 4, 38, ds=True) for k in range(NOP_) for h in range(2)]
    phaseB(31, extra=[setup_its, ex1 + ex2, pre_o])
    if cfg.dump == "o":
        a("s_nop 7")
        emit_dump_acc(a, cfg, 204); return
    a(f"v_lshlrev_b32 v{V_ST}, 4, v{lane}")
    a(f"s_mul_i32 s{S_WOFF}, s{S_WID}, {3*14*1024}")
    for qt in range(3):
        a(f"v_accvgpr_read_b32 v{V_RL+2*qt}, a{A_L + 4*qt}")
    for qt in range(3):
        a(f"v_rcp_f32 v{V_RL+2*qt}, v{V_RL+2*qt}")
    a("s_nop 0")
    for qt in range(3):
        a(f"v_mov_b32 v{V_RL+2*qt+1}, v{V_RL+2*qt}")
    if cfg.fused:
        a(f"v_mov_b32 v4, {VS[0]}")
        a("v_mov_b32 v5, 1")
        emit_red_setup(a, cfg)
    if scale_red:
        a(f"v_and_b32 v6, 15, v{lane}")
        a("v_lshlrev_b32 v6, 6, v6")
        a(f"s_mul_i32 s90, s{S_WID}, 3072")
        a(f"s_lshl_b32 s91, s{S_H}, 2")
        a("s_add_u32 s90, s90, s91")
        a("s_mov_b64 exec, 0xffff")
        for qt in range(3):
            a(f"buffer_store_dword v{V_RL+2*qt}, v6, s[64:67], s90 offen offset:{1024*qt}{cfg.st_flags}")
            slog.append(-1)
        a("s_mov_b64 exec, -1")

    cur_slot = -1
    nxt = NOP_
    pend = []
    store_log = slog
    stores_since = {q: (lambda q=q: sum(1 for i, x in enumerate(store_log) if i > max(k for k, y in enumerate(store_log) if y == q))) for q in range(NP)}
    sg0 = (cfg.sig_p0, cfg.sig_f0, 0 if merge0 else 1) if fine else (2, cfg.sig_t, 0)
    sg1 = (cfg.sig_p1, cfg.sig_f1, 3) if fine else (3, cfg.sig_t1, 1)
    for si, (p, T, j, tau, nu) in enumerate(steps):
        if j != cur_slot:
            if j < ntb(cfg): a("s_barrier")
            cur_slot = j
            if cfg.slot_stamps: a(f"s_memtime s[{SLST[j]}:{SLST[j]+1}]")
        if T == 0 and (p == 0 or not fine): cstamp(p)
        if cfg.fused and p == sg0[0] and T == sg0[1]:
            signal_a(0, stores_since[sg0[2]]())
            cstamp(4)
        if cfg.fused and p == sg0[0] and T == sg0[1] + 1:
            signal_b(0)
        if cfg.fused and p == sg1[0] and T == sg1[1]:
            cstamp(5)
            signal_a(1, stores_since[sg1[2]]())
            cstamp(6)
        if cfg.fused and p == sg1[0] and T == sg1[1] + 1:
            signal_b(1)
        k0 = sum(s[4] for s in steps[:si])
        if T == 0 and p > 0:
            assert not pend
            pend = conv_items(0 if (merge0 and p == 2) else p - 1)
            for it in pend[:1]: pass
        mf = []
        for u in range(nu):
            k = k0 + u
            for qt in range(3):
                pre = None
                if qt == 0 and u % 2 == 0:
                    pre = (lambda k=k: lg.need(("o", k + 1, 1)))
                mf.append((pre, (lambda u=u, qt=qt, k=k: mfma(a, accstr(p, u, qt), ar(A_WO + 4*(k % FBN), 4), v(Qreg(qt, T), 4), "0" if T == 0 else None))))
        rs = []
        lim = k0 + nu + NOP_
        while nxt < len(frs) and nxt < lim and frs[nxt][3] <= j + 1:
            kk = nxt
            use = 3 * (kk - k0)
            e = max(0, 3 * (kk - FBN - k0) + 2)
            for h in range(2):
                rs.append(It((lambda kk=kk, h=h: oread(kk, h)), 4, max(e, use - 3*NOP_ - 3) + h, max(0, use - 10 + h), ds=True))
            nxt += 1
        streams = [rs]
        if p == 0 and T + 2 <= 7:
            streams.append(oconv_items(T + 2))
        if pend:
            if T == 0:
                for it in pend: it.earliest = 4
            streams.append(pend)
            last_of_pass = (T == 7)
            sched(a, mf, [rs] + [pend], flush=False)
            while rs: rs.pop(0).fn()
            if last_of_pass:
                while pend: pend.pop(0).fn()
            for it in pend: it.earliest = 0
        else:
            sched(a, mf, streams)
    if cfg.slot_stamps: a(f"s_memtime s[{SLST[14]}:{SLST[14]+1}]")
    cstamp(7)
    a("s_nop 7")
    for it in conv_items(NP - 1, packed=True): it.fn()
    cstamp(8)
    a.label("L_tail_end")
    print("lds throttles:", lg.throttled, file=sys.stderr)
    if cfg.fused:
        emit_final_pre(a, cfg)
        signal_a(2, 0); cstamp(9); signal_b(2)
        if cfg.decouple and cfg.poll_wg: emit_poll_wg(a, cfg, 2)
        elif cfg.decouple: emit_poll(a, cfg, 2)
        else: a("s_barrier")
        cstamp(10)
        emit_final_post(a, cfg)
        if cfg.stamps and cfg.cstamps:
            a("s_waitcnt vmcnt(0)")
            cstamp(11)
            if cfg.slot_stamps:
                a("s_waitcnt lgkmcnt(0)")
                for j in range(15):
                    a(f"v_writelane_b32 v7, s{SLST[j]}, {16 + j}")
            a("s_mov_b32 s76, s72"); a("s_mov_b32 s77, s73")
            a("s_mov_b32 s78, 0x10000000"); a("s_mov_b32 s79, 0x20000")
            a("s_mul_i32 s74, s2, 3")
            a(f"s_add_u32 s74, s74, s{S_WID}")
            a("s_lshl_b32 s74, s74, 8")
            a("s_add_u32 s74, s74, 0x4400000")
            a(f"v_lshlrev_b32 v6, 2, v{V_LANE}")
            a("buffer_store_dword v7, v6, s[76:79], s74 offen")
    elif cfg.stamps:
        a("s_waitcnt vmcnt(0)")
        a("s_barrier")
    a("s_branch L_end")

def emit_rare(a, cfg, rare_blocks):
    for tag, par in rare_blocks:
        a.label(f"L_rare_{tag}")
        a("s_nop 7")
        for qt in range(3):
            s0 = Sreg(par, qt, 0)
            mx = V_TMP + qt
            a(f"v_max3_f32 v{mx}, v{s0}, v{s0+1}, v{s0+2}")
            a(f"v_max3_f32 v{mx}, v{mx}, v{s0+3}, v{s0+4}")
            a(f"v_max3_f32 v{mx}, v{mx}, v{s0+5}, v{s0+6}")
            a(f"v_max_f32 v{mx}, v{mx}, v{s0+7}")
            xlane_max(a, mx, V_TMP + 4)
            a(f"v_max_f32 v{mx}, 0, v{mx}")
            for r in range(8):
                a(f"v_sub_f32 v{s0+r}, v{s0+r}, v{mx}")
            for r in range(4):
                a(f"v_sub_f32 v{V_CM + 4*qt + r}, v{V_CM + 4*qt + r}, v{mx}")
            a(f"v_sub_f32 v{mx}, 0, v{mx}")
            a(f"v_exp_f32 v{mx}, v{mx}")
        a(f"s_getpc_b64 s[{S_TGT}:{S_TGT+1}]")
        a.label(f"L_pc_{tag}")
        a(f"s_add_u32 s{S_TGT}, s{S_TGT}, L_rescale-L_pc_{tag}")
        a(f"s_addc_u32 s{S_TGT+1}, s{S_TGT+1}, 0")
        a(f"s_swappc_b64 s[{S_RET}:{S_RET+1}], s[{S_TGT}:{S_TGT+1}]")
        a(f"s_branch L_back_{tag}")
    if not rare_blocks: return
    a.label("L_rescale")
    a("s_nop 7")
    for qt in range(3):
        regs = [Oreg(u, qt) + r for u in range(16) for r in range(4)] + [A_L + 4*qt + r for r in range(4)]
        for i in range(0, len(regs), 4):
            for k in range(4):
                a(f"v_accvgpr_read_b32 v{V_TMP+4+k}, a{regs[i+k]}")
            for k in range(4):
                a(f"v_mul_f32 v{V_TMP+4+k}, v{V_TMP+qt}, v{V_TMP+4+k}")
            for k in range(4):
                a(f"v_accvgpr_write_b32 a{regs[i+k]}, v{V_TMP+4+k}")
    a("s_nop 1")
    a(f"s_setpc_b64 s[{S_RET}:{S_RET+1}]")

def emit_dump_common(a, cfg, regs, isacc):
    a("s_mov_b32 s76, s72"); a("s_mov_b32 s77, s73")
    a("s_mov_b32 s78, 0x10000000"); a("s_mov_b32 s79, 0x20000")
    a(f"s_mul_i32 s74, s2, 3")
    a(f"s_add_u32 s74, s74, s{S_WID}")
    a("s_lshl_b32 s74, s74, 16")
    a(f"v_lshlrev_b32 v{V_T0}, 2, v{V_LANE}")
    for i, r in enumerate(regs):
        if isacc:
            a(f"v_accvgpr_read_b32 v{V_T1}, a{r}")
            src = V_T1
        else:
            src = r
        a(f"buffer_store_dword v{src}, v{V_T0}, s[76:79], s74 offen")
        a("s_add_u32 s74, s74, 256")
        if isacc: a("s_waitcnt vmcnt(0)")
    a("s_waitcnt vmcnt(0)")
    n = {"qacc": 33 + 14, "q": 33 + 14, "s0": 32 + 14, "o": 14}[cfg.dump]
    for _ in range(n): a("s_barrier")
    if cfg.stamps: a("s_barrier")
    a.label("L_tail_end")
    if cfg.dump != "o": a.label("L_tail_code")
    a("s_branch L_end")
def emit_dump_acc(a, cfg, n):
    a("s_nop 7")
    emit_dump_common(a, cfg, list(range(n)), True)
def emit_dump_v(a, cfg, base, n, extra=None):
    regs = list(range(base, base + n))
    if extra: regs += list(range(extra[0], extra[0] + extra[1]))
    emit_dump_common(a, cfg, regs, False)

def emit_reduce(a, cfg):
    a.raw(f".globl {RNAME}")
    a.raw(".p2align 8")
    a.raw(f".type {RNAME},@function")
    a.label(RNAME)
    a("s_cmp_ge_u32 s2, 504")
    a("s_cbranch_scc1 LR_end")
    a("s_load_dwordx2 s[4:5], s[0:1], 96")
    a("s_load_dwordx2 s[8:9], s[0:1], 80")
    a("v_lshrrev_b32 v1, 6, v0")
    a("v_and_b32 v2, 63, v0")
    a("v_readfirstlane_b32 s3, v1")
    a("s_lshl_b32 s12, s2, 2")
    a("s_add_u32 s12, s12, s3")
    a(f"s_mul_hi_u32 s13, s12, {(2**32 + 125)//126}")
    a("s_mul_i32 s14, s13, 126")
    a("s_sub_u32 s14, s12, s14")
    a(f"s_mul_hi_u32 s15, s14, {(2**32 + 13)//14}")
    a("s_mul_i32 s16, s15, 14")
    a("s_sub_u32 s16, s14, s16")
    a("s_waitcnt lgkmcnt(0)")
    a(f"s_mul_i32 s17, s13, {16*129024}")
    a("s_lshl_b32 s18, s14, 10")
    a("s_add_u32 s17, s17, s18")
    a("s_add_u32 s4, s4, s17")
    a("s_addc_u32 s5, s5, 0")
    a(f"s_mov_b32 s6, {15*129024 + 1024}")
    a("s_mov_b32 s7, 0x20000")
    a("v_lshlrev_b32 v3, 4, v2")
    for h in range(16):
        a(f"s_mov_b32 s19, {h*129024}")
        a(f"buffer_load_dwordx4 v[{8+4*h}:{11+4*h}], v3, s[4:7], s19 offen{cfg.rd_flags}")
    a("s_and_b32 s20, s13, 7")
    a("s_lshr_b32 s21, s13, 3")
    a("s_mul_i32 s20, s20, 144")
    a("s_lshl_b32 s22, s15, 4")
    a("s_add_u32 s20, s20, s22")
    a("s_mul_i32 s20, s20, 1792")
    a("s_mul_i32 s21, s21, 896")
    a("s_lshl_b32 s22, s16, 6")
    a("s_add_u32 s20, s20, s21")
    a("s_add_u32 s20, s20, s22")
    a("v_and_b32 v4, 15, v2")
    a("v_mul_u32_u24 v4, 1792, v4")
    a("v_lshrrev_b32 v5, 4, v2")
    a("v_lshl_add_u32 v4, v5, 3, v4")
    a("s_mov_b32 s10, %d" % (8*144*896*2))
    a("s_mov_b32 s11, 0x20000")
    for h in range(16):
        a(f"s_waitcnt vmcnt({15-h})")
        for r in range(4):
            src = 8 + 4*h + r
            if h == 0:
                a(f"v_lshlrev_b32 v{72+2*r}, 16, v{src}")
                a(f"v_and_b32 v{73+2*r}, 0xffff0000, v{src}")
            else:
                a(f"v_lshlrev_b32 v80, 16, v{src}")
                a(f"v_and_b32 v81, 0xffff0000, v{src}")
                a(f"v_add_f32 v{72+2*r}, v{72+2*r}, v80")
                a(f"v_add_f32 v{73+2*r}, v{73+2*r}, v81")
    for r in range(4):
        a(f"v_cvt_pk_bf16_f32 v{84+r}, v{72+2*r}, v{73+2*r}")
    a("buffer_store_dwordx2 v[84:85], v4, s[8:11], s20 offen")
    a("buffer_store_dwordx2 v[86:87], v4, s[8:11], s20 offen offset:32")
    a.label("LR_end")
    a("s_endpgm")

def kd(a, name, vg, acc, sg=102):
    a.raw(f".amdhsa_kernel {name}")
    a.raw(f"  .amdhsa_next_free_vgpr {vg}")
    a.raw(f"  .amdhsa_next_free_sgpr {sg}")
    a.raw(f"  .amdhsa_accum_offset {acc}")
    a.raw("  .amdhsa_group_segment_fixed_size 0")
    a.raw("  .amdhsa_kernarg_size 104")
    a.raw("  .amdhsa_user_sgpr_count 2")
    a.raw("  .amdhsa_user_sgpr_kernarg_segment_ptr 1")
    a.raw("  .amdhsa_system_sgpr_workgroup_id_x 1")
    a.raw(".end_amdhsa_kernel")

HEADER = """; Fused MHA block (two branches): Q-proj + flash attention + partial out-proj per (branch,batch,head) workgroup,
"""
def generate(cfg):
    a = Asm()
    a.raw(HEADER.rstrip())
    if cfg.fused and not cfg.aslist:
        a.raw(f"; @launch grid=(256,1,1) block=(256,1,1) lds=163840")
    else:
        a.raw(f"; @launch kernel={KNAME} grid=(256,1,1) block=(256,1,1) lds=163840")
    if not cfg.dump and not cfg.fused:
        a.raw(f"; @launch kernel={RNAME} grid=(504,1,1) block=(256,1,1) lds=0")
    a.raw('.amdgcn_target "amdgcn-amd-amdhsa--gfx950"')
    a.raw(".text")
    a.raw(f".globl {KNAME}")
    a.raw(".p2align 8")
    a.raw(f".type {KNAME},@function")
    a.label(KNAME)
    emit_setup(a, cfg)
    rare = []
    if cfg.fast_start:
        head = a.L; a.L = []
        early, late = emit_loader(a, cfg)
        a.L = []
        a.label("L_compute")
        emit_compute_main(a, cfg, rare)
        a.L = head + early + a.L + late
    else:
        emit_compute_main(a, cfg, rare)
        emit_loader(a, cfg)
    a.label("L_code_end")
    emit_rare(a, cfg, rare)
    a.label("L_end")
    a("s_endpgm")
    if not cfg.dump and not cfg.fused:
        emit_reduce(a, cfg)
    a.raw('.section .rodata,"a"')
    a.raw(".p2align 6")
    kd(a, KNAME, 512, 256)
    if not cfg.dump and not cfg.fused:
        a.raw(".p2align 6")
        kd(a, RNAME, 96, 96, 32)
    return a.text()

if __name__ == "__main__":
    cfg = Cfg()
    out = sys.argv[1]
    if "one_ds=0" in sys.argv: ONE_DS[0] = False; sys.argv.remove("one_ds=0")
    for kv in sys.argv[2:]:
        k, val = kv.split("=", 1)
        cur = getattr(cfg, k)
        if isinstance(cur, bool): val = val in ("1", "True", "true")
        elif isinstance(cur, float): val = float(val)
        elif isinstance(cur, int): val = int(val)
        elif val == "None": val = None
        setattr(cfg, k, val)
    open(out, "w").write(generate(cfg))
```
